```python
import torch

def _softmax(x, axis=-1):
    return torch.softmax(x, dim=axis)
def _gelu(x):
    return torch.nn.functional.gelu(x, approximate="tanh")
def _silu(x):
    return torch.nn.functional.silu(x)
def _sigmoid(x):
    return torch.sigmoid(x)
def _layernorm(x, axis=-1, eps=1e-5):
    m = x.mean(dim=axis, keepdim=True)
    v = x.var(dim=axis, keepdim=True, unbiased=False)
    return (x - m) / torch.sqrt(v + eps)
def _scatter_add(tgt, idx, src, axis=0):
    return tgt.clone().index_add_(axis, idx, src)
def _segment_sum(src, seg, n):
    out = torch.zeros((n,) + src.shape[1:], dtype=src.dtype)
    return out.index_add_(0, seg, src)
def _pad(x, pw):
    flat = tuple(v for pair in reversed(pw) for v in pair)
    return torch.nn.functional.pad(x, flat)

kernel_name = 'parallel_sum__spectral_gfnet__glu_gated_reglu__prompt'

def setup_inputs():

    _w = (lambda a: (lambda t: t.to(torch.bfloat16) if t.is_floating_point() else t)(torch.as_tensor(a)))
    def _A_setup():
        B, S, D = 1, 2048, 512
        Df = D // 2 + 1
        return {
            "x": _w((lambda *s: torch.randn(*s, dtype=torch.bfloat16) * 0.05)(B, S, D)),
            "w_r": _w((lambda *s: torch.randn(*s, dtype=torch.bfloat16) * 0.4)(S, Df) * 0.02),
            "w_i": _w((lambda *s: torch.randn(*s, dtype=torch.bfloat16) * 0.4)(S, Df) * 0.02),
        }
    _A_in = _A_setup()

    def _B_setup():
        B, S, D, F = 1, 2048, 512, 1792
        return {
            "x": _w((lambda *s: torch.randn(*s, dtype=torch.bfloat16) * 0.05)(B, S, D)),
            "W_gate": _w((lambda *s: torch.randn(*s, dtype=torch.bfloat16) * 0.2)(D, F) * (2.0 / D) ** 0.5),
            "W_up": _w((lambda *s: torch.randn(*s, dtype=torch.bfloat16) * 0.2)(D, F) * (2.0 / D) ** 0.5),
            "W_down": _w((lambda *s: torch.randn(*s, dtype=torch.bfloat16) * 0.2)(F, D) * (1.0 / F) ** 0.5),
        }
    _B_in = _B_setup()

    return {
        "A_x": _A_in["x"],
        "A_w_r": _A_in["w_r"],
        "A_w_i": _A_in["w_i"],
        "B_x": _B_in["x"],
        "B_W_gate": _B_in["W_gate"],
        "B_W_up": _B_in["W_up"],
        "B_W_down": _B_in["W_down"],
    }

def reference(A_x, A_w_r, A_w_i, B_x, B_W_gate, B_W_up, B_W_down):
    def _A_ref(x, w_r, w_i):
        B, S, D = x.shape
        X = (lambda x, axes=(-2,-1): torch.fft.rfft2(x.float(), dim=axes))(x, axes=(-2, -1))
        W = w_r + 1j * w_i
        X = X * W
        y = (lambda x, s, axes=(-2,-1): torch.fft.irfft2(x, s=s, dim=axes).to(torch.bfloat16))(X, (S, D), axes=(-2, -1))
        return y

    def _B_ref(x, W_gate, W_up, W_down):
        gate = torch.einsum("bsd,df->bsf", x, W_gate)
        up = torch.einsum("bsd,df->bsf", x, W_up)
        gate = gate * (lambda x, dt: x.to(dt))(gate > 0, gate.dtype)
        h = gate * up
        return torch.einsum("bsf,fd->bsd", h, W_down)

    x = A_x
    xn = _layernorm(x, axis=-1)
    return x + _A_ref(xn, A_w_r, A_w_i) + _B_ref(xn, B_W_gate, B_W_up, B_W_down)
```

```python
import numpy as np, math

NAME = "parallel_sum__spectral_gfnet__glu_gated_reglu__prompt"

WS_H = 0
WS_U = 8 << 20
WS_W = 10 << 20
WS_Z = 13 << 20
WS_SIZE = 16 << 20

KA_X, KA_WR, KA_WI, KA_BX, KA_WG, KA_WU, KA_WD, KA_OUT, KA_DBG, KA_WS = [8 * i for i in range(10)]


def bf16_bits(a):
    a = np.asarray(a, dtype=np.float32)
    u = a.view(np.uint32).astype(np.uint64)
    return ((u + 0x7FFF + ((u >> 16) & 1)) >> 16).astype(np.uint32)


def exact_cos_sin(j, n):
    j = np.asarray(j) % n
    c = np.cos(2 * np.pi * j / n)
    s = np.sin(2 * np.pi * j / n)
    c = np.where((4 * j) % n == 0, np.round(c), c)
    s = np.where((4 * j) % n == 0, np.round(s), s)
    return c + 0.0, s + 0.0


class Asm:
    def __init__(self):
        self.lines = []
        self.vm = []
        self.lg = []

    def __call__(self, s):
        for l in s.strip("\n").split("\n"):
            self.lines.append("  " + l.strip())

    def label(self, l):
        self.lines.append(l + ":")

    def comment(self, c):
        self.lines.append("  ; " + c)

    def vmem(self, s, tag):
        self(s)
        self.vm.append(tag)

    def lds(self, s, tag):
        self(s)
        self.lg.append(tag)

    @staticmethod
    def _count(q, tags):
        idx = [i for i, t in enumerate(q) if t in tags]
        if not idx:
            return None
        return len(q) - 1 - idx[-1]

    def wait(self, vm=None, lg=None):
        parts = []
        if vm is not None:
            tags = vm if isinstance(vm, (list, tuple, set)) else [vm]
            n = 0 if vm == "all" else self._count(self.vm, tags)
            if n is not None:
                assert n <= 63
                parts.append(f"vmcnt({n})")
                self.vm = self.vm[len(self.vm) - n:] if n else []
        if lg is not None:
            tags = lg if isinstance(lg, (list, tuple, set)) else [lg]
            n = 0 if lg == "all" else self._count(self.lg, tags)
            if n is not None:
                n2 = min(n, 15)
                parts.append(f"lgkmcnt({n2})")
                self.lg = self.lg[len(self.lg) - n2:] if n2 else []
        if parts:
            self("s_waitcnt " + " ".join(parts))

    def text(self):
        return "\n".join(self.lines) + "\n"


class Regs:
    def __init__(self, start, limit):
        self.n = start
        self.limit = limit
        self.hi = start

    def alloc(self, cnt=1, align=1):
        self.n = (self.n + align - 1) // align * align
        r = self.n
        self.n += cnt
        assert self.n <= self.limit, f"out of registers {self.n} > {self.limit}"
        self.hi = max(self.hi, self.n)
        return r


def vr(base, cnt):
    return f"v[{base}:{base + cnt - 1}]"


def sr(base, cnt):
    return f"s[{base}:{base + cnt - 1}]"


def srd(a, d, base, nbytes):
    a(f"s_mov_b32 s{d}, s{base}")
    a(f"s_and_b32 s{d + 1}, s{base + 1}, 0xffff")
    a(f"s_mov_b32 s{d + 2}, {nbytes}")
    a(f"s_mov_b32 s{d + 3}, 0x00020000")


def kernel_header(name):
    return f".globl {name}\n.p2align 8\n.type {name},@function\n{name}:\n"


def kernel_desc(name, vgpr, sgpr, accum=None):
    vg = (vgpr + 7) // 8 * 8
    acc = accum if accum is not None else (vgpr + 3) // 4 * 4
    return f""".p2align 6
.amdhsa_kernel {name}
  .amdhsa_next_free_vgpr {vg}
  .amdhsa_next_free_sgpr {sgpr}
  .amdhsa_accum_offset {acc}
  .amdhsa_group_segment_fixed_size 0
  .amdhsa_kernarg_size 80
  .amdhsa_user_sgpr_count 2
  .amdhsa_user_sgpr_kernarg_segment_ptr 1
  .amdhsa_system_sgpr_workgroup_id_x 1
.end_amdhsa_kernel
"""


def interleave(a, mfmas, fillers):
    n = len(mfmas)
    per = [len(fillers) // n + (1 if i < len(fillers) % n else 0) for i in range(n)]
    k = 0
    for i, m in enumerate(mfmas):
        m()
        for _ in range(per[i]):
            fillers[k]()
            k += 1
```

```python
from gen_common import *

K1_LDS_X = 0
K1_LDS_G = 49152
K1_LDS_U = 98304
K1_LDS_ST = 147456
K1_LDS_CS = K1_LDS_ST + 8192
K1_LDS = K1_LDS_CS + 1024
NSTAGE = 8


def gen_k1(name):
    a = Asm()
    V = Regs(1, 256)
    S = Regs(28, 100)
    SRD_X, SRD_G, SRD_U, SRD_WS, SRD_WR, SRD_WI = 4, 8, 12, 16, 20, 24
    s_rb, s_cg, s_w, s_mi, s_ni, s_rs, s_goff, s_uoff = [S.alloc() for _ in range(8)]
    s_t0, s_t1, s_t2, s_t3 = [S.alloc() for _ in range(4)]
    s_sx, s_sw, s_sw2, s_rs4, s_rs64, s_m0x, s_m0g = [S.alloc() for _ in range(7)]
    s_p = S.alloc(12, 4)
    s_exec = S.alloc(2, 2)

    v_lane = V.alloc()
    v_n = V.alloc()
    v_h = V.alloc()
    v_t = [V.alloc() for _ in range(8)]
    v_dx = [V.alloc(), V.alloc()]
    v_dg, v_du = V.alloc(), V.alloc()
    v_xa = [V.alloc() for _ in range(4)]
    v_wa = [[V.alloc(), V.alloc()] for _ in range(4)]
    v_st = [[V.alloc() for _ in range(4)] for _ in range(2)]
    v_f1a, v_f1s, v_f2a, v_f2s = [V.alloc() for _ in range(4)]
    v_f1 = V.alloc(4, 4)
    v_f2 = V.alloc(4, 4)
    v_cs = V.alloc(4, 4)
    v_sel = V.alloc(4, 4)
    v_XS = [V.alloc(4, 4) for _ in range(2)]
    v_X = [[V.alloc(4, 4) for _ in range(2)] for _ in range(2)]
    v_W = [[V.alloc(4, 4) for _ in range(2)] for _ in range(2)]
    v_acc = [[V.alloc(16, 4) for _ in range(2)] for _ in range(2)]
    v_e = V.alloc(48, 4)

    a("s_cmp_ge_u32 s2, 256")
    a(f"s_cbranch_scc1 {name}_done")
    a(f"s_load_dwordx2 {sr(s_p, 2)}, s[0:1], {KA_X}")
    a(f"s_load_dwordx4 {sr(s_p + 4, 4)}, s[0:1], {KA_WG}")
    a(f"s_load_dwordx2 {sr(s_p + 2, 2)}, s[0:1], {KA_WS}")
    a(f"s_load_dwordx4 {sr(s_p + 8, 4)}, s[0:1], {KA_WR}")
    a(f"s_and_b32 s{s_t0}, s2, 7")
    a(f"s_lshr_b32 s{s_t1}, s2, 3")
    a(f"s_lshr_b32 s{s_rb}, s{s_t0}, 1")
    a(f"s_lshl_b32 s{s_rb}, s{s_rb}, 2")
    a(f"s_and_b32 s{s_t2}, s{s_t1}, 3")
    a(f"s_add_u32 s{s_rb}, s{s_rb}, s{s_t2}")
    a(f"s_and_b32 s{s_cg}, s{s_t0}, 1")
    a(f"s_lshl_b32 s{s_cg}, s{s_cg}, 3")
    a(f"s_lshr_b32 s{s_t2}, s{s_t1}, 2")
    a(f"s_add_u32 s{s_cg}, s{s_cg}, s{s_t2}")
    a(f"v_lshrrev_b32 v{v_t[0]}, 6, v0")
    a(f"v_and_b32 v{v_lane}, 63, v0")
    a(f"v_readfirstlane_b32 s{s_w}, v{v_t[0]}")
    a(f"v_and_b32 v{v_n}, 31, v0")
    a(f"v_lshrrev_b32 v{v_h}, 5, v{v_lane}")
    a(f"s_and_b32 s{s_mi}, s{s_w}, 3")
    a(f"s_lshr_b32 s{s_ni}, s{s_w}, 2")
    a(f"s_getpc_b64 {sr(s_exec, 2)}")
    a(f"s_add_u32 s{s_exec}, s{s_exec}, ftab@rel32@lo+4")
    a(f"s_addc_u32 s{s_exec + 1}, s{s_exec + 1}, ftab@rel32@hi+12")
    a("s_waitcnt lgkmcnt(0)")
    srd(a, SRD_X, s_p, 2048 * 1024)
    srd(a, SRD_WS, s_p + 2, WS_SIZE)
    srd(a, SRD_WR, s_p + 8, 2048 * 514)
    srd(a, SRD_WI, s_p + 10, 2048 * 514)
    a(f"s_cmp_ge_u32 s{s_cg}, 14")
    a(f"s_cbranch_scc1 {name}_setdft")
    srd(a, SRD_G, s_p + 4, 512 * 3584)
    srd(a, SRD_U, s_p + 6, 512 * 3584)
    a(f"s_mov_b32 s{s_rs}, 3584")
    a(f"s_lshl_b32 s{s_goff}, s{s_cg}, 8")
    a(f"s_mov_b32 s{s_uoff}, s{s_goff}")
    a(f"s_branch {name}_setdone")
    a.label(f"{name}_setdft")
    srd(a, SRD_G, s_exec, 512 * 1024)
    srd(a, SRD_U, s_exec, 512 * 1024)
    a(f"s_mov_b32 s{s_rs}, 1024")
    a(f"s_sub_u32 s{s_goff}, s{s_cg}, 14")
    a(f"s_lshl_b32 s{s_goff}, s{s_goff}, 9")
    a(f"s_add_u32 s{s_uoff}, s{s_goff}, 256")
    a.label(f"{name}_setdone")
    a(f"s_lshl_b32 s{s_rs4}, s{s_rs}, 2")
    a(f"s_lshl_b32 s{s_rs64}, s{s_rs}, 6")

    t0, t1, t2, t3, t4 = v_t[:5]
    a(f"v_lshrrev_b32 v{t0}, 3, v{v_lane}")
    a(f"v_and_b32 v{t1}, 7, v{v_lane}")
    a(f"s_lshl_b32 s{s_t0}, s{s_w}, 4")
    for jj in range(2):
        a(f"v_add_u32 v{t2}, s{s_t0}, v{t0}")
        if jj:
            a(f"v_add_u32 v{t2}, 8, v{t2}")
        a(f"v_bfe_u32 v{t3}, v{t2}, 1, 3")
        a(f"v_xor_b32 v{t3}, v{t3}, v{t1}")
        a(f"v_lshlrev_b32 v{t3}, 4, v{t3}")
        a(f"v_and_b32 v{t4}, 31, v{t2}")
        a(f"v_lshlrev_b32 v{t4}, 16, v{t4}")
        a(f"v_add_u32 v{t3}, v{t3}, v{t4}")
        a(f"v_lshrrev_b32 v{t4}, 5, v{t2}")
        a(f"v_lshlrev_b32 v{t4}, 10, v{t4}")
        a(f"v_add_u32 v{t3}, v{t3}, v{t4}")
        a(f"s_lshl_b32 s{s_t1}, s{s_rb}, 12")
        a(f"v_add_u32 v{v_dx[jj]}, s{s_t1}, v{t3}")
    a(f"v_lshrrev_b32 v{t0}, 4, v{v_lane}")
    a(f"v_bfe_u32 v{t1}, v{v_lane}, 1, 3")
    a(f"v_lshlrev_b32 v{t2}, 1, v{t0}")
    a(f"v_xor_b32 v{t1}, v{t1}, v{t2}")
    a(f"v_and_b32 v{t2}, 1, v{v_lane}")
    a(f"v_lshlrev_b32 v{t2}, 4, v{t2}")
    a(f"s_lshl_b32 s{s_t0}, s{s_w}, 3")
    a(f"v_add_u32 v{t0}, s{s_t0}, v{t0}")
    a(f"v_mul_lo_u32 v{t0}, v{t0}, s{s_rs}")
    a(f"v_add_u32 v{t0}, v{t0}, v{t2}")
    a(f"v_lshlrev_b32 v{t3}, 5, v{t1}")
    a(f"v_add_u32 v{t3}, v{t3}, v{t0}")
    a(f"v_add_u32 v{v_dg}, s{s_goff}, v{t3}")
    a(f"v_xor_b32 v{t1}, 1, v{t1}")
    a(f"v_lshlrev_b32 v{t3}, 5, v{t1}")
    a(f"v_add_u32 v{t3}, v{t3}, v{t0}")
    a(f"v_add_u32 v{v_du}, s{s_uoff}, v{t3}")
    a(f"s_lshl_b32 s{s_m0x}, s{s_w}, 11")
    a(f"s_mov_b32 s{s_sx}, 0")
    a(f"s_mov_b32 s{s_sw}, 0")

    def dma_ops(stage):
        b = stage % 3
        ops = []

        def mk(ldsbase, vaddr, srdn, soff, pre=None, post=None):
            def f():
                if pre:
                    a(pre)
                a(f"s_add_u32 m0, s{s_m0x}, {ldsbase}")
                a("s_nop 0")
                a.vmem(f"buffer_load_dwordx4 v{vaddr}, {sr(srdn, 4)}, s{soff} offen lds", f"d{stage}")
                if post:
                    a(post)
            return f
        ops.append(mk(K1_LDS_X + b * 16384, v_dx[0], SRD_X, s_sx))
        ops.append(mk(K1_LDS_G + b * 16384, v_dg, SRD_G, s_sw, pre=f"s_add_u32 s{s_sw2}, s{s_sw}, s{s_rs4}"))
        ops.append(mk(K1_LDS_U + b * 16384, v_du, SRD_U, s_sw))
        ops.append(mk(K1_LDS_X + b * 16384 + 1024, v_dx[1], SRD_X, s_sx, post=f"s_add_u32 s{s_sx}, s{s_sx}, 128"))
        ops.append(mk(K1_LDS_G + b * 16384 + 1024, v_dg, SRD_G, s_sw2))
        ops.append(mk(K1_LDS_U + b * 16384 + 1024, v_du, SRD_U, s_sw2, post=f"s_add_u32 s{s_sw}, s{s_sw}, s{s_rs64}"))
        return ops

    for st in range(3):
        for f in dma_ops(st):
            f()

    a(f"v_lshrrev_b32 v{t0}, 3, v{v_lane}")
    a(f"v_and_b32 v{t1}, 7, v{v_lane}")
    a(f"s_and_b32 s{s_t0}, s2, 3")
    a(f"s_lshl_b32 s{s_t0}, s{s_t0}, 3")
    a(f"s_add_u32 s{s_t0}, s{s_t0}, s{s_w}")
    a(f"s_lshl_b32 s{s_t0}, s{s_t0}, 3")
    a(f"v_add_u32 v{t1}, s{s_t0}, v{t1}")
    a(f"s_lshr_b32 s{s_t1}, s2, 2")
    a(f"s_and_b32 s{s_t1}, s{s_t1}, 3")
    a(f"s_lshr_b32 s{s_t2}, s2, 4")
    a(f"v_lshrrev_b32 v{t2}, 2, v{t0}")
    a(f"v_lshlrev_b32 v{t2}, 4, v{t2}")
    a(f"v_and_b32 v{t3}, 3, v{t0}")
    a(f"v_add_u32 v{t2}, v{t2}, v{t3}")
    a(f"s_lshl_b32 s{s_t3}, s{s_t1}, 2")
    a(f"v_add_u32 v{t2}, s{s_t3}, v{t2}")
    a(f"s_lshl_b32 s{s_t3}, s{s_t2}, 7")
    a(f"v_add_u32 v{t2}, s{s_t3}, v{t2}")
    a(f"v_mul_u32_u24 v{t2}, 514, v{t2}")
    a(f"v_lshl_add_u32 v{v_f1a}, v{t1}, 1, v{t2}")
    a(f"v_lshlrev_b32 v{t1}, 13, v{t1}")
    a(f"v_lshl_add_u32 v{t1}, v{t0}, 4, v{t1}")
    a(f"s_lshl_b32 s{s_t3}, s{s_t2}, 9")
    a(f"s_lshl_b32 s{s_t1}, s{s_t1}, 7")
    a(f"s_add_u32 s{s_t3}, s{s_t3}, s{s_t1}")
    a(f"s_add_u32 s{s_t3}, s{s_t3}, {WS_W}")
    a(f"v_add_u32 v{v_f1s}, s{s_t3}, v{t1}")
    for i in range(4):
        a(f"s_mov_b32 s{s_t0}, {i * 32 * 514}")
        a.vmem(f"buffer_load_ushort v{v_f1 + i}, v{v_f1a}, {sr(SRD_WR, 4)}, s{s_t0} offen", "f1")
        a.vmem(f"buffer_load_ushort v{v_e + i}, v{v_f1a}, {sr(SRD_WI, 4)}, s{s_t0} offen", "f1")
    a(f"v_bfe_u32 v{t0}, v{v_n}, 2, 1")
    a(f"v_lshlrev_b32 v{t0}, 4, v{t0}")
    a(f"v_lshrrev_b32 v{t1}, 3, v{v_n}")
    a(f"v_lshl_add_u32 v{t0}, v{t1}, 2, v{t0}")
    a(f"v_and_b32 v{t1}, 3, v{v_n}")
    a(f"v_add_u32 v{t0}, v{t0}, v{t1}")
    a(f"s_lshl_b32 s{s_t0}, s{s_w}, 1")
    a(f"v_add_u32 v{t1}, s{s_t0}, v{v_h}")
    a(f"v_lshl_add_u32 v{t0}, v{t1}, 7, v{t0}")
    a(f"v_mul_u32_u24 v{t0}, 514, v{t0}")
    a(f"v_add_u32 v{v_f2a}, 512, v{t0}")
    a(f"v_lshlrev_b32 v{t1}, 9, v{t1}")
    a(f"v_lshl_add_u32 v{t1}, v{v_n}, 4, v{t1}")
    a(f"v_add_u32 v{v_f2s}, {WS_W + 256 * 8192}, v{t1}")
    a("s_cmp_eq_u32 s2, 255")
    a(f"s_cbranch_scc1 {name}_f2ok")
    a(f"v_mov_b32 v{v_f2a}, 0x7f000000")
    a(f"v_mov_b32 v{v_f2s}, 0x7f000000")
    a.label(f"{name}_f2ok")
    for i in range(4):
        a(f"s_mov_b32 s{s_t0}, {i * 32 * 514}")
        a.vmem(f"buffer_load_ushort v{v_f2 + i}, v{v_f2a}, {sr(SRD_WR, 4)}, s{s_t0} offen", "f1")
        a.vmem(f"buffer_load_ushort v{v_e + 4 + i}, v{v_f2a}, {sr(SRD_WI, 4)}, s{s_t0} offen", "f1")

    a(f"v_bfe_u32 v{t0}, v{v_n}, 1, 3")
    a(f"s_lshl_b32 s{s_t0}, s{s_ni}, 13")
    a(f"v_lshlrev_b32 v{t1}, 7, v{v_n}")
    a(f"v_add_u32 v{t1}, s{s_t0}, v{t1}")
    a(f"v_bfe_u32 v{t2}, v{v_lane}, 4, 1")
    a(f"v_bfe_u32 v{t3}, v{v_lane}, 2, 2")
    a(f"v_lshl_add_u32 v{t4}, v{t3}, 1, v{t2}")
    a(f"s_lshl_b32 s{s_t1}, s{s_mi}, 1")
    a(f"s_add_u32 s{s_t1}, s{s_t1}, s{s_ni}")
    a(f"v_xor_b32 v{t4}, s{s_t1}, v{t4}")
    a(f"v_lshlrev_b32 v{t4}, 5, v{t4}")
    a(f"v_lshl_add_u32 v{t4}, v{t3}, 8, v{t4}")
    a(f"v_and_b32 v{t3}, 3, v{v_lane}")
    a(f"v_lshl_add_u32 v{t4}, v{t3}, 3, v{t4}")
    a(f"v_lshl_add_u32 v{t4}, v{v_h}, 11, v{t4}")
    a(f"v_mul_u32_u24 v{t2}, {K1_LDS_U - K1_LDS_G}, v{t2}")
    a(f"v_add_u32 v{t4}, v{t4}, v{t2}")
    a(f"v_add_u32 v{t4}, {K1_LDS_G}, v{t4}")
    for j in range(4):
        a(f"s_add_u32 s{s_t2}, s{s_mi}, {j}")
        a(f"s_and_b32 s{s_t2}, s{s_t2}, 3")
        a(f"s_lshl_b32 s{s_t3}, s{s_t2}, 1")
        a(f"v_add_u32 v{t2}, s{s_t3}, v{v_h}")
        a(f"v_xor_b32 v{t2}, v{t2}, v{t0}")
        a(f"v_lshl_add_u32 v{v_xa[j]}, v{t2}, 4, v{t1}")
        a(f"s_lshl_b32 s{s_t3}, s{s_t2}, 12")
        a(f"v_add_u32 v{v_wa[j][0]}, s{s_t3}, v{t4}")
        a(f"v_xor_b32 v{v_wa[j][1]}, 32, v{v_wa[j][0]}")
    a(f"v_and_b32 v{t2}, 15, v{v_lane}")
    a(f"v_bfe_u32 v{t3}, v{v_lane}, 4, 1")
    a(f"v_cmp_eq_u32 vcc, v{t2}, v{t3}")
    a(f"v_mov_b32 v{t2}, 0x3f803f80")
    a(f"v_mov_b32 v{t3}, 0")
    for i in range(4):
        a(f"v_cndmask_b32 v{v_sel + i}, v{t3}, v{t2}, vcc")
        a(f"v_mov_b32 v{v_cs + i}, 0")
    for nt in range(2):
        for i in range(4):
            a(f"v_mov_b32 v{v_st[nt][i]}, 0")
    for mt in range(2):
        for nt in range(2):
            for i in range(16):
                a(f"v_mov_b32 v{v_acc[mt][nt] + i}, 0")

    def xbuf(j):
        return v_XS if j == 0 else v_X[j % 2]

    def read_ops(stage, j):
        b = stage % 3
        ops = []
        tag = f"r{stage}_{j}"
        for mt in range(2):
            for e in range(2):
                ops.append(lambda mt=mt, e=e: a.lds(
                    f"ds_read_b64_tr_b16 {vr(v_W[j % 2][mt] + 2 * e, 2)}, v{v_wa[j][mt]} offset:{b * 16384 + e * 1024}", tag))
            ops.append(lambda nt=mt: a.lds(
                f"ds_read_b128 {vr(xbuf(j)[nt], 4)}, v{v_xa[j]} offset:{b * 16384 + nt * 4096}", tag))
        return ops

    def stat_ops():
        ops = []
        for nt in range(2):
            for d in range(4):
                src = v_XS[nt] + d
                lo, hi = v_t[(2 * d) % 4 + 4 * 0], v_t[(2 * d + 1) % 4]
                slo, shi, qlo, qhi = v_st[nt]
                ops.append(lambda src=src, lo=lo: a(f"v_lshlrev_b32 v{lo}, 16, v{src}"))
                ops.append(lambda src=src, hi=hi: a(f"v_and_b32 v{hi}, 0xffff0000, v{src}"))
                ops.append(lambda lo=lo, slo=slo: a(f"v_add_f32 v{slo}, v{slo}, v{lo}"))
                ops.append(lambda hi=hi, shi=shi: a(f"v_add_f32 v{shi}, v{shi}, v{hi}"))
                ops.append(lambda lo=lo, qlo=qlo: a(f"v_fmac_f32 v{qlo}, v{lo}, v{lo}"))
                ops.append(lambda hi=hi, qhi=qhi: a(f"v_fmac_f32 v{qhi}, v{hi}, v{hi}"))
        return ops

    def mfma_ops(j):
        ops = []
        for mt, nt in ((0, 0), (1, 0), (0, 1), (1, 1)):
            acc = vr(v_acc[mt][nt], 16)
            ops.append(lambda mt=mt, nt=nt, acc=acc: a(
                f"v_mfma_f32_32x32x16_bf16 {acc}, {vr(v_W[j % 2][mt], 4)}, {vr(xbuf(j)[nt], 4)}, {acc}"))
        ops.append(lambda: a(
            f"v_mfma_f32_16x16x32_bf16 {vr(v_cs, 4)}, {vr(v_W[j % 2][0], 4)}, {vr(v_sel, 4)}, {vr(v_cs, 4)}"))
        return ops

    a.wait(vm="d0")
    a("s_barrier")
    for f in read_ops(0, 0):
        f()
    for stage in range(NSTAGE):
        sops = stat_ops()
        for j in range(4):
            a.comment(f"stage {stage} step {j}")
            a.wait(lg="all")
            m = mfma_ops(j)
            if j < 3:
                fill = read_ops(stage, j + 1) + sops[16 * j:16 * j + 16]
                interleave(a, m, fill)
            else:
                if stage + 1 < NSTAGE:
                    m[0]()
                    m[1]()
                    a.wait(vm=f"d{stage + 1}")
                    a("s_barrier")
                    fill = read_ops(stage + 1, 0)
                    if stage + 3 < NSTAGE:
                        fill = fill + dma_ops(stage + 3)
                    if stage == 2:
                        assert "f1" not in a.vm
                        fill = fill + [
                            (lambda i=i: a(f"v_lshl_or_b32 v{v_f1 + i}, v{v_e + i}, 16, v{v_f1 + i}")) for i in range(4)] + [
                            (lambda i=i: a(f"v_lshl_or_b32 v{v_f2 + i}, v{v_e + 4 + i}, 16, v{v_f2 + i}")) for i in range(4)] + [
                            lambda: a.vmem(f"buffer_store_dwordx4 {vr(v_f1, 4)}, v{v_f1s}, {sr(SRD_WS, 4)}, 0 offen", "st"),
                            lambda: a.vmem(f"buffer_store_dwordx4 {vr(v_f2, 4)}, v{v_f2s}, {sr(SRD_WS, 4)}, 0 offen", "st")]
                    for f in fill[:6]:
                        f()
                    interleave(a, m[2:], fill[6:] if len(fill) > 6 else [])
                else:
                    for f in m:
                        f()

    e = v_e
    a(f"v_lshlrev_b32 v{t0}, 6, v{v_n}")
    a(f"v_lshl_add_u32 v{t0}, v{v_h}, 3, v{t0}")
    a(f"s_lshl_b32 s{s_t0}, s{s_ni}, 12")
    a(f"s_lshl_b32 s{s_t1}, s{s_mi}, 4")
    a(f"s_add_u32 s{s_t0}, s{s_t0}, s{s_t1}")
    a(f"s_add_u32 s{s_t0}, s{s_t0}, {K1_LDS_ST}")
    a(f"v_add_u32 v{t0}, s{s_t0}, v{t0}")
    for nt in range(2):
        slo, shi, qlo, qhi = v_st[nt]
        a(f"v_add_f32 v{e + 2 * nt}, v{slo}, v{shi}")
        a(f"v_add_f32 v{e + 2 * nt + 1}, v{qlo}, v{qhi}")
        a.lds(f"ds_write_b64 v{t0}, {vr(e + 2 * nt, 2)} offset:{nt * 2048}", "w")
    a(f"v_and_b32 v{t1}, 15, v{v_lane}")
    a(f"v_lshrrev_b32 v{t2}, 4, v{v_lane}")
    a(f"v_lshlrev_b32 v{t2}, 4, v{t2}")
    a(f"v_lshl_add_u32 v{t2}, v{t1}, 6, v{t2}")
    a(f"s_lshl_b32 s{s_t1}, s{s_mi}, 1")
    a(f"s_add_u32 s{s_t1}, s{s_t1}, s{s_ni}")
    a(f"s_lshl_b32 s{s_t2}, s{s_t1}, 7")
    a(f"s_add_u32 s{s_t2}, s{s_t2}, {K1_LDS_CS}")
    a(f"v_add_u32 v{t2}, s{s_t2}, v{t2}")
    a(f"v_cmp_gt_u32 vcc, 2, v{t1}")
    a(f"s_and_saveexec_b64 {sr(s_exec, 2)}, vcc")
    a.lds(f"ds_write_b128 v{t2}, {vr(v_cs, 4)}", "w")
    a(f"s_mov_b64 exec, {sr(s_exec, 2)}")
    a.wait(lg="all")
    a("s_barrier")
    a(f"v_lshlrev_b32 v{t0}, 6, v{v_lane}")
    a(f"s_lshl_b32 s{s_t0}, s{s_ni}, 12")
    a(f"s_add_u32 s{s_t0}, s{s_t0}, {K1_LDS_ST}")
    a(f"v_add_u32 v{t0}, s{s_t0}, v{t0}")
    for i in range(4):
        a.lds(f"ds_read_b128 {vr(e + 4 * i, 4)}, v{t0} offset:{16 * i}", "s")
    a(f"v_lshlrev_b32 v{t1}, 4, v{v_h}")
    a(f"v_add_u32 v{t1}, s{s_t2}, v{t1}")
    a(f"v_xor_b32 v{t2}, 128, v{t1}")
    for mt in range(2):
        for g in range(4):
            a.lds(f"ds_read_b128 {vr(e + 16 + 16 * mt + 4 * g, 4)}, v{t1 if mt == 0 else t2} offset:{32 * g}", "c")
    a.wait(lg="s")
    sv = [e + 2 * p for p in range(8)]
    qv = [e + 2 * p + 1 for p in range(8)]
    m_, mb, dl, c2, c64 = v_t[0], v_t[1], v_t[2], v_t[3], v_t[4]
    tt = v_t[5]
    a(f"v_add_f32 v{m_}, v{sv[0]}, v{sv[1]}")
    a(f"v_add_f32 v{tt}, v{sv[2]}, v{sv[3]}")
    a(f"v_add_f32 v{mb}, v{sv[4]}, v{sv[5]}")
    a(f"v_add_f32 v{dl}, v{sv[6]}, v{sv[7]}")
    a(f"v_add_f32 v{m_}, v{m_}, v{tt}")
    a(f"v_add_f32 v{mb}, v{mb}, v{dl}")
    a(f"v_add_f32 v{m_}, v{m_}, v{mb}")
    a(f"v_mul_f32 v{m_}, 0x3b000000, v{m_}")
    a(f"v_cvt_pk_bf16_f32 v{mb}, v{m_}, v{m_}")
    a(f"v_and_b32 v{mb}, 0xffff0000, v{mb}")
    a(f"v_sub_f32 v{dl}, v{m_}, v{mb}")
    a(f"v_mul_f32 v{c2}, -2.0, v{mb}")
    a(f"v_mul_f32 v{c64}, v{mb}, v{mb}")
    a(f"v_mul_f32 v{c64}, 0x42800000, v{c64}")
    for p in range(8):
        a(f"v_fmac_f32 v{qv[p]}, v{c2}, v{sv[p]}")
    for p in range(8):
        a(f"v_add_f32 v{qv[p]}, v{qv[p]}, v{c64}")
    for p in (0, 2, 4, 6):
        a(f"v_add_f32 v{qv[p]}, v{qv[p]}, v{qv[p + 1]}")
    a(f"v_add_f32 v{qv[0]}, v{qv[0]}, v{qv[2]}")
    a(f"v_add_f32 v{qv[4]}, v{qv[4]}, v{qv[6]}")
    a(f"v_add_f32 v{qv[0]}, v{qv[0]}, v{qv[4]}")
    a(f"v_mul_f32 v{qv[0]}, 0x3b000000, v{qv[0]}")
    a(f"v_fma_f32 v{qv[0]}, -v{dl}, v{dl}, v{qv[0]}")
    a(f"v_max_f32 v{qv[0]}, 0, v{qv[0]}")
    a(f"v_cvt_pk_bf16_f32 v{tt}, v{qv[0]}, v{qv[0]}")
    a(f"v_and_b32 v{tt}, 0xffff0000, v{tt}")
    a(f"v_add_f32 v{tt}, 0x3727c5ac, v{tt}")
    a(f"v_cvt_pk_bf16_f32 v{tt}, v{tt}, v{tt}")
    a(f"v_and_b32 v{tt}, 0xffff0000, v{tt}")
    a(f"v_sqrt_f32 v{tt}, v{tt}")
    a("s_nop 0")
    a(f"v_cvt_pk_bf16_f32 v{tt}, v{tt}, v{tt}")
    a(f"v_and_b32 v{tt}, 0xffff0000, v{tt}")
    a(f"v_rcp_f32 v{tt}, v{tt}")
    mA, mB, rA, rB = e, e + 1, e + 2, e + 3
    a(f"v_sub_f32 v{mA}, 0, v{mb}")
    a(f"v_sub_f32 v{mB}, 0, v{mb}")
    a(f"v_mov_b32 v{rA}, v{tt}")
    a(f"v_mov_b32 v{rB}, v{tt}")
    a("s_nop 1")
    a(f"v_permlane32_swap_b32 v{mA}, v{mB}")
    a(f"v_permlane32_swap_b32 v{rA}, v{rB}")
    a.wait(lg="all")
    nm = [mA, mB]
    rr = [rA, rB]
    a(f"s_cmp_ge_u32 s{s_cg}, 14")
    a(f"s_cbranch_scc1 {name}_epi_dft")
    r2 = [e + 4, e + 5]
    for nt in range(2):
        a(f"v_mul_f32 v{r2[nt]}, v{rr[nt]}, v{rr[nt]}")
    a(f"v_lshlrev_b32 v{t0}, 4, v{v_lane}")
    a(f"s_lshl_b32 s{s_t0}, s{s_rb}, 2")
    a(f"s_lshl_b32 s{s_t2}, s{s_ni}, 1")
    a(f"s_add_u32 s{s_t0}, s{s_t0}, s{s_t2}")
    a(f"s_mul_i32 s{s_t0}, s{s_t0}, 112")
    a(f"s_lshl_b32 s{s_t2}, s{s_cg}, 3")
    a(f"s_add_u32 s{s_t0}, s{s_t0}, s{s_t2}")
    for mt in range(2):
        for nt in range(2):
            acc = v_acc[mt][nt]
            cs = e + 16 + 16 * mt
            for i in range(16):
                a(f"v_fmac_f32 v{acc + i}, v{nm[nt]}, v{cs + i}")
            for i in range(8):
                a(f"v_max_f32 v{acc + i}, 0, v{acc + i}")
                a(f"v_mul_f32 v{acc + 8 + i}, v{r2[nt]}, v{acc + 8 + i}")
            for i in range(8):
                a(f"v_mul_f32 v{acc + i}, v{acc + i}, v{acc + 8 + i}")
            for i in range(4):
                a(f"v_cvt_pk_bf16_f32 v{acc + 8 + i}, v{acc + 2 * i}, v{acc + 2 * i + 1}")
            a(f"s_xor_b32 s{s_t2}, s{s_t1}, {mt}")
            a(f"s_add_u32 s{s_t2}, s{s_t2}, s{s_t0}")
            if nt:
                a(f"s_add_u32 s{s_t2}, s{s_t2}, 112")
            a(f"s_lshl_b32 s{s_t2}, s{s_t2}, 10")
            a(f"buffer_store_dwordx4 {vr(acc + 8, 4)}, v{t0}, {sr(SRD_WS, 4)}, s{s_t2} offen")
    a("s_endpgm")
    a.label(f"{name}_epi_dft")
    for nt in range(2):
        a(f"v_mul_f32 v{rr[nt]}, 0x36000000, v{rr[nt]}")
    a(f"v_lshlrev_b32 v{t0}, 14, v{v_h}")
    a(f"v_lshl_add_u32 v{t0}, v{v_n}, 2, v{t0}")
    a(f"s_sub_u32 s{s_t0}, s{s_cg}, 14")
    a(f"s_lshl_b32 s{s_t0}, s{s_t0}, 20")
    a(f"s_add_u32 s{s_t0}, s{s_t0}, {WS_U}")
    a(f"s_lshl_b32 s{s_t2}, s{s_rb}, 9")
    a(f"s_add_u32 s{s_t0}, s{s_t0}, s{s_t2}")
    a(f"s_lshl_b32 s{s_t2}, s{s_ni}, 8")
    a(f"s_add_u32 s{s_t0}, s{s_t0}, s{s_t2}")
    for mt in range(2):
        a(f"s_xor_b32 s{s_t2}, s{s_t1}, {mt}")
        a(f"s_lshl_b32 s{s_t2}, s{s_t2}, 16")
        a(f"s_add_u32 s{s_t2}, s{s_t2}, s{s_t0}")
        for nt in range(2):
            acc = v_acc[mt][nt]
            cs = e + 16 + 16 * mt
            for i in range(16):
                a(f"v_fmac_f32 v{acc + i}, v{nm[nt]}, v{cs + i}")
            for i in range(16):
                a(f"v_mul_f32 v{acc + i}, v{rr[nt]}, v{acc + i}")
            for i in range(8):
                a(f"v_cvt_pk_bf16_f32 v{acc + 2 * i}, v{acc + 2 * i}, v{acc + 2 * i + 1}")
            for g in range(4):
                for ip in range(2):
                    koff = (g % 2) * 4 + (g // 2) * 64 + ip
                    a(f"s_add_u32 s{s_t3}, s{s_t2}, {koff * 8192}")
                    a(f"buffer_store_dword v{acc + 4 * g + 2 * ip}, v{t0}, {sr(SRD_WS, 4)}, s{s_t3} offen offset:{nt * 128}")
    a.label(f"{name}_done")
    a("s_endpgm")
    return kernel_header(name) + a.text(), kernel_desc(name, V.hi, 100)


def gen_ftab():
    j = np.arange(512)
    c, s = exact_cos_sin(j, 512)
    cb, nb = bf16_bits(c), bf16_bits(-s + 0.0)
    t = ""
    for i in range(512):
        t += f".set tw_{i}, 0x{int(cb[i] | (nb[i] << 16)):08x}\n"
    t += """.macro twe idx
.long tw_\\idx
.endm
.altmacro
.p2align 8
ftab:
.set dd, 0
.rept 512
.long 0x3f003f00 | ((dd & 1) << 31)
.set kk, 1
.rept 255
twe %((dd*kk) & 511)
.set kk, kk+1
.endr
.set dd, dd+1
.endr
.noaltmacro
"""
    return t
```

```python
from gen_common import *

JOBS_PER_WG = 2
K2_LDS = JOBS_PER_WG * 2 * 2 * 6144
K2_NWG = (257 + JOBS_PER_WG - 1) // JOBS_PER_WG


def fhex(x):
    return "0x%08x" % int(np.float32(x).view(np.uint32))


def fft_body(a, V, S, name, s_job, s_t, s_ldsbase, SRD_WS, SRD_C, v_lane, store_flags=""):
    s_a, s_b = S.alloc(), S.alloc()
    v_n, v_h = V.alloc(), V.alloc()
    v_t = [V.alloc() for _ in range(6)]
    v_au, v_al, v_xw, v_xr = V.alloc(), V.alloc(), V.alloc(), V.alloc()
    U = V.alloc(16, 4)
    Wf = V.alloc(16, 4)
    C32r, C32i = V.alloc(16, 4), V.alloc(16, 4)
    F64r, F64i = V.alloc(16, 4), V.alloc(16, 4)
    Cr, Ci = V.alloc(16, 4), V.alloc(16, 4)
    P = [V.alloc(16, 4) for _ in range(3)]
    tw1c, tw1s, tw2c, tw2s = [V.alloc(16, 4) for _ in range(4)]
    t0, t1, t2, t3 = v_t[:4]

    a(f"v_and_b32 v{v_n}, 31, v{v_lane}")
    a(f"v_lshrrev_b32 v{v_h}, 5, v{v_lane}")
    a(f"v_lshlrev_b32 v{v_al}, 4, v{v_lane}")
    a(f"v_lshlrev_b32 v{v_au}, 7, v{v_n}")
    a(f"v_lshl_add_u32 v{v_au}, v{v_h}, 6, v{v_au}")
    a(f"s_and_b32 s{s_a}, s{s_job}, 255")
    a(f"s_lshl_b32 s{s_a}, s{s_a}, 13")
    a(f"s_lshl_b32 s{s_b}, s{s_t}, 12")
    a(f"s_add_u32 s{s_a}, s{s_a}, s{s_b}")
    a(f"s_add_u32 s{s_a}, s{s_a}, {WS_U}")
    for j in range(4):
        a.vmem(f"buffer_load_dwordx4 {vr(U + 4 * j, 4)}, v{v_au}, {sr(SRD_WS, 4)}, s{s_a} offen offset:{16 * j}", "u")
    for j in range(4):
        a.vmem(f"buffer_load_dwordx4 {vr(C32r + 4 * j, 4)}, v{v_al}, {sr(SRD_C, 4)}, 0 offen offset:{1024 * j}", "c32")
    a(f"s_movk_i32 s{s_a}, 4096")
    for j in range(4):
        a.vmem(f"buffer_load_dwordx4 {vr(C32i + 4 * j, 4)}, v{v_al}, {sr(SRD_C, 4)}, s{s_a} offen offset:{1024 * j}", "c32")
    a(f"s_lshl_b32 s{s_a}, s{s_t}, 13")
    a(f"s_add_u32 s{s_a}, s{s_a}, 8192")
    a(f"s_add_u32 s{s_b}, s{s_a}, 4096")
    for j in range(4):
        a.vmem(f"buffer_load_dwordx4 {vr(F64r + 4 * j, 4)}, v{v_al}, {sr(SRD_C, 4)}, s{s_a} offen offset:{1024 * j}", "c64")
        a.vmem(f"buffer_load_dwordx4 {vr(F64i + 4 * j, 4)}, v{v_al}, {sr(SRD_C, 4)}, s{s_b} offen offset:{1024 * j}", "c64")
    a(f"s_lshl_b32 s{s_a}, s{s_job}, 13")
    a(f"s_lshl_b32 s{s_b}, s{s_t}, 12")
    a(f"s_add_u32 s{s_a}, s{s_a}, s{s_b}")
    a(f"s_add_u32 s{s_a}, s{s_a}, {WS_W}")
    for g in range(4):
        a.vmem(f"buffer_load_dwordx4 {vr(Wf + 4 * g, 4)}, v{v_al}, {sr(SRD_WS, 4)}, s{s_a} offen offset:{1024 * g}", "w")
    a(f"s_mul_i32 s{s_a}, s{s_t}, 6144")
    a(f"s_add_u32 s{s_a}, s{s_a}, s{s_ldsbase}")
    a(f"v_add_u32 v{v_xw}, s{s_a}, v{v_al}")
    a(f"s_xor_b32 s{s_b}, s{s_t}, 1")
    a(f"s_mul_i32 s{s_a}, s{s_b}, 6144")
    a(f"s_add_u32 s{s_a}, s{s_a}, s{s_ldsbase}")
    a(f"v_add_u32 v{v_xr}, s{s_a}, v{v_al}")
    a(f"v_bfe_u32 v{t0}, v{v_n}, 2, 1")
    a(f"v_lshlrev_b32 v{t0}, 4, v{t0}")
    a(f"v_lshrrev_b32 v{t1}, 3, v{v_n}")
    a(f"v_lshl_add_u32 v{t0}, v{t1}, 2, v{t0}")
    a(f"v_and_b32 v{t1}, 3, v{v_n}")
    a(f"v_add_u32 v{t0}, v{t0}, v{t1}")
    a(f"v_cvt_f32_u32 v{t0}, v{t0}")
    a(f"v_mul_f32 v{t0}, {fhex(1 / 2048)}, v{t0}")
    a(f"s_lshl_b32 s{s_a}, s{s_t}, 5")
    a(f"v_lshl_add_u32 v{t1}, v{v_h}, 2, s{s_a}")
    a(f"v_cvt_f32_u32 v{t1}, v{t1}")
    a(f"v_mul_f32 v{t1}, v{t1}, v{t0}")
    for r in range(16):
        k = 8 * (r // 4) + r % 4
        tt = v_t[2 + r % 4]
        a(f"v_fmamk_f32 v{tt}, v{t0}, {fhex(k)}, v{t1}")
        a(f"v_cos_f32 v{tw1c + r}, v{tt}")
        a(f"v_sin_f32 v{tw1s + r}, v{tt}")
    a(f"v_add_u32 v{t0}, s{s_a}, v{v_n}")
    a(f"v_cvt_f32_u32 v{t0}, v{t0}")
    a(f"v_mul_f32 v{t0}, {fhex(1 / 2048)}, v{t0}")
    a(f"v_lshlrev_b32 v{t1}, 4, v{v_h}")
    a(f"v_cvt_f32_u32 v{t1}, v{t1}")
    a(f"v_mul_f32 v{t1}, v{t1}, v{t0}")
    for r in range(16):
        tt = v_t[2 + r % 4]
        a(f"v_fmamk_f32 v{tt}, v{t0}, {fhex(r)}, v{t1}")
        a(f"v_cos_f32 v{tw2c + r}, v{tt}")
        a(f"v_sin_f32 v{tw2s + r}, v{tt}")

    a.wait(vm="u")
    a(f"s_and_b32 s{s_a}, s{s_job}, 255")
    a(f"s_cmp_lg_u32 s{s_a}, 0")
    a(f"s_cbranch_scc1 {name}_nospec")
    a(f"s_lshr_b32 s{s_a}, s{s_job}, 4")
    for i in range(16):
        a(f"v_lshrrev_b32 v{U + i}, s{s_a}, v{U + i}")
        a(f"v_and_b32 v{U + i}, 0xffff, v{U + i}")
    a.label(f"{name}_nospec")
    a.wait(vm="c32")

    def mf(acc, A, B, first):
        a(f"v_mfma_f32_32x32x16_bf16 {vr(acc, 16)}, {vr(A, 4)}, {vr(B, 4)}, {'0' if first else vr(acc, 16)}")

    for j in range(4):
        mf(Cr, U + 4 * j, C32r + 4 * j, j == 0)
        mf(Ci, U + 4 * j, C32i + 4 * j, j == 0)
    a("s_nop 11")

    def cmul(cs, sn, sign):
        ng1, ng2 = ("-", "") if sign > 0 else ("", "-")
        for r in range(16):
            tt = v_t[r % 4]
            a(f"v_mul_f32 v{tt}, v{Ci + r}, v{sn + r}")
            a(f"v_mul_f32 v{Ci + r}, v{Ci + r}, v{cs + r}")
            a(f"v_fma_f32 v{Ci + r}, {ng2}v{Cr + r}, v{sn + r}, v{Ci + r}")
            a(f"v_fma_f32 v{Cr + r}, v{Cr + r}, v{cs + r}, {ng1}v{tt}")

    def pack3(neg_src):
        for p in range(8):
            a(f"v_cvt_pk_bf16_f32 v{P[0] + p}, v{Cr + 2 * p}, v{Cr + 2 * p + 1}")
            a(f"v_cvt_pk_bf16_f32 v{P[1] + p}, v{Ci + 2 * p}, v{Ci + 2 * p + 1}")
            a(f"v_cvt_pk_bf16_f32 v{P[2] + p}, -v{neg_src + 2 * p}, -v{neg_src + 2 * p + 1}")

    def exchange(x):
        off = x * 12288
        for q in range(3):
            for hh in range(2):
                a.lds(f"ds_write_b128 v{v_xw}, {vr(P[q] + 4 * hh, 4)} offset:{off + (2 * q + hh) * 1024}", "xw")
        a.wait(lg="all")
        a("s_barrier")
        for hh in range(2):
            for q in range(3):
                a.lds(f"ds_read_b128 {vr(P[q] + 8 + 4 * hh, 4)}, v{v_xr} offset:{off + (2 * q + hh) * 1024}", f"xr{hh}")

    cmul(tw1c, tw1s, -1)
    pack3(Ci)
    exchange(0)
    a.wait(vm="c64")
    for j in range(4):
        if j >= 2:
            a.wait(lg=f"xr{j - 2}")
        mf(Cr, F64r + 4 * j, P[0] + 4 * j, j == 0)
        mf(Ci, F64i + 4 * j, P[0] + 4 * j, j == 0)
        mf(Cr, F64i + 4 * j, P[2] + 4 * j, False)
        mf(Ci, F64r + 4 * j, P[1] + 4 * j, False)
    a.wait(vm="w")
    for r in range(16):
        a(f"v_lshlrev_b32 v{tw1c + r}, 16, v{Wf + r}")
        a(f"v_and_b32 v{tw1s + r}, 0xffff0000, v{Wf + r}")
    cmul(tw1c, tw1s, +1)
    pack3(Cr)
    exchange(1)
    for j in range(4):
        if j >= 2:
            a.wait(lg=f"xr{j - 2}")
        mf(Cr, P[0] + 4 * j, F64r + 4 * j, j == 0)
        mf(Ci, P[1] + 4 * j, F64r + 4 * j, j == 0)
        mf(Cr, P[1] + 4 * j, F64i + 4 * j, False)
        mf(Ci, P[2] + 4 * j, F64i + 4 * j, False)
    a("s_nop 11")
    cmul(tw2c, tw2s, +1)
    for r in range(16):
        a(f"v_cvt_pk_bf16_f32 v{P[0] + r}, v{Cr + r}, -v{Ci + r}")
    a("s_nop 1")
    for j in range(4):
        mf(Cr, C32r + 4 * j, P[0] + 4 * j, j == 0)
        mf(Ci, C32i + 4 * j, P[0] + 4 * j, j == 0)
    a(f"v_lshlrev_b32 v{t0}, 6, v{v_n}")
    a(f"v_lshl_add_u32 v{t0}, v{v_h}, 5, v{t0}")
    a(f"s_and_b32 s{s_a}, s{s_job}, 255")
    a(f"s_lshl_b32 s{s_a}, s{s_a}, 13")
    a(f"s_lshr_b32 s{s_b}, s{s_job}, 8")
    a(f"s_lshl_b32 s{s_b}, s{s_b}, 12")
    a(f"s_add_u32 s{s_a}, s{s_a}, s{s_b}")
    a(f"s_lshl_b32 s{s_b}, s{s_t}, 11")
    a(f"s_add_u32 s{s_a}, s{s_a}, s{s_b}")
    a(f"s_add_u32 s{s_a}, s{s_a}, {WS_Z}")
    a(f"s_add_u32 s{s_b}, s{s_a}, 4096")
    a("s_nop 3")
    for p in range(8):
        a(f"v_cvt_pk_bf16_f32 v{P[1] + p}, v{Cr + 2 * p}, v{Cr + 2 * p + 1}")
    for hh in range(2):
        a.vmem(f"buffer_store_dwordx4 {vr(P[1] + 4 * hh, 4)}, v{t0}, {sr(SRD_WS, 4)}, s{s_a} offen offset:{16 * hh}{store_flags}", "st")
    a(f"s_and_b32 s{s_a}, s{s_job}, 255")
    a(f"s_cmp_eq_u32 s{s_a}, 0")
    a(f"s_cbranch_scc1 {name}_noim")
    for p in range(8):
        a(f"v_cvt_pk_bf16_f32 v{P[2] + p}, -v{Ci + 2 * p}, -v{Ci + 2 * p + 1}")
    for hh in range(2):
        a.vmem(f"buffer_store_dwordx4 {vr(P[2] + 4 * hh, 4)}, v{t0}, {sr(SRD_WS, 4)}, s{s_b} offen offset:{16 * hh}{store_flags}", "st")
    a.label(f"{name}_noim")


def gen_k2(name):
    a = Asm()
    V = Regs(1, 256)
    S = Regs(12, 100)
    SRD_WS, SRD_C = 4, 8
    s_p = S.alloc(4, 4)
    s_w, s_job, s_t, s_lb = [S.alloc() for _ in range(4)]
    v_lane = V.alloc()
    a(f"s_load_dwordx2 {sr(s_p, 2)}, s[0:1], {KA_WS}")
    a(f"v_lshrrev_b32 v{v_lane}, 6, v0")
    a(f"s_getpc_b64 {sr(s_p + 2, 2)}")
    a(f"s_add_u32 s{s_p + 2}, s{s_p + 2}, ctab@rel32@lo+4")
    a(f"s_addc_u32 s{s_p + 3}, s{s_p + 3}, ctab@rel32@hi+12")
    a(f"v_readfirstlane_b32 s{s_w}, v{v_lane}")
    a(f"v_and_b32 v{v_lane}, 63, v0")
    a(f"s_lshr_b32 s{s_lb}, s{s_w}, 1")
    a(f"s_mul_i32 s{s_job}, s2, {JOBS_PER_WG}")
    a(f"s_add_u32 s{s_job}, s{s_job}, s{s_lb}")
    a(f"s_and_b32 s{s_t}, s{s_w}, 1")
    a(f"s_mul_i32 s{s_lb}, s{s_lb}, 24576")
    a(f"s_cmp_gt_u32 s{s_job}, 256")
    a(f"s_cbranch_scc1 {name}_done")
    a("s_waitcnt lgkmcnt(0)")
    srd(a, SRD_WS, s_p, WS_SIZE)
    srd(a, SRD_C, s_p + 2, 24576)
    fft_body(a, V, S, name, s_job, s_t, s_lb, SRD_WS, SRD_C, v_lane)
    a.label(f"{name}_done")
    a("s_endpgm")
    launch = f"; @launch kernel={name} grid=({K2_NWG},1,1) block=({128 * JOBS_PER_WG},1,1) lds={K2_LDS}"
    return kernel_header(name) + a.text(), kernel_desc(name, V.hi, 40), gen_ctab(), launch


def gen_ctab():
    lane = np.arange(64)
    n, h = lane % 32, lane // 32
    pi = 16 * ((n >> 2) & 1) + 4 * (n >> 3) + (n & 3)
    frags = []
    for part in range(2):
        for j in range(4):
            f = np.zeros((64, 8))
            for i in range(4):
                b = 16 * h + 4 * j + i
                c, s = exact_cos_sin(pi * b, 32)
                Fr, Fi = c, -s
                f[:, 2 * i] = Fr if part == 0 else Fi
                f[:, 2 * i + 1] = -Fi if part == 0 else Fr
            frags.append(f)
    for t in range(2):
        for part in range(2):
            for jp in range(4):
                j = jp ^ (2 * t)
                f = np.zeros((64, 8))
                for e in range(8):
                    b = 16 * j + 8 * (e // 4) + 4 * h + e % 4
                    c, s = exact_cos_sin((32 * t + n) * b, 64)
                    f[:, e] = c if part == 0 else -s
                frags.append(f)
    bits = bf16_bits(np.stack(frags) + 0.0).reshape(-1, 2)
    dw = bits[:, 0] | (bits[:, 1] << 16)
    t = ".p2align 8\nctab:\n"
    for i in range(0, len(dw), 8):
        t += ".long " + ",".join("0x%x" % int(x) for x in dw[i:i + 8]) + "\n"
    return t
```

```python
from gen_common import *
from gen_k2 import fhex

NB = 5
K3_LDS = NB * 16384
NSB = 28
NSZ = 4
NST = NSB + NSZ


def gemm2_body(a, V, S, name, s_wg, s_w, v_lane, SRD_X, SRD_WD, SRD_WS, SRD_OUT, zwait=None, zflags=""):
    s_sp, s_dp, s_sw, s_dw = [S.alloc() for _ in range(4)]
    s_t0, s_t1, s_t2 = [S.alloc() for _ in range(3)]
    s_oh, s_ow, s_ow2, s_oz, s_mh, s_mw, s_mz = [S.alloc() for _ in range(7)]
    v_n, v_h = V.alloc(), V.alloc()
    v_t = [V.alloc() for _ in range(8)]
    v_dl, v_dw, v_dz = V.alloc(), V.alloc(), V.alloc()
    v_rh = [V.alloc(), V.alloc()]
    v_rw = [V.alloc(), V.alloc()]
    v_rz = [V.alloc(), V.alloc()]
    v_xo = V.alloc()
    v_step, v_base = V.alloc(), V.alloc()
    v_x = V.alloc(8, 4)
    acc = V.alloc(16, 4)
    FR = [V.alloc(32, 4) for _ in range(2)]
    G = V.alloc(128, 4)
    t0, t1, t2, t3, t4 = v_t[:5]

    a(f"s_and_b32 s{s_t0}, s{s_wg}, 7")
    a(f"s_lshr_b32 s{s_t1}, s{s_wg}, 3")
    a(f"s_lshr_b32 s{s_sp}, s{s_t0}, 1")
    a(f"s_lshl_b32 s{s_sp}, s{s_sp}, 3")
    a(f"s_and_b32 s{s_t2}, s{s_t1}, 7")
    a(f"s_add_u32 s{s_sp}, s{s_sp}, s{s_t2}")
    a(f"s_and_b32 s{s_dp}, s{s_t0}, 1")
    a(f"s_lshl_b32 s{s_dp}, s{s_dp}, 2")
    a(f"s_lshr_b32 s{s_t2}, s{s_t1}, 3")
    a(f"s_add_u32 s{s_dp}, s{s_dp}, s{s_t2}")
    a(f"s_and_b32 s{s_sw}, s{s_w}, 1")
    a(f"s_lshr_b32 s{s_dw}, s{s_w}, 1")
    a(f"v_and_b32 v{v_n}, 31, v{v_lane}")
    a(f"v_lshrrev_b32 v{v_h}, 5, v{v_lane}")
    a(f"v_lshlrev_b32 v{v_dl}, 4, v{v_lane}")
    a(f"v_lshrrev_b32 v{t0}, 3, v{v_lane}")
    a(f"v_bfe_u32 v{t1}, v{v_lane}, 4, 1")
    a(f"v_lshlrev_b32 v{t1}, 2, v{t1}")
    a(f"v_and_b32 v{t2}, 7, v{v_lane}")
    a(f"v_xor_b32 v{t1}, v{t1}, v{t2}")
    a(f"v_lshlrev_b32 v{t1}, 4, v{t1}")
    a(f"v_lshl_add_u32 v{v_dw}, v{t0}, 10, v{t1}")
    a(f"v_lshl_add_u32 v{v_dz}, v{t0}, 12, v{t1}")
    a(f"s_lshl_b32 s{s_t0}, s{s_sp}, 1")
    a(f"s_add_u32 s{s_t0}, s{s_t0}, s{s_sw}")
    a(f"s_mul_i32 s{s_oh}, s{s_t0}, 112")
    a(f"s_lshl_b32 s{s_t1}, s{s_dw}, 1")
    a(f"s_add_u32 s{s_oh}, s{s_oh}, s{s_t1}")
    a(f"s_lshl_b32 s{s_oh}, s{s_oh}, 10")
    a(f"s_lshl_b32 s{s_mh}, s{s_sw}, 12")
    a(f"s_lshl_b32 s{s_t1}, s{s_dw}, 11")
    a(f"s_add_u32 s{s_mh}, s{s_mh}, s{s_t1}")
    a(f"s_lshl_b32 s{s_ow}, s{s_w}, 14")
    a(f"s_lshl_b32 s{s_t1}, s{s_dp}, 7")
    a(f"s_add_u32 s{s_ow}, s{s_ow}, s{s_t1}")
    a(f"s_lshl_b32 s{s_mw}, s{s_w}, 11")
    a(f"s_add_u32 s{s_mw}, s{s_mw}, 8192")
    a(f"s_lshl_b32 s{s_oz}, s{s_w}, 17")
    a(f"s_lshl_b32 s{s_t1}, s{s_sp}, 7")
    a(f"s_add_u32 s{s_oz}, s{s_oz}, s{s_t1}")
    a(f"s_add_u32 s{s_oz}, s{s_oz}, {WS_Z}")
    a(f"s_lshl_b32 s{s_mz}, s{s_w}, 12")

    def dma_ops(s):
        b = (s % NB) * 16384
        tag = f"d{s}"
        ops = []
        if s < NSB:
            def f0():
                a(f"s_add_u32 m0, s{s_mh}, {b}")
                a(f"s_add_u32 s{s_ow2}, s{s_ow}, 8192")
                a.vmem(f"buffer_load_dwordx4 v{v_dl}, {sr(SRD_WS, 4)}, s{s_oh} offen lds", tag)

            def f1():
                a.vmem(f"buffer_load_dwordx4 v{v_dl}, {sr(SRD_WS, 4)}, s{s_oh} offen offset:1024 lds", tag)
                a(f"s_add_u32 s{s_oh}, s{s_oh}, 4096")

            def f2():
                a(f"s_add_u32 m0, s{s_mw}, {b}")
                a("s_nop 0")
                a.vmem(f"buffer_load_dwordx4 v{v_dw}, {sr(SRD_WD, 4)}, s{s_ow} offen lds", tag)

            def f3():
                a(f"s_add_u32 m0, s{s_mw}, {b + 1024}")
                a(f"s_add_u32 s{s_ow}, s{s_ow}, 65536")
                a.vmem(f"buffer_load_dwordx4 v{v_dw}, {sr(SRD_WD, 4)}, s{s_ow2} offen lds", tag)
            ops = [f0, f1, f2, f3]
        else:
            z = s - NSB
            for i in range(4):
                def f(i=i):
                    a(f"s_add_u32 m0, s{s_mz}, {b + 1024 * i}")
                    a(f"s_add_u32 s{s_ow2}, s{s_oz}, {(128 * z + 8 * i) * 4096}")
                    a.vmem(f"buffer_load_dwordx4 v{v_dz}, {sr(SRD_WS, 4)}, s{s_ow2} offen lds{zflags}", tag)
                ops.append(f)
        return ops

    a(f"v_lshlrev_b32 v{v_xo}, 16, v{v_n}")
    a(f"v_lshl_add_u32 v{v_xo}, v{v_h}, 5, v{v_xo}")
    a(f"s_lshl_b32 s{s_t0}, s{s_t0}, 10")
    a(f"s_lshl_b32 s{s_t1}, s{s_dp}, 7")
    a(f"s_add_u32 s{s_t0}, s{s_t0}, s{s_t1}")
    a(f"s_lshl_b32 s{s_t1}, s{s_dw}, 6")
    a(f"s_add_u32 s{s_t0}, s{s_t0}, s{s_t1}")
    a(f"v_add_u32 v{v_xo}, s{s_t0}, v{v_xo}")
    a.vmem(f"buffer_load_dwordx4 {vr(v_x, 4)}, v{v_xo}, {sr(SRD_X, 4)}, 0 offen", "x")
    a.vmem(f"buffer_load_dwordx4 {vr(v_x + 4, 4)}, v{v_xo}, {sr(SRD_X, 4)}, 0 offen offset:16", "x")
    for s in range(NB - 1):
        for f in dma_ops(s):
            f()
    a(f"s_lshl_b32 s{s_t1}, s{s_sw}, 12")
    a(f"v_add_u32 v{v_rh[0]}, s{s_t1}, v{v_dl}")
    a(f"v_bfe_u32 v{t0}, v{v_lane}, 2, 2")
    a(f"v_and_b32 v{t1}, 3, v{v_lane}")
    a(f"v_bfe_u32 v{t2}, v{v_lane}, 4, 1")
    a(f"v_lshl_add_u32 v{t3}, v{v_h}, 2, v{t0}")
    a(f"v_lshlrev_b32 v{t3}, 7, v{t3}")
    a(f"v_lshrrev_b32 v{t0}, 1, v{t0}")
    a(f"v_xor_b32 v{t4}, s{s_dw}, v{t0}")
    a(f"v_lshl_add_u32 v{t4}, v{t4}, 6, v{t3}")
    a(f"v_and_b32 v{v_t[5]}, 1, v{t1}")
    a(f"v_lshl_add_u32 v{t4}, v{v_t[5]}, 5, v{t4}")
    a(f"v_lshl_add_u32 v{t4}, v{t2}, 4, v{t4}")
    a(f"v_lshrrev_b32 v{v_t[5]}, 1, v{t1}")
    a(f"v_lshl_add_u32 v{t4}, v{v_t[5]}, 3, v{t4}")
    a(f"v_add_u32 v{v_rw[0]}, 8192, v{t4}")
    a(f"v_xor_b32 v{t4}, s{s_sw}, v{t0}")
    a(f"v_lshl_add_u32 v{t4}, v{t4}, 6, v{t3}")
    a(f"v_lshl_add_u32 v{t4}, v{t2}, 5, v{t4}")
    a(f"v_lshl_add_u32 v{v_rz[0]}, v{t1}, 3, v{t4}")
    for rg in (v_rh, v_rw, v_rz):
        a(f"v_add_u32 v{rg[1]}, 49152, v{rg[0]}")
    a(f"v_bfe_u32 v{t0}, v{v_n}, 2, 1")
    a(f"v_lshlrev_b32 v{t0}, 4, v{t0}")
    a(f"v_lshrrev_b32 v{t1}, 3, v{v_n}")
    a(f"v_lshl_add_u32 v{t0}, v{t1}, 2, v{t0}")
    a(f"v_and_b32 v{t1}, 3, v{v_n}")
    a(f"v_add_u32 v{t0}, v{t0}, v{t1}")
    a(f"s_lshl_b32 s{s_t1}, s{s_dp}, 6")
    a(f"s_lshl_b32 s{s_t2}, s{s_dw}, 5")
    a(f"s_add_u32 s{s_t1}, s{s_t1}, s{s_t2}")
    a(f"v_add_u32 v{t0}, s{s_t1}, v{t0}")
    a(f"v_cvt_f32_u32 v{v_step}, v{t0}")
    a(f"v_mul_f32 v{v_step}, {fhex(1 / 512)}, v{v_step}")
    a(f"v_cvt_f32_u32 v{t1}, v{v_h}")
    a(f"v_add_f32 v{t1}, v{t1}, v{t1}")
    a(f"v_mul_f32 v{v_base}, v{t1}, v{v_step}")
    v_nyq = v_t[7]
    a(f"v_lshlrev_b32 v{v_nyq}, 31, v{t0}")
    a(f"v_or_b32 v{v_nyq}, 0x3f803f80, v{v_nyq}")

    gops = []
    for kz in range(32):
        for dd in range(4):
            K = 8 * kz + 4 * (dd // 2) + dd % 2
            idx = 4 * kz + dd
            ta, tb, tc = v_t[(3 * idx) % 6], v_t[(3 * idx + 1) % 6], v_t[(3 * idx + 2) % 6]
            gops.append(lambda K=K, ta=ta: a(f"v_fmamk_f32 v{ta}, v{v_step}, {fhex(K)}, v{v_base}"))
            gops.append(lambda ta=ta: a(f"v_fract_f32 v{ta}, v{ta}"))
            gops.append(lambda ta=ta, tb=tb: a(f"v_cos_f32 v{tb}, v{ta}"))
            gops.append(lambda ta=ta, tc=tc: a(f"v_sin_f32 v{tc}, v{ta}"))
            gops.append(lambda: a("s_nop 0"))
            gops.append(lambda tb=tb, tc=tc, idx=idx: a(f"v_cvt_pk_bf16_f32 v{G + idx}, v{tb}, -v{tc}"))
            if idx == 0:
                gops.append(lambda: a(f"v_cmp_eq_u32 vcc, 0, v{v_h}"))
                gops.append(lambda: a("s_nop 1"))
                gops.append(lambda: a(f"v_cndmask_b32 v{G}, v{G}, v{v_nyq}, vcc"))
    gper = (len(gops) + NSB - 2) // (NSB - 1)

    def read_ops(s):
        bi = s % NB
        hi = 1 if bi >= 3 else 0
        b = bi * 16384 - hi * 49152
        F = FR[s % 2]
        ops = []
        if s < NSB:
            for ks in range(4):
                ops.append(lambda ks=ks: a.lds(f"ds_read_b128 {vr(F + 8 * ks, 4)}, v{v_rh[hi]} offset:{b + ks * 1024}", f"r{s}"))
                for e in range(2):
                    ops.append(lambda ks=ks, e=e: a.lds(
                        f"ds_read_b64_tr_b16 {vr(F + 8 * ks + 4 + 2 * e, 2)}, v{v_rw[hi]} offset:{b + (16 * ks + 8 * e) * 128}", f"r{s}"))
        else:
            for ks in range(8):
                for e in range(2):
                    ops.append(lambda ks=ks, e=e: a.lds(
                        f"ds_read_b64_tr_b16 {vr(F + 4 * ks + 2 * e, 2)}, v{v_rz[hi]} offset:{b + (16 * ks + 8 * e) * 128}", f"r{s}"))
        return ops

    def mfma_ops(s):
        F = FR[s % 2]
        A = vr(acc, 16)
        if s < NSB:
            return [lambda ks=ks: a(f"v_mfma_f32_32x32x16_bf16 {A}, {vr(F + 8 * ks + 4, 4)}, {vr(F + 8 * ks, 4)}, {A}")
                    for ks in range(4)]
        z = s - NSB
        return [lambda ks=ks: a(f"v_mfma_f32_32x32x16_bf16 {A}, {vr(G + 4 * (8 * z + ks), 4)}, {vr(F + 4 * ks, 4)}, {A}")
                for ks in range(8)]

    gpos = 0
    for s in range(NST + 1):
        a.comment(f"stage {s}")
        if s < NST:
            a.wait(vm=f"d{s}")
            a("s_barrier")
            for f in read_ops(s):
                f()
            nxt = s + NB - 1
            if nxt < NST:
                if nxt == NSB and zwait is not None:
                    zwait()
                for f in dma_ops(nxt):
                    f()
        if s == 1:
            a.wait(vm="x")
            for i in range(8):
                a(f"v_lshlrev_b32 v{acc + 2 * i}, 16, v{v_x + i}")
                a(f"v_and_b32 v{acc + 2 * i + 1}, 0xffff0000, v{v_x + i}")
            a("s_nop 1")
        if s >= 1:
            fill = gops[gpos:gpos + gper]
            gpos += len(fill)
            interleave(a, mfma_ops(s - 1), fill)
        if s < NST:
            a.wait(lg="all")
        if s == NSB - 1:
            assert gpos == len(gops)
    a("s_nop 11")
    for i in range(8):
        a(f"v_cvt_pk_bf16_f32 v{v_x + i}, v{acc + 2 * i}, v{acc + 2 * i + 1}")
    a(f"buffer_store_dwordx4 {vr(v_x, 4)}, v{v_xo}, {sr(SRD_OUT, 4)}, 0 offen")
    a(f"buffer_store_dwordx4 {vr(v_x + 4, 4)}, v{v_xo}, {sr(SRD_OUT, 4)}, 0 offen offset:16")


def gen_k3(name):
    a = Asm()
    V = Regs(1, 256)
    S = Regs(20, 100)
    SRD_X, SRD_WD, SRD_WS, SRD_OUT = 4, 8, 12, 16
    s_p = S.alloc(8, 4)
    s_w = S.alloc()
    v_lane = V.alloc()
    a("s_cmp_ge_u32 s2, 256")
    a(f"s_cbranch_scc1 {name}_done")
    a(f"s_load_dwordx2 {sr(s_p, 2)}, s[0:1], {KA_X}")
    a(f"s_load_dwordx4 {sr(s_p + 4, 4)}, s[0:1], {KA_WD}")
    a(f"s_load_dwordx2 {sr(s_p + 2, 2)}, s[0:1], {KA_WS}")
    a(f"v_lshrrev_b32 v{v_lane}, 6, v0")
    a("s_nop 0")
    a(f"v_readfirstlane_b32 s{s_w}, v{v_lane}")
    a(f"v_and_b32 v{v_lane}, 63, v0")
    a("s_waitcnt lgkmcnt(0)")
    srd(a, SRD_X, s_p, 2048 * 1024)
    srd(a, SRD_WS, s_p + 2, WS_SIZE)
    srd(a, SRD_WD, s_p + 4, 1792 * 1024)
    srd(a, SRD_OUT, s_p + 6, 2048 * 1024)
    gemm2_body(a, V, S, name, 2, s_w, v_lane, SRD_X, SRD_WD, SRD_WS, SRD_OUT)
    a.label(f"{name}_done")
    a("s_endpgm")
    launch = f"; @launch kernel={name} grid=(256,1,1) block=(256,1,1) lds={K3_LDS}"
    return kernel_header(name) + a.text(), kernel_desc(name, V.hi, 60), launch
```

```python
import sys
from gen_common import *
import gen_k1
def build(which=("k1",)):
    hdr = open("cdna_kernels/" + NAME + ".s.ref").read().split("; Override launch")[0]
    launches, code, desc, data = [], [], [], []
    if "k1" in which:
        c, d = gen_k1.gen_k1("k1_kernel"); code.append(c); desc.append(d); data.append(gen_k1.gen_ftab())
        launches.append(f"; @launch kernel=k1_kernel grid=(256,1,1) block=(512,1,1) lds={gen_k1.K1_LDS}")
    if "k2" in which:
        import gen_k2
        c, d, t, l = gen_k2.gen_k2("k2_kernel"); code.append(c); desc.append(d); data.append(t); launches.append(l)
    if "k3" in which:
        import gen_k3
        c, d, l = gen_k3.gen_k3("k3_kernel"); code.append(c); desc.append(d); launches.append(l)
    s = hdr + "\n".join(launches) + '\n.amdgcn_target "amdgcn-amd-amdhsa--gfx950"\n.text\n' + "\n".join(code)
    s += '.section .rodata,"a"\n' + "\n".join(desc) + "\n".join(data)
    return s
if __name__ == "__main__":
    which = sys.argv[2].split(",") if len(sys.argv) > 2 else ("k1", "k2", "k3")
    open(sys.argv[1], "w").write(build(which))
```

```python
import numpy as np, math

NAME = "parallel_sum__spectral_gfnet__glu_gated_reglu__prompt"

WS_H = 0
WS_U = 8 << 20
WS_W = 10 << 20
WS_Z = 13 << 20
WS_WD = 16 << 20
WS_SIZE = 18 << 20

KA_X, KA_WR, KA_WI, KA_BX, KA_WG, KA_WU, KA_WD, KA_OUT, KA_DBG, KA_WS = [8 * i for i in range(10)]


def bf16_bits(a):
    a = np.asarray(a, dtype=np.float32)
    u = a.view(np.uint32).astype(np.uint64)
    return ((u + 0x7FFF + ((u >> 16) & 1)) >> 16).astype(np.uint32)


def exact_cos_sin(j, n):
    j = np.asarray(j) % n
    c = np.cos(2 * np.pi * j / n)
    s = np.sin(2 * np.pi * j / n)
    c = np.where((4 * j) % n == 0, np.round(c), c)
    s = np.where((4 * j) % n == 0, np.round(s), s)
    return c + 0.0, s + 0.0


class Asm:
    def __init__(self):
        self.lines = []
        self.vm = []
        self.lg = []

    def __call__(self, s):
        for l in s.strip("\n").split("\n"):
            self.lines.append("  " + l.strip())

    def label(self, l):
        self.lines.append(l + ":")

    def comment(self, c):
        self.lines.append("  ; " + c)

    def vmem(self, s, tag):
        self(s)
        self.vm.append(tag)

    def lds(self, s, tag):
        self(s)
        self.lg.append(tag)

    @staticmethod
    def _count(q, tags):
        idx = [i for i, t in enumerate(q) if t in tags]
        if not idx:
            return None
        return len(q) - 1 - idx[-1]

    def wait(self, vm=None, lg=None):
        parts = []
        if vm is not None:
            tags = vm if isinstance(vm, (list, tuple, set)) else [vm]
            n = 0 if vm == "all" else self._count(self.vm, tags)
            if n is not None:
                assert n <= 63
                parts.append(f"vmcnt({n})")
                self.vm = self.vm[len(self.vm) - n:] if n else []
        if lg is not None:
            tags = lg if isinstance(lg, (list, tuple, set)) else [lg]
            n = 0 if lg == "all" else self._count(self.lg, tags)
            if n is not None:
                n2 = min(n, 15)
                parts.append(f"lgkmcnt({n2})")
                self.lg = self.lg[len(self.lg) - n2:] if n2 else []
        if parts:
            self("s_waitcnt " + " ".join(parts))

    def text(self):
        return "\n".join(self.lines) + "\n"


class Regs:
    def __init__(self, start, limit):
        self.n = start
        self.limit = limit
        self.hi = start

    def alloc(self, cnt=1, align=1):
        self.n = (self.n + align - 1) // align * align
        r = self.n
        self.n += cnt
        assert self.n <= self.limit, f"out of registers {self.n} > {self.limit}"
        self.hi = max(self.hi, self.n)
        return r


def vr(base, cnt):
    return f"v[{base}:{base + cnt - 1}]"


def sr(base, cnt):
    return f"s[{base}:{base + cnt - 1}]"


def srd(a, d, base, nbytes):
    a(f"s_mov_b32 s{d}, s{base}")
    a(f"s_and_b32 s{d + 1}, s{base + 1}, 0xffff")
    a(f"s_mov_b32 s{d + 2}, {nbytes}")
    a(f"s_mov_b32 s{d + 3}, 0x00020000")


def kernel_header(name):
    return f".globl {name}\n.p2align 8\n.type {name},@function\n{name}:\n"


def kernel_desc(name, vgpr, sgpr, accum=None):
    vg = (vgpr + 7) // 8 * 8
    acc = accum if accum is not None else (vgpr + 3) // 4 * 4
    return f""".p2align 6
.amdhsa_kernel {name}
  .amdhsa_next_free_vgpr {vg}
  .amdhsa_next_free_sgpr {sgpr}
  .amdhsa_accum_offset {acc}
  .amdhsa_group_segment_fixed_size 0
  .amdhsa_kernarg_size 80
  .amdhsa_user_sgpr_count 2
  .amdhsa_user_sgpr_kernarg_segment_ptr 1
  .amdhsa_system_sgpr_workgroup_id_x 1
.end_amdhsa_kernel
"""


def interleave(a, mfmas, fillers):
    n = len(mfmas)
    per = [len(fillers) // n + (1 if i < len(fillers) % n else 0) for i in range(n)]
    k = 0
    for i, m in enumerate(mfmas):
        m()
        for _ in range(per[i]):
            fillers[k]()
            k += 1


import os
PROF = int(os.environ.get("PROF", "0"))
WS_PROF = 20 << 20


class Prof:
    def __init__(self, a, S, nmax, region):
        self.a, self.n, self.nmax, self.region = a, 0, nmax, region
        if PROF:
            self.base = S.alloc(2 * nmax, 2)

    def stamp(self, real=False):
        if not PROF:
            return
        assert self.n < self.nmax
        self.a(f"{'s_memrealtime' if real else 's_memtime'} {sr(self.base + 2 * self.n, 2)}")
        self.n += 1

    def dump(self, srd_ws, s_wg, s_w, vtmp, stmp, wpw):
        if not PROF:
            return
        a = self.a
        a("s_waitcnt lgkmcnt(0)")
        self.srd = srd_ws
        a(f"s_mov_b32 s{self.srd + 2}, {64 << 20}")
        a(f"s_mul_i32 s{stmp}, s{s_wg}, {wpw}")
        a(f"s_add_u32 s{stmp}, s{stmp}, s{s_w}")
        a(f"s_lshl_b32 s{stmp}, s{stmp}, 8")
        a(f"s_add_u32 s{stmp}, s{stmp}, {WS_PROF + self.region * (1 << 20)}")
        a(f"v_mov_b32 v{vtmp + 1}, 0")
        for i in range(self.n):
            a(f"v_mov_b32 v{vtmp}, s{self.base + 2 * i}")
            a(f"buffer_store_dword v{vtmp}, v{vtmp + 1}, {sr(self.srd, 4)}, s{stmp} offen offset:{4 * i}")
            a("s_nop 1")
```

```python
from gen_common import *

K1_LDS_X = 0
K1_LDS_G = 65536
K1_LDS_U = 114688
K1_LDS = 163840
K1_LDS_ST = K1_LDS_G + 2 * 16384
K1_LDS_CS = K1_LDS_ST + 8192
NSTAGE = 8
WT = os.environ.get("K1_WT", " sc1")
WTH = os.environ.get("K1_WTH", "")
TOUCH_WD = int(os.environ.get("TOUCH_WD", "1"))
TOUCH = int(os.environ.get("TOUCH", "0"))
TOUCH_NEXT = int(os.environ.get("TOUCH_NEXT", "1"))
TLB_WARM = int(os.environ.get("TLB_WARM", "0"))
SENT = int(os.environ.get("SENT", "-1"))
WDST = int(os.environ.get("WDST", "6"))


def gen_k1(name):
    a = Asm()
    V = Regs(1, 256)
    S = Regs(36, 102)
    SRD_X, SRD_G, SRD_U, SRD_WS, SRD_WR, SRD_WI, SRD_WD, SRD_T = 4, 8, 12, 16, 20, 24, 28, 32
    s_rb, s_cg, s_w, s_mi, s_ni, s_rs, s_goff, s_uoff = [S.alloc() for _ in range(8)]
    s_t0, s_t1, s_t2, s_t3 = [S.alloc() for _ in range(4)]
    s_sx, s_sw, s_sw2, s_rs4, s_rs64, s_m0x, s_tile = [S.alloc() for _ in range(7)]
    s_p = S.alloc(14, 4)
    s_tab = S.alloc(2, 2)

    v_lane, v_n, v_h = V.alloc(), V.alloc(), V.alloc()
    v_t = [V.alloc() for _ in range(8)]
    v_dx = [V.alloc(), V.alloc()]
    v_dg, v_du = V.alloc(), V.alloc()
    v_xa = [V.alloc() for _ in range(4)]
    v_xs = V.alloc()
    v_wa = [V.alloc(), V.alloc()]
    v_st = [[V.alloc() for _ in range(4)] for _ in range(2)]
    v_f1a, v_f1s, v_f2a, v_f2s = [V.alloc() for _ in range(4)]
    v_pa = [V.alloc() for _ in range(3)]
    v_f1 = V.alloc(4, 4)
    v_f2 = V.alloc(4, 4)
    v_fi = V.alloc(8, 4)
    v_cs = [V.alloc(4, 4), V.alloc(4, 4)]
    v_sel = V.alloc(4, 4)
    v_XS = [V.alloc(4, 4) for _ in range(2)]
    v_X = [[V.alloc(4, 4) for _ in range(2)] for _ in range(2)]
    v_W = [[V.alloc(4, 4) for _ in range(2)] for _ in range(2)]
    v_acc = [[V.alloc(16, 4) for _ in range(2)] for _ in range(2)]
    v_e = V.alloc(16, 4)
    v_FA = [V.alloc(4, 4) for _ in range(2)]
    v_FB = [V.alloc(4, 4) for _ in range(2)]
    v_cso = V.alloc()
    v_sn = V.alloc(4, 4)
    t0, t1, t2, t3, t4 = v_t[:5]
    u0, u1, u2, u3 = v_t[4:8]

    pf = Prof(a, S, 15, 0)
    a("s_cmp_ge_u32 s2, 256")
    a(f"s_cbranch_scc1 {name}_done")
    pf.stamp(real=True)
    pf.stamp()
    a(f"s_load_dwordx2 {sr(s_p, 2)}, s[0:1], {KA_X}")
    a(f"s_load_dwordx4 {sr(s_p + 4, 4)}, s[0:1], {KA_WG}")
    a(f"s_load_dwordx2 {sr(s_p + 2, 2)}, s[0:1], {KA_WS}")
    a(f"s_load_dwordx4 {sr(s_p + 8, 4)}, s[0:1], {KA_WR}")
    a(f"s_load_dwordx2 {sr(s_p + 12, 2)}, s[0:1], {KA_WD}")
    a(f"v_lshrrev_b32 v{t0}, 6, v0")
    a(f"v_and_b32 v{v_lane}, 63, v0")
    a(f"v_readfirstlane_b32 s{s_w}, v{t0}")
    a(f"s_bfe_u32 s{s_rb}, s2, 0x10002")
    a(f"s_lshl_b32 s{s_rb}, s{s_rb}, 3")
    a(f"s_bfe_u32 s{s_t2}, s2, 0x30003")
    a(f"s_add_u32 s{s_rb}, s{s_rb}, s{s_t2}")
    a(f"s_and_b32 s{s_cg}, s2, 3")
    a(f"s_lshl_b32 s{s_cg}, s{s_cg}, 2")
    a(f"s_lshr_b32 s{s_t2}, s2, 6")
    a(f"s_add_u32 s{s_cg}, s{s_cg}, s{s_t2}")
    a(f"s_sub_u32 s{s_t0}, s{s_cg}, 14")
    a(f"s_lshl_b32 s{s_t0}, s{s_t0}, 9")
    a(f"s_add_u32 s{s_t1}, s{s_t0}, 256")
    a(f"s_lshl_b32 s{s_t2}, s{s_cg}, 8")
    a(f"s_movk_i32 s{s_rs}, 3584")
    a(f"s_cmp_ge_u32 s{s_cg}, 14")
    a(f"s_cselect_b32 s{s_rs}, 1024, s{s_rs}")
    a(f"s_cselect_b32 s{s_goff}, s{s_t0}, s{s_t2}")
    a(f"s_cselect_b32 s{s_uoff}, s{s_t1}, s{s_t2}")
    a(f"s_lshl_b32 s{s_rs4}, s{s_rs}, 2")
    a(f"s_lshl_b32 s{s_rs64}, s{s_rs}, 6")
    a(f"s_getpc_b64 {sr(s_tab, 2)}")
    a(f"s_add_u32 s{s_tab}, s{s_tab}, ftab@rel32@lo+4")
    a(f"s_addc_u32 s{s_tab + 1}, s{s_tab + 1}, ftab@rel32@hi+12")

    a(f"v_lshrrev_b32 v{t0}, 3, v{v_lane}")
    a(f"v_and_b32 v{t1}, 7, v{v_lane}")
    a(f"v_lshrrev_b32 v{t2}, 4, v{v_lane}")
    a(f"v_xor_b32 v{t1}, v{t1}, v{t2}")
    a(f"v_lshlrev_b32 v{t1}, 4, v{t1}")
    a(f"v_lshl_add_u32 v{t1}, v{t0}, 16, v{t1}")
    a(f"s_and_b32 s{s_t0}, s{s_w}, 1")
    a(f"s_lshl_b32 s{s_t0}, s{s_t0}, 20")
    a(f"s_lshr_b32 s{s_t1}, s{s_w}, 1")
    a(f"s_lshl_b32 s{s_t1}, s{s_t1}, 10")
    a(f"s_add_u32 s{s_t0}, s{s_t0}, s{s_t1}")
    a(f"s_lshl_b32 s{s_t1}, s{s_rb}, 12")
    a(f"s_add_u32 s{s_t0}, s{s_t0}, s{s_t1}")
    a(f"v_add_u32 v{v_dx[0]}, s{s_t0}, v{t1}")
    a(f"v_xor_b32 v{t1}, 0x80040, v{t1}")
    a(f"v_add_u32 v{v_dx[1]}, s{s_t0}, v{t1}")
    a(f"v_lshlrev_b32 v{t3}, 6, v{t2}")
    a(f"v_and_b32 v{t1}, 15, v{v_lane}")
    a(f"v_lshlrev_b32 v{t1}, 4, v{t1}")
    a(f"v_xor_b32 v{t1}, v{t1}, v{t3}")
    a(f"s_lshl_b32 s{s_t0}, s{s_w}, 3")
    a(f"v_add_u32 v{t0}, s{s_t0}, v{t2}")
    a(f"v_mul_lo_u32 v{t0}, v{t0}, s{s_rs}")
    a(f"v_add3_u32 v{v_dg}, v{t0}, v{t1}, s{s_goff}")
    a(f"v_xor_b32 v{t1}, 32, v{t1}")
    a(f"v_add3_u32 v{v_du}, v{t0}, v{t1}, s{s_uoff}")
    a(f"s_lshl_b32 s{s_m0x}, s{s_w}, 11")
    a(f"s_mov_b32 s{s_sx}, 0")
    a(f"s_mov_b32 s{s_sw}, 0")
    a(f"s_mov_b32 s{SRD_X + 2}, {2048 * 1024}")
    a(f"s_mov_b32 s{SRD_X + 3}, 0x00020000")
    a(f"s_mov_b32 s{SRD_G + 3}, 0x00020000")
    a(f"s_mov_b32 s{SRD_U + 3}, 0x00020000")
    a(f"s_lshl_b32 s{SRD_G + 2}, s{s_rs}, 9")
    a(f"s_lshl_b32 s{SRD_U + 2}, s{s_rs}, 9")
    a("s_waitcnt lgkmcnt(0)")
    a(f"s_mov_b32 s{SRD_X}, s{s_p}")
    a(f"s_and_b32 s{SRD_X + 1}, s{s_p + 1}, 0xffff")
    a(f"s_cmp_ge_u32 s{s_cg}, 14")
    a(f"s_cselect_b32 s{SRD_G}, s{s_tab}, s{s_p + 4}")
    a(f"s_cselect_b32 s{SRD_G + 1}, s{s_tab + 1}, s{s_p + 5}")
    a(f"s_cselect_b32 s{SRD_U}, s{s_tab}, s{s_p + 6}")
    a(f"s_cselect_b32 s{SRD_U + 1}, s{s_tab + 1}, s{s_p + 7}")
    a(f"s_and_b32 s{SRD_G + 1}, s{SRD_G + 1}, 0xffff")
    a(f"s_and_b32 s{SRD_U + 1}, s{SRD_U + 1}, 0xffff")

    def mk(ldsbase, vaddr, srdn, soff, mid, tag, post=None):
        def f():
            a(f"s_add_u32 m0, s{s_m0x}, {ldsbase}")
            a(mid)
            a.vmem(f"buffer_load_dwordx4 v{vaddr}, {sr(srdn, 4)}, s{soff} offen lds", tag)
            if post:
                a(post)
        return f

    def dma_x(stage):
        b = K1_LDS_X + (stage % 4) * 16384
        return [mk(b, v_dx[0], SRD_X, s_sx, "s_nop 0", f"x{stage}"),
                mk(b + 1024, v_dx[1], SRD_X, s_sx, "s_nop 0", f"x{stage}", post=f"s_add_u32 s{s_sx}, s{s_sx}, 128")]

    def dma_w(stage):
        b = (stage % 3) * 16384
        tag = f"w{stage}"
        return [mk(K1_LDS_G + b, v_dg, SRD_G, s_sw, f"s_add_u32 s{s_sw2}, s{s_sw}, s{s_rs4}", tag),
                mk(K1_LDS_U + b, v_du, SRD_U, s_sw, "s_nop 0", tag),
                mk(K1_LDS_G + b + 1024, v_dg, SRD_G, s_sw2, f"s_add_u32 s{s_sw}, s{s_sw}, s{s_rs64}", tag),
                mk(K1_LDS_U + b + 1024, v_du, SRD_U, s_sw2, "s_nop 0", tag)]

    for f in dma_x(0) + dma_w(0):
        f()
    a(f"v_and_b32 v{v_n}, 31, v{v_lane}")
    a(f"v_lshrrev_b32 v{v_h}, 5, v{v_lane}")
    a(f"s_and_b32 s{s_mi}, s{s_w}, 3")
    a(f"s_lshr_b32 s{s_ni}, s{s_w}, 2")
    d1 = dma_x(1) + dma_w(1) + dma_x(2)
    a(f"v_bfe_u32 v{t0}, v{v_n}, 1, 3")
    a(f"v_xor_b32 v{t0}, v{t0}, v{v_h}")
    a(f"s_lshl_b32 s{s_t0}, s{s_ni}, 13")
    a(f"v_lshlrev_b32 v{t1}, 7, v{v_n}")
    a(f"v_add_u32 v{t1}, s{s_t0}, v{t1}")
    a(f"v_lshl_add_u32 v{v_xa[0]}, v{t0}, 4, v{t1}")
    d1[0]()
    for j in range(1, 4):
        a(f"v_xor_b32 v{v_xa[j]}, {32 * j}, v{v_xa[0]}")
    a(f"s_lshl_b32 s{s_t0}, s{s_mi}, 5")
    a(f"v_xor_b32 v{v_xs}, s{s_t0}, v{v_xa[0]}")
    d1[1]()
    a(f"v_bfe_u32 v{t2}, v{v_lane}, 4, 1")
    a(f"v_bfe_u32 v{t3}, v{v_lane}, 2, 2")
    a(f"v_lshl_add_u32 v{t4}, v{t3}, 1, v{t2}")
    a(f"s_lshl_b32 s{s_tile}, s{s_mi}, 1")
    a(f"s_add_u32 s{s_tile}, s{s_tile}, s{s_ni}")
    a(f"v_xor_b32 v{t4}, s{s_tile}, v{t4}")
    d1[2]()
    a(f"v_lshlrev_b32 v{t4}, 5, v{t4}")
    a(f"v_lshl_add_u32 v{t4}, v{t3}, 8, v{t4}")
    a(f"v_and_b32 v{t3}, 3, v{v_lane}")
    a(f"v_lshl_add_u32 v{t4}, v{t3}, 3, v{t4}")
    a(f"v_lshl_add_u32 v{t4}, v{v_h}, 11, v{t4}")
    d1[3]()
    a(f"v_mul_u32_u24 v{t2}, {K1_LDS_U - K1_LDS_G}, v{t2}")
    a(f"v_add_u32 v{t4}, v{t4}, v{t2}")
    a(f"v_add_u32 v{v_wa[0]}, {K1_LDS_G}, v{t4}")
    a(f"v_xor_b32 v{v_wa[1]}, 32, v{v_wa[0]}")
    d1[4]()
    a(f"v_bfe_u32 v{t2}, v{v_lane}, 4, 1")
    a(f"v_cmp_eq_u32 vcc, v{t3}, v{t2}")
    a(f"v_mov_b32 v{t2}, 0x3f803f80")
    a(f"v_mov_b32 v{t3}, 0")
    d1[5]()
    for i in range(4):
        a(f"v_cndmask_b32 v{v_sel + i}, v{t3}, v{t2}, vcc")
    d1[6]()
    for nt in range(2):
        for i in range(4):
            a(f"v_mov_b32 v{v_st[nt][i]}, 0")
    d1[7]()

    s_tpar, s_toff, s_tstep = s_tab, s_tab + 1, s_p

    def touch_setup():
        a(f"v_and_b32 v{u0}, 15, v{v_lane}")
        a(f"s_cmp_ge_u32 s{s_w}, 4")
        a(f"s_cbranch_scc1 {name}_tx")
        a(f"s_and_b32 s{s_tpar}, s{s_w}, 1")
        a(f"s_and_b32 s{s_t1}, s{s_rb}, 7")
        a(f"v_lshrrev_b32 v{u1}, 1, v{u0}")
        a(f"v_lshl_add_u32 v{u1}, v{u1}, 3, s{s_t1}")
        a(f"v_mul_lo_u32 v{u1}, v{u1}, s{s_rs}")
        a(f"v_and_b32 v{u0}, 1, v{u0}")
        a(f"v_lshl_add_u32 v{v_pa[2]}, v{u0}, 7, v{u1}")
        a(f"s_cmp_ge_u32 s{s_w}, 2")
        a(f"s_cselect_b32 s{s_toff}, s{s_uoff}, s{s_goff}")
        a(f"s_cselect_b32 s{SRD_T}, s{SRD_U}, s{SRD_G}")
        a(f"s_cselect_b32 s{SRD_T + 1}, s{SRD_U + 1}, s{SRD_G + 1}")
        a(f"s_mov_b32 s{SRD_T + 2}, s{SRD_G + 2}")
        a(f"s_mov_b32 s{s_tstep}, s{s_rs64}")
        a(f"s_branch {name}_tj")
        a.label(f"{name}_tx")
        a(f"s_bfe_u32 s{s_tpar}, s{s_w}, 0x10001")
        a(f"s_and_b32 s{s_toff}, s{s_w}, 1")
        a(f"s_lshl_b32 s{s_toff}, s{s_toff}, 20")
        a(f"s_and_b32 s{s_t1}, s{s_cg}, 3")
        a(f"s_lshl_b32 s{s_t1}, s{s_t1}, 10")
        a(f"s_add_u32 s{s_toff}, s{s_toff}, s{s_t1}")
        a(f"s_lshl_b32 s{s_t1}, s{s_rb}, 12")
        a(f"s_add_u32 s{s_toff}, s{s_toff}, s{s_t1}")
        a(f"v_lshlrev_b32 v{v_pa[2]}, 16, v{u0}")
        a(f"s_mov_b32 s{SRD_T}, s{SRD_X}")
        a(f"s_mov_b32 s{SRD_T + 1}, s{SRD_X + 1}")
        a(f"s_mov_b32 s{SRD_T + 2}, s{SRD_X + 2}")
        a(f"s_movk_i32 s{s_tstep}, 128")
        a.label(f"{name}_tj")
        a(f"s_mov_b32 s{SRD_T + 3}, 0x00020000")
        a(f"s_add_u32 s{s_t1}, s{s_tpar}, 2")
        a(f"s_mul_i32 s{s_t1}, s{s_t1}, s{s_tstep}")
        a(f"s_add_u32 s{s_toff}, s{s_toff}, s{s_t1}")
        a(f"s_lshl_b32 s{s_tstep}, s{s_tstep}, 1")

    def touch(stage):
        if stage is not None:
            a(f"s_cmp_lg_u32 s{s_tpar}, {stage & 1}")
            a(f"s_cbranch_scc1 {name}_tn{stage}")
        a(f"buffer_load_dword v{v_pa[1]}, v{v_pa[2]}, {sr(SRD_T, 4)}, s{s_toff} offen")
        a(f"s_add_u32 s{s_toff}, s{s_toff}, s{s_tstep}")
        if stage is not None:
            a.label(f"{name}_tn{stage}")
    if TOUCH:
        touch_setup()
        touch(None)
    srd(a, SRD_WS, s_p + 2, WS_SIZE)
    srd(a, SRD_WR, s_p + 8, 2048 * 514)
    srd(a, SRD_WI, s_p + 10, 2048 * 514)
    srd(a, SRD_WD, s_p + 12, 1792 * 1024)

    side = {}

    def lines(txt):
        return [lambda l=l: a(l) for l in txt.strip().split("\n")]
    job = lines(f"""
v_lshrrev_b32 v{u0}, 3, v{v_lane}
v_and_b32 v{u1}, 7, v{v_lane}
s_and_b32 s{s_t0}, s2, 3
s_lshl_b32 s{s_t0}, s{s_t0}, 3
s_add_u32 s{s_t0}, s{s_t0}, s{s_w}
s_lshl_b32 s{s_t0}, s{s_t0}, 3
v_add_u32 v{u1}, s{s_t0}, v{u1}
s_lshr_b32 s{s_t1}, s2, 2
s_and_b32 s{s_t1}, s{s_t1}, 3
s_lshr_b32 s{s_t2}, s2, 4
v_lshrrev_b32 v{u2}, 2, v{u0}
v_lshlrev_b32 v{u2}, 4, v{u2}
v_and_b32 v{u3}, 3, v{u0}
v_add_u32 v{u2}, v{u2}, v{u3}
s_lshl_b32 s{s_t3}, s{s_t1}, 2
v_add_u32 v{u2}, s{s_t3}, v{u2}
s_lshl_b32 s{s_t3}, s{s_t2}, 7
v_add_u32 v{u2}, s{s_t3}, v{u2}
v_mul_u32_u24 v{u2}, 514, v{u2}
v_lshl_add_u32 v{v_f1a}, v{u1}, 1, v{u2}
v_add_u32 v{v_f2a}, 512, v{u2}
s_lshl_b32 s{s_t3}, s{s_t2}, 9
s_lshl_b32 s{s_t1}, s{s_t1}, 7
s_add_u32 s{s_t3}, s{s_t3}, s{s_t1}
s_add_u32 s{s_t3}, s{s_t3}, {WS_W}
v_lshl_add_u32 v{u0}, v{u0}, 4, s{s_t3}
v_lshl_add_u32 v{v_f1s}, v{u1}, 13, v{u0}
v_add_u32 v{v_f2s}, {256 * 8192}, v{u0}
""")
    side[4] = job

    def gl(dst, va, srdn, i):
        def f():
            a(f"s_mov_b32 s{s_t0}, {i * 32 * 514}")
            a.vmem(f"buffer_load_ushort v{dst}, v{va}, {sr(srdn, 4)}, s{s_t0} offen", "f1")
        return f
    job = []
    for i in range(4):
        job.append(gl(v_f1 + i, v_f1a, SRD_WR, i))
        job.append(gl(v_fi + i, v_f1a, SRD_WI, i))
    gath = job
    side[6] = []

    def c256_test(lbl):
        a(f"s_and_b32 s{s_t0}, s2, 3")
        a(f"s_lshl_b32 s{s_t0}, s{s_t0}, 3")
        a(f"s_add_u32 s{s_t0}, s{s_t0}, s{s_w}")
        a(f"s_cmp_lg_u32 s{s_t0}, 31")
        a(f"s_cbranch_scc1 {name}_{lbl}")

    def col256_load():
        c256_test("c256a")
        for i in range(4):
            a(f"s_mov_b32 s{s_t0}, {i * 32 * 514}")
            a(f"buffer_load_ushort v{v_f2 + i}, v{v_f2a}, {sr(SRD_WR, 4)}, s{s_t0} offen")
            a(f"buffer_load_ushort v{v_fi + 4 + i}, v{v_f2a}, {sr(SRD_WI, 4)}, s{s_t0} offen")
        a.label(f"{name}_c256a")
    side[6] = [col256_load] + gath

    def side_store():
        a.wait(vm="f1")
        for i in range(4):
            a(f"v_lshl_or_b32 v{v_f1 + i}, v{v_fi + i}, 16, v{v_f1 + i}")
        a.vmem(f"buffer_store_dwordx4 {vr(v_f1, 4)}, v{v_f1s}, {sr(SRD_WS, 4)}, 0 offen{WT}", "st")
        c256_test("c256b")
        for i in range(4):
            a(f"v_lshl_or_b32 v{v_f2 + i}, v{v_fi + 4 + i}, 16, v{v_f2 + i}")
        a(f"buffer_store_dwordx4 {vr(v_f2, 4)}, v{v_f2s}, {sr(SRD_WS, 4)}, 0 offen{WT}")
        a.label(f"{name}_c256b")

    job = lines(f"""
s_lshr_b32 s{s_t0}, s2, 3
s_lshl_b32 s{s_t0}, s{s_t0}, 3
s_add_u32 s{s_t0}, s{s_t0}, s{s_w}
s_mul_i32 s{s_t0}, s{s_t0}, 7168
v_min_u32 v{u3}, 55, v{v_lane}
v_lshlrev_b32 v{u3}, 7, v{u3}
v_add_u32 v{v_pa[0]}, s{s_t0}, v{u3}
""")
    job.append(lambda: a.vmem(f"buffer_load_dword v{v_pa[1]}, v{v_pa[0]}, {sr(SRD_WD, 4)}, 0 offen", "pf"))
    def flag_init():
        a(f"s_lshl_b32 s{s_t0}, s2, 3")
        a(f"s_add_u32 s{s_t0}, s{s_t0}, s{s_w}")
        a(f"s_lshl_b32 s{s_t0}, s{s_t0}, 10")
        a(f"s_add_u32 s{s_t0}, s{s_t0}, {WS_Z}")
        a(f"v_lshlrev_b32 v{u3}, 4, v{v_lane}")
        for i in range(4):
            a(f"v_mov_b32 v{v_sn + i}, -1")
        a.vmem(f"buffer_store_dwordx4 {vr(v_sn, 4)}, v{u3}, {sr(SRD_WS, 4)}, s{s_t0} offen sc1", "st")
    def touch_next():
        a(f"s_cmp_ge_u32 s2, 8")
        a(f"s_cbranch_scc1 {name}_notn")
        a(f"s_getpc_b64 {sr(SRD_T, 2)}")
        a(f"s_add_u32 s{SRD_T}, s{SRD_T}, ctab@rel32@lo+4")
        a(f"s_addc_u32 s{SRD_T + 1}, s{SRD_T + 1}, ctab@rel32@hi+12")
        a(f"s_mov_b32 s{SRD_T + 2}, 24576")
        a(f"s_lshl_b32 s{s_t0}, s{s_w}, 13")
        a(f"s_cmp_lt_u32 s{s_w}, 3")
        a(f"s_cbranch_scc1 {name}_tnc")
        a(f"s_getpc_b64 {sr(SRD_T, 2)}")
        a(f"s_add_u32 s{SRD_T}, s{SRD_T}, k23_kernel@rel32@lo+4")
        a(f"s_addc_u32 s{SRD_T + 1}, s{SRD_T + 1}, k23_kernel@rel32@hi+12")
        a(f"s_mov_b32 s{SRD_T + 2}, k23_end-k23_kernel")
        a(f"s_sub_u32 s{s_t0}, s{s_t0}, {3 * 8192}")
        a.label(f"{name}_tnc")
        a(f"s_and_b32 s{SRD_T + 1}, s{SRD_T + 1}, 0xffff")
        a(f"s_mov_b32 s{SRD_T + 3}, 0x00020000")
        a(f"v_lshlrev_b32 v{u3}, 7, v{v_lane}")
        a(f"buffer_load_dword v{v_pa[1]}, v{u3}, {sr(SRD_T, 4)}, s{s_t0} offen")
        a.label(f"{name}_notn")
    if TOUCH_NEXT:
        side[6] = side[6] + [touch_next]

    def tlb_warm():
        a(f"v_min_u32 v{u3}, 7, v{v_lane}")
        a(f"v_lshlrev_b32 v{u3}, 21, v{u3}")
        a(f"s_cmp_lg_u32 s{s_w}, 7")
        a(f"s_cbranch_scc1 {name}_notlb")
        a(f"buffer_load_dword v{v_pa[1]}, v{u3}, {sr(SRD_WS, 4)}, 0 offen")
        a(f"buffer_load_dword v{v_pa[0]}, v{u3}, {sr(SRD_WR, 4)}, 0 offen")
        a(f"buffer_load_dword v{v_pa[2]}, v{u3}, {sr(SRD_WI, 4)}, 0 offen")
        a.label(f"{name}_notlb")
    if TLB_WARM:
        side[3] = [tlb_warm]
    if TOUCH_WD:
        side[WDST] = side.get(WDST, []) + job
    if TOUCH:
        for st in range(4):
            side[st] = [lambda st=st: touch(st + 4)] + [lambda: None] * 3 + side.get(st, [])

    def read_ops(stage, j):
        bw = (stage % 3) * 16384 + j * 4096
        bx = (stage % 4) * 16384
        ops = []
        tag = f"r{stage}_{j}"
        for mt in range(2):
            for e in range(2):
                ops.append(lambda mt=mt, e=e: a.lds(
                    f"ds_read_b64_tr_b16 {vr(v_W[j % 2][mt] + 2 * e, 2)}, v{v_wa[mt]} offset:{bw + e * 1024}", tag))
            ops.append(lambda nt=mt: a.lds(
                f"ds_read_b128 {vr(v_X[j % 2][nt], 4)}, v{v_xa[j]} offset:{bx + nt * 4096}", tag))
        return ops

    def stat_reads(xs):
        bx = (xs % 4) * 16384
        return [lambda nt=nt: a.lds(f"ds_read_b128 {vr(v_XS[nt], 4)}, v{v_xs} offset:{bx + nt * 4096}", "xs") for nt in range(2)]

    def stat_ops():
        ops = []
        for nt in range(2):
            for d in range(4):
                src = v_XS[nt] + d
                lo, hi = v_t[(2 * d) % 4], v_t[(2 * d + 1) % 4]
                slo, shi, qlo, qhi = v_st[nt]
                ops.append(lambda src=src, lo=lo: a(f"v_lshlrev_b32 v{lo}, 16, v{src}"))
                ops.append(lambda src=src, hi=hi: a(f"v_and_b32 v{hi}, 0xffff0000, v{src}"))
                ops.append(lambda lo=lo, slo=slo: a(f"v_add_f32 v{slo}, v{slo}, v{lo}"))
                ops.append(lambda hi=hi, shi=shi: a(f"v_add_f32 v{shi}, v{shi}, v{hi}"))
                ops.append(lambda lo=lo, qlo=qlo: a(f"v_fmac_f32 v{qlo}, v{lo}, v{lo}"))
                ops.append(lambda hi=hi, qhi=qhi: a(f"v_fmac_f32 v{qhi}, v{hi}, v{hi}"))
        return ops

    def sel_op(j, mt, first):
        c = "0" if first else vr(v_cs[mt], 4)
        return lambda: a(f"v_mfma_f32_16x16x32_bf16 {vr(v_cs[mt], 4)}, {vr(v_sel, 4)}, {vr(v_W[j % 2][mt], 4)}, {c}")

    ORDER = ((0, 0), (1, 0), (0, 1), (1, 1))

    def mfma_ops(stage, j):
        ops = []
        first = stage == 0 and j == 0
        for mt, nt in ORDER:
            acc = vr(v_acc[mt][nt], 16)
            ops.append(lambda mt=mt, nt=nt, acc=acc: a(
                f"v_mfma_f32_32x32x16_bf16 {acc}, {vr(v_W[j % 2][mt], 4)}, {vr(v_X[j % 2][nt], 4)}, {'0' if first else acc}"))
        return ops

    def merge(a_list, b_list):
        out = []
        na, nb = len(a_list), len(b_list)
        ia = ib = 0
        while ia < na or ib < nb:
            if ib >= nb or (ia < na and ia * nb <= ib * na):
                out.append(a_list[ia]); ia += 1
            else:
                out.append(b_list[ib]); ib += 1
        return out

    e = v_e
    sv = [e + 2 * p for p in range(8)]
    qv = [e + 2 * p + 1 for p in range(8)]
    m_, mb, dl, c2, c64, tt = v_t[0], v_t[1], v_t[2], v_t[3], v_t[4], v_t[5]
    mA, mB, rA, rB = v_st[0]

    publish = lines(f"""
v_lshlrev_b32 v{u0}, 3, v{v_n}
v_lshl_add_u32 v{u0}, v{v_h}, 10, v{u0}
s_lshl_b32 s{s_t1}, s{s_ni}, 9
s_lshl_b32 s{s_t2}, s{s_mi}, 11
s_add_u32 s{s_t1}, s{s_t1}, s{s_t2}
s_add_u32 s{s_t1}, s{s_t1}, {K1_LDS_ST}
v_add_u32 v{u0}, s{s_t1}, v{u0}
v_add_f32 v{e}, v{v_st[0][0]}, v{v_st[0][1]}
v_add_f32 v{e + 1}, v{v_st[0][2]}, v{v_st[0][3]}
v_add_f32 v{e + 2}, v{v_st[1][0]}, v{v_st[1][1]}
v_add_f32 v{e + 3}, v{v_st[1][2]}, v{v_st[1][3]}
""")
    publish.append(lambda: a.lds(f"ds_write_b64 v{u0}, {vr(e, 2)}", "w"))
    publish.append(lambda: a.lds(f"ds_write_b64 v{u0}, {vr(e + 2, 2)} offset:256", "w"))
    publish += lines(f"""
s_lshl_b32 s{s_t2}, s{s_tile}, 9
s_add_u32 s{s_t2}, s{s_t2}, {K1_LDS_CS}
v_lshlrev_b32 v{u1}, 3, v{v_lane}
v_add_u32 v{u1}, s{s_t2}, v{u1}
""")

    def publish_cs():
        a.lds(f"ds_write_b64 v{u1}, {vr(v_cs[0], 2)}", "w")

    gather = lines(f"""
v_lshlrev_b32 v{u0}, 3, v{v_lane}
s_lshl_b32 s{s_t1}, s{s_ni}, 9
s_add_u32 s{s_t1}, s{s_t1}, {K1_LDS_ST}
v_add_u32 v{u0}, s{s_t1}, v{u0}
v_xor_b32 v{u1}, 512, v{u1}
""")
    gather += [lambda i=i: a.lds(f"ds_read_b64 {vr(e + 2 * i, 2)}, v{u0} offset:{1024 * i}", "s") for i in range(8)]
    gather.append(lambda: a.lds(f"ds_read_b64 {vr(v_FA[1], 2)}, v{u1}", "s"))

    fin = lines(f"""
v_add_f32 v{m_}, v{sv[0]}, v{sv[1]}
v_add_f32 v{tt}, v{sv[2]}, v{sv[3]}
v_add_f32 v{mb}, v{sv[4]}, v{sv[5]}
v_add_f32 v{dl}, v{sv[6]}, v{sv[7]}
v_add_f32 v{m_}, v{m_}, v{tt}
v_add_f32 v{mb}, v{mb}, v{dl}
v_add_f32 v{m_}, v{m_}, v{mb}
v_mul_f32 v{m_}, 0x3b000000, v{m_}
v_cvt_pk_bf16_f32 v{mA}, -v{m_}, -v{m_}
v_cvt_pk_bf16_f32 v{mb}, v{m_}, v{m_}
v_and_b32 v{mb}, 0xffff0000, v{mb}
v_mov_b32 v{mB}, v{mA}
v_sub_f32 v{dl}, v{m_}, v{mb}
v_mul_f32 v{c2}, -2.0, v{mb}
v_mul_f32 v{c64}, v{mb}, v{mb}
v_mul_f32 v{c64}, 0x42800000, v{c64}
v_permlane32_swap_b32 v{mA}, v{mB}
""")
    fin += lines("\n".join(f"v_fmac_f32 v{qv[p]}, v{c2}, v{sv[p]}" for p in range(8)))
    fin += lines("\n".join(f"v_add_f32 v{qv[p]}, v{qv[p]}, v{c64}" for p in range(8)))
    fin += lines("\n".join(f"v_add_f32 v{qv[p]}, v{qv[p]}, v{qv[p + 1]}" for p in (0, 2, 4, 6)))
    fin += lines(f"""
v_add_f32 v{qv[0]}, v{qv[0]}, v{qv[2]}
v_add_f32 v{qv[4]}, v{qv[4]}, v{qv[6]}
v_cmp_eq_u32 vcc, 0, v{v_h}
v_add_f32 v{qv[0]}, v{qv[0]}, v{qv[4]}
v_mul_f32 v{qv[0]}, 0x3b000000, v{qv[0]}
v_cndmask_b32 v{v_FB[0]}, 0, v{mA}, vcc
v_fma_f32 v{qv[0]}, -v{dl}, v{dl}, v{qv[0]}
v_cndmask_b32 v{v_FB[1]}, 0, v{mB}, vcc
v_max_f32 v{qv[0]}, 0, v{qv[0]}
v_mov_b32 v{v_FB[0] + 1}, v{v_FB[0]}
v_cvt_pk_bf16_f32 v{tt}, v{qv[0]}, v{qv[0]}
v_mov_b32 v{v_FB[1] + 1}, v{v_FB[1]}
v_and_b32 v{tt}, 0xffff0000, v{tt}
v_mov_b32 v{v_FB[0] + 2}, 0
v_add_f32 v{tt}, 0x3727c5ac, v{tt}
v_mov_b32 v{v_FB[0] + 3}, 0
v_cvt_pk_bf16_f32 v{tt}, v{tt}, v{tt}
v_mov_b32 v{v_FB[1] + 2}, 0
v_and_b32 v{tt}, 0xffff0000, v{tt}
v_mov_b32 v{v_FB[1] + 3}, 0
v_sqrt_f32 v{tt}, v{tt}
v_bfe_u32 v{dl}, v{v_lane}, 4, 1
v_cvt_pk_bf16_f32 v{tt}, v{tt}, v{tt}
v_cmp_eq_u32 vcc, 1, v{dl}
v_and_b32 v{tt}, 0xffff0000, v{tt}
v_rcp_f32 v{tt}, v{tt}
v_cndmask_b32 v{v_cso}, v{v_FA[1]}, v{v_FA[1] + 1}, vcc
v_mov_b32 v{rA}, v{tt}
v_mov_b32 v{rB}, v{tt}
v_mov_b32 v{v_FA[0] + 2}, 0
v_mov_b32 v{v_FA[0] + 3}, 0
v_permlane32_swap_b32 v{rA}, v{rB}
v_mov_b32 v{v_FA[1] + 2}, 0
v_mov_b32 v{v_FA[1] + 3}, 0
""")

    def fold_a(mt):
        c, r1, hi = v_t[3 * mt], v_t[3 * mt + 1], v_t[3 * mt + 2]
        FA = v_FA[mt]
        txt = f"v_cndmask_b32 v{c}, v{v_cs[mt]}, v{v_cs[mt] + 1}, vcc\n"
        if mt == 1:
            txt += f"v_add_f32 v{c}, v{c}, v{v_cso}\n"
        txt += f"""v_and_b32 v{hi}, 0xffff0000, v{c}
v_sub_f32 v{r1}, v{c}, v{hi}
v_and_b32 v{c}, 0xffff0000, v{r1}
v_sub_f32 v{r1}, v{r1}, v{c}
v_lshrrev_b32 v{hi}, 16, v{hi}
v_or_b32 v{FA}, v{hi}, v{c}
v_lshrrev_b32 v{FA + 1}, 16, v{r1}"""
        return lines(txt)

    STATS = {0: [0], 1: [1, 2], 2: [3], 3: [4], 4: [5], 5: [6], 6: [7]}
    if SENT == -1:
        flag_init()
    elif SENT < 7:
        side[SENT] = side.get(SENT, []) + [flag_init]
    pf.stamp()
    a.wait(vm=["x0", "w0"])
    a("s_barrier")
    pf.stamp()
    for f in read_ops(0, 0) + stat_reads(0):
        f()
    LAST = NSTAGE - 1
    for stage in range(NSTAGE):
        dops = (dma_w(stage + 2) if stage + 2 < NSTAGE else []) + (dma_x(stage + 3) if stage + 3 < NSTAGE else [])
        extra = side.get(stage, [])
        two = len(STATS.get(stage, [])) == 2
        for j in range(4):
            a.comment(f"stage {stage} step {j}")
            a.wait(lg="all")
            m = mfma_ops(stage, j)
            if stage < LAST:
                m = [sel_op(j, 0, stage == 0 and j == 0)] + m
                sops = stat_ops()
                if two:
                    so = {0: sops[:24], 1: sops[24:] + stat_reads(STATS[stage][1]), 2: sops[:32], 3: sops[32:]}[j]
                elif stage == 6:
                    so = {0: sops[:24], 1: sops[24:], 2: publish, 3: []}[j]
                else:
                    so = sops[16 * j:16 * j + 16] if j < 3 else []
                ex = extra[len(extra) * j // 4:len(extra) * (j + 1) // 4]
                if j < 3:
                    fill = read_ops(stage, j + 1) + merge(merge(so, ex), dops[2 * j:2 * j + 2])
                    interleave(a, m, fill)
                else:
                    interleave(a, m[:3], merge(so, ex))
                    if stage == 6:
                        a("s_nop 3")
                        publish_cs()
                        a.wait(lg="all")
                    tags = [f"w{stage + 1}"] + ([f"x{stage + 2}"] if stage + 2 < NSTAGE else [])
                    a.wait(vm=tags)
                    a("s_barrier")
                    if PROF == 1:
                        pf.stamp()
                    for f in read_ops(stage + 1, 0):
                        f()
                    m[3]()
                    if stage + 1 in STATS:
                        for f in stat_reads(STATS[stage + 1][0]):
                            f()
                    else:
                        for f in gather:
                            f()
                    m[4]()
            else:
                m = [sel_op(j, 0, False), sel_op(j, 1, j == 0)] + m
                if j < 3:
                    n = len(fin)
                    interleave(a, m, read_ops(stage, j + 1) + ([flag_init] if j == 0 and SENT == 7 else []) + fin[n * j // 3:n * (j + 1) // 3])
                else:
                    for f in m[:4]:
                        f()
                    a("s_nop 3")
                    interleave(a, m[4:], merge(fold_a(0), fold_a(1)))
    a("s_nop 1")
    for mt, nt in ORDER:
        acc = vr(v_acc[mt][nt], 16)
        a(f"v_mfma_f32_32x32x16_bf16 {acc}, {vr(v_FA[mt], 4)}, {vr(v_FB[nt], 4)}, {acc}")
    side_store()
    pf.stamp()
    rr = [rA, rB]
    a(f"s_cmp_ge_u32 s{s_cg}, 14")
    a(f"s_cbranch_scc1 {name}_epi_dft")
    r2 = [e + 4, e + 6]
    for nt in range(2):
        a(f"v_mul_f32 v{r2[nt]}, v{rr[nt]}, v{rr[nt]}")
    a(f"v_lshlrev_b32 v{t0}, 4, v{v_lane}")
    a(f"s_lshl_b32 s{s_t0}, s{s_rb}, 2")
    a(f"s_lshl_b32 s{s_t2}, s{s_ni}, 1")
    a(f"s_add_u32 s{s_t0}, s{s_t0}, s{s_t2}")
    a(f"s_mul_i32 s{s_t0}, s{s_t0}, 112")
    a(f"s_lshl_b32 s{s_t2}, s{s_cg}, 3")
    a(f"s_add_u32 s{s_t0}, s{s_t0}, s{s_t2}")
    for mt, nt in ORDER:
        acc = v_acc[mt][nt]
        for i in range(8):
            a(f"v_max_f32 v{acc + i}, 0, v{acc + i}")
            a(f"v_mul_f32 v{acc + 8 + i}, v{r2[nt]}, v{acc + 8 + i}")
        for i in range(8):
            a(f"v_mul_f32 v{acc + i}, v{acc + i}, v{acc + 8 + i}")
        for i in range(4):
            a(f"v_cvt_pk_bf16_f32 v{acc + 8 + i}, v{acc + 2 * i}, v{acc + 2 * i + 1}")
        a(f"s_xor_b32 s{s_t2}, s{s_tile}, {mt}")
        a(f"s_add_u32 s{s_t2}, s{s_t2}, s{s_t0}")
        if nt:
            a(f"s_add_u32 s{s_t2}, s{s_t2}, 112")
        a(f"s_lshl_b32 s{s_t2}, s{s_t2}, 10")
        a(f"buffer_store_dwordx4 {vr(acc + 8, 4)}, v{t0}, {sr(SRD_WS, 4)}, s{s_t2} offen{WTH}")
    if PROF:
        pf.stamp()
        a("s_waitcnt vmcnt(0)")
        pf.stamp()
        pf.stamp(real=True)
        pf.dump(SRD_WS, 2, s_w, v_t[0], s_t0, 8)
    a("s_endpgm")
    a.label(f"{name}_epi_dft")
    for nt in range(2):
        a(f"v_mul_f32 v{rr[nt]}, 0x36000000, v{rr[nt]}")
    a(f"v_lshlrev_b32 v{t0}, 14, v{v_h}")
    a(f"v_lshl_add_u32 v{t0}, v{v_n}, 2, v{t0}")
    a(f"s_sub_u32 s{s_t0}, s{s_cg}, 14")
    a(f"s_lshl_b32 s{s_t0}, s{s_t0}, 20")
    a(f"s_add_u32 s{s_t0}, s{s_t0}, {WS_U}")
    a(f"s_lshl_b32 s{s_t2}, s{s_rb}, 9")
    a(f"s_add_u32 s{s_t0}, s{s_t0}, s{s_t2}")
    a(f"s_lshl_b32 s{s_t2}, s{s_ni}, 8")
    a(f"s_add_u32 s{s_t0}, s{s_t0}, s{s_t2}")
    for mt, nt in ORDER:
        a(f"s_xor_b32 s{s_t2}, s{s_tile}, {mt}")
        a(f"s_lshl_b32 s{s_t2}, s{s_t2}, 16")
        a(f"s_add_u32 s{s_t2}, s{s_t2}, s{s_t0}")
        acc = v_acc[mt][nt]
        for i in range(16):
            a(f"v_mul_f32 v{acc + i}, v{rr[nt]}, v{acc + i}")
        for i in range(8):
            a(f"v_cvt_pk_bf16_f32 v{acc + 2 * i}, v{acc + 2 * i}, v{acc + 2 * i + 1}")
        for g in range(4):
            for ip in range(2):
                koff = (g % 2) * 4 + (g // 2) * 64 + ip
                a(f"s_add_u32 s{s_t3}, s{s_t2}, {koff * 8192}")
                a(f"buffer_store_dword v{acc + 4 * g + 2 * ip}, v{t0}, {sr(SRD_WS, 4)}, s{s_t3} offen offset:{nt * 128}{WTH}")
    if PROF:
        pf.n -= 3
        pf.stamp()
        a("s_waitcnt vmcnt(0)")
        pf.stamp()
        pf.stamp(real=True)
        pf.dump(SRD_WS, 2, s_w, v_t[0], s_t0, 8)
    a.label(f"{name}_done")
    a("s_endpgm")
    return kernel_header(name) + a.text(), kernel_desc(name, V.hi, 102)


def gen_ftab():
    j = np.arange(512)
    c, s = exact_cos_sin(j, 512)
    cb, nb = bf16_bits(c), bf16_bits(-s + 0.0)
    t = ""
    for i in range(512):
        t += f".set tw_{i}, 0x{int(cb[i] | (nb[i] << 16)):08x}\n"
    t += """.macro twe idx
.long tw_\\idx
.endm
.altmacro
.p2align 8
ftab:
.set dd, 0
.rept 512
.long 0x3f003f00 | ((dd & 1) << 31)
.set kk, 1
.rept 255
twe %((dd*kk) & 511)
.set kk, kk+1
.endr
.set dd, dd+1
.endr
.noaltmacro
"""
    return t
```

```python
from gen_common import *

JOBS_PER_WG = 2
K2_LDS = JOBS_PER_WG * 2 * 2 * 6144
K2_NWG = (257 + JOBS_PER_WG - 1) // JOBS_PER_WG


def fhex(x):
    return "0x%08x" % int(np.float32(x).view(np.uint32))


def fft_body(a, V, S, name, s_job, s_t, s_ldsbase, SRD_WS, SRD_C, v_lane, store_flags="", pf=None):
    s_a, s_b = S.alloc(), S.alloc()
    v_n, v_h = V.alloc(), V.alloc()
    v_t = [V.alloc() for _ in range(6)]
    v_au, v_al, v_xw, v_xr = V.alloc(), V.alloc(), V.alloc(), V.alloc()
    U = V.alloc(16, 4)
    Wf = V.alloc(16, 4)
    C32r, C32i = V.alloc(16, 4), V.alloc(16, 4)
    F64r, F64i = V.alloc(16, 4), V.alloc(16, 4)
    Cr, Ci = V.alloc(16, 4), V.alloc(16, 4)
    P = [V.alloc(16, 4) for _ in range(3)]
    tw1c, tw1s, tw2c, tw2s = [V.alloc(16, 4) for _ in range(4)]
    t0, t1, t2, t3 = v_t[:4]

    a(f"v_and_b32 v{v_n}, 31, v{v_lane}")
    a(f"v_lshrrev_b32 v{v_h}, 5, v{v_lane}")
    a(f"v_lshlrev_b32 v{v_al}, 4, v{v_lane}")
    a(f"v_lshlrev_b32 v{v_au}, 7, v{v_n}")
    a(f"v_lshl_add_u32 v{v_au}, v{v_h}, 6, v{v_au}")
    a(f"s_and_b32 s{s_a}, s{s_job}, 255")
    a(f"s_lshl_b32 s{s_a}, s{s_a}, 13")
    a(f"s_lshl_b32 s{s_b}, s{s_t}, 12")
    a(f"s_add_u32 s{s_a}, s{s_a}, s{s_b}")
    a(f"s_add_u32 s{s_a}, s{s_a}, {WS_U}")
    for j in range(4):
        a.vmem(f"buffer_load_dwordx4 {vr(U + 4 * j, 4)}, v{v_au}, {sr(SRD_WS, 4)}, s{s_a} offen offset:{16 * j}", "u")
    for j in range(4):
        a.vmem(f"buffer_load_dwordx4 {vr(C32r + 4 * j, 4)}, v{v_al}, {sr(SRD_C, 4)}, 0 offen offset:{1024 * j}", "c32")
    a(f"s_movk_i32 s{s_a}, 4096")
    for j in range(4):
        a.vmem(f"buffer_load_dwordx4 {vr(C32i + 4 * j, 4)}, v{v_al}, {sr(SRD_C, 4)}, s{s_a} offen offset:{1024 * j}", "c32")
    a(f"s_lshl_b32 s{s_a}, s{s_t}, 13")
    a(f"s_add_u32 s{s_a}, s{s_a}, 8192")
    a(f"s_add_u32 s{s_b}, s{s_a}, 4096")
    for j in range(4):
        a.vmem(f"buffer_load_dwordx4 {vr(F64r + 4 * j, 4)}, v{v_al}, {sr(SRD_C, 4)}, s{s_a} offen offset:{1024 * j}", "c64")
        a.vmem(f"buffer_load_dwordx4 {vr(F64i + 4 * j, 4)}, v{v_al}, {sr(SRD_C, 4)}, s{s_b} offen offset:{1024 * j}", "c64")
    a(f"s_lshl_b32 s{s_a}, s{s_job}, 13")
    a(f"s_lshl_b32 s{s_b}, s{s_t}, 12")
    a(f"s_add_u32 s{s_a}, s{s_a}, s{s_b}")
    a(f"s_add_u32 s{s_a}, s{s_a}, {WS_W}")
    for g in range(4):
        a.vmem(f"buffer_load_dwordx4 {vr(Wf + 4 * g, 4)}, v{v_al}, {sr(SRD_WS, 4)}, s{s_a} offen offset:{1024 * g}", "w")
    a(f"s_mul_i32 s{s_a}, s{s_t}, 6144")
    a(f"s_add_u32 s{s_a}, s{s_a}, s{s_ldsbase}")
    a(f"v_add_u32 v{v_xw}, s{s_a}, v{v_al}")
    a(f"s_xor_b32 s{s_b}, s{s_t}, 1")
    a(f"s_mul_i32 s{s_a}, s{s_b}, 6144")
    a(f"s_add_u32 s{s_a}, s{s_a}, s{s_ldsbase}")
    a(f"v_add_u32 v{v_xr}, s{s_a}, v{v_al}")
    a(f"v_bfe_u32 v{t0}, v{v_n}, 2, 1")
    a(f"v_lshlrev_b32 v{t0}, 4, v{t0}")
    a(f"v_lshrrev_b32 v{t1}, 3, v{v_n}")
    a(f"v_lshl_add_u32 v{t0}, v{t1}, 2, v{t0}")
    a(f"v_and_b32 v{t1}, 3, v{v_n}")
    a(f"v_add_u32 v{t0}, v{t0}, v{t1}")
    a(f"v_cvt_f32_u32 v{t0}, v{t0}")
    a(f"v_mul_f32 v{t0}, {fhex(1 / 2048)}, v{t0}")
    a(f"s_lshl_b32 s{s_a}, s{s_t}, 5")
    a(f"v_lshl_add_u32 v{t1}, v{v_h}, 2, s{s_a}")
    a(f"v_cvt_f32_u32 v{t1}, v{t1}")
    a(f"v_mul_f32 v{t1}, v{t1}, v{t0}")
    for r in range(16):
        k = 8 * (r // 4) + r % 4
        tt = v_t[2 + r % 4]
        a(f"v_fmamk_f32 v{tt}, v{t0}, {fhex(k)}, v{t1}")
        a(f"v_cos_f32 v{tw1c + r}, v{tt}")
        a(f"v_sin_f32 v{tw1s + r}, v{tt}")
    a(f"v_add_u32 v{t0}, s{s_a}, v{v_n}")
    a(f"v_cvt_f32_u32 v{t0}, v{t0}")
    a(f"v_mul_f32 v{t0}, {fhex(1 / 2048)}, v{t0}")
    a(f"v_lshlrev_b32 v{t1}, 4, v{v_h}")
    a(f"v_cvt_f32_u32 v{t1}, v{t1}")
    a(f"v_mul_f32 v{t1}, v{t1}, v{t0}")
    for r in range(16):
        tt = v_t[2 + r % 4]
        a(f"v_fmamk_f32 v{tt}, v{t0}, {fhex(r)}, v{t1}")
        a(f"v_cos_f32 v{tw2c + r}, v{tt}")
        a(f"v_sin_f32 v{tw2s + r}, v{tt}")

    if pf: pf.stamp()
    a.wait(vm="u")
    a(f"s_and_b32 s{s_a}, s{s_job}, 255")
    a(f"s_cmp_lg_u32 s{s_a}, 0")
    a(f"s_cbranch_scc1 {name}_nospec")
    a(f"s_lshr_b32 s{s_a}, s{s_job}, 4")
    for i in range(16):
        a(f"v_lshrrev_b32 v{U + i}, s{s_a}, v{U + i}")
        a(f"v_and_b32 v{U + i}, 0xffff, v{U + i}")
    a.label(f"{name}_nospec")
    a.wait(vm="c32")
    if pf: pf.stamp()

    def mf(acc, A, B, first):
        a(f"v_mfma_f32_32x32x16_bf16 {vr(acc, 16)}, {vr(A, 4)}, {vr(B, 4)}, {'0' if first else vr(acc, 16)}")

    for j in range(4):
        mf(Cr, U + 4 * j, C32r + 4 * j, j == 0)
        mf(Ci, U + 4 * j, C32i + 4 * j, j == 0)
    a("s_nop 11")

    def cmul(cs, sn, sign):
        ng1, ng2 = ("-", "") if sign > 0 else ("", "-")
        for r in range(16):
            tt = v_t[r % 4]
            a(f"v_mul_f32 v{tt}, v{Ci + r}, v{sn + r}")
            a(f"v_mul_f32 v{Ci + r}, v{Ci + r}, v{cs + r}")
            a(f"v_fma_f32 v{Ci + r}, {ng2}v{Cr + r}, v{sn + r}, v{Ci + r}")
            a(f"v_fma_f32 v{Cr + r}, v{Cr + r}, v{cs + r}, {ng1}v{tt}")

    def pack3(neg_src):
        for p in range(8):
            a(f"v_cvt_pk_bf16_f32 v{P[0] + p}, v{Cr + 2 * p}, v{Cr + 2 * p + 1}")
            a(f"v_cvt_pk_bf16_f32 v{P[1] + p}, v{Ci + 2 * p}, v{Ci + 2 * p + 1}")
            a(f"v_cvt_pk_bf16_f32 v{P[2] + p}, -v{neg_src + 2 * p}, -v{neg_src + 2 * p + 1}")

    def exchange(x):
        off = x * 12288
        for q in range(3):
            for hh in range(2):
                a.lds(f"ds_write_b128 v{v_xw}, {vr(P[q] + 4 * hh, 4)} offset:{off + (2 * q + hh) * 1024}", "xw")
        a.wait(lg="all")
        a("s_barrier")
        for hh in range(2):
            for q in range(3):
                a.lds(f"ds_read_b128 {vr(P[q] + 8 + 4 * hh, 4)}, v{v_xr} offset:{off + (2 * q + hh) * 1024}", f"xr{hh}")

    cmul(tw1c, tw1s, -1)
    pack3(Ci)
    if pf: pf.stamp()
    exchange(0)
    a.wait(vm="c64")
    for j in range(4):
        if j >= 2:
            a.wait(lg=f"xr{j - 2}")
        mf(Cr, F64r + 4 * j, P[0] + 4 * j, j == 0)
        mf(Ci, F64i + 4 * j, P[0] + 4 * j, j == 0)
        mf(Cr, F64i + 4 * j, P[2] + 4 * j, False)
        mf(Ci, F64r + 4 * j, P[1] + 4 * j, False)
    a.wait(vm="w")
    if pf: pf.stamp()
    for r in range(16):
        a(f"v_lshlrev_b32 v{tw1c + r}, 16, v{Wf + r}")
        a(f"v_and_b32 v{tw1s + r}, 0xffff0000, v{Wf + r}")
    cmul(tw1c, tw1s, +1)
    pack3(Cr)
    if pf: pf.stamp()
    exchange(1)
    for j in range(4):
        if j >= 2:
            a.wait(lg=f"xr{j - 2}")
        mf(Cr, P[0] + 4 * j, F64r + 4 * j, j == 0)
        mf(Ci, P[1] + 4 * j, F64r + 4 * j, j == 0)
        mf(Cr, P[1] + 4 * j, F64i + 4 * j, False)
        mf(Ci, P[2] + 4 * j, F64i + 4 * j, False)
    a("s_nop 11")
    if pf: pf.stamp()
    cmul(tw2c, tw2s, +1)
    for r in range(16):
        a(f"v_cvt_pk_bf16_f32 v{P[0] + r}, v{Cr + r}, -v{Ci + r}")
    a("s_nop 1")
    for j in range(4):
        mf(Cr, C32r + 4 * j, P[0] + 4 * j, j == 0)
        mf(Ci, C32i + 4 * j, P[0] + 4 * j, j == 0)
    a(f"v_lshlrev_b32 v{t0}, 6, v{v_n}")
    a(f"v_lshl_add_u32 v{t0}, v{v_h}, 5, v{t0}")
    a(f"s_and_b32 s{s_a}, s{s_job}, 255")
    a(f"s_lshl_b32 s{s_a}, s{s_a}, 13")
    a(f"s_lshr_b32 s{s_b}, s{s_job}, 8")
    a(f"s_lshl_b32 s{s_b}, s{s_b}, 12")
    a(f"s_add_u32 s{s_a}, s{s_a}, s{s_b}")
    a(f"s_lshl_b32 s{s_b}, s{s_t}, 11")
    a(f"s_add_u32 s{s_a}, s{s_a}, s{s_b}")
    a(f"s_add_u32 s{s_a}, s{s_a}, {WS_Z}")
    a(f"s_add_u32 s{s_b}, s{s_a}, 4096")
    a("s_nop 3")
    for p in range(8):
        a(f"v_cvt_pk_bf16_f32 v{P[1] + p}, v{Cr + 2 * p}, v{Cr + 2 * p + 1}")
    for hh in range(2):
        a.vmem(f"buffer_store_dwordx4 {vr(P[1] + 4 * hh, 4)}, v{t0}, {sr(SRD_WS, 4)}, s{s_a} offen offset:{16 * hh}{store_flags}", "st")
    a(f"s_and_b32 s{s_a}, s{s_job}, 255")
    a(f"s_cmp_eq_u32 s{s_a}, 0")
    a(f"s_cbranch_scc1 {name}_noim")
    for p in range(8):
        a(f"v_cvt_pk_bf16_f32 v{P[2] + p}, -v{Ci + 2 * p}, -v{Ci + 2 * p + 1}")
    for hh in range(2):
        a.vmem(f"buffer_store_dwordx4 {vr(P[2] + 4 * hh, 4)}, v{t0}, {sr(SRD_WS, 4)}, s{s_b} offen offset:{16 * hh}{store_flags}", "st")
    a.label(f"{name}_noim")


def gen_k2(name):
    a = Asm()
    V = Regs(1, 256)
    S = Regs(12, 100)
    SRD_WS, SRD_C = 4, 8
    s_p = S.alloc(4, 4)
    s_w, s_job, s_t, s_lb = [S.alloc() for _ in range(4)]
    v_lane = V.alloc()
    pf = Prof(a, S, 16, 1)
    pf.stamp(real=True)
    pf.stamp()
    a(f"s_load_dwordx2 {sr(s_p, 2)}, s[0:1], {KA_WS}")
    a(f"v_lshrrev_b32 v{v_lane}, 6, v0")
    a(f"s_getpc_b64 {sr(s_p + 2, 2)}")
    a(f"s_add_u32 s{s_p + 2}, s{s_p + 2}, ctab@rel32@lo+4")
    a(f"s_addc_u32 s{s_p + 3}, s{s_p + 3}, ctab@rel32@hi+12")
    a(f"v_readfirstlane_b32 s{s_w}, v{v_lane}")
    a(f"v_and_b32 v{v_lane}, 63, v0")
    a(f"s_lshr_b32 s{s_lb}, s{s_w}, 1")
    a(f"s_mul_i32 s{s_job}, s2, {JOBS_PER_WG}")
    a(f"s_add_u32 s{s_job}, s{s_job}, s{s_lb}")
    a(f"s_and_b32 s{s_t}, s{s_w}, 1")
    a(f"s_mul_i32 s{s_lb}, s{s_lb}, 24576")
    a(f"s_cmp_gt_u32 s{s_job}, 256")
    a(f"s_cbranch_scc1 {name}_done")
    a("s_waitcnt lgkmcnt(0)")
    srd(a, SRD_WS, s_p, WS_SIZE)
    srd(a, SRD_C, s_p + 2, 24576)
    fft_body(a, V, S, name, s_job, s_t, s_lb, SRD_WS, SRD_C, v_lane, pf=pf)
    if PROF:
        pf.stamp()
        a("s_waitcnt vmcnt(0)")
        pf.stamp()
        pf.stamp(real=True)
        pf.dump(SRD_WS, 2, s_w, 2, s_lb, 4)
    a.label(f"{name}_done")
    a("s_endpgm")
    launch = f"; @launch kernel={name} grid=({K2_NWG},1,1) block=({128 * JOBS_PER_WG},1,1) lds={K2_LDS}"
    return kernel_header(name) + a.text(), kernel_desc(name, V.hi, 100), gen_ctab(), launch


def gen_ctab():
    lane = np.arange(64)
    n, h = lane % 32, lane // 32
    pi = 16 * ((n >> 2) & 1) + 4 * (n >> 3) + (n & 3)
    frags = []
    for part in range(2):
        for j in range(4):
            f = np.zeros((64, 8))
            for i in range(4):
                b = 16 * h + 4 * j + i
                c, s = exact_cos_sin(pi * b, 32)
                Fr, Fi = c, -s
                f[:, 2 * i] = Fr if part == 0 else Fi
                f[:, 2 * i + 1] = -Fi if part == 0 else Fr
            frags.append(f)
    for t in range(2):
        for part in range(2):
            for jp in range(4):
                j = jp ^ (2 * t)
                f = np.zeros((64, 8))
                for e in range(8):
                    b = 16 * j + 8 * (e // 4) + 4 * h + e % 4
                    c, s = exact_cos_sin((32 * t + n) * b, 64)
                    f[:, e] = c if part == 0 else -s
                frags.append(f)
    bits = bf16_bits(np.stack(frags) + 0.0).reshape(-1, 2)
    dw = bits[:, 0] | (bits[:, 1] << 16)
    t = ".p2align 8\nctab:\n"
    for i in range(0, len(dw), 8):
        t += ".long " + ",".join("0x%x" % int(x) for x in dw[i:i + 8]) + "\n"
    return t
```

```python
from gen_common import *
from gen_k2 import fhex, gen_ctab

R = int(os.environ.get("K3_R", "7"))
NKB, NKZ = 28, 8
L_RING = 0
L_Z = 4 * R * 2048
L_X = L_Z + 65536
L_F = L_X + 32768
K23_LDS = L_F + 256
WS_FLAG = 15 << 20
SPIN_MAX = 1 << 14
FFT_PRIO = int(os.environ.get("FFT_PRIO", "3"))


def lds_spin(a, name, v_addr, off, v_tmp, s_tmp):
    a.label(name)
    a(f"ds_read_b32 v{v_tmp}, v{v_addr} offset:{off}")
    a("s_waitcnt lgkmcnt(0)")
    a(f"v_readfirstlane_b32 s{s_tmp}, v{v_tmp}")
    a(f"s_cmp_eq_u32 s{s_tmp}, 0")
    a(f"s_cbranch_scc1 {name}")
    a.lg = []


def fft_part(a, V, S, name, s_w, SRD_WS, SRD_C, v_lane, pf):
    s_a, s_b, s_job, s_t, s_lb = [S.alloc() for _ in range(5)]
    v_n, v_h = V.alloc(), V.alloc()
    v_t = [V.alloc() for _ in range(6)]
    v_au, v_al, v_xw, v_xr, v_fw, v_fr, v_one = [V.alloc() for _ in range(7)]
    U = V.alloc(16, 4)
    Wf = V.alloc(16, 4)
    C32r, C32i = V.alloc(16, 4), V.alloc(16, 4)
    F64r, F64i = V.alloc(16, 4), V.alloc(16, 4)
    Cr, Ci = V.alloc(16, 4), V.alloc(16, 4)
    P = [V.alloc(16, 4), V.alloc(16, 4), U]
    tw1c, tw1s, tw2c, tw2s = [V.alloc(16, 4) for _ in range(4)]
    t0, t1, t2, t3 = v_t[:4]

    a(f"s_sub_u32 s{s_b}, s{s_w}, 4")
    a(f"s_lshl_b32 s{s_b}, s{s_b}, 4")
    a(f"s_add_u32 s{s_b}, s{s_b}, {L_F}")
    a(f"v_mov_b32 v{v_fw}, s{s_b}")
    a(f"v_mov_b32 v{t0}, 0")
    a(f"ds_write_b32 v{v_fw}, v{t0}")
    a(f"ds_write_b32 v{v_fw}, v{t0} offset:4")
    a(f"ds_write_b32 v{v_fw}, v{t0} offset:8")
    a(f"ds_write_b32 v{v_fw}, v{t0} offset:12")
    a(f"v_xor_b32 v{v_fr}, 16, v{v_fw}")
    a(f"v_mov_b32 v{v_one}, 1")
    a(f"s_and_b32 s{s_t}, s{s_w}, 1")
    a(f"s_bfe_u32 s{s_lb}, s{s_w}, 0x10001")
    a(f"s_lshl_b32 s{s_job}, s{s_lb}, 8")
    a(f"s_add_u32 s{s_job}, s{s_job}, s2")
    a(f"v_and_b32 v{v_n}, 31, v{v_lane}")
    a(f"v_lshrrev_b32 v{v_h}, 5, v{v_lane}")
    a(f"v_lshlrev_b32 v{v_al}, 4, v{v_lane}")
    a(f"v_lshlrev_b32 v{v_au}, 7, v{v_n}")
    a(f"v_lshl_add_u32 v{v_au}, v{v_h}, 6, v{v_au}")
    a(f"s_and_b32 s{s_a}, s{s_job}, 255")
    a(f"s_lshl_b32 s{s_a}, s{s_a}, 13")
    a(f"s_lshl_b32 s{s_b}, s{s_t}, 12")
    a(f"s_add_u32 s{s_a}, s{s_a}, s{s_b}")
    a(f"s_add_u32 s{s_a}, s{s_a}, {WS_U}")
    a("s_waitcnt lgkmcnt(0)")
    a("s_barrier")
    return dict(locals())


def fft_main(L):
    a, name, pf = L["a"], L["name"], L["pf"]
    (s_a, s_b, s_job, s_t, s_lb, s_w, SRD_WS, SRD_C, v_lane, v_n, v_h, v_t, v_au, v_al, v_xw, v_xr, v_fw, v_fr, v_one,
     U, Wf, C32r, C32i, F64r, F64i, Cr, Ci, P, tw1c, tw1s, tw2c, tw2s) = [L[k] for k in (
        "s_a s_b s_job s_t s_lb s_w SRD_WS SRD_C v_lane v_n v_h v_t v_au v_al v_xw v_xr v_fw v_fr v_one "
        "U Wf C32r C32i F64r F64i Cr Ci P tw1c tw1s tw2c tw2s").split()]
    t0, t1, t2, t3 = v_t[:4]
    for j in range(4):
        a.vmem(f"buffer_load_dwordx4 {vr(U + 4 * j, 4)}, v{v_au}, {sr(SRD_WS, 4)}, s{s_a} offen offset:{16 * j}", "u")
    for j in range(4):
        a.vmem(f"buffer_load_dwordx4 {vr(C32r + 4 * j, 4)}, v{v_al}, {sr(SRD_C, 4)}, 0 offen offset:{1024 * j}", "c32")
    a(f"s_movk_i32 s{s_a}, 4096")
    for j in range(4):
        a.vmem(f"buffer_load_dwordx4 {vr(C32i + 4 * j, 4)}, v{v_al}, {sr(SRD_C, 4)}, s{s_a} offen offset:{1024 * j}", "c32")
    a(f"s_lshl_b32 s{s_a}, s{s_t}, 13")
    a(f"s_add_u32 s{s_a}, s{s_a}, 8192")
    a(f"s_add_u32 s{s_b}, s{s_a}, 4096")
    for j in range(4):
        a.vmem(f"buffer_load_dwordx4 {vr(F64r + 4 * j, 4)}, v{v_al}, {sr(SRD_C, 4)}, s{s_a} offen offset:{1024 * j}", "c64")
        a.vmem(f"buffer_load_dwordx4 {vr(F64i + 4 * j, 4)}, v{v_al}, {sr(SRD_C, 4)}, s{s_b} offen offset:{1024 * j}", "c64")
    a(f"s_lshl_b32 s{s_a}, s{s_job}, 13")
    a(f"s_lshl_b32 s{s_b}, s{s_t}, 12")
    a(f"s_add_u32 s{s_a}, s{s_a}, s{s_b}")
    a(f"s_add_u32 s{s_a}, s{s_a}, {WS_W}")
    for g in range(4):
        a.vmem(f"buffer_load_dwordx4 {vr(Wf + 4 * g, 4)}, v{v_al}, {sr(SRD_WS, 4)}, s{s_a} offen offset:{1024 * g}", "w")
    a(f"s_lshl_b32 s{s_a}, s{s_lb}, 14")
    a(f"s_lshl_b32 s{s_b}, s{s_t}, 12")
    a(f"s_add_u32 s{s_a}, s{s_a}, s{s_b}")
    a(f"s_add_u32 s{s_a}, s{s_a}, {L_X}")
    a(f"v_add_u32 v{v_xw}, s{s_a}, v{v_al}")
    assert L_X % 8192 == 0
    a(f"v_xor_b32 v{v_xr}, 4096, v{v_xw}")
    a(f"v_bfe_u32 v{t0}, v{v_n}, 2, 1")
    a(f"v_lshlrev_b32 v{t0}, 4, v{t0}")
    a(f"v_lshrrev_b32 v{t1}, 3, v{v_n}")
    a(f"v_lshl_add_u32 v{t0}, v{t1}, 2, v{t0}")
    a(f"v_and_b32 v{t1}, 3, v{v_n}")
    a(f"v_add_u32 v{t0}, v{t0}, v{t1}")
    a(f"v_cvt_f32_u32 v{t0}, v{t0}")
    a(f"v_mul_f32 v{t0}, {fhex(1 / 2048)}, v{t0}")
    a(f"s_lshl_b32 s{s_a}, s{s_t}, 5")
    a(f"v_lshl_add_u32 v{t1}, v{v_h}, 2, s{s_a}")
    a(f"v_cvt_f32_u32 v{t1}, v{t1}")
    a(f"v_mul_f32 v{t1}, v{t1}, v{t0}")
    for r in range(16):
        k = 8 * (r // 4) + r % 4
        tt = v_t[2 + r % 4]
        a(f"v_fmamk_f32 v{tt}, v{t0}, {fhex(k)}, v{t1}")
        a(f"v_cos_f32 v{tw1c + r}, v{tt}")
        a(f"v_sin_f32 v{tw1s + r}, v{tt}")
    a(f"v_add_u32 v{t0}, s{s_a}, v{v_n}")
    a(f"v_cvt_f32_u32 v{t0}, v{t0}")
    a(f"v_mul_f32 v{t0}, {fhex(1 / 2048)}, v{t0}")
    a(f"v_lshlrev_b32 v{t1}, 4, v{v_h}")
    a(f"v_cvt_f32_u32 v{t1}, v{t1}")
    a(f"v_mul_f32 v{t1}, v{t1}, v{t0}")
    for r in range(16):
        tt = v_t[2 + r % 4]
        a(f"v_fmamk_f32 v{tt}, v{t0}, {fhex(r)}, v{t1}")
        a(f"v_cos_f32 v{tw2c + r}, v{tt}")
        a(f"v_sin_f32 v{tw2s + r}, v{tt}")
    pf.stamp()
    a.wait(vm="u")
    a(f"s_and_b32 s{s_a}, s{s_job}, 255")
    a(f"s_cmp_lg_u32 s{s_a}, 0")
    a(f"s_cbranch_scc1 {name}_nospec")
    a(f"s_lshr_b32 s{s_a}, s{s_job}, 4")
    for i in range(16):
        a(f"v_lshrrev_b32 v{U + i}, s{s_a}, v{U + i}")
        a(f"v_and_b32 v{U + i}, 0xffff, v{U + i}")
    a.label(f"{name}_nospec")
    a.wait(vm="c32")
    pf.stamp()

    def mf(acc, A, B, first):
        a(f"v_mfma_f32_32x32x16_bf16 {vr(acc, 16)}, {vr(A, 4)}, {vr(B, 4)}, {'0' if first else vr(acc, 16)}")

    for j in range(4):
        mf(Cr, U + 4 * j, C32r + 4 * j, j == 0)
        mf(Ci, U + 4 * j, C32i + 4 * j, j == 0)
    a("s_nop 11")

    def cmul(cs, sn, sign):
        ng1, ng2 = ("-", "") if sign > 0 else ("", "-")
        for r in range(16):
            tt = v_t[r % 4]
            a(f"v_mul_f32 v{tt}, v{Ci + r}, v{sn + r}")
            a(f"v_mul_f32 v{Ci + r}, v{Ci + r}, v{cs + r}")
            a(f"v_fma_f32 v{Ci + r}, {ng2}v{Cr + r}, v{sn + r}, v{Ci + r}")
            a(f"v_fma_f32 v{Cr + r}, v{Cr + r}, v{cs + r}, {ng1}v{tt}")

    def send(x, negq):
        off = x * 8192
        for p in range(8):
            a(f"v_cvt_pk_bf16_f32 v{P[0] + p}, v{Cr + 2 * p}, v{Cr + 2 * p + 1}")
            a(f"v_cvt_pk_bf16_f32 v{P[1] + p}, v{Ci + 2 * p}, v{Ci + 2 * p + 1}")
        for q in range(2):
            for hh in range(2):
                a.lds(f"ds_write_b128 v{v_xw}, {vr(P[q] + 4 * hh, 4)} offset:{off + (2 * q + hh) * 1024}", "xw")
        a.lds(f"ds_write_b32 v{v_fw}, v{v_one} offset:{4 * x}", "xw")
        for p in range(8):
            a(f"v_xor_b32 v{P[2] + p}, 0x80008000, v{P[negq] + p}")

    def recv(x, negq):
        off = x * 8192
        lds_spin(a, f"{name}_sp{x}", v_fr, 4 * x, t0, s_a)
        for q in (negq, 1 - negq):
            for hh in range(2):
                a.lds(f"ds_read_b128 {vr(P[q] + 8 + 4 * hh, 4)}, v{v_xr} offset:{off + (2 * q + hh) * 1024}", f"xr{q}")

    def recv_fin(negq):
        a.wait(lg=f"xr{negq}")
        for p in range(8):
            a(f"v_xor_b32 v{P[2] + 8 + p}, 0x80008000, v{P[negq] + 8 + p}")
        a.wait(lg="all")

    cmul(tw1c, tw1s, -1)
    pf.stamp()
    send(0, 1)
    a.wait(vm="c64")

    def step3(j):
        mf(Cr, F64r + 4 * j, P[0] + 4 * j, j == 0)
        mf(Ci, F64i + 4 * j, P[0] + 4 * j, j == 0)
        mf(Ci, F64r + 4 * j, P[1] + 4 * j, False)
        mf(Cr, F64i + 4 * j, P[2] + 4 * j, False)
    step3(0)
    recv(0, 1)
    step3(1)
    recv_fin(1)
    step3(2)
    step3(3)
    a.wait(vm="w")
    pf.stamp()
    for r in range(16):
        a(f"v_lshlrev_b32 v{tw1c + r}, 16, v{Wf + r}")
        a(f"v_and_b32 v{tw1s + r}, 0xffff0000, v{Wf + r}")
    cmul(tw1c, tw1s, +1)
    pf.stamp()
    send(1, 0)
    a("s_nop 0")

    def step4(j):
        mf(Cr, P[0] + 4 * j, F64r + 4 * j, j == 0)
        mf(Ci, P[1] + 4 * j, F64r + 4 * j, j == 0)
        mf(Cr, P[1] + 4 * j, F64i + 4 * j, False)
        mf(Ci, P[2] + 4 * j, F64i + 4 * j, False)
    step4(0)
    recv(1, 0)
    step4(1)
    recv_fin(0)
    step4(2)
    step4(3)
    a("s_nop 11")
    pf.stamp()
    cmul(tw2c, tw2s, +1)
    for r in range(16):
        a(f"v_cvt_pk_bf16_f32 v{P[0] + r}, v{Cr + r}, -v{Ci + r}")
    a("s_nop 1")
    for j in range(4):
        mf(Cr, C32r + 4 * j, P[0] + 4 * j, j == 0)
    for j in range(4):
        mf(Ci, C32i + 4 * j, P[0] + 4 * j, j == 0)
    a(f"v_lshlrev_b32 v{t0}, 6, v{v_n}")
    a(f"v_lshl_add_u32 v{t0}, v{v_h}, 5, v{t0}")
    a(f"s_and_b32 s{s_a}, s{s_job}, 255")
    a(f"s_lshl_b32 s{s_a}, s{s_a}, 13")
    a(f"s_lshr_b32 s{s_b}, s{s_job}, 8")
    a(f"s_lshl_b32 s{s_b}, s{s_b}, 12")
    a(f"s_add_u32 s{s_a}, s{s_a}, s{s_b}")
    a(f"s_lshl_b32 s{s_b}, s{s_t}, 11")
    a(f"s_add_u32 s{s_a}, s{s_a}, s{s_b}")
    a(f"s_add_u32 s{s_a}, s{s_a}, {WS_Z}")
    a(f"s_add_u32 s{s_b}, s{s_a}, 4096")
    for p in range(8):
        a(f"v_cvt_pk_bf16_f32 v{P[1] + p}, v{Cr + 2 * p}, v{Cr + 2 * p + 1}")
    for hh in range(2):
        a.vmem(f"buffer_store_dwordx4 {vr(P[1] + 4 * hh, 4)}, v{t0}, {sr(SRD_WS, 4)}, s{s_a} offen offset:{16 * hh} sc1", "st")
    a(f"s_and_b32 s{s_a}, s{s_job}, 255")
    a(f"s_cmp_eq_u32 s{s_a}, 0")
    a(f"s_cbranch_scc1 {name}_noim")
    for p in range(8):
        a(f"v_cvt_pk_bf16_f32 v{P[2] + p}, -v{Ci + 2 * p}, -v{Ci + 2 * p + 1}")
    for hh in range(2):
        a.vmem(f"buffer_store_dwordx4 {vr(P[2] + 4 * hh, 4)}, v{t0}, {sr(SRD_WS, 4)}, s{s_b} offen offset:{16 * hh} sc1", "st")
    a.label(f"{name}_noim")
    pf.stamp()
    pf.stamp()


def tile_decode(a, s_sp, s_dp, s_t2):
    a(f"s_and_b32 s{s_sp}, s2, 7")
    a(f"s_lshl_b32 s{s_sp}, s{s_sp}, 2")
    a(f"s_bfe_u32 s{s_t2}, s2, 0x20003")
    a(f"s_add_u32 s{s_sp}, s{s_sp}, s{s_t2}")
    a(f"s_lshr_b32 s{s_dp}, s2, 5")


def out_addr(a, v_xo, v_n, v_h, s_sp, s_dp, s_sw, s_dw, s_t0, s_t1):
    a(f"v_lshlrev_b32 v{v_xo}, 16, v{v_n}")
    a(f"v_lshl_add_u32 v{v_xo}, v{v_h}, 5, v{v_xo}")
    a(f"s_lshl_b32 s{s_t0}, s{s_sp}, 11")
    a(f"s_lshl_b32 s{s_t1}, s{s_sw}, 10")
    a(f"s_add_u32 s{s_t0}, s{s_t0}, s{s_t1}")
    a(f"s_lshl_b32 s{s_t1}, s{s_dp}, 7")
    a(f"s_add_u32 s{s_t0}, s{s_t0}, s{s_t1}")
    a(f"s_lshl_b32 s{s_t1}, s{s_dw}, 6")
    a(f"s_add_u32 s{s_t0}, s{s_t0}, s{s_t1}")
    a(f"v_add_u32 v{v_xo}, s{s_t0}, v{v_xo}")


def z_part(a, V, S, name, s_w, v_lane, SRD_X, SRD_WS, pf):
    s_sp, s_dp, s_sw, s_dw, s_z = [S.alloc() for _ in range(5)]
    s_t0, s_t1, s_t2, s_oz, s_mz, s_spin = [S.alloc() for _ in range(6)]
    s_msk = S.alloc(2, 2)
    v_n, v_h = V.alloc(), V.alloc()
    v_t = [V.alloc() for _ in range(8)]
    v_dl, v_dz, v_xo, v_nyq, v_fa, v_one = [V.alloc() for _ in range(6)]
    v_rz = [V.alloc(), V.alloc()]
    v_step, v_base = [V.alloc(), V.alloc()], [V.alloc(), V.alloc()]
    v_x = V.alloc(8, 4)
    v_fl = V.alloc(4, 4)
    acc = [[V.alloc(16, 4) for _ in range(2)] for _ in range(2)]
    POOL = V.alloc(64, 4)
    ZF = lambda ps, kz: POOL + 32 * (1 - ps) + 4 * kz
    G = V.alloc(64, 4)
    t0, t1, t2, t3, t4 = v_t[:5]
    a("s_setprio 1")
    a(f"s_sub_u32 s{s_z}, s{s_w}, 4")
    tile_decode(a, s_sp, s_dp, s_t2)
    a(f"s_and_b32 s{s_sw}, s{s_z}, 1")
    a(f"s_lshr_b32 s{s_dw}, s{s_z}, 1")
    a(f"v_and_b32 v{v_n}, 31, v{v_lane}")
    a(f"v_lshrrev_b32 v{v_h}, 5, v{v_lane}")
    a(f"v_lshlrev_b32 v{v_dl}, 4, v{v_lane}")
    out_addr(a, v_xo, v_n, v_h, s_sp, s_dp, s_sw, s_dw, s_t0, s_t1)
    a.vmem(f"buffer_load_dwordx4 {vr(v_x, 4)}, v{v_xo}, {sr(SRD_X, 4)}, 0 offen", "x")
    a.vmem(f"buffer_load_dwordx4 {vr(v_x + 4, 4)}, v{v_xo}, {sr(SRD_X, 4)}, 0 offen offset:16", "x")
    a(f"v_lshrrev_b32 v{t0}, 3, v{v_lane}")
    a(f"v_bfe_u32 v{t1}, v{v_lane}, 4, 1")
    a(f"v_lshlrev_b32 v{t1}, 2, v{t1}")
    a(f"v_and_b32 v{t2}, 7, v{v_lane}")
    a(f"v_xor_b32 v{t1}, v{t1}, v{t2}")
    a(f"v_lshlrev_b32 v{t1}, 4, v{t1}")
    a(f"v_lshl_add_u32 v{v_dz}, v{t0}, 12, v{t1}")
    a(f"s_lshl_b32 s{s_mz}, s{s_z}, 14")
    a(f"s_add_u32 s{s_mz}, s{s_mz}, {L_Z}")
    a(f"s_lshl_b32 s{s_oz}, s{s_z}, 19")
    a(f"s_lshl_b32 s{s_t1}, s{s_sp}, 7")
    a(f"s_add_u32 s{s_oz}, s{s_oz}, s{s_t1}")
    a(f"s_add_u32 s{s_oz}, s{s_oz}, {WS_Z}")
    a(f"v_bfe_u32 v{t0}, v{v_lane}, 2, 2")
    a(f"v_and_b32 v{t1}, 3, v{v_lane}")
    a(f"v_bfe_u32 v{t2}, v{v_lane}, 4, 1")
    a(f"v_lshl_add_u32 v{t3}, v{v_h}, 2, v{t0}")
    a(f"v_lshlrev_b32 v{t3}, 7, v{t3}")
    a(f"v_lshrrev_b32 v{t0}, 1, v{t0}")
    a(f"v_xor_b32 v{t4}, s{s_sw}, v{t0}")
    a(f"v_lshl_add_u32 v{t4}, v{t4}, 6, v{t3}")
    a(f"v_add_u32 v{t4}, s{s_mz}, v{t4}")
    a(f"v_lshl_add_u32 v{t4}, v{t2}, 5, v{t4}")
    a(f"v_lshl_add_u32 v{v_rz[0]}, v{t1}, 3, v{t4}")
    a(f"v_xor_b32 v{v_rz[1]}, 64, v{v_rz[0]}")
    a(f"v_bfe_u32 v{t0}, v{v_n}, 2, 1")
    a(f"v_lshlrev_b32 v{t0}, 4, v{t0}")
    a(f"v_lshrrev_b32 v{t1}, 3, v{v_n}")
    a(f"v_lshl_add_u32 v{t0}, v{t1}, 2, v{t0}")
    a(f"v_and_b32 v{t1}, 3, v{v_n}")
    a(f"v_add_u32 v{t0}, v{t0}, v{t1}")
    a(f"s_lshl_b32 s{s_t1}, s{s_dp}, 6")
    a(f"s_lshl_b32 s{s_t2}, s{s_dw}, 5")
    a(f"s_add_u32 s{s_t1}, s{s_t1}, s{s_t2}")
    a(f"v_add_u32 v{t0}, s{s_t1}, v{t0}")
    a(f"v_lshlrev_b32 v{v_nyq}, 31, v{t0}")
    a(f"v_or_b32 v{v_nyq}, 0x3f803f80, v{v_nyq}")
    a(f"v_xor_b32 v{t2}, 32, v{t0}")
    a(f"v_cvt_f32_u32 v{v_step[0]}, v{t0}")
    a(f"v_cvt_f32_u32 v{v_step[1]}, v{t2}")
    a(f"v_mul_f32 v{v_step[0]}, {fhex(1 / 512)}, v{v_step[0]}")
    a(f"v_mul_f32 v{v_step[1]}, {fhex(1 / 512)}, v{v_step[1]}")
    a(f"s_lshl_b32 s{s_t1}, s{s_z}, 6")
    a(f"v_lshl_add_u32 v{t1}, v{v_h}, 1, s{s_t1}")
    a(f"v_cvt_f32_u32 v{t2}, v{t1}")
    for dt in range(2):
        a(f"v_mul_f32 v{v_base[dt]}, v{t2}, v{v_step[dt]}")
        a(f"v_fract_f32 v{v_base[dt]}, v{v_base[dt]}")
    a(f"v_cmp_eq_u32 {sr(s_msk, 2)}, 0, v{t1}")
    items = [(kz, dt, dd) for kz in range(NKZ) for dt in range(2) for dd in range(4)]
    prev = None
    for idx, (kz, dt, dd) in enumerate(items):
        K = 8 * kz + 4 * (dd // 2) + dd % 2
        ta, tb, tc = v_t[(3 * idx) % 6], v_t[(3 * idx + 1) % 6], v_t[(3 * idx + 2) % 6]
        a(f"v_fmamk_f32 v{ta}, v{v_step[dt]}, {fhex(K)}, v{v_base[dt]}")
        if prev:
            a(prev)
        a(f"v_cos_f32 v{tb}, v{ta}")
        a(f"v_sin_f32 v{tc}, v{ta}")
        prev = f"v_cvt_pk_bf16_f32 v{G + idx}, v{tb}, -v{tc}"
    a(f"v_cndmask_b32 v{G}, v{G}, v{v_nyq}, {sr(s_msk, 2)}")
    a(prev)
    a(f"v_cndmask_b32 v{G + 4}, v{G + 4}, v{v_nyq}, {sr(s_msk, 2)}")
    a.wait(vm="x")
    for i in range(8):
        a(f"v_lshlrev_b32 v{acc[0][0] + 2 * i}, 16, v{v_x + i}")
        a(f"v_and_b32 v{acc[0][0] + 2 * i + 1}, 0xffff0000, v{v_x + i}")
    a(f"v_add_u32 v{t0}, s{s_mz}, v{v_dl}")
    for q in (1, 2, 3):
        a(f"s_xor_b32 s{s_t0}, s{s_z}, {q}")
        a(f"s_lshl_b32 s{s_t0}, s{s_t0}, 14")
        a(f"s_add_u32 s{s_t0}, s{s_t0}, {L_Z + (q - 1) * 4096}")
        a(f"v_add_u32 v{v_t[q]}, s{s_t0}, v{v_dl}")
    a(f"v_and_b32 v{v_fa}, 3, v{v_lane}")
    a(f"v_lshlrev_b32 v{v_fa}, 4, v{v_fa}")
    a(f"v_add_u32 v{v_fa}, {L_F + 8}, v{v_fa}")
    a(f"s_lshl_b32 s{s_t1}, s{s_z}, 4")
    a(f"s_add_u32 s{s_t1}, s{s_t1}, {L_F + 8}")
    a(f"v_mov_b32 v{v_t[4]}, s{s_t1}")
    a(f"v_mov_b32 v{v_one}, 1")
    pf.stamp()
    a(f"v_mov_b32 v{v_t[6]}, {L_F + 12}")
    a(f"s_cmp_lg_u32 s{s_z}, 0")
    a(f"s_cbranch_scc1 {name}_lw")
    a(f"ds_write_b32 v{v_t[6]}, v{v_one}")
    a.label(f"{name}_lw")
    a(f"ds_read_b32 v{v_t[5]}, v{v_t[6]}")
    a("s_waitcnt lgkmcnt(0)")
    a(f"v_readfirstlane_b32 s{s_t0}, v{v_t[5]}")
    a(f"s_cmp_lg_u32 s{s_t0}, 0")
    a(f"s_cbranch_scc1 {name}_lwok")
    a("s_sleep 2")
    a(f"s_branch {name}_lw")
    a.label(f"{name}_lwok")
    a(f"s_mov_b32 s{s_spin}, {SPIN_MAX}")
    a(f"s_mov_b32 s{s_t1}, 0xffff")
    pf.stamp()

    def zdma(q, reg=True):
        a(f"s_add_u32 m0, s{s_mz}, {1024 * q}")
        a(f"s_add_u32 s{s_t2}, s{s_oz}, {8 * q * 4096}")
        txt = f"buffer_load_dwordx4 v{v_dz}, {sr(SRD_WS, 4)}, s{s_t2} offen sc1 lds"
        if reg:
            a.vmem(txt, f"z{q // 2}")
        else:
            a(txt)
    for q in range(16):
        zdma(q)

    def zread(ps, kz):
        for e in range(2):
            a.lds(f"ds_read_b64_tr_b16 {vr(ZF(ps, kz) + 2 * e, 2)}, v{v_rz[ps]} offset:{kz * 2048 + e * 1024}", f"z{ps}_{kz}")

    def zm(pd, ps, kz):
        A = vr(acc[pd][ps], 16)
        C = "0" if (kz == 0 and (pd or ps)) else A
        a(f"v_mfma_f32_32x32x16_bf16 {A}, {vr(G + 8 * kz + 4 * pd, 4)}, {vr(ZF(ps, kz), 4)}, {C}")

    def qwrite(pd, ps, g):
        a.lds(f"ds_write_b128 v{t0}, {vr(acc[pd][ps] + 4 * g, 4)} offset:{(2 * pd + ps - 1) * 4096 + g * 1024}", "qw")

    def zcheck(kz):
        c0, c1 = v_t[5], v_t[6]
        a.label(f"{name}_zc{kz}")
        a(f"v_pk_max_u16 v{c0}, v{ZF(1, kz)}, v{ZF(1, kz) + 1}")
        a(f"v_pk_max_u16 v{c1}, v{ZF(1, kz) + 2}, v{ZF(1, kz) + 3}")
        for i in range(4):
            a(f"v_pk_max_u16 v{(c0, c1)[i % 2]}, v{(c0, c1)[i % 2]}, v{ZF(0, kz) + i}")
        a(f"v_pk_max_u16 v{c0}, v{c0}, v{c1}")
        a(f"v_lshrrev_b32 v{c1}, 16, v{c0}")
        a(f"v_max_u16 v{c0}, v{c0}, v{c1}")
        a(f"v_and_b32 v{c0}, 0xffff, v{c0}")
        a(f"v_cmp_eq_u32 vcc, s{s_t1}, v{c0}")
        a(f"s_cmp_eq_u32 s{s_spin}, 0")
        a(f"s_cbranch_scc1 {name}_zo{kz}")
        a("s_nop 2")
        a(f"s_cbranch_vccz {name}_zo{kz}")
        a(f"s_sub_u32 s{s_spin}, s{s_spin}, 1")
        a(f"s_sleep {POLL_SLEEP}")
        zdma(2 * kz, False)
        zdma(2 * kz + 1, False)
        a("s_waitcnt vmcnt(0)")
        for ps in (1, 0):
            for e in range(2):
                a(f"ds_read_b64_tr_b16 {vr(ZF(ps, kz) + 2 * e, 2)}, v{v_rz[ps]} offset:{kz * 2048 + e * 1024}")
        a("s_waitcnt lgkmcnt(0)")
        a(f"s_branch {name}_zc{kz}")
        a.label(f"{name}_zo{kz}")

    a.wait(vm="z0")
    zread(1, 0)
    zread(0, 0)
    for kz in range(8):
        if kz + 1 < 8:
            a.wait(vm=f"z{kz + 1}")
            zread(1, kz + 1)
            zread(0, kz + 1)
        a.wait(lg=f"z0_{kz}")
        zcheck(kz)
        zm(1, 1, kz)
        zm(0, 1, kz)
        zm(1, 0, kz)
    pf.stamp()
    zm(0, 0, 0)
    zm(0, 0, 1)
    seq = [(1, 1), (0, 1), (1, 0)]
    for n, (pd, ps) in enumerate(seq):
        for g in range(4):
            qwrite(pd, ps, g)
        zm(0, 0, 2 + n)
    a.lds(f"ds_write_b32 v{v_t[4]}, v{v_one}", "qw")
    zm(0, 0, 5)
    zm(0, 0, 6)
    zm(0, 0, 7)
    a.label(f"{name}_zsp")
    a(f"ds_read_b32 v{v_t[5]}, v{v_fa}")
    a("s_waitcnt lgkmcnt(0)")
    a.lg = []
    a(f"v_cmp_eq_u32 vcc, 0, v{v_t[5]}")
    a("s_nop 3")
    a(f"s_cbranch_vccnz {name}_zsp")
    RB = [acc[0][1], acc[1][0], acc[1][1]]
    for q in (1, 2, 3):
        for g in range(4):
            a.lds(f"ds_read_b128 {vr(RB[q - 1] + 4 * g, 4)}, v{v_t[q]} offset:{g * 1024}", f"q{q}")
    a(f"s_lshl_b32 s{s_t0}, s{s_z}, 12")
    a(f"s_add_u32 s{s_t0}, s{s_t0}, {L_X}")
    a(f"v_add_u32 v{t0}, s{s_t0}, v{v_dl}")
    a.wait(lg="q1")
    for i in range(16):
        a(f"v_add_f32 v{acc[0][0] + i}, v{acc[0][0] + i}, v{RB[0] + i}")
    a.wait(lg="q3")
    for i in range(16):
        a(f"v_add_f32 v{RB[1] + i}, v{RB[1] + i}, v{RB[2] + i}")
    for g in range(4):
        for i in range(4 * g, 4 * g + 4):
            a(f"v_add_f32 v{acc[0][0] + i}, v{acc[0][0] + i}, v{RB[1] + i}")
        a.lds(f"ds_write_b128 v{t0}, {vr(acc[0][0] + 4 * g, 4)} offset:{g * 1024}", "o")
    a.wait(lg="all")
    if PROF:
        pf.stamp()
        pf.stamp(real=True)
        pf.dump(SRD_WS, 2, s_z, v_t[0], s_t0, 4)
    a("s_endpgm")


def gemm_part(a, V, S, name, s_w, v_lane, SRD_WD, SRD_WS, SRD_OUT, build_srds, pf):
    s_sp, s_dp, s_sw, s_dw = [S.alloc() for _ in range(4)]
    s_t0, s_t1, s_t2 = [S.alloc() for _ in range(3)]
    s_oh0, s_oh1, s_ow, s_ow2, s_m = [S.alloc() for _ in range(5)]
    v_n, v_h = V.alloc(), V.alloc()
    v_t = [V.alloc() for _ in range(8)]
    v_dl, v_dw = V.alloc(), V.alloc()
    v_rw = [V.alloc(), V.alloc()]
    v_xo = V.alloc()
    v_x = V.alloc(8, 4)
    acc = [[V.alloc(16, 4) for _ in range(2)] for _ in range(2)]
    HR = [V.alloc(8, 4) for i in range(R)]
    WF = [V.alloc(8, 4), V.alloc(8, 4)]
    RB = [V.alloc(16, 4) for _ in range(4)]
    t0, t1, t2, t3, t4 = v_t[:5]

    tile_decode(a, s_sp, s_dp, s_t2)
    a(f"s_and_b32 s{s_sw}, s{s_w}, 1")
    a(f"s_lshr_b32 s{s_dw}, s{s_w}, 1")
    a(f"v_lshlrev_b32 v{v_dl}, 4, v{v_lane}")
    a(f"v_lshrrev_b32 v{t0}, 3, v{v_lane}")
    a(f"v_bfe_u32 v{t1}, v{v_lane}, 4, 1")
    a(f"v_lshlrev_b32 v{t1}, 2, v{t1}")
    a(f"v_and_b32 v{t2}, 7, v{v_lane}")
    a(f"v_xor_b32 v{t1}, v{t1}, v{t2}")
    a(f"v_lshlrev_b32 v{t1}, 4, v{t1}")
    a(f"v_lshl_add_u32 v{v_dw}, v{t0}, 10, v{t1}")
    a(f"s_mul_i32 s{s_oh0}, s{s_sp}, 224")
    a(f"s_mul_i32 s{s_t1}, s{s_w}, {NKB}")
    a(f"s_add_u32 s{s_oh0}, s{s_oh0}, s{s_t1}")
    a(f"s_mul_i32 s{s_t2}, s{s_sw}, 112")
    a(f"s_sub_u32 s{s_oh1}, s{s_oh0}, s{s_t2}")
    a(f"s_add_u32 s{s_oh1}, s{s_oh1}, 112")
    a(f"s_add_u32 s{s_oh0}, s{s_oh0}, s{s_t2}")
    a(f"s_lshl_b32 s{s_oh0}, s{s_oh0}, 10")
    a(f"s_lshl_b32 s{s_oh1}, s{s_oh1}, 10")
    a(f"s_lshl_b32 s{s_ow}, s{s_t1}, 14")
    a(f"s_lshl_b32 s{s_t1}, s{s_dp}, 7")
    a(f"s_add_u32 s{s_ow}, s{s_ow}, s{s_t1}")
    a(f"s_add_u32 s{s_ow2}, s{s_ow}, 8192")
    a(f"s_mul_i32 s{s_m}, s{s_w}, {R * 2048}")
    a("s_waitcnt lgkmcnt(0)")
    build_srds()
    a("s_barrier")

    def load_ops(i):
        sl = i % R
        tag = f"d{i}"

        def f0():
            a(f"s_add_u32 m0, s{s_m}, {sl * 2048}")
            a.vmem(f"buffer_load_dwordx4 {vr(HR[sl], 4)}, v{v_dl}, {sr(SRD_WS, 4)}, s{s_oh0} offen offset:{(i % 4) * 1024}", tag)

        def f1():
            a.vmem(f"buffer_load_dwordx4 v{v_dw}, {sr(SRD_WD, 4)}, s{s_ow} offen lds", tag)
            a(f"s_add_u32 m0, s{s_m}, {sl * 2048 + 1024}")
            a(f"s_add_u32 s{s_ow}, s{s_ow}, 16384")

        def f2():
            a.vmem(f"buffer_load_dwordx4 v{v_dw}, {sr(SRD_WD, 4)}, s{s_ow2} offen lds", tag)
            a(f"s_add_u32 s{s_ow2}, s{s_ow2}, 16384")

        def f3():
            a.vmem(f"buffer_load_dwordx4 {vr(HR[sl] + 4, 4)}, v{v_dl}, {sr(SRD_WS, 4)}, s{s_oh1} offen offset:{(i % 4) * 1024}", tag)
            if i % 4 == 3:
                a(f"s_add_u32 s{s_oh0}, s{s_oh0}, 4096")
                a(f"s_add_u32 s{s_oh1}, s{s_oh1}, 4096")
        return [f0, f1, f2, f3]

    for i in range(2):
        for f in load_ops(i):
            f()
    a(f"v_and_b32 v{v_n}, 31, v{v_lane}")
    a(f"v_lshrrev_b32 v{v_h}, 5, v{v_lane}")
    a(f"v_bfe_u32 v{t0}, v{v_lane}, 2, 2")
    a(f"v_and_b32 v{t1}, 3, v{v_lane}")
    a(f"v_bfe_u32 v{t2}, v{v_lane}, 4, 1")
    a(f"v_lshl_add_u32 v{t3}, v{v_h}, 2, v{t0}")
    a(f"v_lshlrev_b32 v{t3}, 7, v{t3}")
    a(f"v_lshrrev_b32 v{t0}, 1, v{t0}")
    a(f"v_xor_b32 v{t4}, s{s_dw}, v{t0}")
    a(f"v_lshl_add_u32 v{t4}, v{t4}, 6, v{t3}")
    a(f"v_add_u32 v{t4}, s{s_m}, v{t4}")
    a(f"v_and_b32 v{v_t[5]}, 1, v{t1}")
    a(f"v_lshl_add_u32 v{t4}, v{v_t[5]}, 5, v{t4}")
    a(f"v_lshl_add_u32 v{t4}, v{t2}, 4, v{t4}")
    a(f"v_lshrrev_b32 v{v_t[5]}, 1, v{t1}")
    a(f"v_lshl_add_u32 v{v_rw[0]}, v{v_t[5]}, 3, v{t4}")
    a(f"v_xor_b32 v{v_rw[1]}, 64, v{v_rw[0]}")
    for i in range(2, R - 1):
        for f in load_ops(i):
            f()
    out_addr(a, v_xo, v_n, v_h, s_sp, s_dp, s_sw, s_dw, s_t0, s_t1)
    a(f"v_add_u32 v{t0}, s{s_m}, v{v_dl}")
    for q in (1, 2, 3):
        a(f"s_xor_b32 s{s_t0}, s{s_w}, {q}")
        a(f"s_mul_i32 s{s_t0}, s{s_t0}, {R * 2048}")
        a(f"s_add_u32 s{s_t0}, s{s_t0}, {(q - 1) * 4096}")
        a(f"v_add_u32 v{v_t[q]}, s{s_t0}, v{v_dl}")
    a(f"s_lshl_b32 s{s_t0}, s{s_w}, 12")
    a(f"s_add_u32 s{s_t0}, s{s_t0}, {L_X}")
    a(f"v_add_u32 v{t4}, s{s_t0}, v{v_dl}")
    assert R * 2048 >= 12288

    def read_ops(i):
        b = (i % R) * 2048
        F = WF[i % 2]
        return [lambda tl=tl, e=e: a.lds(f"ds_read_b64_tr_b16 {vr(F + 4 * tl + 2 * e, 2)}, v{v_rw[tl]} offset:{b + e * 1024}", f"r{i}")
                for tl in range(2) for e in range(2)]

    QORD = ((1, 1), (0, 1), (1, 0), (0, 0))

    def mfma_ops(i):
        F = WF[i % 2]
        ops = []
        for dt, st in QORD:
            A = vr(acc[dt][st], 16)
            C = "0" if i == 0 else A
            ops.append(lambda A=A, C=C, dt=dt, st=st: a(
                f"v_mfma_f32_32x32x16_bf16 {A}, {vr(F + 4 * dt, 4)}, {vr(HR[i % R] + 4 * st, 4)}, {C}"))
        return ops

    pf.stamp()
    a.wait(vm="d0")
    for f in read_ops(0):
        f()
    for i in range(NKB):
        a.comment(f"k-step {i}")
        if i % 4 == 0:
            pf.stamp()
        if i + 1 < NKB:
            a.wait(vm=f"d{i + 1}", lg=f"r{i}")
            for f in read_ops(i + 1):
                f()
        else:
            a.wait(lg=f"r{i}")
        nxt = i + R - 1
        lo = load_ops(nxt) if nxt < NKB else []
        m = mfma_ops(i)
        for q in range(4):
            m[q]()
            if q < len(lo):
                lo[q]()
    pf.stamp()
    a("s_nop 7")
    for pd, ps in QORD[:3]:
        for g in range(4):
            a.lds(f"ds_write_b128 v{t0}, {vr(acc[pd][ps] + 4 * g, 4)} offset:{(2 * pd + ps - 1) * 4096 + g * 1024}", "qw")
    a.wait(lg="all")
    a("s_barrier")
    pf.stamp()
    for q in (0, 3, 1, 2):
        for g in range(4):
            a.lds(f"ds_read_b128 {vr(RB[q] + 4 * g, 4)}, v{v_t[q] if q else t4} offset:{g * 1024}", f"q{q}")
    A0 = acc[0][0]
    a.wait(lg="q0")
    for i in range(16):
        a(f"v_add_f32 v{A0 + i}, v{A0 + i}, v{RB[0] + i}")
    a.wait(lg="q1")
    for i in range(16):
        a(f"v_add_f32 v{RB[3] + i}, v{RB[3] + i}, v{RB[1] + i}")
    a.wait(lg="q2")
    for i in range(16):
        a(f"v_add_f32 v{A0 + i}, v{A0 + i}, v{RB[2] + i}")
    for hh in range(2):
        for i in range(8 * hh, 8 * hh + 8):
            a(f"v_add_f32 v{A0 + i}, v{A0 + i}, v{RB[3] + i}")
        for i in range(4 * hh, 4 * hh + 4):
            a(f"v_cvt_pk_bf16_f32 v{v_x + i}, v{A0 + 2 * i}, v{A0 + 2 * i + 1}")
        a(f"buffer_store_dwordx4 {vr(v_x + 4 * hh, 4)}, v{v_xo}, {sr(SRD_OUT, 4)}, 0 offen offset:{16 * hh}")
    if PROF:
        pf.stamp()
        a("s_waitcnt vmcnt(0)")
        pf.stamp()
        pf.stamp(real=True)
        pf.dump(SRD_WS, 2, s_w, v_t[0], s_t0, 4)


TOUCH_H = int(os.environ.get("TOUCH_H", "0"))
POLL_SLEEP = int(os.environ.get("POLL_SLEEP", "4"))


def gen_k23(name):
    import copy
    a = Asm()
    SRD_X, SRD_WD, SRD_WS, SRD_OUT, SRD_C = 4, 8, 12, 16, 20
    S = Regs(24, 102)
    s_p = S.alloc(12, 4)
    s_w = S.alloc()
    v_lane = 1
    a.label("k23_begin")
    a("s_cmp_ge_u32 s2, 256")
    a(f"s_cbranch_scc1 {name}_done")
    pfg = Prof(a, S, 18, 2)
    pfg.stamp(real=True)
    pfg.stamp()
    a(f"s_load_dwordx2 {sr(s_p + 2, 2)}, s[0:1], {KA_WS}")
    a(f"s_load_dwordx2 {sr(s_p, 2)}, s[0:1], {KA_X}")
    a(f"s_load_dwordx4 {sr(s_p + 4, 4)}, s[0:1], {KA_WD}")
    a(f"v_lshrrev_b32 v{v_lane}, 6, v0")
    a(f"s_getpc_b64 {sr(s_p + 8, 2)}")
    a(f"s_add_u32 s{s_p + 8}, s{s_p + 8}, ctab@rel32@lo+4")
    a(f"s_addc_u32 s{s_p + 9}, s{s_p + 9}, ctab@rel32@hi+12")
    a(f"v_readfirstlane_b32 s{s_w}, v{v_lane}")
    a(f"v_and_b32 v{v_lane}, 63, v0")
    a(f"s_cmp_lt_u32 s{s_w}, 4")
    a(f"s_cbranch_scc1 {name}_gemm")
    if FFT_PRIO:
        a(f"s_setprio {FFT_PRIO}")
    srd(a, SRD_C, s_p + 8, 24576)
    Sn = S.n
    V1 = Regs(2, 256)
    pff = copy.copy(pfg)
    pff.region = 1
    L = fft_part(a, V1, S, name, s_w, SRD_WS, SRD_C, v_lane, pff)
    srd(a, SRD_WS, s_p + 2, WS_SIZE)
    srd(a, SRD_X, s_p, 2048 * 1024)
    a(f"s_cmp_gt_u32 s{L['s_job']}, 256")
    a(f"s_cbranch_scc1 {name}_nojob")
    fft_main(L)
    a(f"s_branch {name}_zpart")
    a.label(f"{name}_nojob")
    if PROF:
        n = pff.n
        pff.n = 2
        while pff.n < n:
            pff.stamp()
    if TOUCH_H:
        sa, sb, vt = L["s_a"], L["s_b"], L["v_t"]
        a(f"s_and_b32 s{sa}, s2, 7")
        a(f"s_lshl_b32 s{sa}, s{sa}, 2")
        a(f"s_bfe_u32 s{sb}, s2, 0x20003")
        a(f"s_add_u32 s{sa}, s{sa}, s{sb}")
        a(f"s_mul_i32 s{sa}, s{sa}, {224 * 1024}")
        a(f"s_and_b32 s{sb}, s{s_w}, 1")
        a(f"s_mul_i32 s{sb}, s{sb}, {112 * 1024}")
        a(f"s_add_u32 s{sa}, s{sa}, s{sb}")
        a(f"s_lshr_b32 s{sb}, s2, 5")
        a(f"s_lshl_b32 s{sb}, s{sb}, 7")
        a(f"s_add_u32 s{sa}, s{sa}, s{sb}")
        a(f"v_lshrrev_b32 v{vt[0]}, 2, v{v_lane}")
        a(f"v_min_u32 v{vt[0]}, 13, v{vt[0]}")
        a(f"v_and_b32 v{vt[1]}, 3, v{v_lane}")
        a(f"v_mul_u32_u24 v{vt[1]}, 28, v{vt[1]}")
        a(f"v_add_u32 v{vt[0]}, v{vt[0]}, v{vt[1]}")
        a(f"v_lshlrev_b32 v{vt[0]}, 10, v{vt[0]}")
        a(f"buffer_load_dword v{vt[2]}, v{vt[0]}, {sr(SRD_WS, 4)}, s{sa} offen")
        a(f"s_add_u32 s{sa}, s{sa}, {14 * 1024}")
        a(f"buffer_load_dword v{vt[3]}, v{vt[0]}, {sr(SRD_WS, 4)}, s{sa} offen")
        a("s_waitcnt vmcnt(0)")
    a.label(f"{name}_zpart")
    a.vm, a.lg = [], []
    S.n = Sn
    V3 = Regs(2, 256)
    z_part(a, V3, S, name, s_w, v_lane, SRD_X, SRD_WS, pff)
    a.label(f"{name}_gemm")
    a.vm, a.lg = [], []
    S.n = Sn
    V2 = Regs(2, 256)

    def build_srds():
        srd(a, SRD_WS, s_p + 2, WS_SIZE)
        srd(a, SRD_WD, s_p + 4, 1792 * 1024)
        srd(a, SRD_OUT, s_p + 6, 2048 * 1024)
    gemm_part(a, V2, S, name, s_w, v_lane, SRD_WD, SRD_WS, SRD_OUT, build_srds, pfg)
    a.label(f"{name}_done")
    a("s_endpgm")
    a.label("k23_end")
    launch = f"; @launch kernel={name} grid=(256,1,1) block=(512,1,1) lds={K23_LDS}"
    return kernel_header(name) + a.text(), kernel_desc(name, max(V1.hi, V2.hi, V3.hi), 102), gen_ctab(), launch
```

```python
from gen_common import *
from gen_k2 import fhex

R = int(os.environ.get("K3_R", "7"))
NKB = 28
NKZ = 8
NK = NKB + NKZ
K3_RING = 4 * R * 2048
K3_LDS = max(K3_RING, 65536)


def gemm2_body(a, V, S, name, s_wg, s_w, v_lane, SRD_X, SRD_WD, SRD_WS, SRD_OUT, zwait=None, zflags="", pf=None):
    s_sp, s_dp = [S.alloc() for _ in range(2)]
    s_t0, s_t1, s_t2 = [S.alloc() for _ in range(3)]
    s_oh0, s_oh1, s_ow, s_ow2, s_oz, s_m = [S.alloc() for _ in range(6)]
    v_n, v_h = V.alloc(), V.alloc()
    v_t = [V.alloc() for _ in range(8)]
    v_dl, v_dw, v_dz = V.alloc(), V.alloc(), V.alloc()
    v_rw = [V.alloc(), V.alloc()]
    v_rz = [V.alloc(), V.alloc()]
    v_xo = V.alloc()
    v_step, v_base = [V.alloc(), V.alloc()], [V.alloc(), V.alloc()]
    v_nyq = V.alloc()
    v_x = V.alloc(8, 4)
    acc = [[V.alloc(16, 4) for _ in range(2)] for _ in range(2)]
    HR = [V.alloc(8, 4) for _ in range(R)]
    WF = [V.alloc(8, 4) for _ in range(2)]
    G = V.alloc(64, 4)
    t0, t1, t2, t3, t4 = v_t[:5]

    a(f"s_and_b32 s{s_sp}, s{s_wg}, 7")
    a(f"s_lshl_b32 s{s_sp}, s{s_sp}, 2")
    a(f"s_bfe_u32 s{s_t2}, s{s_wg}, 0x20003")
    a(f"s_add_u32 s{s_sp}, s{s_sp}, s{s_t2}")
    a(f"s_lshr_b32 s{s_dp}, s{s_wg}, 5")
    a(f"v_lshlrev_b32 v{v_dl}, 4, v{v_lane}")
    a(f"v_lshrrev_b32 v{t0}, 3, v{v_lane}")
    a(f"v_bfe_u32 v{t1}, v{v_lane}, 4, 1")
    a(f"v_lshlrev_b32 v{t1}, 2, v{t1}")
    a(f"v_and_b32 v{t2}, 7, v{v_lane}")
    a(f"v_xor_b32 v{t1}, v{t1}, v{t2}")
    a(f"v_lshlrev_b32 v{t1}, 4, v{t1}")
    a(f"v_lshl_add_u32 v{v_dw}, v{t0}, 10, v{t1}")
    a(f"v_lshl_add_u32 v{v_dz}, v{t0}, 12, v{t1}")
    a(f"s_mul_i32 s{s_oh0}, s{s_sp}, 224")
    a(f"s_mul_i32 s{s_t1}, s{s_w}, {NKB}")
    a(f"s_add_u32 s{s_oh0}, s{s_oh0}, s{s_t1}")
    a(f"s_lshl_b32 s{s_oh0}, s{s_oh0}, 10")
    a(f"s_add_u32 s{s_oh1}, s{s_oh0}, {112 * 1024}")
    a(f"s_lshl_b32 s{s_ow}, s{s_t1}, 14")
    a(f"s_lshl_b32 s{s_t1}, s{s_dp}, 7")
    a(f"s_add_u32 s{s_ow}, s{s_ow}, s{s_t1}")
    a(f"s_add_u32 s{s_ow2}, s{s_ow}, 8192")
    a(f"s_mul_i32 s{s_m}, s{s_w}, {R * 2048}")

    def load_ops(i):
        sl = i % R
        tag = f"d{i}"
        if i < NKB:
            def f0():
                a(f"s_add_u32 m0, s{s_m}, {sl * 2048}")
                a.vmem(f"buffer_load_dwordx4 {vr(HR[sl], 4)}, v{v_dl}, {sr(SRD_WS, 4)}, s{s_oh0} offen offset:{(i % 4) * 1024}", tag)

            def f1():
                a.vmem(f"buffer_load_dwordx4 v{v_dw}, {sr(SRD_WD, 4)}, s{s_ow} offen lds", tag)
                a(f"s_add_u32 m0, s{s_m}, {sl * 2048 + 1024}")
                a(f"s_add_u32 s{s_ow}, s{s_ow}, 16384")

            def f2():
                a.vmem(f"buffer_load_dwordx4 v{v_dw}, {sr(SRD_WD, 4)}, s{s_ow2} offen lds", tag)
                a(f"s_add_u32 s{s_ow2}, s{s_ow2}, 16384")

            def f3():
                a.vmem(f"buffer_load_dwordx4 {vr(HR[sl] + 4, 4)}, v{v_dl}, {sr(SRD_WS, 4)}, s{s_oh1} offen offset:{(i % 4) * 1024}", tag)
                if i % 4 == 3:
                    a(f"s_add_u32 s{s_oh0}, s{s_oh0}, 4096")
                    a(f"s_add_u32 s{s_oh1}, s{s_oh1}, 4096")
            return [f0, f1, f2, f3]
        z = i - NKB
        ops = []
        for hh in range(2):
            def f(hh=hh):
                a(f"s_add_u32 m0, s{s_m}, {sl * 2048 + 1024 * hh}")
                a(f"s_add_u32 s{s_ow2}, s{s_oz}, {(16 * z + 8 * hh) * 4096}")
                a.vmem(f"buffer_load_dwordx4 v{v_dz}, {sr(SRD_WS, 4)}, s{s_ow2} offen lds{zflags}", tag)
            ops.append(f)
        return ops

    for i in range(2):
        for f in load_ops(i):
            f()
    a(f"v_and_b32 v{v_n}, 31, v{v_lane}")
    a(f"v_lshrrev_b32 v{v_h}, 5, v{v_lane}")
    a(f"s_lshl_b32 s{s_oz}, s{s_w}, 19")
    a(f"s_lshl_b32 s{s_t1}, s{s_sp}, 7")
    a(f"s_add_u32 s{s_oz}, s{s_oz}, s{s_t1}")
    a(f"s_add_u32 s{s_oz}, s{s_oz}, {WS_Z}")
    a(f"v_bfe_u32 v{t0}, v{v_lane}, 2, 2")
    a(f"v_and_b32 v{t1}, 3, v{v_lane}")
    a(f"v_bfe_u32 v{t2}, v{v_lane}, 4, 1")
    a(f"v_lshl_add_u32 v{t3}, v{v_h}, 2, v{t0}")
    a(f"v_lshlrev_b32 v{t3}, 7, v{t3}")
    a(f"v_add_u32 v{t3}, s{s_m}, v{t3}")
    a(f"v_lshrrev_b32 v{t0}, 1, v{t0}")
    a(f"v_lshl_add_u32 v{t3}, v{t0}, 6, v{t3}")
    a(f"v_and_b32 v{t4}, 1, v{t1}")
    a(f"v_lshl_add_u32 v{t4}, v{t4}, 5, v{t3}")
    a(f"v_lshl_add_u32 v{t4}, v{t2}, 4, v{t4}")
    a(f"v_lshrrev_b32 v{v_t[5]}, 1, v{t1}")
    a(f"v_lshl_add_u32 v{v_rw[0]}, v{v_t[5]}, 3, v{t4}")
    a(f"v_xor_b32 v{v_rw[1]}, 64, v{v_rw[0]}")
    a(f"v_lshl_add_u32 v{t4}, v{t2}, 5, v{t3}")
    a(f"v_lshl_add_u32 v{v_rz[0]}, v{t1}, 3, v{t4}")
    a(f"v_xor_b32 v{v_rz[1]}, 64, v{v_rz[0]}")
    for i in range(2, R - 1):
        for f in load_ops(i):
            f()
    a(f"v_lshlrev_b32 v{v_xo}, 16, v{v_n}")
    a(f"v_lshl_add_u32 v{v_xo}, v{v_h}, 5, v{v_xo}")
    a(f"s_lshl_b32 s{s_t0}, s{s_sp}, 11")
    a(f"s_and_b32 s{s_t1}, s{s_w}, 1")
    a(f"s_lshl_b32 s{s_t1}, s{s_t1}, 10")
    a(f"s_add_u32 s{s_t0}, s{s_t0}, s{s_t1}")
    a(f"s_lshl_b32 s{s_t1}, s{s_dp}, 7")
    a(f"s_add_u32 s{s_t0}, s{s_t0}, s{s_t1}")
    a(f"s_lshr_b32 s{s_t1}, s{s_w}, 1")
    a(f"s_lshl_b32 s{s_t1}, s{s_t1}, 6")
    a(f"s_add_u32 s{s_t0}, s{s_t0}, s{s_t1}")
    a(f"v_add_u32 v{v_xo}, s{s_t0}, v{v_xo}")
    a(f"v_bfe_u32 v{t0}, v{v_n}, 2, 1")
    a(f"v_lshlrev_b32 v{t0}, 4, v{t0}")
    a(f"v_lshrrev_b32 v{t1}, 3, v{v_n}")
    a(f"v_lshl_add_u32 v{t0}, v{t1}, 2, v{t0}")
    a(f"v_and_b32 v{t1}, 3, v{v_n}")
    a(f"v_add_u32 v{t0}, v{t0}, v{t1}")
    a(f"s_lshl_b32 s{s_t1}, s{s_dp}, 6")
    a(f"v_add_u32 v{t0}, s{s_t1}, v{t0}")
    a(f"v_lshlrev_b32 v{v_nyq}, 31, v{t0}")
    a(f"v_or_b32 v{v_nyq}, 0x3f803f80, v{v_nyq}")
    a(f"v_cvt_f32_u32 v{v_step[0]}, v{t0}")
    a(f"v_mul_f32 v{v_step[0]}, {fhex(1 / 512)}, v{v_step[0]}")
    a(f"v_add_f32 v{v_step[1]}, {fhex(32 / 512)}, v{v_step[0]}")
    a(f"s_lshl_b32 s{s_t1}, s{s_w}, 6")
    a(f"v_lshl_add_u32 v{t1}, v{v_h}, 1, s{s_t1}")
    a(f"v_cvt_f32_u32 v{t2}, v{t1}")
    for dt in range(2):
        a(f"v_mul_f32 v{v_base[dt]}, v{t2}, v{v_step[dt]}")
        a(f"v_fract_f32 v{v_base[dt]}, v{v_base[dt]}")
    a(f"v_cmp_eq_u32 vcc, 0, v{t1}")

    items = [(kz, dt, dd) for kz in range(NKZ) for dt in range(2) for dd in range(4)]
    gops = []
    prev = None
    for idx, (kz, dt, dd) in enumerate(items):
        K = 8 * kz + 4 * (dd // 2) + dd % 2
        ta, tb, tc = v_t[(3 * idx) % 6], v_t[(3 * idx + 1) % 6], v_t[(3 * idx + 2) % 6]
        gops.append(lambda K=K, ta=ta, dt=dt: a(f"v_fmamk_f32 v{ta}, v{v_step[dt]}, {fhex(K)}, v{v_base[dt]}"))
        if prev:
            gops.append(prev)
        gops.append(lambda ta=ta, tb=tb: a(f"v_cos_f32 v{tb}, v{ta}"))
        gops.append(lambda ta=ta, tc=tc: a(f"v_sin_f32 v{tc}, v{ta}"))
        prev = (lambda tb=tb, tc=tc, idx=idx: a(f"v_cvt_pk_bf16_f32 v{G + idx}, v{tb}, -v{tc}"))
    gops.append(lambda: a(f"v_cndmask_b32 v{G}, v{G}, v{v_nyq}, vcc"))
    gops.append(prev)
    gops.append(lambda: a(f"v_cndmask_b32 v{G + 4}, v{G + 4}, v{v_nyq}, vcc"))
    gper = (len(gops) + NKB - 3) // (NKB - 2)

    def read_ops(i):
        b = (i % R) * 2048
        F = WF[i % 2]
        rg = v_rw if i < NKB else v_rz
        return [lambda tl=tl, e=e: a.lds(f"ds_read_b64_tr_b16 {vr(F + 4 * tl + 2 * e, 2)}, v{rg[tl]} offset:{b + e * 1024}", f"r{i}")
                for tl in range(2) for e in range(2)]

    def mfma_ops(i):
        F = WF[i % 2]
        ops = []
        for dt, st in ((0, 0), (1, 0), (1, 1), (0, 1)):
            A = vr(acc[dt][st], 16)
            C = "0" if i == 0 else A
            if i < NKB:
                ops.append(lambda A=A, C=C, dt=dt, st=st: a(
                    f"v_mfma_f32_32x32x16_bf16 {A}, {vr(F + 4 * dt, 4)}, {vr(HR[i % R] + 4 * st, 4)}, {C}"))
            else:
                ops.append(lambda A=A, C=C, dt=dt, st=st: a(
                    f"v_mfma_f32_32x32x16_bf16 {A}, {vr(G + 8 * (i - NKB) + 4 * dt, 4)}, {vr(F + 4 * st, 4)}, {C}"))
        return ops

    if pf:
        pf.stamp()
    a.wait(vm="d0")
    for f in read_ops(0):
        f()
    gpos = 0
    for i in range(NK):
        a.comment(f"k-step {i}")
        if pf and (i % 4 == 0):
            pf.stamp()
        if i + 1 < NK:
            a.wait(vm=f"d{i + 1}", lg=f"r{i}")
            for f in read_ops(i + 1):
                f()
        else:
            a.wait(lg=f"r{i}")
        nxt = i + R - 1
        lo = []
        if nxt < NK:
            if nxt == NKB and zwait is not None:
                zwait()
            lo = load_ops(nxt)
        if nxt == NK:
            lo = [lambda: a.vmem(f"buffer_load_dwordx4 {vr(v_x, 4)}, v{v_xo}, {sr(SRD_X, 4)}, 0 offen", "x"),
                  lambda: a.vmem(f"buffer_load_dwordx4 {vr(v_x + 4, 4)}, v{v_xo}, {sr(SRD_X, 4)}, 0 offen offset:16", "x")]
        fill = gops[gpos:gpos + gper]
        gpos += len(fill)
        m = mfma_ops(i)
        per = (len(fill) + 3) // 4
        for q in range(4):
            m[q]()
            if q < len(lo):
                lo[q]()
            for f in fill[q * per:(q + 1) * per]:
                f()
        if i == NKB - 2:
            assert gpos == len(gops)
    if pf:
        pf.stamp()
    a("s_barrier")
    a(f"s_lshl_b32 s{s_t0}, s{s_w}, 12")
    a(f"v_add_u32 v{t0}, s{s_t0}, v{v_dl}")
    a(f"s_lshl_b32 s{s_t0}, s{s_w}, 14")
    a(f"v_add_u32 v{t1}, s{s_t0}, v{v_dl}")
    a("s_nop 6")
    for dt, st in ((0, 0), (1, 0), (1, 1), (0, 1)):
        for g in range(4):
            a.lds(f"ds_write_b128 v{t0}, {vr(acc[dt][st] + 4 * g, 4)} offset:{(2 * dt + st) * 16384 + g * 1024}", "w")
    a.wait(lg="all")
    a("s_barrier")
    flat = [acc[0][0], acc[0][1], acc[1][0], acc[1][1]]
    for src in range(4):
        for g in range(4):
            a.lds(f"ds_read_b128 {vr(flat[src] + 4 * g, 4)}, v{t1} offset:{src * 4096 + g * 1024}", f"q{src}")
    a.wait(vm="x")
    xs = HR[0]
    assert HR[1] == HR[0] + 8
    for i in range(8):
        a(f"v_lshlrev_b32 v{xs + 2 * i}, 16, v{v_x + i}")
        a(f"v_and_b32 v{xs + 2 * i + 1}, 0xffff0000, v{v_x + i}")
    a.wait(lg="q1")
    for i in range(16):
        a(f"v_add_f32 v{flat[0] + i}, v{flat[0] + i}, v{flat[1] + i}")
    a.wait(lg="q3")
    for i in range(16):
        a(f"v_add_f32 v{flat[2] + i}, v{flat[2] + i}, v{flat[3] + i}")
    for i in range(16):
        a(f"v_add_f32 v{flat[0] + i}, v{flat[0] + i}, v{flat[2] + i}")
    for i in range(16):
        a(f"v_add_f32 v{flat[0] + i}, v{flat[0] + i}, v{xs + i}")
    for i in range(8):
        a(f"v_cvt_pk_bf16_f32 v{v_x + i}, v{flat[0] + 2 * i}, v{flat[0] + 2 * i + 1}")
    a(f"buffer_store_dwordx4 {vr(v_x, 4)}, v{v_xo}, {sr(SRD_OUT, 4)}, 0 offen")
    a(f"buffer_store_dwordx4 {vr(v_x + 4, 4)}, v{v_xo}, {sr(SRD_OUT, 4)}, 0 offen offset:16")
    if pf and PROF:
        pf.stamp()
        a("s_waitcnt vmcnt(0)")
        pf.stamp()
        pf.stamp(real=True)
        pf.dump(SRD_WS, s_wg, s_w, v_t[0], s_t0, 4)


def gen_k3(name):
    a = Asm()
    V = Regs(1, 256)
    S = Regs(20, 100)
    SRD_X, SRD_WD, SRD_WS, SRD_OUT = 4, 8, 12, 16
    s_p = S.alloc(8, 4)
    s_w = S.alloc()
    v_lane = V.alloc()
    a("s_cmp_ge_u32 s2, 256")
    a(f"s_cbranch_scc1 {name}_done")
    pf = Prof(a, S, 20, 2)
    pf.stamp(real=True)
    pf.stamp()
    a(f"s_load_dwordx2 {sr(s_p, 2)}, s[0:1], {KA_X}")
    a(f"s_load_dwordx4 {sr(s_p + 4, 4)}, s[0:1], {KA_WD}")
    a(f"s_load_dwordx2 {sr(s_p + 2, 2)}, s[0:1], {KA_WS}")
    a(f"v_lshrrev_b32 v{v_lane}, 6, v0")
    a("s_nop 0")
    a(f"v_readfirstlane_b32 s{s_w}, v{v_lane}")
    a(f"v_and_b32 v{v_lane}, 63, v0")
    a("s_waitcnt lgkmcnt(0)")
    srd(a, SRD_X, s_p, 2048 * 1024)
    srd(a, SRD_WS, s_p + 2, WS_SIZE)
    srd(a, SRD_WD, s_p + 4, 1792 * 1024)
    srd(a, SRD_OUT, s_p + 6, 2048 * 1024)
    gemm2_body(a, V, S, name, 2, s_w, v_lane, SRD_X, SRD_WD, SRD_WS, SRD_OUT, pf=pf)
    a.label(f"{name}_done")
    a("s_endpgm")
    launch = f"; @launch kernel={name} grid=(256,1,1) block=(256,1,1) lds={K3_LDS}"
    return kernel_header(name) + a.text(), kernel_desc(name, V.hi, 100), launch
```

```python
import sys
from gen_common import *
import gen_k1
def build(which=("k1",)):
    hdr = open("cdna_kernels/" + NAME + ".s.ref").read().split("; Override launch")[0]
    launches, code, desc, data = [], [], [], []
    if "pf" in which or "pfn" in which:
        import gen_pf
        c, d, l = gen_pf.gen_pf("pf_kernel", "pf" in which); code.append(c); desc.append(d); launches.append(l)
    if "k1" in which:
        c, d = gen_k1.gen_k1("k1_kernel"); code.append(c); desc.append(d); data.append(gen_k1.gen_ftab())
        launches.append(f"; @launch kernel=k1_kernel grid=(256,1,1) block=(512,1,1) lds={gen_k1.K1_LDS}")
    if "ka" in which:
        import gen_ka
        c, d, l = gen_ka.gen_ka("k1_kernel"); code.append(c); desc.append(d); data.append(gen_k1.gen_ftab()); launches.append(l)
    if "k2" in which:
        import gen_k2
        c, d, t, l = gen_k2.gen_k2("k2_kernel"); code.append(c); desc.append(d); data.append(t); launches.append(l)
    if "k3" in which:
        import gen_k3
        c, d, l = gen_k3.gen_k3("k3_kernel"); code.append(c); desc.append(d); launches.append(l)
    if "k23" in which:
        import gen_k23
        c, d, t, l = gen_k23.gen_k23("k23_kernel"); code.append(c); desc.append(d); data.append(t); launches.append(l)
    if "kf" in which:
        import gen_kf
        c, d, t, l = gen_kf.gen_kf(NAME + "_kernel"); code.append(c); desc.append(d); data.append(t); launches.append(l)
    s = hdr + "\n".join(launches) + '\n.amdgcn_target "amdgcn-amd-amdhsa--gfx950"\n.text\n' + "\n".join(code)
    s += '.section .rodata,"a"\n' + "\n".join(desc) + "\n".join(data)
    return s
if __name__ == "__main__":
    which = sys.argv[2].split(",") if len(sys.argv) > 2 else ("k1", "k23")
    open(sys.argv[1], "w").write(build(which))
```

```python
from gen_common import *

K1_LDS_X = 0
K1_LDS_G = 65536
K1_LDS_U = 114688
K1_LDS = 163840
K1_LDS_ST = K1_LDS_G + 2 * 16384
K1_LDS_CS = K1_LDS_ST + 8192
NSTAGE = 8
WS_ST = 15 << 20
SPIN_MAX = 1 << 14
SF = int(os.environ.get('K1_SF', '3'))
WT = os.environ.get("K1_WT", " sc1")
WTH = os.environ.get("K1_WTH", " sc1")
TOUCH_WD = int(os.environ.get("TOUCH_WD", "1"))
TOUCH = int(os.environ.get("TOUCH", "0"))
TOUCH_NEXT = int(os.environ.get("TOUCH_NEXT", "1"))
TLB_WARM = int(os.environ.get("TLB_WARM", "0"))
SENT = int(os.environ.get("SENT", "-1"))
WDST = int(os.environ.get("WDST", "6"))
WDN = int(os.environ.get("WDN", "1"))
GS = int(os.environ.get("GS", "6"))


def gen_k1(name):
    a = Asm()
    V = Regs(1, 256)
    S = Regs(40, 102)
    SRD_X, SRD_G, SRD_U, SRD_WS, SRD_WR, SRD_WI, SRD_WD, SRD_T, SRD_D = 4, 8, 12, 16, 20, 24, 28, 32, 36
    s_rb, s_cg, s_w, s_mi, s_ni, s_rs, s_goff, s_uoff = [S.alloc() for _ in range(8)]
    s_t0, s_t1, s_t2, s_t3 = [S.alloc() for _ in range(4)]
    s_sx, s_sw, s_sw2, s_rs4, s_rs64, s_m0x, s_tile = [S.alloc() for _ in range(7)]
    s_p = S.alloc(16, 4)
    s_tab = S.alloc(2, 2)

    v_lane, v_n, v_h = V.alloc(), V.alloc(), V.alloc()
    v_t = [V.alloc() for _ in range(8)]
    v_dx = [V.alloc(), V.alloc()]
    v_dg, v_du = V.alloc(), V.alloc()
    v_xa = [V.alloc() for _ in range(4)]
    v_xs = V.alloc()
    v_wa = [V.alloc(), V.alloc()]
    v_st = [V.alloc(2, 2), V.alloc(2, 2)]
    v_f1a, v_f1s, v_f2a, v_f2s = [V.alloc() for _ in range(4)]
    v_pa = [V.alloc() for _ in range(3)]
    v_f1 = V.alloc(4, 4)
    v_f2 = V.alloc(4, 4)
    v_fi = V.alloc(8, 4)
    v_cs = [V.alloc(4, 4), V.alloc(4, 4)]
    v_sel = V.alloc(4, 4)
    v_XS = [V.alloc(4, 4) for _ in range(2)]
    v_X = [[V.alloc(4, 4) for _ in range(2)] for _ in range(2)]
    v_W = [[V.alloc(4, 4) for _ in range(2)] for _ in range(2)]
    v_acc = [[V.alloc(16, 4) for _ in range(2)] for _ in range(2)]
    v_e = V.alloc(16, 4)
    v_FA = [V.alloc(4, 4) for _ in range(2)]
    v_FB = [V.alloc(4, 4) for _ in range(2)]
    v_cso = V.alloc()
    v_sn = V.alloc(4, 4)
    t0, t1, t2, t3, t4 = v_t[:5]
    u0, u1, u2, u3 = v_t[4:8]

    pf = Prof(a, S, 12, 0)
    a("s_cmp_ge_u32 s2, 256")
    a(f"s_cbranch_scc1 {name}_done")
    pf.stamp(real=True)
    pf.stamp()
    a(f"s_load_dwordx2 {sr(s_p, 2)}, s[0:1], {KA_X}")
    a(f"s_load_dwordx4 {sr(s_p + 4, 4)}, s[0:1], {KA_WG}")
    a(f"s_load_dwordx2 {sr(s_p + 2, 2)}, s[0:1], {KA_WS}")
    a(f"s_load_dwordx4 {sr(s_p + 8, 4)}, s[0:1], {KA_WR}")
    a(f"s_load_dwordx2 {sr(s_p + 12, 2)}, s[0:1], {KA_WD}")
    a(f"s_load_dwordx2 {sr(s_p + 14, 2)}, s[0:1], {KA_DBG}")
    a(f"v_lshrrev_b32 v{t0}, 6, v0")
    a(f"v_and_b32 v{v_lane}, 63, v0")
    a(f"v_readfirstlane_b32 s{s_w}, v{t0}")
    a(f"s_bfe_u32 s{s_rb}, s2, 0x10002")
    a(f"s_lshl_b32 s{s_rb}, s{s_rb}, 3")
    a(f"s_bfe_u32 s{s_t2}, s2, 0x30003")
    a(f"s_add_u32 s{s_rb}, s{s_rb}, s{s_t2}")
    a(f"s_and_b32 s{s_cg}, s2, 3")
    a(f"s_lshl_b32 s{s_cg}, s{s_cg}, 2")
    a(f"s_lshr_b32 s{s_t2}, s2, 6")
    a(f"s_add_u32 s{s_cg}, s{s_cg}, s{s_t2}")
    a(f"s_sub_u32 s{s_t0}, s{s_cg}, 14")
    a(f"s_lshl_b32 s{s_t0}, s{s_t0}, 9")
    a(f"s_add_u32 s{s_t1}, s{s_t0}, 256")
    a(f"s_lshl_b32 s{s_t2}, s{s_cg}, 8")
    a(f"s_movk_i32 s{s_rs}, 3584")
    a(f"s_cmp_ge_u32 s{s_cg}, 14")
    a(f"s_cselect_b32 s{s_rs}, 1024, s{s_rs}")
    a(f"s_cselect_b32 s{s_goff}, s{s_t0}, s{s_t2}")
    a(f"s_cselect_b32 s{s_uoff}, s{s_t1}, s{s_t2}")
    a(f"s_lshl_b32 s{s_rs4}, s{s_rs}, 2")
    a(f"s_lshl_b32 s{s_rs64}, s{s_rs}, 6")
    a(f"s_getpc_b64 {sr(s_tab, 2)}")
    a(f"s_add_u32 s{s_tab}, s{s_tab}, ftab@rel32@lo+4")
    a(f"s_addc_u32 s{s_tab + 1}, s{s_tab + 1}, ftab@rel32@hi+12")

    a(f"v_lshrrev_b32 v{t0}, 3, v{v_lane}")
    a(f"v_and_b32 v{t1}, 7, v{v_lane}")
    a(f"v_lshrrev_b32 v{t2}, 4, v{v_lane}")
    a(f"v_xor_b32 v{t1}, v{t1}, v{t2}")
    a(f"v_lshlrev_b32 v{t1}, 4, v{t1}")
    a(f"v_lshl_add_u32 v{t1}, v{t0}, 16, v{t1}")
    a(f"s_and_b32 s{s_t0}, s{s_w}, 1")
    a(f"s_lshl_b32 s{s_t0}, s{s_t0}, 20")
    a(f"s_lshr_b32 s{s_t1}, s{s_w}, 1")
    a(f"s_lshl_b32 s{s_t1}, s{s_t1}, 10")
    a(f"s_add_u32 s{s_t0}, s{s_t0}, s{s_t1}")
    a(f"s_lshl_b32 s{s_t1}, s{s_rb}, 12")
    a(f"s_add_u32 s{s_t0}, s{s_t0}, s{s_t1}")
    a(f"v_add_u32 v{v_dx[0]}, s{s_t0}, v{t1}")
    a(f"v_xor_b32 v{t1}, 0x80040, v{t1}")
    a(f"v_add_u32 v{v_dx[1]}, s{s_t0}, v{t1}")
    a(f"v_lshlrev_b32 v{t3}, 6, v{t2}")
    a(f"v_and_b32 v{t1}, 15, v{v_lane}")
    a(f"v_lshlrev_b32 v{t1}, 4, v{t1}")
    a(f"v_xor_b32 v{t1}, v{t1}, v{t3}")
    a(f"s_lshl_b32 s{s_t0}, s{s_w}, 3")
    a(f"v_add_u32 v{t0}, s{s_t0}, v{t2}")
    a(f"v_mul_lo_u32 v{t0}, v{t0}, s{s_rs}")
    a(f"v_add3_u32 v{v_dg}, v{t0}, v{t1}, s{s_goff}")
    a(f"v_xor_b32 v{t1}, 32, v{t1}")
    a(f"v_add3_u32 v{v_du}, v{t0}, v{t1}, s{s_uoff}")
    a(f"s_lshl_b32 s{s_m0x}, s{s_w}, 11")
    a(f"s_lshl_b32 s{s_t0}, s{s_cg}, 3")
    a(f"s_add_u32 s{s_t0}, s{s_t0}, s{s_w}")
    a(f"s_and_b32 s{s_t1}, s{s_t0}, 31")
    a(f"s_lshl_b32 s{s_t1}, s{s_t1}, 16")
    a(f"s_lshr_b32 s{s_t0}, s{s_t0}, 5")
    a(f"s_lshl_b32 s{s_t0}, s{s_t0}, 10")
    a(f"s_add_u32 s{s_t1}, s{s_t1}, s{s_t0}")
    a(f"s_lshl_b32 s{s_t0}, s{s_rb}, 12")
    a(f"s_add_u32 s{s_t3}, s{s_t1}, s{s_t0}")
    a(f"v_lshlrev_b32 v{t1}, 4, v{v_lane}")
    a(f"s_mov_b32 s{s_sx}, 0")
    a(f"s_mov_b32 s{s_sw}, 0")
    a(f"s_mov_b32 s{SRD_X + 2}, {2048 * 1024}")
    a(f"s_mov_b32 s{SRD_X + 3}, 0x00020000")
    a(f"s_mov_b32 s{SRD_G + 3}, 0x00020000")
    a(f"s_mov_b32 s{SRD_U + 3}, 0x00020000")
    a(f"s_lshl_b32 s{SRD_G + 2}, s{s_rs}, 9")
    a(f"s_lshl_b32 s{SRD_U + 2}, s{s_rs}, 9")
    a("s_waitcnt lgkmcnt(0)")
    a(f"s_mov_b32 s{SRD_X}, s{s_p}")
    a(f"s_and_b32 s{SRD_X + 1}, s{s_p + 1}, 0xffff")
    a(f"s_cmp_ge_u32 s{s_cg}, 14")
    a(f"s_cselect_b32 s{SRD_G}, s{s_tab}, s{s_p + 4}")
    a(f"s_cselect_b32 s{SRD_G + 1}, s{s_tab + 1}, s{s_p + 5}")
    a(f"s_cselect_b32 s{SRD_U}, s{s_tab}, s{s_p + 6}")
    a(f"s_cselect_b32 s{SRD_U + 1}, s{s_tab + 1}, s{s_p + 7}")
    a(f"s_and_b32 s{SRD_G + 1}, s{SRD_G + 1}, 0xffff")
    a(f"s_and_b32 s{SRD_U + 1}, s{SRD_U + 1}, 0xffff")

    def mk(ldsbase, vaddr, srdn, soff, mid, tag, post=None):
        def f():
            a(f"s_add_u32 m0, s{s_m0x}, {ldsbase}")
            a(mid)
            a.vmem(f"buffer_load_dwordx4 v{vaddr}, {sr(srdn, 4)}, s{soff} offen lds", tag)
            if post:
                a(post)
        return f

    def dma_x(stage):
        b = K1_LDS_X + (stage % 4) * 16384
        return [mk(b, v_dx[0], SRD_X, s_sx, "s_nop 0", f"x{stage}"),
                mk(b + 1024, v_dx[1], SRD_X, s_sx, "s_nop 0", f"x{stage}", post=f"s_add_u32 s{s_sx}, s{s_sx}, 128")]

    def dma_w(stage):
        b = (stage % 3) * 16384
        tag = f"w{stage}"
        return [mk(K1_LDS_G + b, v_dg, SRD_G, s_sw, f"s_add_u32 s{s_sw2}, s{s_sw}, s{s_rs4}", tag),
                mk(K1_LDS_U + b, v_du, SRD_U, s_sw, "s_nop 0", tag),
                mk(K1_LDS_G + b + 1024, v_dg, SRD_G, s_sw2, f"s_add_u32 s{s_sw}, s{s_sw}, s{s_rs64}", tag),
                mk(K1_LDS_U + b + 1024, v_du, SRD_U, s_sw2, "s_nop 0", tag)]

    for f in dma_x(0) + dma_w(0):
        f()
    XR = v_XS[0]
    a.vmem(f"buffer_load_dwordx4 {vr(XR, 4)}, v{t1}, {sr(SRD_X, 4)}, s{s_t3} offen", "xr")
    a(f"v_and_b32 v{v_n}, 31, v{v_lane}")
    a(f"v_lshrrev_b32 v{v_h}, 5, v{v_lane}")
    a(f"s_and_b32 s{s_mi}, s{s_w}, 3")
    a(f"s_lshr_b32 s{s_ni}, s{s_w}, 2")
    d1 = dma_x(1) + dma_w(1) + dma_x(2)
    a(f"v_bfe_u32 v{t0}, v{v_n}, 1, 3")
    a(f"v_xor_b32 v{t0}, v{t0}, v{v_h}")
    a(f"s_lshl_b32 s{s_t0}, s{s_ni}, 13")
    a(f"v_lshlrev_b32 v{t1}, 7, v{v_n}")
    a(f"v_add_u32 v{t1}, s{s_t0}, v{t1}")
    a(f"v_lshl_add_u32 v{v_xa[0]}, v{t0}, 4, v{t1}")
    d1[0]()
    for j in range(1, 4):
        a(f"v_xor_b32 v{v_xa[j]}, {32 * j}, v{v_xa[0]}")
    d1[1]()
    a(f"v_bfe_u32 v{t2}, v{v_lane}, 4, 1")
    a(f"v_bfe_u32 v{t3}, v{v_lane}, 2, 2")
    a(f"v_lshl_add_u32 v{t4}, v{t3}, 1, v{t2}")
    a(f"s_lshl_b32 s{s_tile}, s{s_mi}, 1")
    a(f"s_add_u32 s{s_tile}, s{s_tile}, s{s_ni}")
    a(f"v_xor_b32 v{t4}, s{s_tile}, v{t4}")
    d1[2]()
    a(f"v_lshlrev_b32 v{t4}, 5, v{t4}")
    a(f"v_lshl_add_u32 v{t4}, v{t3}, 8, v{t4}")
    a(f"v_and_b32 v{t3}, 3, v{v_lane}")
    a(f"v_lshl_add_u32 v{t4}, v{t3}, 3, v{t4}")
    a(f"v_lshl_add_u32 v{t4}, v{v_h}, 11, v{t4}")
    d1[3]()
    a(f"v_mul_u32_u24 v{t2}, {K1_LDS_U - K1_LDS_G}, v{t2}")
    a(f"v_add_u32 v{t4}, v{t4}, v{t2}")
    a(f"v_add_u32 v{v_wa[0]}, {K1_LDS_G}, v{t4}")
    a(f"v_xor_b32 v{v_wa[1]}, 32, v{v_wa[0]}")
    d1[4]()
    a(f"v_bfe_u32 v{t2}, v{v_lane}, 4, 1")
    a(f"v_cmp_eq_u32 vcc, v{t3}, v{t2}")
    a(f"v_mov_b32 v{t2}, 0x3f803f80")
    a(f"v_mov_b32 v{t3}, 0")
    d1[5]()
    for i in range(4):
        a(f"v_cndmask_b32 v{v_sel + i}, v{t3}, v{t2}, vcc")
    d1[6]()
    d1[7]()

    s_tpar, s_toff, s_tstep = s_tab, s_tab + 1, s_p

    def touch_setup():
        a(f"v_and_b32 v{u0}, 15, v{v_lane}")
        a(f"s_cmp_ge_u32 s{s_w}, 4")
        a(f"s_cbranch_scc1 {name}_tx")
        a(f"s_and_b32 s{s_tpar}, s{s_w}, 1")
        a(f"s_and_b32 s{s_t1}, s{s_rb}, 7")
        a(f"v_lshrrev_b32 v{u1}, 1, v{u0}")
        a(f"v_lshl_add_u32 v{u1}, v{u1}, 3, s{s_t1}")
        a(f"v_mul_lo_u32 v{u1}, v{u1}, s{s_rs}")
        a(f"v_and_b32 v{u0}, 1, v{u0}")
        a(f"v_lshl_add_u32 v{v_pa[2]}, v{u0}, 7, v{u1}")
        a(f"s_cmp_ge_u32 s{s_w}, 2")
        a(f"s_cselect_b32 s{s_toff}, s{s_uoff}, s{s_goff}")
        a(f"s_cselect_b32 s{SRD_T}, s{SRD_U}, s{SRD_G}")
        a(f"s_cselect_b32 s{SRD_T + 1}, s{SRD_U + 1}, s{SRD_G + 1}")
        a(f"s_mov_b32 s{SRD_T + 2}, s{SRD_G + 2}")
        a(f"s_mov_b32 s{s_tstep}, s{s_rs64}")
        a(f"s_branch {name}_tj")
        a.label(f"{name}_tx")
        a(f"s_bfe_u32 s{s_tpar}, s{s_w}, 0x10001")
        a(f"s_and_b32 s{s_toff}, s{s_w}, 1")
        a(f"s_lshl_b32 s{s_toff}, s{s_toff}, 20")
        a(f"s_and_b32 s{s_t1}, s{s_cg}, 3")
        a(f"s_lshl_b32 s{s_t1}, s{s_t1}, 10")
        a(f"s_add_u32 s{s_toff}, s{s_toff}, s{s_t1}")
        a(f"s_lshl_b32 s{s_t1}, s{s_rb}, 12")
        a(f"s_add_u32 s{s_toff}, s{s_toff}, s{s_t1}")
        a(f"v_lshlrev_b32 v{v_pa[2]}, 16, v{u0}")
        a(f"s_mov_b32 s{SRD_T}, s{SRD_X}")
        a(f"s_mov_b32 s{SRD_T + 1}, s{SRD_X + 1}")
        a(f"s_mov_b32 s{SRD_T + 2}, s{SRD_X + 2}")
        a(f"s_movk_i32 s{s_tstep}, 128")
        a.label(f"{name}_tj")
        a(f"s_mov_b32 s{SRD_T + 3}, 0x00020000")
        a(f"s_add_u32 s{s_t1}, s{s_tpar}, 2")
        a(f"s_mul_i32 s{s_t1}, s{s_t1}, s{s_tstep}")
        a(f"s_add_u32 s{s_toff}, s{s_toff}, s{s_t1}")
        a(f"s_lshl_b32 s{s_tstep}, s{s_tstep}, 1")

    def touch(stage):
        if stage is not None:
            a(f"s_cmp_lg_u32 s{s_tpar}, {stage & 1}")
            a(f"s_cbranch_scc1 {name}_tn{stage}")
        a(f"buffer_load_dword v{v_pa[1]}, v{v_pa[2]}, {sr(SRD_T, 4)}, s{s_toff} offen")
        a(f"s_add_u32 s{s_toff}, s{s_toff}, s{s_tstep}")
        if stage is not None:
            a.label(f"{name}_tn{stage}")
    if TOUCH:
        touch_setup()
        touch(None)
    srd(a, SRD_WS, s_p + 2, WS_SIZE)
    srd(a, SRD_WR, s_p + 8, 2048 * 514)
    srd(a, SRD_WI, s_p + 10, 2048 * 514)
    srd(a, SRD_WD, s_p + 12, 1792 * 1024)
    srd(a, SRD_D, s_p + 14, 256)
    s_non = s_p + 4
    a(f"s_or_b32 s{s_t0}, s{s_w}, s2")
    a(f"s_cmp_lg_u32 s{s_t0}, 0")
    a(f"s_cbranch_scc1 {name}_nonon")
    a(f"s_memrealtime {sr(s_non, 2)}")
    a("s_waitcnt lgkmcnt(0)")
    a(f"s_or_b32 s{s_non}, s{s_non}, 1")
    a(f"v_mov_b32 v{t0}, s{s_non}")
    a(f"v_mov_b32 v{t1}, 0")
    a("s_mov_b64 exec, 1")
    a(f"buffer_store_dword v{t0}, v{t1}, {sr(SRD_D, 4)}, 0 offen sc1")
    a("s_mov_b64 exec, -1")
    a.label(f"{name}_nonon")

    side = {}

    def lines(txt):
        return [lambda l=l: a(l) for l in txt.strip().split("\n")]
    job = lines(f"""
v_lshrrev_b32 v{u0}, 3, v{v_lane}
v_and_b32 v{u1}, 7, v{v_lane}
s_and_b32 s{s_t0}, s2, 3
s_lshl_b32 s{s_t0}, s{s_t0}, 3
s_add_u32 s{s_t0}, s{s_t0}, s{s_w}
s_lshl_b32 s{s_t0}, s{s_t0}, 3
v_add_u32 v{u1}, s{s_t0}, v{u1}
s_lshr_b32 s{s_t1}, s2, 2
s_and_b32 s{s_t1}, s{s_t1}, 3
s_lshr_b32 s{s_t2}, s2, 4
v_lshrrev_b32 v{u2}, 2, v{u0}
v_lshlrev_b32 v{u2}, 4, v{u2}
v_and_b32 v{u3}, 3, v{u0}
v_add_u32 v{u2}, v{u2}, v{u3}
s_lshl_b32 s{s_t3}, s{s_t1}, 2
v_add_u32 v{u2}, s{s_t3}, v{u2}
s_lshl_b32 s{s_t3}, s{s_t2}, 7
v_add_u32 v{u2}, s{s_t3}, v{u2}
v_mul_u32_u24 v{u2}, 514, v{u2}
v_lshl_add_u32 v{v_f1a}, v{u1}, 1, v{u2}
v_add_u32 v{v_f2a}, 512, v{u2}
s_lshl_b32 s{s_t3}, s{s_t2}, 9
s_lshl_b32 s{s_t1}, s{s_t1}, 7
s_add_u32 s{s_t3}, s{s_t3}, s{s_t1}
s_add_u32 s{s_t3}, s{s_t3}, {WS_W}
v_lshl_add_u32 v{u0}, v{u0}, 4, s{s_t3}
v_lshl_add_u32 v{v_f1s}, v{u1}, 13, v{u0}
v_add_u32 v{v_f2s}, {256 * 8192}, v{u0}
""")
    side[GS - 2] = job

    def gl(dst, va, srdn, i):
        def f():
            a(f"s_mov_b32 s{s_t0}, {i * 32 * 514}")
            a.vmem(f"buffer_load_ushort v{dst}, v{va}, {sr(srdn, 4)}, s{s_t0} offen", "f1")
        return f
    job = []
    for i in range(4):
        job.append(gl(v_f1 + i, v_f1a, SRD_WR, i))
        job.append(gl(v_fi + i, v_f1a, SRD_WI, i))
    gath = job
    side[6] = []

    def c256_test(lbl):
        a(f"s_and_b32 s{s_t0}, s2, 3")
        a(f"s_lshl_b32 s{s_t0}, s{s_t0}, 3")
        a(f"s_add_u32 s{s_t0}, s{s_t0}, s{s_w}")
        a(f"s_cmp_lg_u32 s{s_t0}, 31")
        a(f"s_cbranch_scc1 {name}_{lbl}")

    def col256_load():
        c256_test("c256a")
        for i in range(4):
            a(f"s_mov_b32 s{s_t0}, {i * 32 * 514}")
            a(f"buffer_load_ushort v{v_f2 + i}, v{v_f2a}, {sr(SRD_WR, 4)}, s{s_t0} offen")
            a(f"buffer_load_ushort v{v_fi + 4 + i}, v{v_f2a}, {sr(SRD_WI, 4)}, s{s_t0} offen")
        a.label(f"{name}_c256a")
    side[6] = []
    side[GS] = [col256_load] + gath

    def side_store():
        a.wait(vm="f1")
        for i in range(4):
            a(f"v_lshl_or_b32 v{v_f1 + i}, v{v_fi + i}, 16, v{v_f1 + i}")
        a.vmem(f"buffer_store_dwordx4 {vr(v_f1, 4)}, v{v_f1s}, {sr(SRD_WS, 4)}, 0 offen{WT}", "st")
        c256_test("c256b")
        for i in range(4):
            a(f"v_lshl_or_b32 v{v_f2 + i}, v{v_fi + 4 + i}, 16, v{v_f2 + i}")
        a(f"buffer_store_dwordx4 {vr(v_f2, 4)}, v{v_f2s}, {sr(SRD_WS, 4)}, 0 offen{WT}")
        a.label(f"{name}_c256b")

    def wd_job(part, nparts):
        def f():
            if TOUCH_WD == 1:
                per = 56 // nparts
                a(f"s_lshr_b32 s{s_t0}, s2, 3")
                a(f"s_lshl_b32 s{s_t0}, s{s_t0}, 3")
                a(f"s_add_u32 s{s_t0}, s{s_t0}, s{s_w}")
                a(f"s_mul_i32 s{s_t0}, s{s_t0}, {per * 128}")
                a(f"s_add_u32 s{s_t0}, s{s_t0}, {part * 256 * per * 128}")
                a(f"v_min_u32 v{u3}, {per - 1}, v{v_lane}")
            else:
                a(f"s_lshl_b32 s{s_t0}, s2, 3")
                a(f"s_add_u32 s{s_t0}, s{s_t0}, s{s_w}")
                a(f"s_mul_i32 s{s_t0}, s{s_t0}, {7 * 128}")
                a(f"v_min_u32 v{u3}, 6, v{v_lane}")
            a(f"v_lshlrev_b32 v{u3}, 7, v{u3}")
            a.vmem(f"buffer_load_dword v{v_pa[1]}, v{u3}, {sr(SRD_WD, 4)}, s{s_t0} offen", "pf")
        return f
    def flag_init():
        a(f"s_lshl_b32 s{s_t0}, s2, 3")
        a(f"s_add_u32 s{s_t0}, s{s_t0}, s{s_w}")
        a(f"s_lshl_b32 s{s_t0}, s{s_t0}, 10")
        a(f"s_add_u32 s{s_t0}, s{s_t0}, {WS_Z}")
        a(f"v_lshlrev_b32 v{u3}, 4, v{v_lane}")
        for i in range(4):
            a(f"v_mov_b32 v{v_sn + i}, -1")
        a.vmem(f"buffer_store_dwordx4 {vr(v_sn, 4)}, v{u3}, {sr(SRD_WS, 4)}, s{s_t0} offen sc1", "st")
    def touch_next():
        a(f"s_cmp_ge_u32 s2, 8")
        a(f"s_cbranch_scc1 {name}_notn")
        a(f"s_getpc_b64 {sr(SRD_T, 2)}")
        a(f"s_add_u32 s{SRD_T}, s{SRD_T}, ctab@rel32@lo+4")
        a(f"s_addc_u32 s{SRD_T + 1}, s{SRD_T + 1}, ctab@rel32@hi+12")
        a(f"s_mov_b32 s{SRD_T + 2}, 24576")
        a(f"s_lshl_b32 s{s_t0}, s{s_w}, 13")
        a(f"s_cmp_lt_u32 s{s_w}, 3")
        a(f"s_cbranch_scc1 {name}_tnc")
        a(f"s_getpc_b64 {sr(SRD_T, 2)}")
        a(f"s_add_u32 s{SRD_T}, s{SRD_T}, k23_begin@rel32@lo+4")
        a(f"s_addc_u32 s{SRD_T + 1}, s{SRD_T + 1}, k23_begin@rel32@hi+12")
        a(f"s_mov_b32 s{SRD_T + 2}, k23_end-k23_begin")
        a(f"s_sub_u32 s{s_t0}, s{s_t0}, {3 * 8192}")
        a.label(f"{name}_tnc")
        a(f"s_and_b32 s{SRD_T + 1}, s{SRD_T + 1}, 0xffff")
        a(f"s_mov_b32 s{SRD_T + 3}, 0x00020000")
        a(f"v_lshlrev_b32 v{u3}, 7, v{v_lane}")
        a(f"buffer_load_dword v{v_pa[1]}, v{u3}, {sr(SRD_T, 4)}, s{s_t0} offen")
        a.label(f"{name}_notn")
    if TOUCH_NEXT:
        side[6] = side[6] + [touch_next]

    def tlb_warm():
        a(f"v_min_u32 v{u3}, 7, v{v_lane}")
        a(f"v_lshlrev_b32 v{u3}, 21, v{u3}")
        a(f"s_cmp_lg_u32 s{s_w}, 7")
        a(f"s_cbranch_scc1 {name}_notlb")
        a(f"buffer_load_dword v{v_pa[1]}, v{u3}, {sr(SRD_WS, 4)}, 0 offen")
        a(f"buffer_load_dword v{v_pa[0]}, v{u3}, {sr(SRD_WR, 4)}, 0 offen")
        a(f"buffer_load_dword v{v_pa[2]}, v{u3}, {sr(SRD_WI, 4)}, 0 offen")
        a.label(f"{name}_notlb")
    if TLB_WARM:
        side[3] = [tlb_warm]
    if TOUCH_WD:
        for part in range(WDN):
            side[WDST + part] = side.get(WDST + part, []) + [wd_job(part, WDN)]
    if TOUCH:
        for st in range(4):
            side[st] = [lambda st=st: touch(st + 4)] + [lambda: None] * 3 + side.get(st, [])

    def read_ops(stage, j):
        bw = (stage % 3) * 16384 + j * 4096
        bx = (stage % 4) * 16384
        ops = []
        tag = f"r{stage}_{j}"
        for mt in range(2):
            for e in range(2):
                ops.append(lambda mt=mt, e=e: a.lds(
                    f"ds_read_b64_tr_b16 {vr(v_W[j % 2][mt] + 2 * e, 2)}, v{v_wa[mt]} offset:{bw + e * 1024}", tag))
            ops.append(lambda nt=mt: a.lds(
                f"ds_read_b128 {vr(v_X[j % 2][nt], 4)}, v{v_xa[j]} offset:{bx + nt * 4096}", tag))
        return ops

    def allreduce(v, t):
        return lines(f"""
s_nop 1
v_add_f32_dpp v{v}, v{v}, v{v} quad_perm:[1,0,3,2] row_mask:0xf bank_mask:0xf
s_nop 1
v_add_f32_dpp v{v}, v{v}, v{v} quad_perm:[2,3,0,1] row_mask:0xf bank_mask:0xf
s_nop 1
v_add_f32_dpp v{v}, v{v}, v{v} row_half_mirror row_mask:0xf bank_mask:0xf
s_nop 1
v_add_f32_dpp v{v}, v{v}, v{v} row_mirror row_mask:0xf bank_mask:0xf
v_mov_b32 v{t}, v{v}
s_nop 1
v_permlane16_swap_b32 v{v}, v{t}
v_add_f32 v{v}, v{v}, v{t}
v_mov_b32 v{t}, v{v}
s_nop 1
v_permlane32_swap_b32 v{v}, v{t}
v_add_f32 v{v}, v{v}, v{t}
""")
    el = [v_e + i for i in range(8)]
    m_, mb, dl, tt = v_t[:4]
    so0, so1 = v_st[0], v_st[0] + 1
    rowst = [lambda: a.wait(vm="xr")]
    for d in range(4):
        rowst += lines(f"v_lshlrev_b32 v{el[2 * d]}, 16, v{XR + d}\nv_and_b32 v{el[2 * d + 1]}, 0xffff0000, v{XR + d}")
    rowst += lines(f"""
v_add_f32 v{m_}, v{el[0]}, v{el[1]}
v_add_f32 v{mb}, v{el[2]}, v{el[3]}
v_add_f32 v{dl}, v{el[4]}, v{el[5]}
v_add_f32 v{tt}, v{el[6]}, v{el[7]}
v_add_f32 v{m_}, v{m_}, v{mb}
v_add_f32 v{dl}, v{dl}, v{tt}
v_add_f32 v{m_}, v{m_}, v{dl}
""") + allreduce(m_, tt) + lines(f"""
v_mul_f32 v{m_}, 0x3b000000, v{m_}
v_cvt_pk_bf16_f32 v{so0}, -v{m_}, -v{m_}
""")
    rowst += lines("\n".join(f"v_sub_f32 v{e_}, v{e_}, v{m_}" for e_ in el))
    rowst += lines(f"v_mul_f32 v{mb}, v{el[0]}, v{el[0]}\nv_mul_f32 v{dl}, v{el[1]}, v{el[1]}")
    rowst += lines("\n".join(f"v_fmac_f32 v{(mb, dl)[i % 2]}, v{el[i]}, v{el[i]}" for i in range(2, 8)))
    rowst += lines(f"v_add_f32 v{mb}, v{mb}, v{dl}") + allreduce(mb, tt) + lines(f"""
v_mul_f32 v{mb}, 0x3b000000, v{mb}
v_cvt_pk_bf16_f32 v{tt}, v{mb}, v{mb}
v_and_b32 v{tt}, 0xffff0000, v{tt}
v_add_f32 v{tt}, 0x3727c5ac, v{tt}
v_cvt_pk_bf16_f32 v{tt}, v{tt}, v{tt}
v_and_b32 v{tt}, 0xffff0000, v{tt}
v_sqrt_f32 v{tt}, v{tt}
v_and_b32 v{so0}, 0xffff, v{so0}
v_cvt_pk_bf16_f32 v{tt}, v{tt}, v{tt}
v_and_b32 v{tt}, 0xffff0000, v{tt}
v_or_b32 v{so0}, v{so0}, v{tt}
""")
    fl = v_XS[1]

    def nonce_load():
        a(f"v_mov_b32 v{fl + 2}, 0")
        a.vmem(f"buffer_load_dword v{fl}, v{fl + 2}, {sr(SRD_D, 4)}, 0 offen sc1", "nl")

    def rowst_store():
        a.wait(vm="nl")
        a(f"s_mov_b32 s{s_t3}, {SPIN_MAX}")
        a.label(f"{name}_nn")
        a(f"v_readfirstlane_b32 s{s_non}, v{fl}")
        a(f"s_cmp_lg_u32 s{s_non}, 0")
        a(f"s_cbranch_scc1 {name}_nnok")
        a(f"s_sub_u32 s{s_t3}, s{s_t3}, 1")
        a(f"s_cbranch_scc1 {name}_nnok")
        a("s_sleep 8")
        a(f"buffer_load_dword v{fl}, v{fl + 2}, {sr(SRD_D, 4)}, 0 offen sc1")
        a("s_waitcnt vmcnt(0)")
        a(f"s_branch {name}_nn")
        a.label(f"{name}_nnok")
        a(f"s_lshl_b32 s{s_t0}, s{s_rb}, 7")
        a(f"s_lshl_b32 s{s_t1}, s{s_cg}, 3")
        a(f"s_add_u32 s{s_t0}, s{s_t0}, s{s_t1}")
        a(f"s_add_u32 s{s_t0}, s{s_t0}, s{s_w}")
        a(f"s_lshl_b32 s{s_t0}, s{s_t0}, 3")
        a(f"s_add_u32 s{s_t0}, s{s_t0}, {WS_ST}")
        a(f"v_mov_b32 v{so1}, v{fl}")
        a("s_mov_b64 exec, 1")
        a.vmem(f"buffer_store_dwordx2 {vr(so0, 2)}, v{fl + 2}, {sr(SRD_WS, 4)}, s{s_t0} offen sc1", "ss")
        a("s_mov_b64 exec, -1")

    def st_loads(reg):
        for nt in range(2):
            txt = f"buffer_load_dwordx2 {vr(v_st[nt], 2)}, v{fl + 3}, {sr(SRD_WS, 4)}, s{s_sx} offen offset:{256 * nt} sc1"
            if reg:
                a.vmem(txt, "sl")
            else:
                a(txt)

    def st_poll_load():
        a(f"s_lshl_b32 s{s_sx}, s{s_rb}, 10")
        a(f"s_lshl_b32 s{s_t1}, s{s_ni}, 9")
        a(f"s_add_u32 s{s_sx}, s{s_sx}, s{s_t1}")
        a(f"s_add_u32 s{s_sx}, s{s_sx}, {WS_ST}")
        a(f"v_lshlrev_b32 v{fl + 3}, 3, v{v_n}")
        st_loads(True)

    def st_poll_check():
        a.wait(vm="sl")
        a(f"s_mov_b32 s{s_t3}, {SPIN_MAX}")
        a.label(f"{name}_sp")
        a(f"v_cmp_ne_u32 vcc, s{s_non}, v{v_st[0] + 1}")
        a(f"v_cmp_ne_u32 {sr(s_tab, 2)}, s{s_non}, v{v_st[1] + 1}")
        a("s_nop 0")
        a(f"s_or_b64 vcc, vcc, {sr(s_tab, 2)}")
        a(f"s_cbranch_scc0 {name}_spok")
        a(f"s_sub_u32 s{s_t3}, s{s_t3}, 1")
        a(f"s_cbranch_scc1 {name}_spok")
        a("s_sleep 8")
        st_loads(False)
        a("s_waitcnt vmcnt(0)")
        a(f"s_branch {name}_sp")
        a.label(f"{name}_spok")

    def sel_op(j, mt, first):
        c = "0" if first else vr(v_cs[mt], 4)
        return lambda: a(f"v_mfma_f32_16x16x32_bf16 {vr(v_cs[mt], 4)}, {vr(v_sel, 4)}, {vr(v_W[j % 2][mt], 4)}, {c}")

    ORDER = ((0, 0), (1, 0), (0, 1), (1, 1))

    def mfma_ops(stage, j):
        ops = []
        first = stage == 0 and j == 0
        for mt, nt in ORDER:
            acc = vr(v_acc[mt][nt], 16)
            ops.append(lambda mt=mt, nt=nt, acc=acc: a(
                f"v_mfma_f32_32x32x16_bf16 {acc}, {vr(v_W[j % 2][mt], 4)}, {vr(v_X[j % 2][nt], 4)}, {'0' if first else acc}"))
        return ops

    def merge(a_list, b_list):
        out = []
        na, nb = len(a_list), len(b_list)
        ia = ib = 0
        while ia < na or ib < nb:
            if ib >= nb or (ia < na and ia * nb <= ib * na):
                out.append(a_list[ia]); ia += 1
            else:
                out.append(b_list[ib]); ib += 1
        return out

    e = v_e
    rA, rB = v_st[0] + 1, v_st[1] + 1

    publish = lines(f"""
s_lshl_b32 s{s_t2}, s{s_tile}, 9
s_add_u32 s{s_t2}, s{s_t2}, {K1_LDS_CS}
v_lshlrev_b32 v{u1}, 3, v{v_lane}
v_add_u32 v{u1}, s{s_t2}, v{u1}
""")

    def publish_cs():
        a.lds(f"ds_write_b64 v{u1}, {vr(v_cs[0], 2)}", "w")

    gather = lines(f"v_xor_b32 v{u1}, 512, v{u1}")
    gather.append(lambda: a.lds(f"ds_read_b64 {vr(v_FA[1], 2)}, v{u1}", "s"))

    fin = lines(f"""
v_cmp_eq_u32 vcc, 0, v{v_h}
v_mov_b32 v{v_FB[0] + 2}, 0
v_mov_b32 v{v_FB[0] + 3}, 0
v_mov_b32 v{v_FB[1] + 2}, 0
v_mov_b32 v{v_FB[1] + 3}, 0
v_mov_b32 v{v_FA[0] + 2}, 0
v_mov_b32 v{v_FA[0] + 3}, 0
v_mov_b32 v{v_FA[1] + 2}, 0
v_mov_b32 v{v_FA[1] + 3}, 0
v_bfe_u32 v{t0}, v{v_lane}, 4, 1
v_and_b32 v{rA}, 0xffff0000, v{v_st[0]}
v_and_b32 v{rB}, 0xffff0000, v{v_st[1]}
v_rcp_f32 v{rA}, v{rA}
v_rcp_f32 v{rB}, v{rB}
v_and_b32 v{v_st[0]}, 0xffff, v{v_st[0]}
v_and_b32 v{v_st[1]}, 0xffff, v{v_st[1]}
v_lshl_or_b32 v{v_st[0]}, v{v_st[0]}, 16, v{v_st[0]}
v_lshl_or_b32 v{v_st[1]}, v{v_st[1]}, 16, v{v_st[1]}
v_cndmask_b32 v{v_FB[0]}, 0, v{v_st[0]}, vcc
v_cndmask_b32 v{v_FB[1]}, 0, v{v_st[1]}, vcc
v_cmp_eq_u32 vcc, 1, v{t0}
v_mov_b32 v{v_FB[0] + 1}, v{v_FB[0]}
v_mov_b32 v{v_FB[1] + 1}, v{v_FB[1]}
v_cndmask_b32 v{v_cso}, v{v_FA[1]}, v{v_FA[1] + 1}, vcc
""")

    def fold_a(mt):
        c, r1, hi = v_t[3 * mt], v_t[3 * mt + 1], v_t[3 * mt + 2]
        FA = v_FA[mt]
        txt = f"v_cndmask_b32 v{c}, v{v_cs[mt]}, v{v_cs[mt] + 1}, vcc\n"
        if mt == 1:
            txt += f"v_add_f32 v{c}, v{c}, v{v_cso}\n"
        txt += f"""v_and_b32 v{hi}, 0xffff0000, v{c}
v_sub_f32 v{r1}, v{c}, v{hi}
v_and_b32 v{c}, 0xffff0000, v{r1}
v_sub_f32 v{r1}, v{r1}, v{c}
v_lshrrev_b32 v{hi}, 16, v{hi}
v_or_b32 v{FA}, v{hi}, v{c}
v_lshrrev_b32 v{FA + 1}, 16, v{r1}"""
        return lines(txt)

    if GS < 6:
        side[GS + 2 if GS + 2 < 7 else 6] = side.get(GS + 2 if GS + 2 < 7 else 6, []) + [side_store]
    side[0] = rowst[:40] + [nonce_load] + rowst[40:] + side.get(0, [])
    side[1] = [lambda: None, rowst_store, lambda: None, lambda: None] + side.get(1, [])
    side[5] = side.get(5, []) + [lambda: None] * 2 + [st_poll_load, lambda: None]
    side[6] = [st_poll_check] + side[6]
    if SENT == -1:
        flag_init()
    elif SENT < 7:
        side[SENT] = side.get(SENT, []) + [flag_init]
    pf.stamp()
    a.wait(vm=["x0", "w0"])
    a("s_barrier")
    pf.stamp()
    for f in read_ops(0, 0):
        f()
    LAST = NSTAGE - 1
    for stage in range(NSTAGE):
        dops = (dma_w(stage + 2) if stage + 2 < NSTAGE else []) + (dma_x(stage + 3) if stage + 3 < NSTAGE else [])
        extra = side.get(stage, [])
        for j in range(4):
            a.comment(f"stage {stage} step {j}")
            a.wait(lg="all")
            m = mfma_ops(stage, j)
            if stage < LAST:
                m = [sel_op(j, 0, stage == 0 and j == 0)] + m
                so = publish if (stage == 6 and j == 2) else []
                ex = extra[len(extra) * j // 4:len(extra) * (j + 1) // 4]
                if j < 3:
                    fill = read_ops(stage, j + 1) + merge(merge(so, ex), dops[2 * j:2 * j + 2])
                    interleave(a, m, fill)
                else:
                    interleave(a, m[:3], merge(so, ex))
                    if stage == 6:
                        a("s_nop 3")
                        publish_cs()
                        a.wait(lg="all")
                    tags = [f"w{stage + 1}", f"x{stage + 1}"]
                    a.wait(vm=tags)
                    a("s_barrier")
                    if PROF == 1 and stage % 2 == 0:
                        pf.stamp()
                    for f in read_ops(stage + 1, 0):
                        f()
                    m[3]()
                    if stage == 6:
                        for f in gather:
                            f()
                    m[4]()
            else:
                m = [sel_op(j, 0, False), sel_op(j, 1, j == 0)] + m
                if j < 3:
                    n = len(fin)
                    interleave(a, m, read_ops(stage, j + 1) + ([flag_init] if j == 0 and SENT == 7 else []) + fin[n * j // 3:n * (j + 1) // 3])
                else:
                    for f in m[:4]:
                        f()
                    a("s_nop 3")
                    interleave(a, m[4:], merge(fold_a(0), fold_a(1)))
    a("s_nop 1")
    for mt, nt in ORDER:
        acc = vr(v_acc[mt][nt], 16)
        a(f"v_mfma_f32_32x32x16_bf16 {acc}, {vr(v_FA[mt], 4)}, {vr(v_FB[nt], 4)}, {acc}")
    if GS == 6:
        side_store()
    pf.stamp()
    rr = [rA, rB]
    a(f"s_cmp_ge_u32 s{s_cg}, 14")
    a(f"s_cbranch_scc1 {name}_epi_dft")
    r2 = [e + 4, e + 6]
    for nt in range(2):
        a(f"v_mul_f32 v{r2[nt]}, v{rr[nt]}, v{rr[nt]}")
    a(f"v_lshlrev_b32 v{t0}, 4, v{v_lane}")
    a(f"s_lshl_b32 s{s_t0}, s{s_rb}, 2")
    a(f"s_lshl_b32 s{s_t2}, s{s_ni}, 1")
    a(f"s_add_u32 s{s_t0}, s{s_t0}, s{s_t2}")
    a(f"s_mul_i32 s{s_t0}, s{s_t0}, 112")
    a(f"s_lshl_b32 s{s_t2}, s{s_cg}, 3")
    a(f"s_add_u32 s{s_t0}, s{s_t0}, s{s_t2}")
    for mt, nt in ORDER:
        acc = v_acc[mt][nt]
        for i in range(8):
            a(f"v_max_f32 v{acc + i}, 0, v{acc + i}")
            a(f"v_mul_f32 v{acc + 8 + i}, v{r2[nt]}, v{acc + 8 + i}")
        for i in range(8):
            a(f"v_mul_f32 v{acc + i}, v{acc + i}, v{acc + 8 + i}")
        for i in range(4):
            a(f"v_cvt_pk_bf16_f32 v{acc + 8 + i}, v{acc + 2 * i}, v{acc + 2 * i + 1}")
        a(f"s_xor_b32 s{s_t2}, s{s_tile}, {mt}")
        a(f"s_add_u32 s{s_t2}, s{s_t2}, s{s_t0}")
        if nt:
            a(f"s_add_u32 s{s_t2}, s{s_t2}, 112")
        a(f"s_lshl_b32 s{s_t2}, s{s_t2}, 10")
        a(f"buffer_store_dwordx4 {vr(acc + 8, 4)}, v{t0}, {sr(SRD_WS, 4)}, s{s_t2} offen{WTH}")
    if PROF:
        pf.stamp()
        a("s_waitcnt vmcnt(0)")
        pf.stamp()
        pf.stamp(real=True)
        pf.dump(SRD_WS, 2, s_w, v_t[0], s_t0, 8)
    a("s_endpgm")
    a.label(f"{name}_epi_dft")
    for nt in range(2):
        a(f"v_mul_f32 v{rr[nt]}, 0x36000000, v{rr[nt]}")
    a(f"v_lshlrev_b32 v{t0}, 14, v{v_h}")
    a(f"v_lshl_add_u32 v{t0}, v{v_n}, 2, v{t0}")
    a(f"s_sub_u32 s{s_t0}, s{s_cg}, 14")
    a(f"s_lshl_b32 s{s_t0}, s{s_t0}, 20")
    a(f"s_add_u32 s{s_t0}, s{s_t0}, {WS_U}")
    a(f"s_lshl_b32 s{s_t2}, s{s_rb}, 9")
    a(f"s_add_u32 s{s_t0}, s{s_t0}, s{s_t2}")
    a(f"s_lshl_b32 s{s_t2}, s{s_ni}, 8")
    a(f"s_add_u32 s{s_t0}, s{s_t0}, s{s_t2}")
    for mt, nt in ORDER:
        a(f"s_xor_b32 s{s_t2}, s{s_tile}, {mt}")
        a(f"s_lshl_b32 s{s_t2}, s{s_t2}, 16")
        a(f"s_add_u32 s{s_t2}, s{s_t2}, s{s_t0}")
        acc = v_acc[mt][nt]
        for i in range(16):
            a(f"v_mul_f32 v{acc + i}, v{rr[nt]}, v{acc + i}")
        for i in range(8):
            a(f"v_cvt_pk_bf16_f32 v{acc + 2 * i}, v{acc + 2 * i}, v{acc + 2 * i + 1}")
        for g in range(4):
            for ip in range(2):
                koff = (g % 2) * 4 + (g // 2) * 64 + ip
                a(f"s_add_u32 s{s_t3}, s{s_t2}, {koff * 8192}")
                a(f"buffer_store_dword v{acc + 4 * g + 2 * ip}, v{t0}, {sr(SRD_WS, 4)}, s{s_t3} offen offset:{nt * 128}{WTH}")
    if PROF:
        pf.n -= 3
        pf.stamp()
        a("s_waitcnt vmcnt(0)")
        pf.stamp()
        pf.stamp(real=True)
        pf.dump(SRD_WS, 2, s_w, v_t[0], s_t0, 8)
    a.label(f"{name}_done")
    a("s_endpgm")
    return kernel_header(name) + a.text(), kernel_desc(name, V.hi, 102)


def gen_ftab():
    j = np.arange(512)
    c, s = exact_cos_sin(j, 512)
    cb, nb = bf16_bits(c), bf16_bits(-s + 0.0)
    t = ""
    for i in range(512):
        t += f".set tw_{i}, 0x{int(cb[i] | (nb[i] << 16)):08x}\n"
    t += """.macro twe idx
.long tw_\\idx
.endm
.altmacro
.p2align 8
ftab:
.set dd, 0
.rept 512
.long 0x3f003f00 | ((dd & 1) << 31)
.set kk, 1
.rept 255
twe %((dd*kk) & 511)
.set kk, kk+1
.endr
.set dd, dd+1
.endr
.noaltmacro
"""
    return t
```

```python
from gen_common import *

NXS, NWS = 4, 5
KA_W0 = NXS * 16384
KA_CS = KA_W0 + NWS * 16384
KA_LDS = 163840
WS_ST = 15 << 20
WT = os.environ.get("K1_WT", " sc1")
WT0 = os.environ.get("KA_WT0", " sc1")
WT1 = os.environ.get("KA_WT1", "")
TOUCH_NEXT = int(os.environ.get("TOUCH_NEXT", "1"))
SPIN_MAX = 1 << 14


def base_x(s):
    return (s % NXS) * 16384


def base_w(s):
    return KA_W0 + (s % NWS) * 16384


def phase_a(a, V, S, name, pf, fused=None):
    SRD_X, SRD_G, SRD_U, SRD_WS, SRD_WR, SRD_WI, SRD_WD, SRD_T, SRD_D = 4, 8, 12, 16, 20, 24, 28, 32, 36
    s_rb, s_cg, s_w, s_mi, s_ni, s_rs, s_rot = [S.alloc() for _ in range(7)]
    s_t0, s_t1, s_t2, s_t3 = [S.alloc() for _ in range(4)]
    s_sx, s_sg, s_su, s_rs64, s_mw, s_mx = [S.alloc() for _ in range(6)]
    s_p = S.alloc(16, 4)
    s_tab = S.alloc(2, 2)

    v_lane = V.alloc()
    b = V.alloc(10, 2)
    v_dx = [b, b + 1]
    v_xa = [b + 2 + i for i in range(4)]
    v_st = [b + 6 + i for i in range(4)]
    v_n, v_h = V.alloc(), V.alloc()
    v_t = [V.alloc() for _ in range(6)]
    v_dg, v_du = V.alloc(), V.alloc()
    v_wa = [[V.alloc(), V.alloc()] for _ in range(4)]
    v_r = V.alloc()
    v_cs = [V.alloc(4, 4), V.alloc(4, 4)]
    v_sel = V.alloc(4, 4)
    v_FB = V.alloc(4, 4)
    v_W = [[V.alloc(4, 4) for _ in range(2)] for _ in range(2)]
    v_acc = [[V.alloc(16, 4) for _ in range(2)] for _ in range(2)]
    X = V.alloc(128, 4)
    t0, t1, t2, t3, t4, t5 = v_t
    J = v_acc[1][0]
    E = X

    a(f"s_load_dwordx2 {sr(s_p, 2)}, s[0:1], {KA_X}")
    a(f"s_load_dwordx4 {sr(s_p + 4, 4)}, s[0:1], {KA_WG}")
    a(f"s_load_dwordx2 {sr(s_p + 2, 2)}, s[0:1], {KA_WS}")
    a(f"s_load_dwordx4 {sr(s_p + 8, 4)}, s[0:1], {KA_WR}")
    a(f"s_load_dwordx2 {sr(s_p + 12, 2)}, s[0:1], {KA_WD}")
    a(f"s_load_dwordx2 {sr(s_p + 14, 2)}, s[0:1], {KA_DBG}")
    a(f"v_lshrrev_b32 v{t0}, 6, v0")
    a(f"v_and_b32 v{v_lane}, 63, v0")
    a(f"v_readfirstlane_b32 s{s_w}, v{t0}")
    a(f"s_bfe_u32 s{s_rb}, s2, 0x10002")
    a(f"s_lshl_b32 s{s_rb}, s{s_rb}, 3")
    a(f"s_bfe_u32 s{s_t2}, s2, 0x30003")
    a(f"s_add_u32 s{s_rb}, s{s_rb}, s{s_t2}")
    a(f"s_lshr_b32 s{s_cg}, s2, 6")
    a(f"s_lshl_b32 s{s_cg}, s{s_cg}, 2")
    a(f"s_and_b32 s{s_t2}, s2, 3")
    a(f"s_add_u32 s{s_cg}, s{s_cg}, s{s_t2}")
    a(f"s_lshl_b32 s{s_t0}, s{s_cg}, 8")
    a(f"s_add_u32 s{s_t1}, s{s_t0}, 128")
    a(f"s_sub_u32 s{s_t2}, s{s_cg}, 4")
    a(f"s_lshl_b32 s{s_t2}, s{s_t2}, 7")
    a(f"s_movk_i32 s{s_rs}, 3584")
    a(f"s_cmp_lt_u32 s{s_cg}, 4")
    a(f"s_cselect_b32 s{s_rs}, 1024, s{s_rs}")
    a(f"s_cselect_b32 s{s_sg}, s{s_t0}, s{s_t2}")
    a(f"s_cselect_b32 s{s_su}, s{s_t1}, s{s_t2}")
    a(f"s_lshl_b32 s{s_rs64}, s{s_rs}, 6")
    a(f"s_getpc_b64 {sr(s_tab, 2)}")
    a(f"s_add_u32 s{s_tab}, s{s_tab}, ftab@rel32@lo+4")
    a(f"s_addc_u32 s{s_tab + 1}, s{s_tab + 1}, ftab@rel32@hi+12")
    a(f"v_lshrrev_b32 v{t0}, 3, v{v_lane}")
    a(f"v_and_b32 v{t1}, 7, v{v_lane}")
    a(f"v_lshrrev_b32 v{t2}, 4, v{v_lane}")
    a(f"v_xor_b32 v{t3}, v{t1}, v{t2}")
    a(f"v_lshlrev_b32 v{t3}, 4, v{t3}")
    a(f"v_lshl_add_u32 v{t3}, v{t0}, 16, v{t3}")
    a(f"s_and_b32 s{s_t0}, s{s_w}, 1")
    a(f"s_lshl_b32 s{s_t0}, s{s_t0}, 20")
    a(f"s_lshr_b32 s{s_t1}, s{s_w}, 1")
    a(f"s_lshl_b32 s{s_t1}, s{s_t1}, 10")
    a(f"s_add_u32 s{s_t0}, s{s_t0}, s{s_t1}")
    a(f"s_lshl_b32 s{s_t1}, s{s_rb}, 12")
    a(f"s_add_u32 s{s_t0}, s{s_t0}, s{s_t1}")
    a(f"v_add_u32 v{v_dx[0]}, s{s_t0}, v{t3}")
    a(f"v_xor_b32 v{t3}, 0x80040, v{t3}")
    a(f"v_add_u32 v{v_dx[1]}, s{s_t0}, v{t3}")
    a(f"v_and_b32 v{t2}, 1, v{t2}")
    a(f"v_lshlrev_b32 v{t2}, 6, v{t2}")
    a(f"v_lshlrev_b32 v{t1}, 4, v{t1}")
    a(f"v_xor_b32 v{t4}, v{t1}, v{t2}")
    a(f"s_lshl_b32 s{s_t0}, s{s_w}, 3")
    a(f"v_add_u32 v{t5}, s{s_t0}, v{t0}")
    a(f"v_mul_lo_u32 v{t0}, v{t5}, s{s_rs}")
    a(f"v_add_u32 v{v_dg}, v{t0}, v{t4}")
    a(f"v_xor_b32 v{v_du}, 32, v{v_dg}")
    a(f"s_lshl_b32 s{s_mw}, s{s_w}, 10")
    a(f"s_lshl_b32 s{s_mx}, s{s_w}, 11")
    a(f"s_lshl_b32 s{s_t0}, s{s_cg}, 3")
    a(f"s_add_u32 s{s_t0}, s{s_t0}, s{s_w}")
    a(f"s_and_b32 s{s_t1}, s{s_t0}, 31")
    a(f"s_lshl_b32 s{s_t1}, s{s_t1}, 16")
    a(f"s_lshr_b32 s{s_t0}, s{s_t0}, 5")
    a(f"s_lshl_b32 s{s_t0}, s{s_t0}, 10")
    a(f"s_add_u32 s{s_t1}, s{s_t1}, s{s_t0}")
    a(f"s_lshl_b32 s{s_t0}, s{s_rb}, 12")
    a(f"s_add_u32 s{s_t3}, s{s_t1}, s{s_t0}")
    a(f"v_lshlrev_b32 v{t1}, 4, v{v_lane}")
    a(f"s_mov_b32 s{s_sx}, 0")
    a(f"s_mov_b32 s{SRD_X + 2}, {2048 * 1024}")
    a(f"s_mov_b32 s{SRD_X + 3}, 0x00020000")
    a(f"s_mov_b32 s{SRD_G + 3}, 0x00020000")
    a(f"s_mov_b32 s{SRD_U + 3}, 0x00020000")
    a(f"s_lshl_b32 s{SRD_G + 2}, s{s_rs}, 9")
    a(f"s_lshl_b32 s{SRD_U + 2}, s{s_rs}, 9")
    a("s_waitcnt lgkmcnt(0)")
    a(f"s_mov_b32 s{SRD_X}, s{s_p}")
    a(f"s_and_b32 s{SRD_X + 1}, s{s_p + 1}, 0xffff")
    a(f"s_cmp_lt_u32 s{s_cg}, 4")
    a(f"s_cselect_b32 s{SRD_G}, s{s_tab}, s{s_p + 4}")
    a(f"s_cselect_b32 s{SRD_G + 1}, s{s_tab + 1}, s{s_p + 5}")
    a(f"s_cselect_b32 s{SRD_U}, s{s_tab}, s{s_p + 6}")
    a(f"s_cselect_b32 s{SRD_U + 1}, s{s_tab + 1}, s{s_p + 7}")
    a(f"s_and_b32 s{SRD_G + 1}, s{SRD_G + 1}, 0xffff")
    a(f"s_and_b32 s{SRD_U + 1}, s{SRD_U + 1}, 0xffff")

    def dma_x(s):
        b = base_x(s)

        def f0():
            a(f"s_add_u32 m0, s{s_mx}, {b}")
            a("s_nop 0")
            a.vmem(f"buffer_load_dwordx4 v{v_dx[0]}, {sr(SRD_X, 4)}, s{s_sx} offen lds", f"x{s}")

        def f1():
            a(f"s_add_u32 m0, s{s_mx}, {b + 1024}")
            a("s_nop 0")
            a.vmem(f"buffer_load_dwordx4 v{v_dx[1]}, {sr(SRD_X, 4)}, s{s_sx} offen lds", f"x{s}")
        return [f0, f1]

    def switch_round1():
        a(f"s_mov_b32 s{SRD_G}, s{s_p + 4}")
        a(f"s_and_b32 s{SRD_G + 1}, s{s_p + 5}, 0xffff")
        a(f"s_mov_b32 s{SRD_U}, s{s_p + 6}")
        a(f"s_and_b32 s{SRD_U + 1}, s{s_p + 7}, 0xffff")
        a(f"s_mov_b32 s{SRD_G + 2}, {512 * 3584}")
        a(f"s_mov_b32 s{SRD_U + 2}, {512 * 3584}")
        a(f"s_mov_b32 s{s_rs64}, {64 * 3584}")
        a(f"s_add_u32 s{s_sg}, s{s_cg}, 12")
        a(f"s_lshl_b32 s{s_sg}, s{s_sg}, 7")
        a(f"s_mov_b32 s{s_su}, s{s_sg}")
        a(f"v_lshrrev_b32 v{J + 30}, 3, v{v_lane}")
        a(f"s_lshl_b32 s{s_t3}, s{s_w}, 3")
        a(f"v_add_u32 v{J + 30}, s{s_t3}, v{J + 30}")
        a(f"v_mul_u32_u24 v{J + 30}, 3584, v{J + 30}")
        a(f"v_and_b32 v{v_dg}, 127, v{v_dg}")
        a(f"v_add_u32 v{v_dg}, v{v_dg}, v{J + 30}")
        a(f"v_xor_b32 v{v_du}, 32, v{v_dg}")

    def dma_w(s):
        b = base_w(s)

        def f0():
            if s == 8:
                switch_round1()
            a(f"s_add_u32 m0, s{s_mw}, {b}")
            a(f"s_add_u32 s{s_su}, s{s_su}, s{s_rs64}" if s % 8 else "s_nop 0")
            a.vmem(f"buffer_load_dwordx4 v{v_dg}, {sr(SRD_G, 4)}, s{s_sg} offen lds", f"w{s}")

        def f1():
            a(f"s_add_u32 m0, s{s_mw}, {b + 8192}")
            a(f"s_add_u32 s{s_sg}, s{s_sg}, s{s_rs64}")
            a.vmem(f"buffer_load_dwordx4 v{v_du}, {sr(SRD_U, 4)}, s{s_su} offen lds", f"w{s}")
        return [f0, f1]

    def dma_xs(s):
        f0, f1 = dma_x(s)
        if s == 0:
            return [f0, f1]

        def g0():
            a(f"s_add_u32 m0, s{s_mx}, {base_x(s)}")
            a(f"s_add_u32 s{s_sx}, s{s_sx}, 128")
            a.vmem(f"buffer_load_dwordx4 v{v_dx[0]}, {sr(SRD_X, 4)}, s{s_sx} offen lds", f"x{s}")
        return [g0, f1]

    XR = J + 8
    for f in dma_xs(0) + dma_w(0):
        f()
    a.vmem(f"buffer_load_dwordx4 {vr(XR, 4)}, v{t1}, {sr(SRD_X, 4)}, s{s_t3} offen", "xr")
    NPRO = int(os.environ.get("KA_NPRO", "3"))
    rest = [f for st_ in range(1, NPRO) for f in dma_xs(st_) + dma_w(st_)]
    nx = nw = NPRO

    setup = []

    def L(txt):
        setup.extend(txt.strip().split("\n"))
    L(f"""
v_and_b32 v{v_n}, 31, v{v_lane}
v_lshrrev_b32 v{v_h}, 5, v{v_lane}
s_and_b32 s{s_mi}, s{s_w}, 1
s_lshr_b32 s{s_ni}, s{s_w}, 1
s_xor_b32 s{s_rot}, s{s_ni}, s{s_mi}
v_bfe_u32 v{t0}, v{v_n}, 1, 3
v_xor_b32 v{t0}, v{t0}, v{v_h}
s_lshl_b32 s{s_t0}, s{s_ni}, 12
v_lshlrev_b32 v{t1}, 7, v{v_n}
v_add_u32 v{t1}, s{s_t0}, v{t1}
v_lshl_add_u32 v{t1}, v{t0}, 4, v{t1}
s_lshl_b32 s{s_t0}, s{s_rot}, 5
v_xor_b32 v{v_xa[0]}, s{s_t0}, v{t1}
v_xor_b32 v{v_xa[1]}, 32, v{v_xa[0]}
v_xor_b32 v{v_xa[2]}, 64, v{v_xa[0]}
v_xor_b32 v{v_xa[3]}, 96, v{v_xa[0]}
v_bfe_u32 v{t2}, v{v_lane}, 4, 1
v_bfe_u32 v{t3}, v{v_lane}, 2, 2
v_and_b32 v{t4}, 2, v{t3}
v_or_b32 v{t4}, v{t4}, v{t2}
s_lshl_b32 s{s_t0}, s{s_mi}, 1
v_xor_b32 v{t4}, s{s_t0}, v{t4}
v_lshlrev_b32 v{t4}, 5, v{t4}
v_lshl_add_u32 v{t4}, v{t3}, 7, v{t4}
v_and_b32 v{t3}, 3, v{v_lane}
v_lshl_add_u32 v{t4}, v{t3}, 3, v{t4}
v_lshl_add_u32 v{t4}, v{v_h}, 10, v{t4}
v_lshl_add_u32 v{t4}, v{t2}, 13, v{t4}
s_lshl_b32 s{s_t0}, s{s_rot}, 11
v_xor_b32 v{t4}, s{s_t0}, v{t4}
v_add_u32 v{v_wa[0][0]}, {KA_W0}, v{t4}
""")
    for j in range(4):
        if j:
            L(f"v_xor_b32 v{v_wa[j][0]}, {2048 * j}, v{v_wa[0][0]}")
        L(f"v_xor_b32 v{v_wa[j][1]}, 32, v{v_wa[j][0]}")
    L(f"""
v_cmp_eq_u32 vcc, v{t3}, v{t2}
v_mov_b32 v{t0}, 0x3f803f80
v_mov_b32 v{t1}, 0
v_cndmask_b32 v{v_sel}, v{t1}, v{t0}, vcc
v_cndmask_b32 v{v_sel + 1}, v{t1}, v{t0}, vcc
v_cndmask_b32 v{v_sel + 2}, v{t1}, v{t0}, vcc
v_cndmask_b32 v{v_sel + 3}, v{t1}, v{t0}, vcc
""")
    per = max(1, len(setup) // (len(rest) + 1))
    k = 0
    for i, l in enumerate(setup):
        a(l)
        if (i + 1) % per == 0 and k < len(rest):
            rest[k]()
            k += 1
    for f in rest[k:]:
        f()
    srd(a, SRD_WS, s_p + 2, WS_SIZE)
    srd(a, SRD_WR, s_p + 8, 2048 * 514)
    srd(a, SRD_WI, s_p + 10, 2048 * 514)
    srd(a, SRD_WD, s_p + 12, 1792 * 1024)
    srd(a, SRD_D, s_p + 14, 256)

    def lines(txt):
        return [lambda l=l: a(l) for l in txt.strip().split("\n")]

    side = {}
    f1, fi, f2, sn = J, J + 4, J + 12, J + 16
    f1a, f1s, f2a, f2s, u0, u1, u2, u3, pa = [J + 20 + i for i in range(9)]

    def sentinel():
        a(f"s_lshl_b32 s{s_t0}, s2, 3")
        a(f"s_add_u32 s{s_t0}, s{s_t0}, s{s_w}")
        a(f"s_lshl_b32 s{s_t0}, s{s_t0}, 10")
        a(f"s_add_u32 s{s_t0}, s{s_t0}, {WS_Z}")
        a(f"v_lshlrev_b32 v{u3}, 4, v{v_lane}")
        for i in range(4):
            a(f"v_mov_b32 v{sn + i}, -1")
        a.vmem(f"buffer_store_dwordx4 {vr(sn, 4)}, v{u3}, {sr(SRD_WS, 4)}, s{s_t0} offen sc1", "st")
    sentinel()
    if fused:
        fused["early"](locals())
    job = lines(f"""
v_lshrrev_b32 v{u0}, 3, v{v_lane}
v_and_b32 v{u1}, 7, v{v_lane}
s_and_b32 s{s_t0}, s2, 3
s_lshl_b32 s{s_t0}, s{s_t0}, 3
s_add_u32 s{s_t0}, s{s_t0}, s{s_w}
s_lshl_b32 s{s_t0}, s{s_t0}, 3
v_add_u32 v{u1}, s{s_t0}, v{u1}
s_lshr_b32 s{s_t1}, s2, 2
s_and_b32 s{s_t1}, s{s_t1}, 3
s_lshr_b32 s{s_t2}, s2, 4
v_lshrrev_b32 v{u2}, 2, v{u0}
v_lshlrev_b32 v{u2}, 4, v{u2}
v_and_b32 v{u3}, 3, v{u0}
v_add_u32 v{u2}, v{u2}, v{u3}
s_lshl_b32 s{s_t3}, s{s_t1}, 2
v_add_u32 v{u2}, s{s_t3}, v{u2}
s_lshl_b32 s{s_t3}, s{s_t2}, 7
v_add_u32 v{u2}, s{s_t3}, v{u2}
v_mul_u32_u24 v{u2}, 514, v{u2}
v_lshl_add_u32 v{f1a}, v{u1}, 1, v{u2}
v_add_u32 v{f2a}, 512, v{u2}
s_lshl_b32 s{s_t3}, s{s_t2}, 9
s_lshl_b32 s{s_t1}, s{s_t1}, 7
s_add_u32 s{s_t3}, s{s_t3}, s{s_t1}
s_add_u32 s{s_t3}, s{s_t3}, {WS_W}
v_lshl_add_u32 v{u0}, v{u0}, 4, s{s_t3}
v_lshl_add_u32 v{f1s}, v{u1}, 13, v{u0}
v_add_u32 v{f2s}, {256 * 8192}, v{u0}
""")
    side[2] = job

    def gl(dst, va, srdn, i):
        def f():
            a(f"s_mov_b32 s{s_t0}, {i * 32 * 514}")
            a.vmem(f"buffer_load_ushort v{dst}, v{va}, {sr(srdn, 4)}, s{s_t0} offen", "f1")
        return f

    def c256_test(lbl):
        a(f"s_and_b32 s{s_t0}, s2, 3")
        a(f"s_lshl_b32 s{s_t0}, s{s_t0}, 3")
        a(f"s_add_u32 s{s_t0}, s{s_t0}, s{s_w}")
        a(f"s_cmp_lg_u32 s{s_t0}, 31")
        a(f"s_cbranch_scc1 {name}_{lbl}")

    def col256_load():
        c256_test("c256a")
        for i in range(4):
            a(f"s_mov_b32 s{s_t0}, {i * 32 * 514}")
            a(f"buffer_load_ushort v{f2 + i}, v{f2a}, {sr(SRD_WR, 4)}, s{s_t0} offen")
            a(f"buffer_load_ushort v{fi + 4 + i}, v{f2a}, {sr(SRD_WI, 4)}, s{s_t0} offen")
        a.label(f"{name}_c256a")
    gath = []
    for i in range(4):
        gath.append(gl(f1 + i, f1a, SRD_WR, i))
        gath.append(gl(fi + i, f1a, SRD_WI, i))
    GS = int(os.environ.get("KA_GS", "3"))
    side[GS] = [col256_load] + gath[:4]
    side[GS + 1] = gath[4:]

    def side_store():
        a.wait(vm="f1")
        for i in range(4):
            a(f"v_lshl_or_b32 v{f1 + i}, v{fi + i}, 16, v{f1 + i}")
        a.vmem(f"buffer_store_dwordx4 {vr(f1, 4)}, v{f1s}, {sr(SRD_WS, 4)}, 0 offen{WT}", "st")
        c256_test("c256b")
        for i in range(4):
            a(f"v_lshl_or_b32 v{f2 + i}, v{fi + 4 + i}, 16, v{f2 + i}")
        a(f"buffer_store_dwordx4 {vr(f2, 4)}, v{f2s}, {sr(SRD_WS, 4)}, 0 offen{WT}")
        a.label(f"{name}_c256b")
    side[7] = [lambda: None] * 2 + [side_store] + [lambda: None]

    ea, eb = E + 60, E + 61

    def touch_wd():
        a(f"s_lshr_b32 s{s_t0}, s2, 3")
        a(f"s_lshl_b32 s{s_t0}, s{s_t0}, 3")
        a(f"s_add_u32 s{s_t0}, s{s_t0}, s{s_w}")
        a(f"s_mul_i32 s{s_t0}, s{s_t0}, 7168")
        a(f"v_min_u32 v{ea}, 55, v{v_lane}")
        a(f"v_lshlrev_b32 v{ea}, 7, v{ea}")
        a.vmem(f"buffer_load_dword v{eb}, v{ea}, {sr(SRD_WD, 4)}, s{s_t0} offen", "pf")

    def touch_next():
        a(f"s_cmp_ge_u32 s2, 8")
        a(f"s_cbranch_scc1 {name}_notn")
        a(f"s_getpc_b64 {sr(SRD_T, 2)}")
        a(f"s_add_u32 s{SRD_T}, s{SRD_T}, ctab@rel32@lo+4")
        a(f"s_addc_u32 s{SRD_T + 1}, s{SRD_T + 1}, ctab@rel32@hi+12")
        a(f"s_mov_b32 s{SRD_T + 2}, 24576")
        a(f"s_lshl_b32 s{s_t0}, s{s_w}, 13")
        a(f"s_cmp_lt_u32 s{s_w}, 3")
        a(f"s_cbranch_scc1 {name}_tnc")
        a(f"s_getpc_b64 {sr(SRD_T, 2)}")
        a(f"s_add_u32 s{SRD_T}, s{SRD_T}, k23_begin@rel32@lo+4")
        a(f"s_addc_u32 s{SRD_T + 1}, s{SRD_T + 1}, k23_begin@rel32@hi+12")
        a(f"s_mov_b32 s{SRD_T + 2}, k23_end-k23_begin")
        a(f"s_sub_u32 s{s_t0}, s{s_t0}, {3 * 8192}")
        a.label(f"{name}_tnc")
        a(f"s_and_b32 s{SRD_T + 1}, s{SRD_T + 1}, 0xffff")
        a(f"s_mov_b32 s{SRD_T + 3}, 0x00020000")
        a(f"v_lshlrev_b32 v{ea + 2}, 7, v{v_lane}")
        a(f"buffer_load_dword v{ea + 3}, v{ea + 2}, {sr(SRD_T, 4)}, s{s_t0} offen")
        a.label(f"{name}_notn")
    WDS = int(os.environ.get("KA_WDS", "13"))
    side[WDS] = [touch_wd] + ([touch_next] if TOUCH_NEXT else []) + [lambda: None] * 2

    win = {"w": KA_W0}

    def set_window(base):
        ops = []
        if not (win["w"] <= base and base + 16384 <= win["w"] + 65536):
            d = base - win["w"]
            for r in [r for p in v_wa for r in p]:
                ops.append(lambda r=r, d=d: a(f"v_add_u32 v{r}, {d & 0xffffffff}, v{r}"))
            win["w"] = base
        return ops, base - win["w"]

    def read_ops(hs):
        s, j, mt = hs // 8, (hs % 8) // 2, hs % 2
        ops, bw = set_window(base_w(s))
        tag = f"r{hs // 2}"
        for e in range(2):
            ops.append(lambda e=e, bw=bw: a.lds(
                f"ds_read_b64_tr_b16 {vr(v_W[j % 2][mt] + 2 * e, 2)}, v{v_wa[j][mt]} offset:{bw + e * 512}", tag))
        if s < 8 and mt == 0:
            ops.append(lambda: a.lds(f"ds_read_b128 {vr(X + 16 * s + 4 * j, 4)}, v{v_xa[j]} offset:{base_x(s)}", tag))
        return ops

    def allreduce(v, t):
        return lines(f"""
s_nop 1
v_add_f32_dpp v{v}, v{v}, v{v} quad_perm:[1,0,3,2] row_mask:0xf bank_mask:0xf
s_nop 1
v_add_f32_dpp v{v}, v{v}, v{v} quad_perm:[2,3,0,1] row_mask:0xf bank_mask:0xf
s_nop 1
v_add_f32_dpp v{v}, v{v}, v{v} row_half_mirror row_mask:0xf bank_mask:0xf
s_nop 1
v_add_f32_dpp v{v}, v{v}, v{v} row_mirror row_mask:0xf bank_mask:0xf
v_mov_b32 v{t}, v{v}
s_nop 1
v_permlane16_swap_b32 v{v}, v{t}
v_add_f32 v{v}, v{v}, v{t}
v_mov_b32 v{t}, v{v}
s_nop 1
v_permlane32_swap_b32 v{v}, v{t}
v_add_f32 v{v}, v{v}, v{t}
""")
    el = [J + i for i in range(8)]
    m_, mb, dl, tt = v_t[:4]
    so0, so1 = v_st[0], v_st[1]
    rowst = [lambda: a.wait(vm="xr")]
    for d in range(4):
        rowst += lines(f"v_lshlrev_b32 v{el[2 * d]}, 16, v{XR + d}\nv_and_b32 v{el[2 * d + 1]}, 0xffff0000, v{XR + d}")
    rowst += lines(f"""
v_add_f32 v{m_}, v{el[0]}, v{el[1]}
v_add_f32 v{mb}, v{el[2]}, v{el[3]}
v_add_f32 v{dl}, v{el[4]}, v{el[5]}
v_add_f32 v{tt}, v{el[6]}, v{el[7]}
v_add_f32 v{m_}, v{m_}, v{mb}
v_add_f32 v{dl}, v{dl}, v{tt}
v_add_f32 v{m_}, v{m_}, v{dl}
""") + allreduce(m_, tt) + lines(f"""
v_mul_f32 v{m_}, 0x3b000000, v{m_}
v_cvt_pk_bf16_f32 v{so0}, -v{m_}, -v{m_}
""")
    rowst += lines("\n".join(f"v_sub_f32 v{e_}, v{e_}, v{m_}" for e_ in el))
    rowst += lines(f"v_mul_f32 v{mb}, v{el[0]}, v{el[0]}\nv_mul_f32 v{dl}, v{el[1]}, v{el[1]}")
    rowst += lines("\n".join(f"v_fmac_f32 v{(mb, dl)[i % 2]}, v{el[i]}, v{el[i]}" for i in range(2, 8)))
    rowst += lines(f"v_add_f32 v{mb}, v{mb}, v{dl}") + allreduce(mb, tt) + lines(f"""
v_mul_f32 v{mb}, 0x3b000000, v{mb}
v_cvt_pk_bf16_f32 v{tt}, v{mb}, v{mb}
v_and_b32 v{tt}, 0xffff0000, v{tt}
v_add_f32 v{tt}, 0x3727c5ac, v{tt}
v_cvt_pk_bf16_f32 v{tt}, v{tt}, v{tt}
v_and_b32 v{tt}, 0xffff0000, v{tt}
v_sqrt_f32 v{tt}, v{tt}
s_lshl_b32 s{s_t0}, s{s_rb}, 7
v_cvt_pk_bf16_f32 v{tt}, v{tt}, v{tt}
s_lshl_b32 s{s_t1}, s{s_cg}, 3
v_and_b32 v{tt}, 0xffff0000, v{tt}
s_add_u32 s{s_t0}, s{s_t0}, s{s_t1}
v_rcp_f32 v{so1}, v{tt}
s_add_u32 s{s_t0}, s{s_t0}, s{s_w}
s_lshl_b32 s{s_t0}, s{s_t0}, 3
s_add_u32 s{s_t0}, s{s_t0}, {WS_ST}
v_mov_b32 v{tt}, 0
""")

    def rowst_store():
        a("s_mov_b64 exec, 1")
        a.vmem(f"buffer_store_dwordx2 {vr(so0, 2)}, v{tt}, {sr(SRD_WS, 4)}, s{s_t0} offen sc1", "ss")
        a("s_mov_b64 exec, -1")
    rowst.append(rowst_store)

    def st_flag():
        a(f"s_cmp_lg_u32 s{s_w}, 0")
        a(f"s_cbranch_scc1 {name}_nosf")
        a(f"s_lshl_b32 s{s_t0}, s{s_rb}, 4")
        a(f"s_add_u32 s{s_t0}, s{s_t0}, s{s_cg}")
        a(f"v_mov_b32 v{t0}, 1")
        a(f"v_mov_b32 v{t1}, 0")
        a("s_mov_b64 exec, 1")
        a(f"buffer_store_byte v{t0}, v{t1}, {sr(SRD_D, 4)}, s{s_t0} offen sc1")
        a("s_mov_b64 exec, -1")
        a.label(f"{name}_nosf")

    def st_poll_load():
        a(f"s_lshl_b32 s{s_t2}, s{s_rb}, 4")
        a(f"s_lshl_b32 s{s_t1}, s{s_ni}, 2")
        a(f"s_add_u32 s{s_t2}, s{s_t2}, s{s_t1}")
        a(f"v_mov_b32 v{t1}, 0")
        a.vmem(f"buffer_load_dword v{t0}, v{t1}, {sr(SRD_D, 4)}, s{s_t2} offen sc1", "sp")

    def st_poll_check():
        a.wait(vm="sp")
        a(f"s_mov_b32 s{s_t3}, {SPIN_MAX}")
        a.label(f"{name}_sp")
        a(f"v_readfirstlane_b32 s{s_t0}, v{t0}")
        a(f"s_and_b32 s{s_t0}, s{s_t0}, 0x01010101")
        a(f"s_cmp_eq_u32 s{s_t0}, 0x01010101")
        a(f"s_cbranch_scc1 {name}_spok")
        a(f"s_sub_u32 s{s_t3}, s{s_t3}, 1")
        a(f"s_cbranch_scc1 {name}_spok")
        a("s_sleep 8")
        a(f"buffer_load_dword v{t0}, v{t1}, {sr(SRD_D, 4)}, s{s_t2} offen sc1")
        a("s_waitcnt vmcnt(0)")
        a(f"s_branch {name}_sp")
        a.label(f"{name}_spok")
        a(f"s_lshl_b32 s{s_t0}, s{s_rb}, 10")
        a(f"s_lshl_b32 s{s_t1}, s{s_ni}, 8")
        a(f"s_add_u32 s{s_t0}, s{s_t0}, s{s_t1}")
        a(f"s_add_u32 s{s_t0}, s{s_t0}, {WS_ST}")
        a(f"v_lshlrev_b32 v{t1}, 3, v{v_n}")
        a.vmem(f"buffer_load_dwordx2 {vr(so0, 2)}, v{t1}, {sr(SRD_WS, 4)}, s{s_t0} offen sc1", "sl")

    def st_use():
        return [lambda: a.wait(vm="sl")] + lines(f"""
v_cmp_eq_u32 vcc, 0, v{v_h}
v_mov_b32 v{v_FB + 2}, 0
v_mov_b32 v{v_FB + 3}, 0
v_cndmask_b32 v{v_FB}, 0, v{so0}, vcc
v_bfe_u32 v{t0}, v{v_lane}, 4, 1
v_mov_b32 v{v_FB + 1}, v{v_FB}
v_cmp_eq_u32 vcc, 1, v{t0}
v_mov_b32 v{v_r}, v{so1}
""")

    def sel_op(j, mt, first, dst=None):
        d = dst if dst is not None else v_cs[mt]
        c = "0" if first else vr(d, 4)
        return lambda: a(f"v_mfma_f32_16x16x32_bf16 {vr(d, 4)}, {vr(v_sel, 4)}, {vr(v_W[j % 2][mt], 4)}, {c}")

    def mfma_ops(s, j):
        r = s // 8
        first = s % 8 == 0 and j == 0
        xs = X + 16 * (s % 8) + 4 * j
        return [lambda mt=mt: a(
            f"v_mfma_f32_32x32x16_bf16 {vr(v_acc[r][mt], 16)}, {vr(v_W[j % 2][mt], 4)}, {vr(xs, 4)}, {'0' if first else vr(v_acc[r][mt], 16)}")
            for mt in range(2)]

    def merge(*lists):
        out = []
        lists = [l for l in lists if l]
        pos = [0] * len(lists)
        total = sum(len(l) for l in lists)
        while len(out) < total:
            i = min((i for i in range(len(lists)) if pos[i] < len(lists[i])), key=lambda i: pos[i] / len(lists[i]))
            out.append(lists[i][pos[i]])
            pos[i] += 1
        return out

    def publish_cs():
        a(f"s_lshl_b32 s{s_t1}, s{s_ni}, 11")
        a(f"s_lshl_b32 s{s_t2}, s{s_mi}, 10")
        a(f"s_add_u32 s{s_t1}, s{s_t1}, s{s_t2}")
        a(f"s_add_u32 s{s_t1}, s{s_t1}, {KA_CS}")
        a(f"v_lshl_add_u32 v{t4}, v{v_lane}, 3, s{s_t1}")
        a.lds(f"ds_write_b64 v{t4}, {vr(v_cs[0], 2)}", "w")
        a.lds(f"ds_write_b64 v{t4}, {vr(v_cs[1], 2)} offset:512", "w")

    def gather_cs(dst):
        ops = lines(f"""
s_lshl_b32 s{s_t2}, s{s_mi}, 10
s_add_u32 s{s_t2}, s{s_t2}, {KA_CS}
v_lshl_add_u32 v{t4}, v{v_lane}, 3, s{s_t2}
""")
        for mt in range(2):
            for q in range(4):
                ops.append(lambda mt=mt, q=q: a.lds(f"ds_read_b64 {vr(dst + 8 * mt + 2 * q, 2)}, v{t4} offset:{q * 2048 + mt * 512}", "g"))
        return ops

    def fold_a(mt, g, FA, extra=None):
        p = g + 8 * mt
        c, r1, hi = p, p + 1, p + 2
        txt = f"""v_add_f32 v{p}, v{p}, v{p + 2}
v_add_f32 v{p + 1}, v{p + 1}, v{p + 3}
v_add_f32 v{p + 4}, v{p + 4}, v{p + 6}
v_add_f32 v{p + 5}, v{p + 5}, v{p + 7}
v_add_f32 v{p}, v{p}, v{p + 4}
v_add_f32 v{p + 1}, v{p + 1}, v{p + 5}
v_mov_b32 v{FA + 2}, 0
v_mov_b32 v{FA + 3}, 0
"""
        pre = lines(txt)
        txt = ""
        if extra is not None:
            txt += f"v_add_f32 v{p}, v{p}, v{extra}\nv_add_f32 v{p + 1}, v{p + 1}, v{extra + 1}\n"
        txt += f"""v_cndmask_b32 v{c}, v{p}, v{p + 1}, vcc
v_and_b32 v{hi}, 0xffff0000, v{c}
v_sub_f32 v{r1}, v{c}, v{hi}
v_and_b32 v{c}, 0xffff0000, v{r1}
v_sub_f32 v{r1}, v{r1}, v{c}
v_lshrrev_b32 v{hi}, 16, v{hi}
v_or_b32 v{FA}, v{hi}, v{c}
v_lshrrev_b32 v{FA + 1}, 16, v{r1}"""
        return pre, lines(txt)

    def fold_mfma(r, mt, FA):
        acc = vr(v_acc[r][mt], 16)
        return lambda: a(f"v_mfma_f32_32x32x16_bf16 {acc}, {vr(FA, 4)}, {vr(v_FB, 4)}, {acc}")

    def epi_gu(r, mt, r2, va, flags):
        acc = v_acc[r][mt]
        ops = []
        for i in range(8):
            ops += lines(f"v_max_f32 v{acc + i}, 0, v{acc + i}\nv_mul_f32 v{acc + 8 + i}, v{r2}, v{acc + 8 + i}")
        ops += lines("\n".join(f"v_mul_f32 v{acc + i}, v{acc + i}, v{acc + 8 + i}" for i in range(8)))
        ops += lines("\n".join(f"v_cvt_pk_bf16_f32 v{acc + 8 + i}, v{acc + 2 * i}, v{acc + 2 * i + 1}" for i in range(4)))

        def st():
            a(f"s_lshl_b32 s{s_t0}, s{s_rb}, 2")
            a(f"s_add_u32 s{s_t0}, s{s_t0}, s{s_ni}")
            a(f"s_mul_i32 s{s_t0}, s{s_t0}, 112")
            a(f"s_lshl_b32 s{s_t1}, s{s_cg}, 2")
            a(f"s_add_u32 s{s_t0}, s{s_t0}, s{s_t1}")
            a(f"s_lshl_b32 s{s_t1}, s{s_mi}, 1")
            a(f"s_add_u32 s{s_t0}, s{s_t0}, s{s_t1}")
            a(f"s_add_u32 s{s_t0}, s{s_t0}, {(64 * r - 16 + mt) & 0xffffffff}")
            a(f"s_lshl_b32 s{s_t0}, s{s_t0}, 10")
            a.vmem(f"buffer_store_dwordx4 {vr(acc + 8, 4)}, v{va}, {sr(SRD_WS, 4)}, s{s_t0} offen{flags}", f"o{r}")
        ops.append(st)
        return ops

    def epi0_block(mt, r2, rs_, va, vd):
        def f():
            acc = v_acc[0][mt]
            a(f"s_cmp_lt_u32 s{s_cg}, 4")
            a(f"s_cbranch_scc1 {name}_e0d{mt}")
            saved = list(a.vm)
            for op in epi_gu(0, mt, r2, va, WT0):
                op()
            a(f"s_branch {name}_e0j{mt}")
            a.label(f"{name}_e0d{mt}")
            for i in range(16):
                a(f"v_mul_f32 v{acc + i}, v{rs_}, v{acc + i}")
            for i in range(8):
                a(f"v_cvt_pk_bf16_f32 v{acc + 2 * i}, v{acc + 2 * i}, v{acc + 2 * i + 1}")
            a(f"s_lshl_b32 s{s_t0}, s{s_cg}, 19")
            a(f"s_lshl_b32 s{s_t1}, s{s_mi}, 17")
            a(f"s_add_u32 s{s_t0}, s{s_t0}, s{s_t1}")
            a(f"s_lshl_b32 s{s_t1}, s{s_rb}, 9")
            a(f"s_add_u32 s{s_t0}, s{s_t0}, s{s_t1}")
            a(f"s_lshl_b32 s{s_t1}, s{s_ni}, 7")
            a(f"s_add_u32 s{s_t0}, s{s_t0}, s{s_t1}")
            for g in range(4):
                for ip in range(2):
                    koff = 8 * mt + (g % 2) * 4 + (g // 2) * 32 + ip
                    a(f"s_add_u32 s{s_t1}, s{s_t0}, {WS_U + koff * 8192}")
                    a(f"buffer_store_dword v{acc + 4 * g + 2 * ip}, v{vd}, {sr(SRD_WS, 4)}, s{s_t1} offen{WT0}")
            a.label(f"{name}_e0j{mt}")
        return f

    pf.stamp()
    a.wait(vm=["x0", "w0"])
    a("s_barrier")
    pf.stamp()
    for hs in range(4):
        for f in read_ops(hs):
            f()
    G0 = E
    FA = [E + 16, E + 20]
    r2, rs_, va, vd = E + 24, E + 25, E + 26, E + 27
    SE = int(os.environ.get("KA_SE", "9"))
    SF = int(os.environ.get("KA_SF", "3"))
    nop = lambda: None
    for s in range(16):
        extra = list(side.get(s, []))
        if s == 0:
            extra = rowst[:len(rowst) // 2] + extra
        if s == 1:
            extra = rowst[len(rowst) // 2:] + extra
        if s == SE - 2:
            extra = extra + [nop] * 3 + [st_poll_load]
        if s == SE - 1:
            extra = [nop] * 3 + [st_poll_check] + extra
        if s == SE:
            extra = gather_cs(G0) + extra
        if s == SE + 1:
            p0, q0 = fold_a(0, G0, FA[0])
            p1, q1 = fold_a(1, G0, FA[1])
            extra = [lambda: a.wait(lg="g")] + st_use() + lines(f"""v_lshlrev_b32 v{va}, 4, v{v_lane}
v_mul_f32 v{r2}, v{v_r}, v{v_r}
v_mul_f32 v{rs_}, 0x36000000, v{v_r}
v_lshlrev_b32 v{vd}, 14, v{v_h}
v_lshl_add_u32 v{vd}, v{v_n}, 2, v{vd}""") + p0 + q0 + p1 + q1 + [lambda: a("s_nop 1"), fold_mfma(0, 0, FA[0]), fold_mfma(0, 1, FA[1])] + extra
        if s == SE + 2:
            extra = [nop, epi0_block(0, r2, rs_, va, vd), nop, nop, nop, epi0_block(1, r2, rs_, va, vd), nop, nop] + extra
        if s == 15:
            p0, q0 = fold_a(0, G0, FA[0], extra=v_cs[0])
            p1, q1 = fold_a(1, G0, FA[1], extra=v_cs[1])
            extra = [nop] * 8 + [lambda: a.wait(lg="g")] + p0 + p1 + [nop] * 8
        if fused and s in fused["stage"]:
            extra = extra + fused["stage"][s](locals())
        dops = []
        for h8 in range(8):
            hs = 8 * s + h8
            j, mt = h8 // 2, h8 % 2
            if h8 == 0 or h8 == 5:
                last = s - 2 if h8 == 0 else s - 1
                while True:
                    cx = nx < 8 and nx <= last + NXS
                    cw = nw < 16 and nw <= last + NWS
                    if cx and (nx <= nw or not cw):
                        dops += dma_xs(nx)
                        nx += 1
                    elif cw:
                        dops += dma_w(nw)
                        nw += 1
                    else:
                        break
            if mt == 0:
                a.wait(lg=f"r{hs // 2}")
            mfma_ops(s, j)[mt]()
            if s == 15:
                sel_op(j, mt, j == 0)()
            elif j == 0:
                sel_op(0, mt, s % 8 == 0)()
            if h8 == 4 and s < 15:
                if s in (7, 14):
                    publish_cs()
                    a.wait(lg="w")
                tags = [f"w{s + 1}"] + ([f"x{s + 1}"] if s + 1 < 8 else []) + (["ss"] if s == SF else [])
                if fused and s in fused["bar_tags"]:
                    tags += fused["bar_tags"][s]
                a.wait(vm=tags)
                a("s_barrier")
                if PROF == 1 and s % 3 == 1:
                    pf.stamp()
            if hs + 4 < 128:
                for f in read_ops(hs + 4):
                    f()
            if h8 == 4 and s == SF:
                st_flag()
            if h8 == 4 and fused and s in fused["post_bar"]:
                fused["post_bar"][s](locals())
            if h8 == 4 and s == 14:
                for f in gather_cs(G0):
                    f()
            nd = (len(dops) + (7 - h8)) // (8 - h8) if h8 != 4 else 0
            nd = min(nd, 2)
            dd, dops = dops[:nd], dops[nd:]
            for f in merge(extra[len(extra) * h8 // 8:len(extra) * (h8 + 1) // 8], dd):
                f()
        for f in dops:
            f()
    a("s_nop 6")
    for f in merge(q0, q1):
        f()
    a("s_nop 1")
    fold_mfma(1, 0, FA[0])()
    fold_mfma(1, 1, FA[1])()
    pf.stamp()
    if fused:
        fused["pre_epi"](locals())
    else:
        a("s_nop 11")
    for mt in range(2):
        for op in epi_gu(1, mt, r2, va, WT1):
            op()
    return locals()


def gen_ka(name):
    a = Asm()
    V = Regs(1, 256)
    S = Regs(40, 102)
    pf = Prof(a, S, 13, 0)
    a("s_cmp_ge_u32 s2, 256")
    a(f"s_cbranch_scc1 {name}_done")
    pf.stamp(real=True)
    pf.stamp()
    Lc = phase_a(a, V, S, name, pf)
    if PROF:
        pf.stamp()
        a("s_waitcnt vmcnt(0)")
        pf.stamp()
        pf.stamp(real=True)
        pf.dump(16, 2, Lc["s_w"], Lc["v_t"][0], Lc["s_t0"], 8)
    a.label(f"{name}_done")
    a("s_endpgm")
    launch = f"; @launch kernel={name} grid=(256,1,1) block=(512,1,1) lds={KA_LDS}"
    return kernel_header(name) + a.text(), kernel_desc(name, V.hi, 102), launch
```

```python
from gen_common import *

K1_LDS_X = 0
K1_LDS_G = 65536
K1_LDS_U = 114688
K1_LDS = 163840
K1_LDS_ST = K1_LDS_G + 2 * 16384
K1_LDS_CS = K1_LDS_ST + 8192
NSTAGE = 8
WS_ST = 15 << 20
SPIN_MAX = 1 << 14
SF = int(os.environ.get('K1_SF', '3'))
WT = os.environ.get("K1_WT", " sc1")
WTH = os.environ.get("K1_WTH", " sc1")
TOUCH_WD = int(os.environ.get("TOUCH_WD", "2"))
TOUCH = int(os.environ.get("TOUCH", "0"))
TOUCH_NEXT = int(os.environ.get("TOUCH_NEXT", "1"))
TLB_WARM = int(os.environ.get("TLB_WARM", "0"))
SENT = int(os.environ.get("SENT", "-1"))
WDST = int(os.environ.get("WDST", "3"))
WDN = int(os.environ.get("WDN", "1"))
G0S = int(os.environ.get("G0S", "4"))
GSTEP = int(os.environ.get("GSTEP", "0"))
XRS = int(os.environ.get("XRS", "-1"))
MAP = int(os.environ.get("MAP", "0"))
PBAR = int(os.environ.get("PBAR", "2"))


def gen_k1(name):
    a = Asm()
    V = Regs(1, 256)
    S = Regs(40, 102)
    SRD_X, SRD_G, SRD_U, SRD_WS, SRD_WR, SRD_WI, SRD_WD, SRD_T, SRD_D = 4, 8, 12, 16, 20, 24, 28, 32, 36
    s_rb, s_cg, s_w, s_mi, s_ni, s_rs, s_goff, s_uoff = [S.alloc() for _ in range(8)]
    s_t0, s_t1, s_t2, s_t3 = [S.alloc() for _ in range(4)]
    s_sx, s_sw, s_sw2, s_rs4, s_rs64, s_m0x, s_tile = [S.alloc() for _ in range(7)]
    s_p = S.alloc(16, 4)
    s_tab = S.alloc(2, 2)

    v_lane, v_n, v_h = V.alloc(), V.alloc(), V.alloc()
    v_t = [V.alloc() for _ in range(8)]
    v_dx = [V.alloc(), V.alloc()]
    v_dg, v_du = V.alloc(), V.alloc()
    v_xa = [V.alloc() for _ in range(4)]
    v_xs = V.alloc()
    v_wa = [V.alloc(), V.alloc()]
    v_st = [V.alloc(2, 2), V.alloc(2, 2)]
    v_f1a, v_f1s, v_f2a, v_f2s = [V.alloc() for _ in range(4)]
    v_pa = [V.alloc() for _ in range(3)]
    v_f1 = V.alloc(4, 4)
    v_f2 = V.alloc(4, 4)
    v_fi = V.alloc(8, 4)
    v_cs = [V.alloc(4, 4), V.alloc(4, 4)]
    v_sel = V.alloc(4, 4)
    v_XS = [V.alloc(4, 4) for _ in range(2)]
    v_X = [[V.alloc(4, 4) for _ in range(2)] for _ in range(2)]
    v_W = [[V.alloc(4, 4) for _ in range(2)] for _ in range(2)]
    v_acc = [[V.alloc(16, 4) for _ in range(2)] for _ in range(2)]
    v_e = V.alloc(16, 4)
    v_FA = [V.alloc(4, 4) for _ in range(2)]
    v_FB = [V.alloc(4, 4) for _ in range(2)]
    v_cso = V.alloc()
    v_sn = V.alloc(4, 4)
    t0, t1, t2, t3, t4 = v_t[:5]
    u0, u1, u2, u3 = v_t[4:8]

    pf = Prof(a, S, 12, 0)
    a("s_cmp_ge_u32 s2, 256")
    a(f"s_cbranch_scc1 {name}_done")
    pf.stamp(real=True)
    pf.stamp()
    a(f"s_load_dwordx2 {sr(s_p, 2)}, s[0:1], {KA_X}")
    a(f"s_load_dwordx4 {sr(s_p + 4, 4)}, s[0:1], {KA_WG}")
    a(f"s_load_dwordx2 {sr(s_p + 2, 2)}, s[0:1], {KA_WS}")
    a(f"s_load_dwordx4 {sr(s_p + 8, 4)}, s[0:1], {KA_WR}")
    a(f"s_load_dwordx2 {sr(s_p + 12, 2)}, s[0:1], {KA_WD}")
    a(f"s_load_dwordx2 {sr(s_p + 14, 2)}, s[0:1], {KA_DBG}")
    a(f"v_lshrrev_b32 v{t0}, 6, v0")
    a(f"v_and_b32 v{v_lane}, 63, v0")
    a(f"v_readfirstlane_b32 s{s_w}, v{t0}")
    if MAP == 0:
        a(f"s_bfe_u32 s{s_rb}, s2, 0x10002")
        a(f"s_lshl_b32 s{s_rb}, s{s_rb}, 3")
        a(f"s_bfe_u32 s{s_t2}, s2, 0x30003")
        a(f"s_add_u32 s{s_rb}, s{s_rb}, s{s_t2}")
        a(f"s_and_b32 s{s_cg}, s2, 3")
        a(f"s_lshl_b32 s{s_cg}, s{s_cg}, 2")
        a(f"s_lshr_b32 s{s_t2}, s2, 6")
        a(f"s_add_u32 s{s_cg}, s{s_cg}, s{s_t2}")
    elif MAP == 1:
        a(f"s_and_b32 s{s_rb}, s2, 7")
        a(f"s_lshl_b32 s{s_rb}, s{s_rb}, 1")
        a(f"s_bfe_u32 s{s_t2}, s2, 0x10003")
        a(f"s_add_u32 s{s_rb}, s{s_rb}, s{s_t2}")
        a(f"s_lshr_b32 s{s_cg}, s2, 4")
    else:
        a(f"s_bfe_u32 s{s_rb}, s2, 0x20001")
        a(f"s_lshl_b32 s{s_rb}, s{s_rb}, 2")
        a(f"s_bfe_u32 s{s_t2}, s2, 0x20003")
        a(f"s_add_u32 s{s_rb}, s{s_rb}, s{s_t2}")
        a(f"s_and_b32 s{s_cg}, s2, 1")
        a(f"s_lshl_b32 s{s_cg}, s{s_cg}, 3")
        a(f"s_lshr_b32 s{s_t2}, s2, 5")
        a(f"s_add_u32 s{s_cg}, s{s_cg}, s{s_t2}")
    a(f"s_sub_u32 s{s_t0}, s{s_cg}, 14")
    a(f"s_lshl_b32 s{s_t0}, s{s_t0}, 9")
    a(f"s_add_u32 s{s_t1}, s{s_t0}, 256")
    a(f"s_lshl_b32 s{s_t2}, s{s_cg}, 8")
    a(f"s_movk_i32 s{s_rs}, 3584")
    a(f"s_cmp_ge_u32 s{s_cg}, 14")
    a(f"s_cselect_b32 s{s_rs}, 1024, s{s_rs}")
    a(f"s_cselect_b32 s{s_goff}, s{s_t0}, s{s_t2}")
    a(f"s_cselect_b32 s{s_uoff}, s{s_t1}, s{s_t2}")
    a(f"s_lshl_b32 s{s_rs4}, s{s_rs}, 2")
    a(f"s_lshl_b32 s{s_rs64}, s{s_rs}, 6")
    a(f"s_getpc_b64 {sr(s_tab, 2)}")
    a(f"s_add_u32 s{s_tab}, s{s_tab}, ftab@rel32@lo+4")
    a(f"s_addc_u32 s{s_tab + 1}, s{s_tab + 1}, ftab@rel32@hi+12")

    a(f"v_lshrrev_b32 v{t0}, 3, v{v_lane}")
    a(f"v_and_b32 v{t1}, 7, v{v_lane}")
    a(f"v_lshrrev_b32 v{t2}, 4, v{v_lane}")
    a(f"v_xor_b32 v{t1}, v{t1}, v{t2}")
    a(f"v_lshlrev_b32 v{t1}, 4, v{t1}")
    a(f"v_lshl_add_u32 v{t1}, v{t0}, 16, v{t1}")
    a(f"s_and_b32 s{s_t0}, s{s_w}, 1")
    a(f"s_lshl_b32 s{s_t0}, s{s_t0}, 20")
    a(f"s_lshr_b32 s{s_t1}, s{s_w}, 1")
    a(f"s_lshl_b32 s{s_t1}, s{s_t1}, 10")
    a(f"s_add_u32 s{s_t0}, s{s_t0}, s{s_t1}")
    a(f"s_lshl_b32 s{s_t1}, s{s_rb}, 12")
    a(f"s_add_u32 s{s_t0}, s{s_t0}, s{s_t1}")
    a(f"v_add_u32 v{v_dx[0]}, s{s_t0}, v{t1}")
    a(f"v_xor_b32 v{t1}, 0x80040, v{t1}")
    a(f"v_add_u32 v{v_dx[1]}, s{s_t0}, v{t1}")
    a(f"v_lshlrev_b32 v{t3}, 6, v{t2}")
    a(f"v_and_b32 v{t1}, 15, v{v_lane}")
    a(f"v_lshlrev_b32 v{t1}, 4, v{t1}")
    a(f"v_xor_b32 v{t1}, v{t1}, v{t3}")
    a(f"s_lshl_b32 s{s_t0}, s{s_w}, 3")
    a(f"v_add_u32 v{t0}, s{s_t0}, v{t2}")
    a(f"v_mul_lo_u32 v{t0}, v{t0}, s{s_rs}")
    a(f"v_add3_u32 v{v_dg}, v{t0}, v{t1}, s{s_goff}")
    a(f"v_xor_b32 v{t1}, 32, v{t1}")
    a(f"v_add3_u32 v{v_du}, v{t0}, v{t1}, s{s_uoff}")
    a(f"s_lshl_b32 s{s_m0x}, s{s_w}, 11")
    a(f"s_lshl_b32 s{s_t0}, s{s_cg}, 3")
    a(f"s_add_u32 s{s_t0}, s{s_t0}, s{s_w}")
    a(f"s_and_b32 s{s_t1}, s{s_t0}, 31")
    a(f"s_lshl_b32 s{s_t1}, s{s_t1}, 16")
    a(f"s_lshr_b32 s{s_t0}, s{s_t0}, 5")
    a(f"s_lshl_b32 s{s_t0}, s{s_t0}, 10")
    a(f"s_add_u32 s{s_t1}, s{s_t1}, s{s_t0}")
    a(f"s_lshl_b32 s{s_t0}, s{s_rb}, 12")
    a(f"s_add_u32 s{s_t3}, s{s_t1}, s{s_t0}")
    a(f"v_lshlrev_b32 v{t1}, 4, v{v_lane}")
    a(f"s_mov_b32 s{s_sx}, 0")
    a(f"s_mov_b32 s{s_sw}, 0")
    a(f"s_mov_b32 s{SRD_X + 2}, {2048 * 1024}")
    a(f"s_mov_b32 s{SRD_X + 3}, 0x00020000")
    a(f"s_mov_b32 s{SRD_G + 3}, 0x00020000")
    a(f"s_mov_b32 s{SRD_U + 3}, 0x00020000")
    a(f"s_lshl_b32 s{SRD_G + 2}, s{s_rs}, 9")
    a(f"s_lshl_b32 s{SRD_U + 2}, s{s_rs}, 9")
    if PROF == 3:
        pf.stamp()
    a("s_waitcnt lgkmcnt(0)")
    if PROF == 3:
        pf.stamp()
    a(f"s_mov_b32 s{SRD_X}, s{s_p}")
    a(f"s_and_b32 s{SRD_X + 1}, s{s_p + 1}, 0xffff")
    a(f"s_cmp_ge_u32 s{s_cg}, 14")
    a(f"s_cselect_b32 s{SRD_G}, s{s_tab}, s{s_p + 4}")
    a(f"s_cselect_b32 s{SRD_G + 1}, s{s_tab + 1}, s{s_p + 5}")
    a(f"s_cselect_b32 s{SRD_U}, s{s_tab}, s{s_p + 6}")
    a(f"s_cselect_b32 s{SRD_U + 1}, s{s_tab + 1}, s{s_p + 7}")
    a(f"s_and_b32 s{SRD_G + 1}, s{SRD_G + 1}, 0xffff")
    a(f"s_and_b32 s{SRD_U + 1}, s{SRD_U + 1}, 0xffff")

    def mk(ldsbase, vaddr, srdn, soff, mid, tag, post=None):
        def f():
            a(f"s_add_u32 m0, s{s_m0x}, {ldsbase}")
            a(mid)
            a.vmem(f"buffer_load_dwordx4 v{vaddr}, {sr(srdn, 4)}, s{soff} offen lds", tag)
            if post:
                a(post)
        return f

    def dma_x(stage):
        b = K1_LDS_X + (stage % 4) * 16384
        return [mk(b, v_dx[0], SRD_X, s_sx, "s_nop 0", f"x{stage}"),
                mk(b + 1024, v_dx[1], SRD_X, s_sx, "s_nop 0", f"x{stage}", post=f"s_add_u32 s{s_sx}, s{s_sx}, 128")]

    def dma_w(stage):
        b = (stage % 3) * 16384
        tag = f"w{stage}"
        return [mk(K1_LDS_G + b, v_dg, SRD_G, s_sw, f"s_add_u32 s{s_sw2}, s{s_sw}, s{s_rs4}", tag),
                mk(K1_LDS_U + b, v_du, SRD_U, s_sw, "s_nop 0", tag),
                mk(K1_LDS_G + b + 1024, v_dg, SRD_G, s_sw2, f"s_add_u32 s{s_sw}, s{s_sw}, s{s_rs64}", tag),
                mk(K1_LDS_U + b + 1024, v_du, SRD_U, s_sw2, "s_nop 0", tag)]

    for f in dma_x(0) + dma_w(0):
        f()
    if PROF == 3:
        pf.stamp()
    XR = v_XS[0]
    a(f"v_add_u32 v{v_xs}, s{s_t3}, v{t1}")

    def xr_load():
        a.vmem(f"buffer_load_dwordx4 {vr(XR, 4)}, v{v_xs}, {sr(SRD_X, 4)}, 0 offen", "xr")
    if PBAR >= 1:
        a("s_barrier")
    elif XRS < 0:
        xr_load()
    a(f"v_and_b32 v{v_n}, 31, v{v_lane}")
    a(f"v_lshrrev_b32 v{v_h}, 5, v{v_lane}")
    a(f"s_and_b32 s{s_mi}, s{s_w}, 3")
    a(f"s_lshr_b32 s{s_ni}, s{s_w}, 2")
    d1 = dma_x(1) + dma_w(1) + dma_x(2)
    a(f"v_bfe_u32 v{t0}, v{v_n}, 1, 3")
    a(f"v_xor_b32 v{t0}, v{t0}, v{v_h}")
    a(f"s_lshl_b32 s{s_t0}, s{s_ni}, 13")
    a(f"v_lshlrev_b32 v{t1}, 7, v{v_n}")
    a(f"v_add_u32 v{t1}, s{s_t0}, v{t1}")
    a(f"v_lshl_add_u32 v{v_xa[0]}, v{t0}, 4, v{t1}")
    d1[0]()
    for j in range(1, 4):
        a(f"v_xor_b32 v{v_xa[j]}, {32 * j}, v{v_xa[0]}")
    d1[1]()
    a(f"v_bfe_u32 v{t2}, v{v_lane}, 4, 1")
    a(f"v_bfe_u32 v{t3}, v{v_lane}, 2, 2")
    a(f"v_lshl_add_u32 v{t4}, v{t3}, 1, v{t2}")
    a(f"s_lshl_b32 s{s_tile}, s{s_mi}, 1")
    a(f"s_add_u32 s{s_tile}, s{s_tile}, s{s_ni}")
    a(f"v_xor_b32 v{t4}, s{s_tile}, v{t4}")
    d1[2]()
    a(f"v_lshlrev_b32 v{t4}, 5, v{t4}")
    a(f"v_lshl_add_u32 v{t4}, v{t3}, 8, v{t4}")
    a(f"v_and_b32 v{t3}, 3, v{v_lane}")
    a(f"v_lshl_add_u32 v{t4}, v{t3}, 3, v{t4}")
    a(f"v_lshl_add_u32 v{t4}, v{v_h}, 11, v{t4}")
    d1[3]()
    a(f"v_mul_u32_u24 v{t2}, {K1_LDS_U - K1_LDS_G}, v{t2}")
    a(f"v_add_u32 v{t4}, v{t4}, v{t2}")
    a(f"v_add_u32 v{v_wa[0]}, {K1_LDS_G}, v{t4}")
    a(f"v_xor_b32 v{v_wa[1]}, 32, v{v_wa[0]}")
    d1[4]()
    a(f"v_bfe_u32 v{t2}, v{v_lane}, 4, 1")
    a(f"v_cmp_eq_u32 vcc, v{t3}, v{t2}")
    a(f"v_mov_b32 v{t2}, 0x3f803f80")
    a(f"v_mov_b32 v{t3}, 0")
    d1[5]()
    for i in range(4):
        a(f"v_cndmask_b32 v{v_sel + i}, v{t3}, v{t2}, vcc")
    if PBAR >= 2:
        a("s_barrier")
    if PBAR >= 1 and XRS < 0:
        xr_load()
    d1[6]()
    d1[7]()

    s_tpar, s_toff, s_tstep = s_tab, s_tab + 1, s_p

    def touch_setup():
        a(f"v_and_b32 v{u0}, 15, v{v_lane}")
        a(f"s_cmp_ge_u32 s{s_w}, 4")
        a(f"s_cbranch_scc1 {name}_tx")
        a(f"s_and_b32 s{s_tpar}, s{s_w}, 1")
        a(f"s_and_b32 s{s_t1}, s{s_rb}, 7")
        a(f"v_lshrrev_b32 v{u1}, 1, v{u0}")
        a(f"v_lshl_add_u32 v{u1}, v{u1}, 3, s{s_t1}")
        a(f"v_mul_lo_u32 v{u1}, v{u1}, s{s_rs}")
        a(f"v_and_b32 v{u0}, 1, v{u0}")
        a(f"v_lshl_add_u32 v{v_pa[2]}, v{u0}, 7, v{u1}")
        a(f"s_cmp_ge_u32 s{s_w}, 2")
        a(f"s_cselect_b32 s{s_toff}, s{s_uoff}, s{s_goff}")
        a(f"s_cselect_b32 s{SRD_T}, s{SRD_U}, s{SRD_G}")
        a(f"s_cselect_b32 s{SRD_T + 1}, s{SRD_U + 1}, s{SRD_G + 1}")
        a(f"s_mov_b32 s{SRD_T + 2}, s{SRD_G + 2}")
        a(f"s_mov_b32 s{s_tstep}, s{s_rs64}")
        a(f"s_branch {name}_tj")
        a.label(f"{name}_tx")
        a(f"s_bfe_u32 s{s_tpar}, s{s_w}, 0x10001")
        a(f"s_and_b32 s{s_toff}, s{s_w}, 1")
        a(f"s_lshl_b32 s{s_toff}, s{s_toff}, 20")
        a(f"s_and_b32 s{s_t1}, s{s_cg}, 3")
        a(f"s_lshl_b32 s{s_t1}, s{s_t1}, 10")
        a(f"s_add_u32 s{s_toff}, s{s_toff}, s{s_t1}")
        a(f"s_lshl_b32 s{s_t1}, s{s_rb}, 12")
        a(f"s_add_u32 s{s_toff}, s{s_toff}, s{s_t1}")
        a(f"v_lshlrev_b32 v{v_pa[2]}, 16, v{u0}")
        a(f"s_mov_b32 s{SRD_T}, s{SRD_X}")
        a(f"s_mov_b32 s{SRD_T + 1}, s{SRD_X + 1}")
        a(f"s_mov_b32 s{SRD_T + 2}, s{SRD_X + 2}")
        a(f"s_movk_i32 s{s_tstep}, 128")
        a.label(f"{name}_tj")
        a(f"s_mov_b32 s{SRD_T + 3}, 0x00020000")
        a(f"s_add_u32 s{s_t1}, s{s_tpar}, 2")
        a(f"s_mul_i32 s{s_t1}, s{s_t1}, s{s_tstep}")
        a(f"s_add_u32 s{s_toff}, s{s_toff}, s{s_t1}")
        a(f"s_lshl_b32 s{s_tstep}, s{s_tstep}, 1")

    def touch(stage):
        if stage is not None:
            a(f"s_cmp_lg_u32 s{s_tpar}, {stage & 1}")
            a(f"s_cbranch_scc1 {name}_tn{stage}")
        a(f"buffer_load_dword v{v_pa[1]}, v{v_pa[2]}, {sr(SRD_T, 4)}, s{s_toff} offen")
        a(f"s_add_u32 s{s_toff}, s{s_toff}, s{s_tstep}")
        if stage is not None:
            a.label(f"{name}_tn{stage}")
    if TOUCH:
        touch_setup()
        touch(None)
    srd(a, SRD_WS, s_p + 2, WS_SIZE)
    srd(a, SRD_WR, s_p + 8, 2048 * 514)
    srd(a, SRD_WI, s_p + 10, 2048 * 514)
    srd(a, SRD_WD, s_p + 12, 1792 * 1024)
    srd(a, SRD_D, s_p + 14, 256)
    s_non = s_p + 4
    a(f"s_or_b32 s{s_t0}, s{s_w}, s2")
    a(f"s_cmp_lg_u32 s{s_t0}, 0")
    a(f"s_cbranch_scc1 {name}_nonon")
    a(f"s_memrealtime {sr(s_non, 2)}")
    a("s_waitcnt lgkmcnt(0)")
    a(f"s_or_b32 s{s_non}, s{s_non}, 1")
    a(f"v_mov_b32 v{t0}, s{s_non}")
    a(f"v_mov_b32 v{t1}, 0")
    a("s_mov_b64 exec, 1")
    a(f"buffer_store_dword v{t0}, v{t1}, {sr(SRD_D, 4)}, 0 offen sc1")
    a("s_mov_b64 exec, -1")
    a.label(f"{name}_nonon")

    side = {}

    def lines(txt):
        return [lambda l=l: a(l) for l in txt.strip().split("\n")]
    job = lines(f"""
v_lshrrev_b32 v{u0}, 3, v{v_lane}
v_and_b32 v{u1}, 7, v{v_lane}
s_and_b32 s{s_t0}, s2, 3
s_lshl_b32 s{s_t0}, s{s_t0}, 3
s_add_u32 s{s_t0}, s{s_t0}, s{s_w}
s_lshl_b32 s{s_t0}, s{s_t0}, 3
v_add_u32 v{u1}, s{s_t0}, v{u1}
s_lshr_b32 s{s_t1}, s2, 2
s_and_b32 s{s_t1}, s{s_t1}, 3
s_lshr_b32 s{s_t2}, s2, 4
v_lshrrev_b32 v{u2}, 2, v{u0}
v_lshlrev_b32 v{u2}, 4, v{u2}
v_and_b32 v{u3}, 3, v{u0}
v_add_u32 v{u2}, v{u2}, v{u3}
s_lshl_b32 s{s_t3}, s{s_t1}, 2
v_add_u32 v{u2}, s{s_t3}, v{u2}
s_lshl_b32 s{s_t3}, s{s_t2}, 7
v_add_u32 v{u2}, s{s_t3}, v{u2}
v_mul_u32_u24 v{u2}, 514, v{u2}
v_lshl_add_u32 v{v_f1a}, v{u1}, 1, v{u2}
v_add_u32 v{v_f2a}, 512, v{u2}
s_lshl_b32 s{s_t3}, s{s_t2}, 9
s_lshl_b32 s{s_t1}, s{s_t1}, 7
s_add_u32 s{s_t3}, s{s_t3}, s{s_t1}
s_add_u32 s{s_t3}, s{s_t3}, {WS_W}
v_lshl_add_u32 v{u0}, v{u0}, 4, s{s_t3}
v_lshl_add_u32 v{v_f1s}, v{u1}, 13, v{u0}
v_add_u32 v{v_f2s}, {256 * 8192}, v{u0}
""")
    addr_job = job

    def gl(dst, va, srdn, i):
        def f():
            a(f"s_mov_b32 s{s_t0}, {i * 32 * 514}")
            a.vmem(f"buffer_load_ushort v{dst}, v{va}, {sr(srdn, 4)}, s{s_t0} offen", "f1")
        return f
    job = []
    for i in range(4):
        job.append(gl(v_f1 + i, v_f1a, SRD_WR, i))
        job.append(gl(v_fi + i, v_f1a, SRD_WI, i))
    gath = job
    side[6] = []

    def c256_test(lbl):
        a(f"s_and_b32 s{s_t0}, s2, 3")
        a(f"s_lshl_b32 s{s_t0}, s{s_t0}, 3")
        a(f"s_add_u32 s{s_t0}, s{s_t0}, s{s_w}")
        a(f"s_cmp_lg_u32 s{s_t0}, 31")
        a(f"s_cbranch_scc1 {name}_{lbl}")

    def col256_load():
        c256_test("c256a")
        for i in range(4):
            a(f"s_mov_b32 s{s_t0}, {i * 32 * 514}")
            a(f"buffer_load_ushort v{v_f2 + i}, v{v_f2a}, {sr(SRD_WR, 4)}, s{s_t0} offen")
            a(f"buffer_load_ushort v{v_fi + 4 + i}, v{v_f2a}, {sr(SRD_WI, 4)}, s{s_t0} offen")
        a.label(f"{name}_c256a")

    def side_store():
        a.wait(vm="f1")
        for i in range(4):
            a(f"v_lshl_or_b32 v{v_f1 + i}, v{v_fi + i}, 16, v{v_f1 + i}")
        a.vmem(f"buffer_store_dwordx4 {vr(v_f1, 4)}, v{v_f1s}, {sr(SRD_WS, 4)}, 0 offen{WT}", "st")
        c256_test("c256b")
        for i in range(4):
            a(f"v_lshl_or_b32 v{v_f2 + i}, v{v_fi + 4 + i}, 16, v{v_f2 + i}")
        a(f"buffer_store_dwordx4 {vr(v_f2, 4)}, v{v_f2s}, {sr(SRD_WS, 4)}, 0 offen{WT}")
        a.label(f"{name}_c256b")

    def wd_job(part, nparts):
        def f():
            if TOUCH_WD == 1:
                per = 56 // nparts
                a(f"s_lshr_b32 s{s_t0}, s2, 3")
                a(f"s_lshl_b32 s{s_t0}, s{s_t0}, 3")
                a(f"s_add_u32 s{s_t0}, s{s_t0}, s{s_w}")
                a(f"s_mul_i32 s{s_t0}, s{s_t0}, {per * 128}")
                a(f"s_add_u32 s{s_t0}, s{s_t0}, {part * 256 * per * 128}")
                a(f"v_min_u32 v{u3}, {per - 1}, v{v_lane}")
            else:
                a(f"s_lshl_b32 s{s_t0}, s2, 3")
                a(f"s_add_u32 s{s_t0}, s{s_t0}, s{s_w}")
                a(f"s_mul_i32 s{s_t0}, s{s_t0}, {7 * 128}")
                a(f"v_min_u32 v{u3}, 6, v{v_lane}")
            a(f"v_lshlrev_b32 v{u3}, 7, v{u3}")
            a.vmem(f"buffer_load_dword v{v_pa[1]}, v{u3}, {sr(SRD_WD, 4)}, s{s_t0} offen", "pf")
        return f
    def flag_init():
        a(f"s_lshl_b32 s{s_t0}, s2, 3")
        a(f"s_add_u32 s{s_t0}, s{s_t0}, s{s_w}")
        a(f"s_lshl_b32 s{s_t0}, s{s_t0}, 10")
        a(f"s_add_u32 s{s_t0}, s{s_t0}, {WS_Z}")
        a(f"v_lshlrev_b32 v{u3}, 4, v{v_lane}")
        for i in range(4):
            a(f"v_mov_b32 v{v_sn + i}, -1")
        a.vmem(f"buffer_store_dwordx4 {vr(v_sn, 4)}, v{u3}, {sr(SRD_WS, 4)}, s{s_t0} offen sc1", "st")
    def touch_next():
        a(f"s_cmp_ge_u32 s2, 8")
        a(f"s_cbranch_scc1 {name}_notn")
        a(f"s_getpc_b64 {sr(SRD_T, 2)}")
        a(f"s_add_u32 s{SRD_T}, s{SRD_T}, ctab@rel32@lo+4")
        a(f"s_addc_u32 s{SRD_T + 1}, s{SRD_T + 1}, ctab@rel32@hi+12")
        a(f"s_mov_b32 s{SRD_T + 2}, 24576")
        a(f"s_lshl_b32 s{s_t0}, s{s_w}, 13")
        a(f"s_cmp_lt_u32 s{s_w}, 3")
        a(f"s_cbranch_scc1 {name}_tnc")
        a(f"s_getpc_b64 {sr(SRD_T, 2)}")
        a(f"s_add_u32 s{SRD_T}, s{SRD_T}, k23_begin@rel32@lo+4")
        a(f"s_addc_u32 s{SRD_T + 1}, s{SRD_T + 1}, k23_begin@rel32@hi+12")
        a(f"s_mov_b32 s{SRD_T + 2}, k23_end-k23_begin")
        a(f"s_sub_u32 s{s_t0}, s{s_t0}, {3 * 8192}")
        a.label(f"{name}_tnc")
        a(f"s_and_b32 s{SRD_T + 1}, s{SRD_T + 1}, 0xffff")
        a(f"s_mov_b32 s{SRD_T + 3}, 0x00020000")
        a(f"v_lshlrev_b32 v{u3}, 7, v{v_lane}")
        a(f"buffer_load_dword v{v_pa[1]}, v{u3}, {sr(SRD_T, 4)}, s{s_t0} offen")
        a.label(f"{name}_notn")

    def tlb_warm():
        a(f"v_min_u32 v{u3}, 7, v{v_lane}")
        a(f"v_lshlrev_b32 v{u3}, 21, v{u3}")
        a(f"s_cmp_lg_u32 s{s_w}, 7")
        a(f"s_cbranch_scc1 {name}_notlb")
        a(f"buffer_load_dword v{v_pa[1]}, v{u3}, {sr(SRD_WS, 4)}, 0 offen")
        a(f"buffer_load_dword v{v_pa[0]}, v{u3}, {sr(SRD_WR, 4)}, 0 offen")
        a(f"buffer_load_dword v{v_pa[2]}, v{u3}, {sr(SRD_WI, 4)}, 0 offen")
        a.label(f"{name}_notlb")
    if TOUCH:
        for st in range(4):
            side[st] = [lambda st=st: touch(st + 4)] + [lambda: None] * 3 + side.get(st, [])

    def read_ops(stage, j):
        bw = (stage % 3) * 16384 + j * 4096
        bx = (stage % 4) * 16384
        ops = []
        tag = f"r{stage}_{j}"
        for mt in range(2):
            for e in range(2):
                ops.append(lambda mt=mt, e=e: a.lds(
                    f"ds_read_b64_tr_b16 {vr(v_W[j % 2][mt] + 2 * e, 2)}, v{v_wa[mt]} offset:{bw + e * 1024}", tag))
            ops.append(lambda nt=mt: a.lds(
                f"ds_read_b128 {vr(v_X[j % 2][nt], 4)}, v{v_xa[j]} offset:{bx + nt * 4096}", tag))
        return ops

    def allreduce(v, t):
        return lines(f"""
s_nop 1
v_add_f32_dpp v{v}, v{v}, v{v} quad_perm:[1,0,3,2] row_mask:0xf bank_mask:0xf
s_nop 1
v_add_f32_dpp v{v}, v{v}, v{v} quad_perm:[2,3,0,1] row_mask:0xf bank_mask:0xf
s_nop 1
v_add_f32_dpp v{v}, v{v}, v{v} row_half_mirror row_mask:0xf bank_mask:0xf
s_nop 1
v_add_f32_dpp v{v}, v{v}, v{v} row_mirror row_mask:0xf bank_mask:0xf
v_mov_b32 v{t}, v{v}
s_nop 1
v_permlane16_swap_b32 v{v}, v{t}
v_add_f32 v{v}, v{v}, v{t}
v_mov_b32 v{t}, v{v}
s_nop 1
v_permlane32_swap_b32 v{v}, v{t}
v_add_f32 v{v}, v{v}, v{t}
""")
    el = [v_e + i for i in range(8)]
    m_, mb, dl, tt = v_t[:4]
    so0, so1 = v_st[0], v_st[0] + 1
    rowst = [lambda: a.wait(vm="xr")]
    for d in range(4):
        rowst += lines(f"v_lshlrev_b32 v{el[2 * d]}, 16, v{XR + d}\nv_and_b32 v{el[2 * d + 1]}, 0xffff0000, v{XR + d}")
    rowst += lines(f"""
v_add_f32 v{m_}, v{el[0]}, v{el[1]}
v_add_f32 v{mb}, v{el[2]}, v{el[3]}
v_add_f32 v{dl}, v{el[4]}, v{el[5]}
v_add_f32 v{tt}, v{el[6]}, v{el[7]}
v_add_f32 v{m_}, v{m_}, v{mb}
v_add_f32 v{dl}, v{dl}, v{tt}
v_add_f32 v{m_}, v{m_}, v{dl}
""") + allreduce(m_, tt) + lines(f"""
v_mul_f32 v{m_}, 0x3b000000, v{m_}
v_cvt_pk_bf16_f32 v{so0}, -v{m_}, -v{m_}
""")
    rowst += lines("\n".join(f"v_sub_f32 v{e_}, v{e_}, v{m_}" for e_ in el))
    rowst += lines(f"v_mul_f32 v{mb}, v{el[0]}, v{el[0]}\nv_mul_f32 v{dl}, v{el[1]}, v{el[1]}")
    rowst += lines("\n".join(f"v_fmac_f32 v{(mb, dl)[i % 2]}, v{el[i]}, v{el[i]}" for i in range(2, 8)))
    rowst += lines(f"v_add_f32 v{mb}, v{mb}, v{dl}") + allreduce(mb, tt) + lines(f"""
v_mul_f32 v{mb}, 0x3b000000, v{mb}
v_cvt_pk_bf16_f32 v{tt}, v{mb}, v{mb}
v_and_b32 v{tt}, 0xffff0000, v{tt}
v_add_f32 v{tt}, 0x3727c5ac, v{tt}
v_cvt_pk_bf16_f32 v{tt}, v{tt}, v{tt}
v_and_b32 v{tt}, 0xffff0000, v{tt}
v_sqrt_f32 v{tt}, v{tt}
v_and_b32 v{so0}, 0xffff, v{so0}
v_cvt_pk_bf16_f32 v{tt}, v{tt}, v{tt}
v_and_b32 v{tt}, 0xffff0000, v{tt}
v_or_b32 v{so0}, v{so0}, v{tt}
""")
    fl = v_XS[1]

    def nonce_load():
        a(f"v_mov_b32 v{fl + 2}, 0")
        a.vmem(f"buffer_load_dword v{fl}, v{fl + 2}, {sr(SRD_D, 4)}, 0 offen sc1", "nl")

    def rowst_store():
        a.wait(vm="nl")
        a(f"s_mov_b32 s{s_t3}, {SPIN_MAX}")
        a.label(f"{name}_nn")
        a(f"v_readfirstlane_b32 s{s_non}, v{fl}")
        a(f"s_cmp_lg_u32 s{s_non}, 0")
        a(f"s_cbranch_scc1 {name}_nnok")
        a(f"s_sub_u32 s{s_t3}, s{s_t3}, 1")
        a(f"s_cbranch_scc1 {name}_nnok")
        a("s_sleep 8")
        a(f"buffer_load_dword v{fl}, v{fl + 2}, {sr(SRD_D, 4)}, 0 offen sc1")
        a("s_waitcnt vmcnt(0)")
        a(f"s_branch {name}_nn")
        a.label(f"{name}_nnok")
        a(f"s_lshl_b32 s{s_t0}, s{s_rb}, 7")
        a(f"s_lshl_b32 s{s_t1}, s{s_cg}, 3")
        a(f"s_add_u32 s{s_t0}, s{s_t0}, s{s_t1}")
        a(f"s_add_u32 s{s_t0}, s{s_t0}, s{s_w}")
        a(f"s_lshl_b32 s{s_t0}, s{s_t0}, 3")
        a(f"s_add_u32 s{s_t0}, s{s_t0}, {WS_ST}")
        a(f"v_mov_b32 v{so1}, v{fl}")
        a("s_mov_b64 exec, 1")
        a.vmem(f"buffer_store_dwordx2 {vr(so0, 2)}, v{fl + 2}, {sr(SRD_WS, 4)}, s{s_t0} offen sc1", "ss")
        a("s_mov_b64 exec, -1")

    def st_loads(reg):
        for nt in range(2):
            txt = f"buffer_load_dwordx2 {vr(v_st[nt], 2)}, v{fl + 3}, {sr(SRD_WS, 4)}, s{s_sx} offen offset:{256 * nt} sc1"
            if reg:
                a.vmem(txt, "sl")
            else:
                a(txt)

    def st_poll_load():
        a(f"s_lshl_b32 s{s_sx}, s{s_rb}, 10")
        a(f"s_lshl_b32 s{s_t1}, s{s_ni}, 9")
        a(f"s_add_u32 s{s_sx}, s{s_sx}, s{s_t1}")
        a(f"s_add_u32 s{s_sx}, s{s_sx}, {WS_ST}")
        a(f"v_lshlrev_b32 v{fl + 3}, 3, v{v_n}")
        st_loads(True)

    def st_poll_check():
        a.wait(vm="sl")
        a(f"s_mov_b32 s{s_t3}, {SPIN_MAX}")
        a.label(f"{name}_sp")
        a(f"v_cmp_ne_u32 vcc, s{s_non}, v{v_st[0] + 1}")
        a(f"v_cmp_ne_u32 {sr(s_tab, 2)}, s{s_non}, v{v_st[1] + 1}")
        a("s_nop 0")
        a(f"s_or_b64 vcc, vcc, {sr(s_tab, 2)}")
        a(f"s_cbranch_scc0 {name}_spok")
        a(f"s_sub_u32 s{s_t3}, s{s_t3}, 1")
        a(f"s_cbranch_scc1 {name}_spok")
        a("s_sleep 8")
        st_loads(False)
        a("s_waitcnt vmcnt(0)")
        a(f"s_branch {name}_sp")
        a.label(f"{name}_spok")

    def sel_op(j, mt, first):
        c = "0" if first else vr(v_cs[mt], 4)
        return lambda: a(f"v_mfma_f32_16x16x32_bf16 {vr(v_cs[mt], 4)}, {vr(v_sel, 4)}, {vr(v_W[j % 2][mt], 4)}, {c}")

    ORDER = ((0, 0), (1, 0), (0, 1), (1, 1))

    def mfma_ops(stage, j):
        ops = []
        first = stage == 0 and j == 0
        for mt, nt in ORDER:
            acc = vr(v_acc[mt][nt], 16)
            ops.append(lambda mt=mt, nt=nt, acc=acc: a(
                f"v_mfma_f32_32x32x16_bf16 {acc}, {vr(v_W[j % 2][mt], 4)}, {vr(v_X[j % 2][nt], 4)}, {'0' if first else acc}"))
        return ops

    def merge(a_list, b_list):
        out = []
        na, nb = len(a_list), len(b_list)
        ia = ib = 0
        while ia < na or ib < nb:
            if ib >= nb or (ia < na and ia * nb <= ib * na):
                out.append(a_list[ia]); ia += 1
            else:
                out.append(b_list[ib]); ib += 1
        return out

    e = v_e
    rA, rB = v_st[0] + 1, v_st[1] + 1

    publish = lines(f"""
s_lshl_b32 s{s_t2}, s{s_tile}, 9
s_add_u32 s{s_t2}, s{s_t2}, {K1_LDS_CS}
v_lshlrev_b32 v{u1}, 3, v{v_lane}
v_add_u32 v{u1}, s{s_t2}, v{u1}
""")

    def publish_cs():
        a.lds(f"ds_write_b64 v{u1}, {vr(v_cs[0], 2)}", "w")

    gather = lines(f"v_xor_b32 v{u1}, 512, v{u1}")
    gather.append(lambda: a.lds(f"ds_read_b64 {vr(v_FA[1], 2)}, v{u1}", "s"))

    fin = lines(f"""
v_cmp_eq_u32 vcc, 0, v{v_h}
v_mov_b32 v{v_FB[0] + 2}, 0
v_mov_b32 v{v_FB[0] + 3}, 0
v_mov_b32 v{v_FB[1] + 2}, 0
v_mov_b32 v{v_FB[1] + 3}, 0
v_mov_b32 v{v_FA[0] + 2}, 0
v_mov_b32 v{v_FA[0] + 3}, 0
v_mov_b32 v{v_FA[1] + 2}, 0
v_mov_b32 v{v_FA[1] + 3}, 0
v_bfe_u32 v{t0}, v{v_lane}, 4, 1
v_and_b32 v{rA}, 0xffff0000, v{v_st[0]}
v_and_b32 v{rB}, 0xffff0000, v{v_st[1]}
v_rcp_f32 v{rA}, v{rA}
v_rcp_f32 v{rB}, v{rB}
v_and_b32 v{v_st[0]}, 0xffff, v{v_st[0]}
v_and_b32 v{v_st[1]}, 0xffff, v{v_st[1]}
v_lshl_or_b32 v{v_st[0]}, v{v_st[0]}, 16, v{v_st[0]}
v_lshl_or_b32 v{v_st[1]}, v{v_st[1]}, 16, v{v_st[1]}
v_cndmask_b32 v{v_FB[0]}, 0, v{v_st[0]}, vcc
v_cndmask_b32 v{v_FB[1]}, 0, v{v_st[1]}, vcc
v_cmp_eq_u32 vcc, 1, v{t0}
v_mov_b32 v{v_FB[0] + 1}, v{v_FB[0]}
v_mov_b32 v{v_FB[1] + 1}, v{v_FB[1]}
v_cndmask_b32 v{v_cso}, v{v_FA[1]}, v{v_FA[1] + 1}, vcc
""")

    def fold_a(mt):
        c, r1, hi = v_t[3 * mt], v_t[3 * mt + 1], v_t[3 * mt + 2]
        FA = v_FA[mt]
        txt = f"v_cndmask_b32 v{c}, v{v_cs[mt]}, v{v_cs[mt] + 1}, vcc\n"
        if mt == 1:
            txt += f"v_add_f32 v{c}, v{c}, v{v_cso}\n"
        txt += f"""v_and_b32 v{hi}, 0xffff0000, v{c}
v_sub_f32 v{r1}, v{c}, v{hi}
v_and_b32 v{c}, 0xffff0000, v{r1}
v_sub_f32 v{r1}, v{r1}, v{c}
v_lshrrev_b32 v{hi}, 16, v{hi}
v_or_b32 v{FA}, v{hi}, v{c}
v_lshrrev_b32 v{FA + 1}, 16, v{r1}"""
        return lines(txt)

    nop = lambda: None
    side.clear()

    def put(stage, frac, ops):
        b = side.setdefault(stage, [[] for _ in range(16)])
        if isinstance(ops, list) and len(ops) > 4:
            n = len(ops)
            lo = int(frac * 16)
            for i, op in enumerate(ops):
                b[lo + (16 - lo) * i // n].append(op)
        else:
            b[min(15, int(frac * 16))] += ops if isinstance(ops, list) else [ops]
    put(2, 0.0, addr_job)
    if not os.environ.get("NOGATH"):
        for i in range(4):
            put(G0S + i * GSTEP, 0.3 if GSTEP else 0.1 + 0.2 * i, gath[2 * i:2 * i + 2])
        put(G0S + 3 * GSTEP, 0.8, col256_load)
        put(6, 0.5, side_store)

    def wd_by_wave(k):
        def f():
            a(f"s_and_b32 s{s_t0}, s{s_w}, 3")
            a(f"s_cmp_lg_u32 s{s_t0}, {k}")
            a(f"s_cbranch_scc1 {name}_nwd{k}")
            saved = list(a.vm)
            wd_job(0, 1)()
            a.vm = saved
            a.label(f"{name}_nwd{k}")
        return f
    if TOUCH_WD:
        put(WDST, 0.9, wd_job(0, 1))
    if TOUCH_NEXT:
        put(5, 0.8, touch_next)
    RS = max(XRS, -1) + 1
    if XRS >= 0:
        put(XRS, 0.1, xr_load)
    put(RS, 0.0, rowst)
    put(RS, 0.4, nonce_load)
    put(RS + 1, 0.1, rowst_store)
    put(6, 0.3, st_poll_load)
    side = {k: [op for bk in v for op in (bk if bk else [nop])] for k, v in side.items()}
    if SENT == -1:
        flag_init()
    elif SENT < 7:
        side[SENT] = side.get(SENT, []) + [flag_init]
    pf.stamp()
    a.wait(vm=["x0", "w0"])
    if PROF == 3:
        pf.stamp()
    a("s_barrier")
    pf.stamp()
    for f in read_ops(0, 0):
        f()
    LAST = NSTAGE - 1
    for stage in range(NSTAGE):
        dops = (dma_w(stage + 2) if stage + 2 < NSTAGE else []) + (dma_x(stage + 3) if stage + 3 < NSTAGE else [])
        extra = side.get(stage, [])
        for j in range(4):
            a.comment(f"stage {stage} step {j}")
            a.wait(lg="all")
            m = mfma_ops(stage, j)
            if stage < LAST:
                m = [sel_op(j, 0, stage == 0 and j == 0)] + m
                so = publish if (stage == 6 and j == 2) else []
                ex = extra[len(extra) * j // 4:len(extra) * (j + 1) // 4]
                if j < 3:
                    fill = read_ops(stage, j + 1) + merge(merge(so, ex), dops[2 * j:2 * j + 2])
                    interleave(a, m, fill)
                else:
                    interleave(a, m[:3], merge(so, ex))
                    if stage == 6:
                        a("s_nop 3")
                        publish_cs()
                        a.wait(lg="all")
                    tags = [f"w{stage + 1}", f"x{stage + 1}"]
                    a.wait(vm=tags)
                    a("s_barrier")
                    if PROF == 1 and stage % 2 == 0:
                        pf.stamp()
                    for f in read_ops(stage + 1, 0):
                        f()
                    m[3]()
                    if stage == 6:
                        for f in gather:
                            f()
                    m[4]()
            else:
                m = [sel_op(j, 0, False), sel_op(j, 1, j == 0)] + m
                if j < 3:
                    n = len(fin)
                    interleave(a, m, read_ops(stage, j + 1) + ([st_poll_check] if j == 0 else []) + fin[n * j // 3:n * (j + 1) // 3])
                else:
                    for f in m[:4]:
                        f()
                    a("s_nop 3")
                    interleave(a, m[4:], merge(fold_a(0), fold_a(1)))
    a("s_nop 1")
    for mt, nt in ORDER:
        acc = vr(v_acc[mt][nt], 16)
        a(f"v_mfma_f32_32x32x16_bf16 {acc}, {vr(v_FA[mt], 4)}, {vr(v_FB[nt], 4)}, {acc}")
    pf.stamp()
    rr = [rA, rB]
    a(f"s_cmp_ge_u32 s{s_cg}, 14")
    a(f"s_cbranch_scc1 {name}_epi_dft")
    r2 = [e + 4, e + 6]
    for nt in range(2):
        a(f"v_mul_f32 v{r2[nt]}, v{rr[nt]}, v{rr[nt]}")
    a(f"v_lshlrev_b32 v{t0}, 4, v{v_lane}")
    a(f"s_lshl_b32 s{s_t0}, s{s_rb}, 2")
    a(f"s_lshl_b32 s{s_t2}, s{s_ni}, 1")
    a(f"s_add_u32 s{s_t0}, s{s_t0}, s{s_t2}")
    a(f"s_mul_i32 s{s_t0}, s{s_t0}, 112")
    a(f"s_lshl_b32 s{s_t2}, s{s_cg}, 3")
    a(f"s_add_u32 s{s_t0}, s{s_t0}, s{s_t2}")
    for mt, nt in ORDER:
        acc = v_acc[mt][nt]
        for i in range(8):
            a(f"v_max_f32 v{acc + i}, 0, v{acc + i}")
            a(f"v_mul_f32 v{acc + 8 + i}, v{r2[nt]}, v{acc + 8 + i}")
        for i in range(8):
            a(f"v_mul_f32 v{acc + i}, v{acc + i}, v{acc + 8 + i}")
        for i in range(4):
            a(f"v_cvt_pk_bf16_f32 v{acc + 8 + i}, v{acc + 2 * i}, v{acc + 2 * i + 1}")
        a(f"s_xor_b32 s{s_t2}, s{s_tile}, {mt}")
        a(f"s_add_u32 s{s_t2}, s{s_t2}, s{s_t0}")
        if nt:
            a(f"s_add_u32 s{s_t2}, s{s_t2}, 112")
        a(f"s_lshl_b32 s{s_t2}, s{s_t2}, 10")
        a(f"buffer_store_dwordx4 {vr(acc + 8, 4)}, v{t0}, {sr(SRD_WS, 4)}, s{s_t2} offen{WTH}")
    if PROF:
        pf.stamp()
        a("s_waitcnt vmcnt(0)")
        pf.stamp()
        pf.stamp(real=True)
        pf.dump(SRD_WS, 2, s_w, v_t[0], s_t0, 8)
    a("s_endpgm")
    a.label(f"{name}_epi_dft")
    for nt in range(2):
        a(f"v_mul_f32 v{rr[nt]}, 0x36000000, v{rr[nt]}")
    a(f"v_lshlrev_b32 v{t0}, 14, v{v_h}")
    a(f"v_lshl_add_u32 v{t0}, v{v_n}, 2, v{t0}")
    a(f"s_sub_u32 s{s_t0}, s{s_cg}, 14")
    a(f"s_lshl_b32 s{s_t0}, s{s_t0}, 20")
    a(f"s_add_u32 s{s_t0}, s{s_t0}, {WS_U}")
    a(f"s_lshl_b32 s{s_t2}, s{s_rb}, 9")
    a(f"s_add_u32 s{s_t0}, s{s_t0}, s{s_t2}")
    a(f"s_lshl_b32 s{s_t2}, s{s_ni}, 8")
    a(f"s_add_u32 s{s_t0}, s{s_t0}, s{s_t2}")
    for mt, nt in ORDER:
        a(f"s_xor_b32 s{s_t2}, s{s_tile}, {mt}")
        a(f"s_lshl_b32 s{s_t2}, s{s_t2}, 16")
        a(f"s_add_u32 s{s_t2}, s{s_t2}, s{s_t0}")
        acc = v_acc[mt][nt]
        for i in range(16):
            a(f"v_mul_f32 v{acc + i}, v{rr[nt]}, v{acc + i}")
        for i in range(8):
            a(f"v_cvt_pk_bf16_f32 v{acc + 2 * i}, v{acc + 2 * i}, v{acc + 2 * i + 1}")
        for g in range(4):
            for ip in range(2):
                koff = (g % 2) * 4 + (g // 2) * 64 + ip
                a(f"s_add_u32 s{s_t3}, s{s_t2}, {koff * 8192}")
                a(f"buffer_store_dword v{acc + 4 * g + 2 * ip}, v{t0}, {sr(SRD_WS, 4)}, s{s_t3} offen offset:{nt * 128}{WTH}")
    if PROF:
        pf.n -= 3
        pf.stamp()
        a("s_waitcnt vmcnt(0)")
        pf.stamp()
        pf.stamp(real=True)
        pf.dump(SRD_WS, 2, s_w, v_t[0], s_t0, 8)
    a.label(f"{name}_done")
    a("s_endpgm")
    return kernel_header(name) + a.text(), kernel_desc(name, V.hi, 102)


def gen_ftab():
    j = np.arange(512)
    c, s = exact_cos_sin(j, 512)
    cb, nb = bf16_bits(c), bf16_bits(-s + 0.0)
    t = ""
    for i in range(512):
        t += f".set tw_{i}, 0x{int(cb[i] | (nb[i] << 16)):08x}\n"
    t += """.macro twe idx
.long tw_\\idx
.endm
.altmacro
.p2align 8
ftab:
.set dd, 0
.rept 512
.long 0x3f003f00 | ((dd & 1) << 31)
.set kk, 1
.rept 255
twe %((dd*kk) & 511)
.set kk, kk+1
.endr
.set dd, dd+1
.endr
.noaltmacro
"""
    return t
```

```python
from gen_common import *
from gen_k2 import fhex, gen_ctab

R = int(os.environ.get("K3_R", "7"))
NKB, NKZ = 28, 8
L_Z = 0
L_RING = 65536
L_F = L_RING + 4 * R * 2048
K23_LDS = L_F + 256
WS_FLAG = 15 << 20
SPIN_MAX = 1 << 14
FFT_PRIO = int(os.environ.get("FFT_PRIO", "3"))
G_PRIO = int(os.environ.get("G_PRIO", "0"))
Z_PRIO = int(os.environ.get("Z_PRIO", "1"))
B_PRIO = int(os.environ.get("B_PRIO", "0"))


def lds_spin(a, name, v_addr, off, v_tmp, s_tmp):
    a.label(name)
    a(f"ds_read_b32 v{v_tmp}, v{v_addr} offset:{off}")
    a("s_waitcnt lgkmcnt(0)")
    a(f"v_readfirstlane_b32 s{s_tmp}, v{v_tmp}")
    a(f"s_cmp_eq_u32 s{s_tmp}, 0")
    a(f"s_cbranch_scc1 {name}")
    a.lg = []


def fft_part(a, V, S, name, s_w, SRD_WS, SRD_C, v_lane, pf):
    s_a, s_b, s_job, s_t, s_lb = [S.alloc() for _ in range(5)]
    v_n, v_h = V.alloc(), V.alloc()
    v_t = [V.alloc() for _ in range(6)]
    v_au, v_al, v_xw, v_xr, v_fw, v_fr, v_one = [V.alloc() for _ in range(7)]
    U = V.alloc(16, 4)
    Wf = V.alloc(16, 4)
    C32r, C32i = V.alloc(16, 4), V.alloc(16, 4)
    F64r, F64i = V.alloc(16, 4), V.alloc(16, 4)
    Cr, Ci = V.alloc(16, 4), V.alloc(16, 4)
    P = [V.alloc(16, 4), V.alloc(16, 4), U]
    tw1c, tw1s, tw2c, tw2s = [V.alloc(16, 4) for _ in range(4)]
    t0, t1, t2, t3 = v_t[:4]

    a(f"s_sub_u32 s{s_b}, s{s_w}, 4")
    a(f"s_lshl_b32 s{s_b}, s{s_b}, 4")
    a(f"s_add_u32 s{s_b}, s{s_b}, {L_F}")
    a(f"v_mov_b32 v{v_fw}, s{s_b}")
    a(f"v_mov_b32 v{t0}, 0")
    a(f"ds_write_b32 v{v_fw}, v{t0}")
    a(f"ds_write_b32 v{v_fw}, v{t0} offset:4")
    a(f"ds_write_b32 v{v_fw}, v{t0} offset:8")
    a(f"ds_write_b32 v{v_fw}, v{t0} offset:12")
    a(f"v_xor_b32 v{v_fr}, 16, v{v_fw}")
    a(f"v_mov_b32 v{v_one}, 1")
    a(f"s_and_b32 s{s_t}, s{s_w}, 1")
    a(f"s_bfe_u32 s{s_lb}, s{s_w}, 0x10001")
    a(f"s_lshl_b32 s{s_job}, s{s_lb}, 8")
    a(f"s_add_u32 s{s_job}, s{s_job}, s2")
    a(f"v_and_b32 v{v_n}, 31, v{v_lane}")
    a(f"v_lshrrev_b32 v{v_h}, 5, v{v_lane}")
    a(f"v_lshlrev_b32 v{v_al}, 4, v{v_lane}")
    a(f"v_lshlrev_b32 v{v_au}, 7, v{v_n}")
    a(f"v_lshl_add_u32 v{v_au}, v{v_h}, 6, v{v_au}")
    a(f"s_and_b32 s{s_a}, s{s_job}, 255")
    a(f"s_lshl_b32 s{s_a}, s{s_a}, 13")
    a(f"s_lshl_b32 s{s_b}, s{s_t}, 12")
    a(f"s_add_u32 s{s_a}, s{s_a}, s{s_b}")
    a(f"s_add_u32 s{s_a}, s{s_a}, {WS_U}")
    a("s_waitcnt lgkmcnt(0)")
    a("s_barrier")
    return dict(locals())


def fft_main(L):
    a, name, pf = L["a"], L["name"], L["pf"]
    (s_a, s_b, s_job, s_t, s_lb, s_w, SRD_WS, SRD_C, v_lane, v_n, v_h, v_t, v_au, v_al, v_xw, v_xr, v_fw, v_fr, v_one,
     U, Wf, C32r, C32i, F64r, F64i, Cr, Ci, P, tw1c, tw1s, tw2c, tw2s) = [L[k] for k in (
        "s_a s_b s_job s_t s_lb s_w SRD_WS SRD_C v_lane v_n v_h v_t v_au v_al v_xw v_xr v_fw v_fr v_one "
        "U Wf C32r C32i F64r F64i Cr Ci P tw1c tw1s tw2c tw2s").split()]
    t0, t1, t2, t3 = v_t[:4]
    for j in range(4):
        a.vmem(f"buffer_load_dwordx4 {vr(U + 4 * j, 4)}, v{v_au}, {sr(SRD_WS, 4)}, s{s_a} offen offset:{16 * j}", "u")
    for j in range(4):
        a.vmem(f"buffer_load_dwordx4 {vr(C32r + 4 * j, 4)}, v{v_al}, {sr(SRD_C, 4)}, 0 offen offset:{1024 * j}", "c32")
    a(f"s_movk_i32 s{s_a}, 4096")
    for j in range(4):
        a.vmem(f"buffer_load_dwordx4 {vr(C32i + 4 * j, 4)}, v{v_al}, {sr(SRD_C, 4)}, s{s_a} offen offset:{1024 * j}", "c32")
    a(f"s_lshl_b32 s{s_a}, s{s_t}, 13")
    a(f"s_add_u32 s{s_a}, s{s_a}, 8192")
    a(f"s_add_u32 s{s_b}, s{s_a}, 4096")
    for j in range(4):
        a.vmem(f"buffer_load_dwordx4 {vr(F64r + 4 * j, 4)}, v{v_al}, {sr(SRD_C, 4)}, s{s_a} offen offset:{1024 * j}", "c64")
        a.vmem(f"buffer_load_dwordx4 {vr(F64i + 4 * j, 4)}, v{v_al}, {sr(SRD_C, 4)}, s{s_b} offen offset:{1024 * j}", "c64")
    a(f"s_lshl_b32 s{s_a}, s{s_job}, 13")
    a(f"s_lshl_b32 s{s_b}, s{s_t}, 12")
    a(f"s_add_u32 s{s_a}, s{s_a}, s{s_b}")
    a(f"s_add_u32 s{s_a}, s{s_a}, {WS_W}")
    for g in range(4):
        a.vmem(f"buffer_load_dwordx4 {vr(Wf + 4 * g, 4)}, v{v_al}, {sr(SRD_WS, 4)}, s{s_a} offen offset:{1024 * g}", "w")
    a(f"s_sub_u32 s{s_a}, s{s_w}, 4")
    a(f"s_lshl_b32 s{s_a}, s{s_a}, 14")
    a(f"v_add_u32 v{v_xr}, s{s_a}, v{v_al}")
    a(f"v_xor_b32 v{v_xw}, 16384, v{v_xr}")
    a(f"v_bfe_u32 v{t0}, v{v_n}, 2, 1")
    a(f"v_lshlrev_b32 v{t0}, 4, v{t0}")
    a(f"v_lshrrev_b32 v{t1}, 3, v{v_n}")
    a(f"v_lshl_add_u32 v{t0}, v{t1}, 2, v{t0}")
    a(f"v_and_b32 v{t1}, 3, v{v_n}")
    a(f"v_add_u32 v{t0}, v{t0}, v{t1}")
    a(f"v_cvt_f32_u32 v{t0}, v{t0}")
    a(f"v_mul_f32 v{t0}, {fhex(1 / 2048)}, v{t0}")
    a(f"s_lshl_b32 s{s_a}, s{s_t}, 5")
    a(f"v_lshl_add_u32 v{t1}, v{v_h}, 2, s{s_a}")
    a(f"v_cvt_f32_u32 v{t1}, v{t1}")
    a(f"v_mul_f32 v{t1}, v{t1}, v{t0}")
    for r in range(16):
        k = 8 * (r // 4) + r % 4
        tt = v_t[2 + r % 4]
        a(f"v_fmamk_f32 v{tt}, v{t0}, {fhex(k)}, v{t1}")
        a(f"v_cos_f32 v{tw1c + r}, v{tt}")
        a(f"v_sin_f32 v{tw1s + r}, v{tt}")
    a(f"v_add_u32 v{t0}, s{s_a}, v{v_n}")
    a(f"v_cvt_f32_u32 v{t0}, v{t0}")
    a(f"v_mul_f32 v{t0}, {fhex(1 / 2048)}, v{t0}")
    a(f"v_lshlrev_b32 v{t1}, 4, v{v_h}")
    a(f"v_cvt_f32_u32 v{t1}, v{t1}")
    a(f"v_mul_f32 v{t1}, v{t1}, v{t0}")
    for r in range(16):
        tt = v_t[2 + r % 4]
        a(f"v_fmamk_f32 v{tt}, v{t0}, {fhex(r)}, v{t1}")
        a(f"v_cos_f32 v{tw2c + r}, v{tt}")
        a(f"v_sin_f32 v{tw2s + r}, v{tt}")
    pf.stamp()
    a.wait(vm="u")
    a(f"s_and_b32 s{s_a}, s{s_job}, 255")
    a(f"s_cmp_lg_u32 s{s_a}, 0")
    a(f"s_cbranch_scc1 {name}_nospec")
    a(f"s_lshr_b32 s{s_a}, s{s_job}, 4")
    for i in range(16):
        a(f"v_lshrrev_b32 v{U + i}, s{s_a}, v{U + i}")
        a(f"v_and_b32 v{U + i}, 0xffff, v{U + i}")
    a.label(f"{name}_nospec")
    a.wait(vm="c32")
    pf.stamp()

    def mf(acc, A, B, first):
        a(f"v_mfma_f32_32x32x16_bf16 {vr(acc, 16)}, {vr(A, 4)}, {vr(B, 4)}, {'0' if first else vr(acc, 16)}")

    for j in range(4):
        mf(Cr, U + 4 * j, C32r + 4 * j, j == 0)
        mf(Ci, U + 4 * j, C32i + 4 * j, j == 0)
    a("s_nop 11")

    def cmul(cs, sn, sign):
        ng1, ng2 = ("-", "") if sign > 0 else ("", "-")
        for r in range(16):
            tt = v_t[r % 4]
            a(f"v_mul_f32 v{tt}, v{Ci + r}, v{sn + r}")
            a(f"v_mul_f32 v{Ci + r}, v{Ci + r}, v{cs + r}")
            a(f"v_fma_f32 v{Ci + r}, {ng2}v{Cr + r}, v{sn + r}, v{Ci + r}")
            a(f"v_fma_f32 v{Cr + r}, v{Cr + r}, v{cs + r}, {ng1}v{tt}")

    def send(x, negq):
        off = x * 8192
        for p in range(8):
            a(f"v_cvt_pk_bf16_f32 v{P[0] + p}, v{Cr + 2 * p}, v{Cr + 2 * p + 1}")
            a(f"v_cvt_pk_bf16_f32 v{P[1] + p}, v{Ci + 2 * p}, v{Ci + 2 * p + 1}")
        for q in range(2):
            for hh in range(2):
                a.lds(f"ds_write_b128 v{v_xw}, {vr(P[q] + 4 * hh, 4)} offset:{off + (2 * q + hh) * 1024}", "xw")
        a.lds(f"ds_write_b32 v{v_fw}, v{v_one} offset:{4 * x}", "xw")
        for p in range(8):
            a(f"v_xor_b32 v{P[2] + p}, 0x80008000, v{P[negq] + p}")

    def recv(x, negq):
        off = x * 8192
        lds_spin(a, f"{name}_sp{x}", v_fr, 4 * x, t0, s_a)
        for q in (negq, 1 - negq):
            for hh in range(2):
                a.lds(f"ds_read_b128 {vr(P[q] + 8 + 4 * hh, 4)}, v{v_xr} offset:{off + (2 * q + hh) * 1024}", f"xr{q}")

    def recv_fin(negq):
        a.wait(lg=f"xr{negq}")
        for p in range(8):
            a(f"v_xor_b32 v{P[2] + 8 + p}, 0x80008000, v{P[negq] + 8 + p}")
        a.wait(lg="all")

    cmul(tw1c, tw1s, -1)
    pf.stamp()
    send(0, 1)
    a.wait(vm="c64")

    def step3(j):
        mf(Cr, F64r + 4 * j, P[0] + 4 * j, j == 0)
        mf(Ci, F64i + 4 * j, P[0] + 4 * j, j == 0)
        mf(Ci, F64r + 4 * j, P[1] + 4 * j, False)
        mf(Cr, F64i + 4 * j, P[2] + 4 * j, False)
    step3(0)
    recv(0, 1)
    step3(1)
    recv_fin(1)
    step3(2)
    step3(3)
    a.wait(vm="w")
    pf.stamp()
    for r in range(16):
        a(f"v_lshlrev_b32 v{tw1c + r}, 16, v{Wf + r}")
        a(f"v_and_b32 v{tw1s + r}, 0xffff0000, v{Wf + r}")
    cmul(tw1c, tw1s, +1)
    pf.stamp()
    send(1, 0)
    a("s_nop 0")

    def step4(j):
        mf(Cr, P[0] + 4 * j, F64r + 4 * j, j == 0)
        mf(Ci, P[1] + 4 * j, F64r + 4 * j, j == 0)
        mf(Cr, P[1] + 4 * j, F64i + 4 * j, False)
        mf(Ci, P[2] + 4 * j, F64i + 4 * j, False)
    step4(0)
    recv(1, 0)
    step4(1)
    recv_fin(0)
    step4(2)
    step4(3)
    a("s_nop 11")
    pf.stamp()
    cmul(tw2c, tw2s, +1)
    for r in range(16):
        a(f"v_cvt_pk_bf16_f32 v{P[0] + r}, v{Cr + r}, -v{Ci + r}")
    a("s_nop 1")
    for j in range(4):
        mf(Cr, C32r + 4 * j, P[0] + 4 * j, j == 0)
    for j in range(4):
        mf(Ci, C32i + 4 * j, P[0] + 4 * j, j == 0)
    a(f"v_lshlrev_b32 v{t0}, 6, v{v_n}")
    a(f"v_lshl_add_u32 v{t0}, v{v_h}, 5, v{t0}")
    a(f"s_and_b32 s{s_a}, s{s_job}, 255")
    a(f"s_lshl_b32 s{s_a}, s{s_a}, 13")
    a(f"s_lshr_b32 s{s_b}, s{s_job}, 8")
    a(f"s_lshl_b32 s{s_b}, s{s_b}, 12")
    a(f"s_add_u32 s{s_a}, s{s_a}, s{s_b}")
    a(f"s_lshl_b32 s{s_b}, s{s_t}, 11")
    a(f"s_add_u32 s{s_a}, s{s_a}, s{s_b}")
    a(f"s_add_u32 s{s_a}, s{s_a}, {WS_Z}")
    a(f"s_add_u32 s{s_b}, s{s_a}, 4096")
    a(f"v_sub_u32 v{t1}, v{v_xr}, v{v_al}")
    a(f"v_add_u32 v{t0}, v{t0}, v{t1}")
    for p in range(8):
        a(f"v_cvt_pk_bf16_f32 v{P[1] + p}, v{Cr + 2 * p}, v{Cr + 2 * p + 1}")
    for hh in range(2):
        a.lds(f"ds_write_b128 v{t0}, {vr(P[1] + 4 * hh, 4)} offset:{16 * hh}", "zb")
    for hh in range(2):
        a.lds(f"ds_read_b128 {vr(P[1] + 8 + 4 * hh, 4)}, v{v_xr} offset:{1024 * hh}", "zr")
    for p in range(8):
        a(f"v_cvt_pk_bf16_f32 v{P[2] + p}, -v{Ci + 2 * p}, -v{Ci + 2 * p + 1}")
    for hh in range(2):
        a.lds(f"ds_write_b128 v{t0}, {vr(P[2] + 4 * hh, 4)} offset:{2048 + 16 * hh}", "zb")
    for hh in range(2):
        a.lds(f"ds_read_b128 {vr(P[2] + 8 + 4 * hh, 4)}, v{v_xr} offset:{2048 + 1024 * hh}", "zi")
    a.wait(lg="zr")
    for hh in range(2):
        a.vmem(f"buffer_store_dwordx4 {vr(P[1] + 8 + 4 * hh, 4)}, v{v_al}, {sr(SRD_WS, 4)}, s{s_a} offen offset:{1024 * hh} sc1", "st")
    a(f"s_and_b32 s{s_a}, s{s_job}, 255")
    a(f"s_cmp_eq_u32 s{s_a}, 0")
    a.wait(lg="all")
    a(f"s_cbranch_scc1 {name}_noim")
    for hh in range(2):
        a.vmem(f"buffer_store_dwordx4 {vr(P[2] + 8 + 4 * hh, 4)}, v{v_al}, {sr(SRD_WS, 4)}, s{s_b} offen offset:{1024 * hh} sc1", "st")
    a.label(f"{name}_noim")
    pf.stamp()
    pf.stamp()


def tile_decode(a, s_sp, s_dp, s_t2):
    a(f"s_and_b32 s{s_sp}, s2, 7")
    a(f"s_lshl_b32 s{s_sp}, s{s_sp}, 2")
    a(f"s_bfe_u32 s{s_t2}, s2, 0x20003")
    a(f"s_add_u32 s{s_sp}, s{s_sp}, s{s_t2}")
    a(f"s_lshr_b32 s{s_dp}, s2, 5")


def out_addr(a, v_xo, v_n, v_h, s_sp, s_dp, s_sw, s_dw, s_t0, s_t1):
    a(f"v_lshlrev_b32 v{v_xo}, 16, v{v_n}")
    a(f"v_lshl_add_u32 v{v_xo}, v{v_h}, 5, v{v_xo}")
    a(f"s_lshl_b32 s{s_t0}, s{s_sp}, 11")
    a(f"s_lshl_b32 s{s_t1}, s{s_sw}, 10")
    a(f"s_add_u32 s{s_t0}, s{s_t0}, s{s_t1}")
    a(f"s_lshl_b32 s{s_t1}, s{s_dp}, 7")
    a(f"s_add_u32 s{s_t0}, s{s_t0}, s{s_t1}")
    a(f"s_lshl_b32 s{s_t1}, s{s_dw}, 6")
    a(f"s_add_u32 s{s_t0}, s{s_t0}, s{s_t1}")
    a(f"v_add_u32 v{v_xo}, s{s_t0}, v{v_xo}")


def z_part(a, V, S, name, s_w, v_lane, SRD_X, SRD_WS, pf):
    s_sp, s_dp, s_sw, s_dw, s_z = [S.alloc() for _ in range(5)]
    s_t0, s_t1, s_t2, s_oz, s_mz, s_spin = [S.alloc() for _ in range(6)]
    s_msk = S.alloc(2, 2)
    v_n, v_h = V.alloc(), V.alloc()
    v_t = [V.alloc() for _ in range(8)]
    v_dl, v_dz, v_xo, v_nyq, v_fa, v_one = [V.alloc() for _ in range(6)]
    v_rz = [V.alloc(), V.alloc()]
    v_step, v_base = [V.alloc(), V.alloc()], [V.alloc(), V.alloc()]
    v_x = V.alloc(8, 4)
    v_fl = V.alloc(4, 4)
    acc = [[V.alloc(16, 4) for _ in range(2)] for _ in range(2)]
    POOL = V.alloc(64, 4)
    ZF = lambda ps, kz: POOL + 32 * (1 - ps) + 4 * kz
    G = V.alloc(64, 4)
    t0, t1, t2, t3, t4 = v_t[:5]
    a(f"s_sub_u32 s{s_z}, s{s_w}, 4")
    tile_decode(a, s_sp, s_dp, s_t2)
    a(f"s_and_b32 s{s_sw}, s{s_z}, 1")
    a(f"s_lshr_b32 s{s_dw}, s{s_z}, 1")
    a(f"v_and_b32 v{v_n}, 31, v{v_lane}")
    a(f"v_lshrrev_b32 v{v_h}, 5, v{v_lane}")
    a(f"v_lshlrev_b32 v{v_dl}, 4, v{v_lane}")
    out_addr(a, v_xo, v_n, v_h, s_sp, s_dp, s_sw, s_dw, s_t0, s_t1)
    a.vmem(f"buffer_load_dwordx4 {vr(v_x, 4)}, v{v_xo}, {sr(SRD_X, 4)}, 0 offen", "x")
    a.vmem(f"buffer_load_dwordx4 {vr(v_x + 4, 4)}, v{v_xo}, {sr(SRD_X, 4)}, 0 offen offset:16", "x")
    a(f"s_setprio {G_PRIO}")
    a(f"v_lshrrev_b32 v{t0}, 3, v{v_lane}")
    a(f"v_bfe_u32 v{t1}, v{v_lane}, 4, 1")
    a(f"v_lshlrev_b32 v{t1}, 2, v{t1}")
    a(f"v_and_b32 v{t2}, 7, v{v_lane}")
    a(f"v_xor_b32 v{t1}, v{t1}, v{t2}")
    a(f"v_lshlrev_b32 v{t1}, 4, v{t1}")
    a(f"v_lshl_add_u32 v{v_dz}, v{t0}, 12, v{t1}")
    a(f"s_lshl_b32 s{s_mz}, s{s_z}, 14")
    a(f"s_add_u32 s{s_mz}, s{s_mz}, {L_Z}")
    a(f"s_lshl_b32 s{s_oz}, s{s_z}, 19")
    a(f"s_lshl_b32 s{s_t1}, s{s_sp}, 7")
    a(f"s_add_u32 s{s_oz}, s{s_oz}, s{s_t1}")
    a(f"s_add_u32 s{s_oz}, s{s_oz}, {WS_Z}")
    a(f"v_bfe_u32 v{t0}, v{v_lane}, 2, 2")
    a(f"v_and_b32 v{t1}, 3, v{v_lane}")
    a(f"v_bfe_u32 v{t2}, v{v_lane}, 4, 1")
    a(f"v_lshl_add_u32 v{t3}, v{v_h}, 2, v{t0}")
    a(f"v_lshlrev_b32 v{t3}, 7, v{t3}")
    a(f"v_lshrrev_b32 v{t0}, 1, v{t0}")
    a(f"v_xor_b32 v{t4}, s{s_sw}, v{t0}")
    a(f"v_lshl_add_u32 v{t4}, v{t4}, 6, v{t3}")
    a(f"v_add_u32 v{t4}, s{s_mz}, v{t4}")
    a(f"v_lshl_add_u32 v{t4}, v{t2}, 5, v{t4}")
    a(f"v_lshl_add_u32 v{v_rz[0]}, v{t1}, 3, v{t4}")
    a(f"v_xor_b32 v{v_rz[1]}, 64, v{v_rz[0]}")
    a(f"v_bfe_u32 v{t0}, v{v_n}, 2, 1")
    a(f"v_lshlrev_b32 v{t0}, 4, v{t0}")
    a(f"v_lshrrev_b32 v{t1}, 3, v{v_n}")
    a(f"v_lshl_add_u32 v{t0}, v{t1}, 2, v{t0}")
    a(f"v_and_b32 v{t1}, 3, v{v_n}")
    a(f"v_add_u32 v{t0}, v{t0}, v{t1}")
    a(f"s_lshl_b32 s{s_t1}, s{s_dp}, 6")
    a(f"s_lshl_b32 s{s_t2}, s{s_dw}, 5")
    a(f"s_add_u32 s{s_t1}, s{s_t1}, s{s_t2}")
    a(f"v_add_u32 v{t0}, s{s_t1}, v{t0}")
    a(f"v_lshlrev_b32 v{v_nyq}, 31, v{t0}")
    a(f"v_or_b32 v{v_nyq}, 0x3f803f80, v{v_nyq}")
    a(f"v_xor_b32 v{t2}, 32, v{t0}")
    a(f"v_cvt_f32_u32 v{v_step[0]}, v{t0}")
    a(f"v_cvt_f32_u32 v{v_step[1]}, v{t2}")
    a(f"v_mul_f32 v{v_step[0]}, {fhex(1 / 512)}, v{v_step[0]}")
    a(f"v_mul_f32 v{v_step[1]}, {fhex(1 / 512)}, v{v_step[1]}")
    a(f"s_lshl_b32 s{s_t1}, s{s_z}, 6")
    a(f"v_lshl_add_u32 v{t1}, v{v_h}, 1, s{s_t1}")
    a(f"v_cvt_f32_u32 v{t2}, v{t1}")
    for dt in range(2):
        a(f"v_mul_f32 v{v_base[dt]}, v{t2}, v{v_step[dt]}")
        a(f"v_fract_f32 v{v_base[dt]}, v{v_base[dt]}")
    a(f"v_cmp_eq_u32 {sr(s_msk, 2)}, 0, v{t1}")
    items = [(kz, dt, dd) for kz in range(NKZ) for dt in range(2) for dd in range(4)]
    prev = None
    for idx, (kz, dt, dd) in enumerate(items):
        K = 8 * kz + 4 * (dd // 2) + dd % 2
        ta, tb, tc = v_t[(3 * idx) % 6], v_t[(3 * idx + 1) % 6], v_t[(3 * idx + 2) % 6]
        a(f"v_fmamk_f32 v{ta}, v{v_step[dt]}, {fhex(K)}, v{v_base[dt]}")
        if prev:
            a(prev)
        a(f"v_cos_f32 v{tb}, v{ta}")
        a(f"v_sin_f32 v{tc}, v{ta}")
        prev = f"v_cvt_pk_bf16_f32 v{G + idx}, v{tb}, -v{tc}"
    a(f"v_cndmask_b32 v{G}, v{G}, v{v_nyq}, {sr(s_msk, 2)}")
    a(prev)
    a(f"v_cndmask_b32 v{G + 4}, v{G + 4}, v{v_nyq}, {sr(s_msk, 2)}")
    a.wait(vm="x")
    for i in range(8):
        a(f"v_lshlrev_b32 v{acc[0][0] + 2 * i}, 16, v{v_x + i}")
        a(f"v_and_b32 v{acc[0][0] + 2 * i + 1}, 0xffff0000, v{v_x + i}")
    a(f"v_add_u32 v{t0}, s{s_mz}, v{v_dl}")
    for q in (1, 2, 3):
        a(f"s_xor_b32 s{s_t0}, s{s_z}, {q}")
        a(f"s_lshl_b32 s{s_t0}, s{s_t0}, 14")
        a(f"s_add_u32 s{s_t0}, s{s_t0}, {L_Z + (q - 1) * 4096}")
        a(f"v_add_u32 v{v_t[q]}, s{s_t0}, v{v_dl}")
    a(f"v_and_b32 v{v_fa}, 3, v{v_lane}")
    a(f"v_lshlrev_b32 v{v_fa}, 4, v{v_fa}")
    a(f"v_add_u32 v{v_fa}, {L_F + 8}, v{v_fa}")
    a(f"s_lshl_b32 s{s_t1}, s{s_z}, 4")
    a(f"s_add_u32 s{s_t1}, s{s_t1}, {L_F + 8}")
    a(f"v_mov_b32 v{v_t[4]}, s{s_t1}")
    a(f"v_mov_b32 v{v_one}, 1")
    pf.stamp()
    a(f"v_mov_b32 v{v_t[6]}, {L_F + 12}")
    a(f"s_cmp_lg_u32 s{s_z}, 0")
    a(f"s_cbranch_scc1 {name}_lw")
    a(f"ds_write_b32 v{v_t[6]}, v{v_one}")
    a.label(f"{name}_lw")
    a(f"ds_read_b32 v{v_t[5]}, v{v_t[6]}")
    a("s_waitcnt lgkmcnt(0)")
    a(f"v_readfirstlane_b32 s{s_t0}, v{v_t[5]}")
    a(f"s_cmp_lg_u32 s{s_t0}, 0")
    a(f"s_cbranch_scc1 {name}_lwok")
    a("s_sleep 2")
    a(f"s_branch {name}_lw")
    a.label(f"{name}_lwok")
    a(f"s_mov_b32 s{s_spin}, {SPIN_MAX}")
    a(f"s_mov_b32 s{s_t1}, 0xffff")
    a(f"s_setprio {Z_PRIO}")
    pf.stamp()

    def zdma(q, reg=True):
        a(f"s_add_u32 m0, s{s_mz}, {1024 * q}")
        a(f"s_add_u32 s{s_t2}, s{s_oz}, {8 * q * 4096}")
        txt = f"buffer_load_dwordx4 v{v_dz}, {sr(SRD_WS, 4)}, s{s_t2} offen sc1 lds"
        if reg:
            a.vmem(txt, f"z{q // 2}")
        else:
            a(txt)
    for q in range(16):
        zdma(q)

    def zread(ps, kz):
        for e in range(2):
            a.lds(f"ds_read_b64_tr_b16 {vr(ZF(ps, kz) + 2 * e, 2)}, v{v_rz[ps]} offset:{kz * 2048 + e * 1024}", f"z{ps}_{kz}")

    def zm(pd, ps, kz):
        A = vr(acc[pd][ps], 16)
        C = "0" if (kz == 0 and (pd or ps)) else A
        a(f"v_mfma_f32_32x32x16_bf16 {A}, {vr(G + 8 * kz + 4 * pd, 4)}, {vr(ZF(ps, kz), 4)}, {C}")

    def qwrite(pd, ps, g):
        a.lds(f"ds_write_b128 v{t0}, {vr(acc[pd][ps] + 4 * g, 4)} offset:{(2 * pd + ps - 1) * 4096 + g * 1024}", "qw")

    def zcheck(kz):
        c0, c1 = v_t[5], v_t[6]
        a.label(f"{name}_zc{kz}")
        a(f"v_pk_max_u16 v{c0}, v{ZF(1, kz)}, v{ZF(1, kz) + 1}")
        a(f"v_pk_max_u16 v{c1}, v{ZF(1, kz) + 2}, v{ZF(1, kz) + 3}")
        for i in range(4):
            a(f"v_pk_max_u16 v{(c0, c1)[i % 2]}, v{(c0, c1)[i % 2]}, v{ZF(0, kz) + i}")
        a(f"v_pk_max_u16 v{c0}, v{c0}, v{c1}")
        a(f"v_lshrrev_b32 v{c1}, 16, v{c0}")
        a(f"v_max_u16 v{c0}, v{c0}, v{c1}")
        a(f"v_and_b32 v{c0}, 0xffff, v{c0}")
        a(f"v_cmp_eq_u32 vcc, s{s_t1}, v{c0}")
        a(f"s_cmp_eq_u32 s{s_spin}, 0")
        a(f"s_cbranch_scc1 {name}_zo{kz}")
        a("s_nop 2")
        a(f"s_cbranch_vccz {name}_zo{kz}")
        a(f"s_sub_u32 s{s_spin}, s{s_spin}, 1")
        a(f"s_sleep {POLL_SLEEP}")
        zdma(2 * kz, False)
        zdma(2 * kz + 1, False)
        a("s_waitcnt vmcnt(0)")
        for ps in (1, 0):
            for e in range(2):
                a(f"ds_read_b64_tr_b16 {vr(ZF(ps, kz) + 2 * e, 2)}, v{v_rz[ps]} offset:{kz * 2048 + e * 1024}")
        a("s_waitcnt lgkmcnt(0)")
        a(f"s_branch {name}_zc{kz}")
        a.label(f"{name}_zo{kz}")

    a.wait(vm="z0")
    zread(1, 0)
    zread(0, 0)
    for kz in range(8):
        if kz + 1 < 8:
            a.wait(vm=f"z{kz + 1}")
            zread(1, kz + 1)
            zread(0, kz + 1)
        a.wait(lg=f"z0_{kz}")
        zcheck(kz)
        zm(1, 1, kz)
        zm(0, 1, kz)
        zm(1, 0, kz)
    pf.stamp()
    zm(0, 0, 0)
    zm(0, 0, 1)
    seq = [(1, 1), (0, 1), (1, 0)]
    for n, (pd, ps) in enumerate(seq):
        for g in range(4):
            qwrite(pd, ps, g)
        zm(0, 0, 2 + n)
    a.lds(f"ds_write_b32 v{v_t[4]}, v{v_one}", "qw")
    zm(0, 0, 5)
    zm(0, 0, 6)
    zm(0, 0, 7)
    a.label(f"{name}_zsp")
    a(f"ds_read_b32 v{v_t[5]}, v{v_fa}")
    a("s_waitcnt lgkmcnt(0)")
    a.lg = []
    a(f"v_cmp_eq_u32 vcc, 0, v{v_t[5]}")
    a("s_nop 3")
    a(f"s_cbranch_vccnz {name}_zsp")
    RB = [acc[0][1], acc[1][0], acc[1][1]]
    for q in (1, 2, 3):
        for g in range(4):
            a.lds(f"ds_read_b128 {vr(RB[q - 1] + 4 * g, 4)}, v{v_t[q]} offset:{g * 1024}", f"q{q}")
    a.wait(lg="q1")
    for i in range(16):
        a(f"v_add_f32 v{acc[0][0] + i}, v{acc[0][0] + i}, v{RB[0] + i}")
    a.wait(lg="q3")
    for i in range(16):
        a(f"v_add_f32 v{RB[1] + i}, v{RB[1] + i}, v{RB[2] + i}")
    for g in range(4):
        for i in range(4 * g, 4 * g + 4):
            a(f"v_add_f32 v{acc[0][0] + i}, v{acc[0][0] + i}, v{RB[1] + i}")
        a.lds(f"ds_write_b128 v{t0}, {vr(acc[0][0] + 4 * g, 4)} offset:{12288 + g * 1024}", "o")
    a.wait(lg="all")
    if PROF:
        pf.stamp()
        pf.stamp(real=True)
        pf.dump(SRD_WS, 2, s_z, v_t[0], s_t0, 4)
    a("s_endpgm")


def gemm_part(a, V, S, name, s_w, v_lane, SRD_WD, SRD_WS, SRD_OUT, build_srds, pf):
    s_sp, s_dp, s_sw, s_dw = [S.alloc() for _ in range(4)]
    s_t0, s_t1, s_t2 = [S.alloc() for _ in range(3)]
    s_oh0, s_oh1, s_ow, s_ow2, s_m = [S.alloc() for _ in range(5)]
    v_n, v_h = V.alloc(), V.alloc()
    v_t = [V.alloc() for _ in range(8)]
    v_dl, v_dw = V.alloc(), V.alloc()
    v_rw = [V.alloc(), V.alloc()]
    v_xo = V.alloc()
    v_x = V.alloc(8, 4)
    acc = [[V.alloc(16, 4) for _ in range(2)] for _ in range(2)]
    HP = V.alloc(max(8 * R, 64), 4)
    HR = [HP + 8 * i for i in range(R)]
    WF = [V.alloc(8, 4), V.alloc(8, 4)]
    RB = [HP + 16 * i for i in range(4)]
    t0, t1, t2, t3, t4 = v_t[:5]

    a(f"s_setprio {B_PRIO}")
    tile_decode(a, s_sp, s_dp, s_t2)
    a(f"s_and_b32 s{s_sw}, s{s_w}, 1")
    a(f"s_lshr_b32 s{s_dw}, s{s_w}, 1")
    a(f"v_lshlrev_b32 v{v_dl}, 4, v{v_lane}")
    a(f"v_lshrrev_b32 v{t0}, 3, v{v_lane}")
    a(f"v_bfe_u32 v{t1}, v{v_lane}, 4, 1")
    a(f"v_lshlrev_b32 v{t1}, 2, v{t1}")
    a(f"v_and_b32 v{t2}, 7, v{v_lane}")
    a(f"v_xor_b32 v{t1}, v{t1}, v{t2}")
    a(f"v_lshlrev_b32 v{t1}, 4, v{t1}")
    a(f"v_lshl_add_u32 v{v_dw}, v{t0}, 10, v{t1}")
    a(f"s_mul_i32 s{s_oh0}, s{s_sp}, 224")
    a(f"s_mul_i32 s{s_t1}, s{s_w}, {NKB}")
    a(f"s_add_u32 s{s_oh0}, s{s_oh0}, s{s_t1}")
    a(f"s_mul_i32 s{s_t2}, s{s_sw}, 112")
    a(f"s_sub_u32 s{s_oh1}, s{s_oh0}, s{s_t2}")
    a(f"s_add_u32 s{s_oh1}, s{s_oh1}, 112")
    a(f"s_add_u32 s{s_oh0}, s{s_oh0}, s{s_t2}")
    a(f"s_lshl_b32 s{s_oh0}, s{s_oh0}, 10")
    a(f"s_lshl_b32 s{s_oh1}, s{s_oh1}, 10")
    a(f"s_lshl_b32 s{s_ow}, s{s_t1}, 14")
    a(f"s_lshl_b32 s{s_t1}, s{s_dp}, 7")
    a(f"s_add_u32 s{s_ow}, s{s_ow}, s{s_t1}")
    a(f"s_add_u32 s{s_ow2}, s{s_ow}, 8192")
    a(f"s_mul_i32 s{s_m}, s{s_w}, {R * 2048}")
    a(f"s_add_u32 s{s_m}, s{s_m}, {L_RING}")
    a("s_waitcnt lgkmcnt(0)")
    build_srds()
    a("s_barrier")

    def load_ops(i):
        sl = i % R
        tag = f"d{i}"

        def f0():
            a(f"s_add_u32 m0, s{s_m}, {sl * 2048}")
            a.vmem(f"buffer_load_dwordx4 {vr(HR[sl], 4)}, v{v_dl}, {sr(SRD_WS, 4)}, s{s_oh0} offen offset:{(i % 4) * 1024}", tag)

        def f1():
            a.vmem(f"buffer_load_dwordx4 v{v_dw}, {sr(SRD_WD, 4)}, s{s_ow} offen lds", tag)
            a(f"s_add_u32 m0, s{s_m}, {sl * 2048 + 1024}")
            a(f"s_add_u32 s{s_ow}, s{s_ow}, 16384")

        def f2():
            a.vmem(f"buffer_load_dwordx4 v{v_dw}, {sr(SRD_WD, 4)}, s{s_ow2} offen lds", tag)
            a(f"s_add_u32 s{s_ow2}, s{s_ow2}, 16384")

        def f3():
            a.vmem(f"buffer_load_dwordx4 {vr(HR[sl] + 4, 4)}, v{v_dl}, {sr(SRD_WS, 4)}, s{s_oh1} offen offset:{(i % 4) * 1024}", tag)
            if i % 4 == 3:
                a(f"s_add_u32 s{s_oh0}, s{s_oh0}, 4096")
                a(f"s_add_u32 s{s_oh1}, s{s_oh1}, 4096")
        return [f0, f1, f2, f3]

    for i in range(2):
        for f in load_ops(i):
            f()
    a(f"v_and_b32 v{v_n}, 31, v{v_lane}")
    a(f"v_lshrrev_b32 v{v_h}, 5, v{v_lane}")
    a(f"v_bfe_u32 v{t0}, v{v_lane}, 2, 2")
    a(f"v_and_b32 v{t1}, 3, v{v_lane}")
    a(f"v_bfe_u32 v{t2}, v{v_lane}, 4, 1")
    a(f"v_lshl_add_u32 v{t3}, v{v_h}, 2, v{t0}")
    a(f"v_lshlrev_b32 v{t3}, 7, v{t3}")
    a(f"v_lshrrev_b32 v{t0}, 1, v{t0}")
    a(f"v_xor_b32 v{t4}, s{s_dw}, v{t0}")
    a(f"v_lshl_add_u32 v{t4}, v{t4}, 6, v{t3}")
    a(f"v_add_u32 v{t4}, s{s_m}, v{t4}")
    a(f"v_and_b32 v{v_t[5]}, 1, v{t1}")
    a(f"v_lshl_add_u32 v{t4}, v{v_t[5]}, 5, v{t4}")
    a(f"v_lshl_add_u32 v{t4}, v{t2}, 4, v{t4}")
    a(f"v_lshrrev_b32 v{v_t[5]}, 1, v{t1}")
    a(f"v_lshl_add_u32 v{v_rw[0]}, v{v_t[5]}, 3, v{t4}")
    a(f"v_xor_b32 v{v_rw[1]}, 64, v{v_rw[0]}")
    for i in range(2, R - 1):
        for f in load_ops(i):
            f()
    out_addr(a, v_xo, v_n, v_h, s_sp, s_dp, s_sw, s_dw, s_t0, s_t1)
    a(f"v_add_u32 v{t0}, s{s_m}, v{v_dl}")
    for q in (1, 2, 3):
        a(f"s_xor_b32 s{s_t0}, s{s_w}, {q}")
        a(f"s_mul_i32 s{s_t0}, s{s_t0}, {R * 2048}")
        a(f"s_add_u32 s{s_t0}, s{s_t0}, {L_RING + (q - 1) * 4096}")
        a(f"v_add_u32 v{v_t[q]}, s{s_t0}, v{v_dl}")
    a(f"s_lshl_b32 s{s_t0}, s{s_w}, 14")
    a(f"s_add_u32 s{s_t0}, s{s_t0}, {L_Z + 12288}")
    a(f"v_add_u32 v{t4}, s{s_t0}, v{v_dl}")
    assert R * 2048 >= 12288

    def read_ops(i):
        b = (i % R) * 2048
        F = WF[i % 2]
        return [lambda tl=tl, e=e: a.lds(f"ds_read_b64_tr_b16 {vr(F + 4 * tl + 2 * e, 2)}, v{v_rw[tl]} offset:{b + e * 1024}", f"r{i}")
                for tl in range(2) for e in range(2)]

    QORD = ((1, 1), (0, 1), (1, 0), (0, 0))

    def mfma_ops(i):
        F = WF[i % 2]
        ops = []
        for dt, st in QORD:
            A = vr(acc[dt][st], 16)
            C = "0" if i == 0 else A
            ops.append(lambda A=A, C=C, dt=dt, st=st: a(
                f"v_mfma_f32_32x32x16_bf16 {A}, {vr(F + 4 * dt, 4)}, {vr(HR[i % R] + 4 * st, 4)}, {C}"))
        return ops

    pf.stamp()
    a.wait(vm="d0")
    for f in read_ops(0):
        f()
    for i in range(NKB):
        a.comment(f"k-step {i}")
        if i % 4 == 0:
            pf.stamp()
        if i + 1 < NKB:
            a.wait(vm=f"d{i + 1}", lg=f"r{i}")
            for f in read_ops(i + 1):
                f()
        else:
            a.wait(lg=f"r{i}")
        nxt = i + R - 1
        lo = load_ops(nxt) if nxt < NKB else []
        m = mfma_ops(i)
        for q in range(4):
            m[q]()
            if q < len(lo):
                lo[q]()
    pf.stamp()
    a("s_nop 7")
    for pd, ps in QORD[:3]:
        for g in range(4):
            a.lds(f"ds_write_b128 v{t0}, {vr(acc[pd][ps] + 4 * g, 4)} offset:{(2 * pd + ps - 1) * 4096 + g * 1024}", "qw")
    a.wait(lg="all")
    a("s_barrier")
    pf.stamp()
    for q in (0, 3, 1, 2):
        for g in range(4):
            a.lds(f"ds_read_b128 {vr(RB[q] + 4 * g, 4)}, v{v_t[q] if q else t4} offset:{g * 1024}", f"q{q}")
    A0 = acc[0][0]
    a.wait(lg="q0")
    for i in range(16):
        a(f"v_add_f32 v{A0 + i}, v{A0 + i}, v{RB[0] + i}")
    a.wait(lg="q1")
    for i in range(16):
        a(f"v_add_f32 v{RB[3] + i}, v{RB[3] + i}, v{RB[1] + i}")
    a.wait(lg="q2")
    for i in range(16):
        a(f"v_add_f32 v{A0 + i}, v{A0 + i}, v{RB[2] + i}")
    for hh in range(2):
        for i in range(8 * hh, 8 * hh + 8):
            a(f"v_add_f32 v{A0 + i}, v{A0 + i}, v{RB[3] + i}")
        for i in range(4 * hh, 4 * hh + 4):
            a(f"v_cvt_pk_bf16_f32 v{v_x + i}, v{A0 + 2 * i}, v{A0 + 2 * i + 1}")
        a(f"buffer_store_dwordx4 {vr(v_x + 4 * hh, 4)}, v{v_xo}, {sr(SRD_OUT, 4)}, 0 offen offset:{16 * hh}")
    if PROF:
        pf.stamp()
        a("s_waitcnt vmcnt(0)")
        pf.stamp()
        pf.stamp(real=True)
        pf.dump(SRD_WS, 2, s_w, v_t[0], s_t0, 4)


TOUCH_H = int(os.environ.get("TOUCH_H", "0"))
POLL_SLEEP = int(os.environ.get("POLL_SLEEP", "4"))
TOUCH_W = int(os.environ.get("TOUCH_W", "0"))


def gen_k23(name):
    import copy
    a = Asm()
    SRD_X, SRD_WD, SRD_WS, SRD_OUT, SRD_C = 4, 8, 12, 16, 20
    S = Regs(24, 102)
    s_p = S.alloc(12, 4)
    s_w = S.alloc()
    v_lane = 1
    a.label("k23_begin")
    a("s_cmp_ge_u32 s2, 256")
    a(f"s_cbranch_scc1 {name}_done")
    pfg = Prof(a, S, 18, 2)
    pfg.stamp(real=True)
    pfg.stamp()
    a(f"s_load_dwordx2 {sr(s_p + 2, 2)}, s[0:1], {KA_WS}")
    a(f"s_load_dwordx2 {sr(s_p, 2)}, s[0:1], {KA_X}")
    a(f"s_load_dwordx4 {sr(s_p + 4, 4)}, s[0:1], {KA_WD}")
    a(f"v_lshrrev_b32 v{v_lane}, 6, v0")
    a(f"s_getpc_b64 {sr(s_p + 8, 2)}")
    a(f"s_add_u32 s{s_p + 8}, s{s_p + 8}, ctab@rel32@lo+4")
    a(f"s_addc_u32 s{s_p + 9}, s{s_p + 9}, ctab@rel32@hi+12")
    a(f"v_readfirstlane_b32 s{s_w}, v{v_lane}")
    a(f"v_and_b32 v{v_lane}, 63, v0")
    a(f"s_cmp_lt_u32 s{s_w}, 4")
    a(f"s_cbranch_scc1 {name}_gemm")
    if FFT_PRIO:
        a(f"s_setprio {FFT_PRIO}")
    srd(a, SRD_C, s_p + 8, 24576)
    Sn = S.n
    V1 = Regs(2, 256)
    pff = copy.copy(pfg)
    pff.region = 1
    L = fft_part(a, V1, S, name, s_w, SRD_WS, SRD_C, v_lane, pff)
    srd(a, SRD_WS, s_p + 2, WS_SIZE)
    srd(a, SRD_X, s_p, 2048 * 1024)
    a(f"s_cmp_gt_u32 s{L['s_job']}, 256")
    a(f"s_cbranch_scc1 {name}_nojob")
    fft_main(L)
    a(f"s_branch {name}_zpart")
    a.label(f"{name}_nojob")
    if PROF:
        n = pff.n
        pff.n = 2
        while pff.n < n:
            pff.stamp()
    if TOUCH_H:
        sa, sb, vt = L["s_a"], L["s_b"], L["v_t"]
        a(f"s_and_b32 s{sa}, s2, 7")
        a(f"s_lshl_b32 s{sa}, s{sa}, 2")
        a(f"s_bfe_u32 s{sb}, s2, 0x20003")
        a(f"s_add_u32 s{sa}, s{sa}, s{sb}")
        a(f"s_mul_i32 s{sa}, s{sa}, {224 * 1024}")
        a(f"s_and_b32 s{sb}, s{s_w}, 1")
        a(f"s_mul_i32 s{sb}, s{sb}, {112 * 1024}")
        a(f"s_add_u32 s{sa}, s{sa}, s{sb}")
        a(f"s_lshr_b32 s{sb}, s2, 5")
        a(f"s_lshl_b32 s{sb}, s{sb}, 7")
        a(f"s_add_u32 s{sa}, s{sa}, s{sb}")
        a(f"v_lshrrev_b32 v{vt[0]}, 2, v{v_lane}")
        a(f"v_min_u32 v{vt[0]}, 13, v{vt[0]}")
        a(f"v_and_b32 v{vt[1]}, 3, v{v_lane}")
        a(f"v_mul_u32_u24 v{vt[1]}, 28, v{vt[1]}")
        a(f"v_add_u32 v{vt[0]}, v{vt[0]}, v{vt[1]}")
        a(f"v_lshlrev_b32 v{vt[0]}, 10, v{vt[0]}")
        a(f"buffer_load_dword v{vt[2]}, v{vt[0]}, {sr(SRD_WS, 4)}, s{sa} offen")
        a(f"s_add_u32 s{sa}, s{sa}, {14 * 1024}")
        a(f"buffer_load_dword v{vt[3]}, v{vt[0]}, {sr(SRD_WS, 4)}, s{sa} offen")
        a("s_waitcnt vmcnt(0)")
    if TOUCH_W:
        sa, sb, vt = L["s_a"], L["s_b"], L["v_t"]
        srd(a, SRD_WD, s_p + 4, 1792 * 1024)
        a(f"s_lshr_b32 s{sa}, s2, 5")
        a(f"s_lshl_b32 s{sa}, s{sa}, 7")
        a(f"s_bfe_u32 s{sb}, s2, 0x20003")
        a(f"s_lshl_b32 s{sb}, s{sb}, 10")
        a(f"s_add_u32 s{sa}, s{sa}, s{sb}")
        a(f"s_and_b32 s{sb}, s{s_w}, 1")
        a(f"s_add_u32 s{sb}, s{sb}, 1")
        a(f"s_lshl_b32 s{sb}, s{sb}, 16")
        a(f"s_add_u32 s{sa}, s{sa}, s{sb}")
        a(f"v_and_b32 v{vt[1]}, 3, v{v_lane}")
        a(f"v_mul_u32_u24 v{vt[1]}, 448, v{vt[1]}")
        a(f"v_and_b32 v{vt[0]}, 60, v{v_lane}")
        a(f"v_add_u32 v{vt[0]}, v{vt[0]}, v{vt[1]}")
        a(f"v_lshlrev_b32 v{vt[0]}, 10, v{vt[0]}")
        for j in range(3):
            a(f"buffer_load_dword v{vt[2 + j]}, v{vt[0]}, {sr(SRD_WD, 4)}, s{sa} offen")
            a(f"s_add_u32 s{sa}, s{sa}, {128 * 1024}")
            if TOUCH_W == 2:
                a("s_waitcnt vmcnt(0)")
        a("s_waitcnt vmcnt(0)")
    a.label(f"{name}_zpart")
    a.vm, a.lg = [], []
    S.n = Sn
    V3 = Regs(2, 256)
    z_part(a, V3, S, name, s_w, v_lane, SRD_X, SRD_WS, pff)
    a.label(f"{name}_gemm")
    a.vm, a.lg = [], []
    S.n = Sn
    V2 = Regs(2, 256)

    def build_srds():
        srd(a, SRD_WS, s_p + 2, WS_SIZE)
        srd(a, SRD_WD, s_p + 4, 1792 * 1024)
        srd(a, SRD_OUT, s_p + 6, 2048 * 1024)
    gemm_part(a, V2, S, name, s_w, v_lane, SRD_WD, SRD_WS, SRD_OUT, build_srds, pfg)
    a.label(f"{name}_done")
    a("s_endpgm")
    a.label("k23_end")
    launch = f"; @launch kernel={name} grid=(256,1,1) block=(512,1,1) lds={K23_LDS}"
    return kernel_header(name) + a.text(), kernel_desc(name, max(V1.hi, V2.hi, V3.hi), 102), gen_ctab(), launch
```

```python
from gen_common import *

K1_LDS_X = 0
K1_LDS_G = 65536
K1_LDS_U = 114688
K1_LDS = 163840
K1_LDS_ST = K1_LDS_G + 2 * 16384
K1_LDS_CS = K1_LDS_ST + 8192
NSTAGE = 8
WS_ST = 15 << 20
SPIN_MAX = 1 << 14
SF = int(os.environ.get('K1_SF', '3'))
WT = os.environ.get("K1_WT", " sc1")
WTH = os.environ.get("K1_WTH", " sc1")
TOUCH_WD = int(os.environ.get("TOUCH_WD", "2"))
TOUCH = int(os.environ.get("TOUCH", "0"))
TOUCH_NEXT = int(os.environ.get("TOUCH_NEXT", "1"))
TLB_WARM = int(os.environ.get("TLB_WARM", "0"))
SENT = int(os.environ.get("SENT", "-1"))
WDST = int(os.environ.get("WDST", "3"))
WDN = int(os.environ.get("WDN", "1"))
G0S = int(os.environ.get("G0S", "4"))
GSTEP = int(os.environ.get("GSTEP", "0"))
XRS = int(os.environ.get("XRS", "-1"))
MAP = int(os.environ.get("MAP", "0"))
PBAR = int(os.environ.get("PBAR", "2"))
TLEAD = int(os.environ.get("TLEAD", "0"))
TEARLY = int(os.environ.get("TEARLY", "0"))


WS_FL = WS_ST + 65536
F_LF = K1_LDS_ST + 12288


def gen_k1(name, fused=False):
    global G0S, TOUCH_NEXT
    if fused:
        G0S = -1
    a = Asm()
    V = Regs(1, 256)
    S = Regs(40, 102)
    SRD_X, SRD_G, SRD_U, SRD_WS, SRD_WR, SRD_WI, SRD_WD, SRD_T, SRD_D = 4, 8, 12, 16, 20, 24, 28, 32, 36
    s_rb, s_cg, s_w, s_mi, s_ni, s_rs, s_goff, s_uoff = [S.alloc() for _ in range(8)]
    s_t0, s_t1, s_t2, s_t3 = [S.alloc() for _ in range(4)]
    s_sx, s_sw, s_sw2, s_rs4, s_rs64, s_m0x, s_tile = [S.alloc() for _ in range(7)]
    s_p = S.alloc(16, 4)
    s_tab = S.alloc(2, 2)

    v_lane, v_n, v_h = V.alloc(), V.alloc(), V.alloc()
    v_t = [V.alloc() for _ in range(8)]
    v_dx = [V.alloc(), V.alloc()]
    v_dg, v_du = V.alloc(), V.alloc()
    v_xa = [V.alloc() for _ in range(4)]
    v_xs = V.alloc()
    v_wa = [V.alloc(), V.alloc()]
    v_st = [V.alloc(2, 2), V.alloc(2, 2)]
    v_f1a, v_f1s, v_f2a, v_f2s = [V.alloc() for _ in range(4)]
    v_pa = [V.alloc() for _ in range(3)]
    v_f1 = V.alloc(4, 4)
    v_f2 = V.alloc(4, 4)
    v_fi = V.alloc(8, 4)
    v_cs = [V.alloc(4, 4), V.alloc(4, 4)]
    v_sel = V.alloc(4, 4)
    v_XS = [V.alloc(4, 4) for _ in range(2)]
    v_X = [[V.alloc(4, 4) for _ in range(2)] for _ in range(2)]
    v_W = [[V.alloc(4, 4) for _ in range(2)] for _ in range(2)]
    v_acc = [[V.alloc(16, 4) for _ in range(2)] for _ in range(2)]
    v_e = V.alloc(16, 4)
    v_FA = [V.alloc(4, 4) for _ in range(2)]
    v_FB = [V.alloc(4, 4) for _ in range(2)]
    v_cso = V.alloc()
    v_sn = V.alloc(4, 4)
    t0, t1, t2, t3, t4 = v_t[:5]
    u0, u1, u2, u3 = v_t[4:8]

    pf = Prof(a, S, 12, 0)
    a("s_cmp_ge_u32 s2, 256")
    a(f"s_cbranch_scc1 {name}_done")
    pf.stamp(real=True)
    pf.stamp()
    a(f"s_load_dwordx2 {sr(s_p, 2)}, s[0:1], {KA_X}")
    a(f"s_load_dwordx4 {sr(s_p + 4, 4)}, s[0:1], {KA_WG}")
    a(f"s_load_dwordx2 {sr(s_p + 2, 2)}, s[0:1], {KA_WS}")
    a(f"s_load_dwordx4 {sr(s_p + 8, 4)}, s[0:1], {KA_WR}")
    a(f"s_load_dwordx4 {sr(s_p + 12, 4)}, s[0:1], {KA_WD}")
    a(f"s_load_dwordx2 {sr(SRD_D, 2)}, s[0:1], {KA_DBG}")
    s_out = s_p + 14
    a(f"v_lshrrev_b32 v{t0}, 6, v0")
    a(f"v_and_b32 v{v_lane}, 63, v0")
    a(f"v_readfirstlane_b32 s{s_w}, v{t0}")
    if MAP == 0:
        a(f"s_bfe_u32 s{s_rb}, s2, 0x10002")
        a(f"s_lshl_b32 s{s_rb}, s{s_rb}, 3")
        a(f"s_bfe_u32 s{s_t2}, s2, 0x30003")
        a(f"s_add_u32 s{s_rb}, s{s_rb}, s{s_t2}")
        a(f"s_and_b32 s{s_cg}, s2, 3")
        a(f"s_lshl_b32 s{s_cg}, s{s_cg}, 2")
        a(f"s_lshr_b32 s{s_t2}, s2, 6")
        a(f"s_add_u32 s{s_cg}, s{s_cg}, s{s_t2}")
    elif MAP == 1:
        a(f"s_and_b32 s{s_rb}, s2, 7")
        a(f"s_lshl_b32 s{s_rb}, s{s_rb}, 1")
        a(f"s_bfe_u32 s{s_t2}, s2, 0x10003")
        a(f"s_add_u32 s{s_rb}, s{s_rb}, s{s_t2}")
        a(f"s_lshr_b32 s{s_cg}, s2, 4")
    else:
        a(f"s_bfe_u32 s{s_rb}, s2, 0x20001")
        a(f"s_lshl_b32 s{s_rb}, s{s_rb}, 2")
        a(f"s_bfe_u32 s{s_t2}, s2, 0x20003")
        a(f"s_add_u32 s{s_rb}, s{s_rb}, s{s_t2}")
        a(f"s_and_b32 s{s_cg}, s2, 1")
        a(f"s_lshl_b32 s{s_cg}, s{s_cg}, 3")
        a(f"s_lshr_b32 s{s_t2}, s2, 5")
        a(f"s_add_u32 s{s_cg}, s{s_cg}, s{s_t2}")
    a(f"s_sub_u32 s{s_t0}, s{s_cg}, 14")
    a(f"s_lshl_b32 s{s_t0}, s{s_t0}, 9")
    a(f"s_add_u32 s{s_t1}, s{s_t0}, 256")
    a(f"s_lshl_b32 s{s_t2}, s{s_cg}, 8")
    a(f"s_movk_i32 s{s_rs}, 3584")
    a(f"s_cmp_ge_u32 s{s_cg}, 14")
    a(f"s_cselect_b32 s{s_rs}, 1024, s{s_rs}")
    a(f"s_cselect_b32 s{s_goff}, s{s_t0}, s{s_t2}")
    a(f"s_cselect_b32 s{s_uoff}, s{s_t1}, s{s_t2}")
    a(f"s_lshl_b32 s{s_rs4}, s{s_rs}, 2")
    a(f"s_lshl_b32 s{s_rs64}, s{s_rs}, 6")
    a(f"s_getpc_b64 {sr(s_tab, 2)}")
    a(f"s_add_u32 s{s_tab}, s{s_tab}, ftab@rel32@lo+4")
    a(f"s_addc_u32 s{s_tab + 1}, s{s_tab + 1}, ftab@rel32@hi+12")

    a(f"v_lshrrev_b32 v{t0}, 3, v{v_lane}")
    a(f"v_and_b32 v{t1}, 7, v{v_lane}")
    a(f"v_lshrrev_b32 v{t2}, 4, v{v_lane}")
    a(f"v_xor_b32 v{t1}, v{t1}, v{t2}")
    a(f"v_lshlrev_b32 v{t1}, 4, v{t1}")
    a(f"v_lshl_add_u32 v{t1}, v{t0}, 16, v{t1}")
    a(f"s_and_b32 s{s_t0}, s{s_w}, 1")
    a(f"s_lshl_b32 s{s_t0}, s{s_t0}, 20")
    a(f"s_lshr_b32 s{s_t1}, s{s_w}, 1")
    a(f"s_lshl_b32 s{s_t1}, s{s_t1}, 10")
    a(f"s_add_u32 s{s_t0}, s{s_t0}, s{s_t1}")
    a(f"s_lshl_b32 s{s_t1}, s{s_rb}, 12")
    a(f"s_add_u32 s{s_t0}, s{s_t0}, s{s_t1}")
    a(f"v_add_u32 v{v_dx[0]}, s{s_t0}, v{t1}")
    a(f"v_xor_b32 v{t1}, 0x80040, v{t1}")
    a(f"v_add_u32 v{v_dx[1]}, s{s_t0}, v{t1}")
    a(f"v_lshlrev_b32 v{t3}, 6, v{t2}")
    a(f"v_and_b32 v{t1}, 15, v{v_lane}")
    a(f"v_lshlrev_b32 v{t1}, 4, v{t1}")
    a(f"v_xor_b32 v{t1}, v{t1}, v{t3}")
    a(f"s_lshl_b32 s{s_t0}, s{s_w}, 3")
    a(f"v_add_u32 v{t0}, s{s_t0}, v{t2}")
    a(f"v_mul_lo_u32 v{t0}, v{t0}, s{s_rs}")
    a(f"v_add3_u32 v{v_dg}, v{t0}, v{t1}, s{s_goff}")
    a(f"v_xor_b32 v{t1}, 32, v{t1}")
    a(f"v_add3_u32 v{v_du}, v{t0}, v{t1}, s{s_uoff}")
    a(f"s_lshl_b32 s{s_m0x}, s{s_w}, 11")
    a(f"s_lshl_b32 s{s_t0}, s{s_cg}, 3")
    a(f"s_add_u32 s{s_t0}, s{s_t0}, s{s_w}")
    a(f"s_and_b32 s{s_t1}, s{s_t0}, 31")
    a(f"s_lshl_b32 s{s_t1}, s{s_t1}, 16")
    a(f"s_lshr_b32 s{s_t0}, s{s_t0}, 5")
    a(f"s_lshl_b32 s{s_t0}, s{s_t0}, 10")
    a(f"s_add_u32 s{s_t1}, s{s_t1}, s{s_t0}")
    a(f"s_lshl_b32 s{s_t0}, s{s_rb}, 12")
    a(f"s_add_u32 s{s_t3}, s{s_t1}, s{s_t0}")
    a(f"v_lshlrev_b32 v{t1}, 4, v{v_lane}")
    a(f"s_mov_b32 s{s_sx}, 0")
    a(f"s_mov_b32 s{s_sw}, 0")
    a(f"s_mov_b32 s{SRD_X + 2}, {2048 * 1024}")
    a(f"s_mov_b32 s{SRD_X + 3}, 0x00020000")
    a(f"s_mov_b32 s{SRD_G + 3}, 0x00020000")
    a(f"s_mov_b32 s{SRD_U + 3}, 0x00020000")
    a(f"s_lshl_b32 s{SRD_G + 2}, s{s_rs}, 9")
    a(f"s_lshl_b32 s{SRD_U + 2}, s{s_rs}, 9")
    if PROF == 3:
        pf.stamp()
    a("s_waitcnt lgkmcnt(0)")
    if PROF == 3:
        pf.stamp()
    a(f"s_mov_b32 s{SRD_X}, s{s_p}")
    a(f"s_and_b32 s{SRD_X + 1}, s{s_p + 1}, 0xffff")
    a(f"s_cmp_ge_u32 s{s_cg}, 14")
    a(f"s_cselect_b32 s{SRD_G}, s{s_tab}, s{s_p + 4}")
    a(f"s_cselect_b32 s{SRD_G + 1}, s{s_tab + 1}, s{s_p + 5}")
    a(f"s_cselect_b32 s{SRD_U}, s{s_tab}, s{s_p + 6}")
    a(f"s_cselect_b32 s{SRD_U + 1}, s{s_tab + 1}, s{s_p + 7}")
    a(f"s_and_b32 s{SRD_G + 1}, s{SRD_G + 1}, 0xffff")
    a(f"s_and_b32 s{SRD_U + 1}, s{SRD_U + 1}, 0xffff")

    def mk(ldsbase, vaddr, srdn, soff, mid, tag, post=None):
        def f():
            a(f"s_add_u32 m0, s{s_m0x}, {ldsbase}")
            a(mid)
            a.vmem(f"buffer_load_dwordx4 v{vaddr}, {sr(srdn, 4)}, s{soff} offen lds", tag)
            if post:
                a(post)
        return f

    def dma_x(stage):
        b = K1_LDS_X + (stage % 4) * 16384
        return [mk(b, v_dx[0], SRD_X, s_sx, "s_nop 0", f"x{stage}"),
                mk(b + 1024, v_dx[1], SRD_X, s_sx, "s_nop 0", f"x{stage}", post=f"s_add_u32 s{s_sx}, s{s_sx}, 128")]

    def dma_w(stage):
        b = (stage % 3) * 16384
        tag = f"w{stage}"
        return [mk(K1_LDS_G + b, v_dg, SRD_G, s_sw, f"s_add_u32 s{s_sw2}, s{s_sw}, s{s_rs4}", tag),
                mk(K1_LDS_U + b, v_du, SRD_U, s_sw, "s_nop 0", tag),
                mk(K1_LDS_G + b + 1024, v_dg, SRD_G, s_sw2, f"s_add_u32 s{s_sw}, s{s_sw}, s{s_rs64}", tag),
                mk(K1_LDS_U + b + 1024, v_du, SRD_U, s_sw2, "s_nop 0", tag)]

    for f in dma_x(0) + dma_w(0):
        f()
    if PROF == 3:
        pf.stamp()
    XR = v_XS[0]
    a(f"v_add_u32 v{v_xs}, s{s_t3}, v{t1}")

    def xr_load():
        a.vmem(f"buffer_load_dwordx4 {vr(XR, 4)}, v{v_xs}, {sr(SRD_X, 4)}, 0 offen", "xr")
    s_tpar, s_toff, s_tstep = s_tab, s_tab + 1, s_p

    def touch_setup():
        a(f"v_and_b32 v{u0}, 15, v{v_lane}")
        a(f"s_cmp_ge_u32 s{s_w}, 4")
        a(f"s_cbranch_scc1 {name}_tx")
        a(f"s_and_b32 s{s_tpar}, s{s_w}, 1")
        a(f"s_and_b32 s{s_t1}, s{s_rb}, 7")
        a(f"v_lshrrev_b32 v{u1}, 1, v{u0}")
        a(f"v_lshl_add_u32 v{u1}, v{u1}, 3, s{s_t1}")
        a(f"v_mul_lo_u32 v{u1}, v{u1}, s{s_rs}")
        a(f"v_and_b32 v{u0}, 1, v{u0}")
        a(f"v_lshl_add_u32 v{v_pa[2]}, v{u0}, 7, v{u1}")
        a(f"s_cmp_ge_u32 s{s_w}, 2")
        a(f"s_cselect_b32 s{s_toff}, s{s_uoff}, s{s_goff}")
        a(f"s_cselect_b32 s{SRD_T}, s{SRD_U}, s{SRD_G}")
        a(f"s_cselect_b32 s{SRD_T + 1}, s{SRD_U + 1}, s{SRD_G + 1}")
        a(f"s_mov_b32 s{SRD_T + 2}, s{SRD_G + 2}")
        a(f"s_mov_b32 s{s_tstep}, s{s_rs64}")
        a(f"s_branch {name}_tj")
        a.label(f"{name}_tx")
        a(f"s_bfe_u32 s{s_tpar}, s{s_w}, 0x10001")
        a(f"s_and_b32 s{s_toff}, s{s_w}, 1")
        a(f"s_lshl_b32 s{s_toff}, s{s_toff}, 20")
        a(f"s_and_b32 s{s_t1}, s{s_cg}, 3")
        a(f"s_lshl_b32 s{s_t1}, s{s_t1}, 10")
        a(f"s_add_u32 s{s_toff}, s{s_toff}, s{s_t1}")
        a(f"s_lshl_b32 s{s_t1}, s{s_rb}, 12")
        a(f"s_add_u32 s{s_toff}, s{s_toff}, s{s_t1}")
        a(f"v_lshlrev_b32 v{v_pa[2]}, 16, v{u0}")
        a(f"s_mov_b32 s{SRD_T}, s{SRD_X}")
        a(f"s_mov_b32 s{SRD_T + 1}, s{SRD_X + 1}")
        a(f"s_mov_b32 s{SRD_T + 2}, s{SRD_X + 2}")
        a(f"s_movk_i32 s{s_tstep}, 128")
        a.label(f"{name}_tj")
        a(f"s_mov_b32 s{SRD_T + 3}, 0x00020000")
        a(f"s_add_u32 s{s_t1}, s{s_tpar}, 2")
        a(f"s_mul_i32 s{s_t1}, s{s_t1}, s{s_tstep}")
        a(f"s_add_u32 s{s_toff}, s{s_toff}, s{s_t1}")
        a(f"s_lshl_b32 s{s_tstep}, s{s_tstep}, 1")

    def touch(stage):
        if stage is not None:
            a(f"s_cmp_lg_u32 s{s_tpar}, {stage & 1}")
            a(f"s_cbranch_scc1 {name}_tn{stage}")
        a(f"buffer_load_dword v{v_pa[1]}, v{v_pa[2]}, {sr(SRD_T, 4)}, s{s_toff} offen")
        a(f"s_add_u32 s{s_toff}, s{s_toff}, s{s_tstep}")
        if stage is not None:
            a.label(f"{name}_tn{stage}")
    if TOUCH and TEARLY:
        touch_setup()
    if PBAR >= 1:
        a("s_barrier")
        if TOUCH and TEARLY:
            touch(None)
    elif XRS < 0:
        xr_load()
    a(f"v_and_b32 v{v_n}, 31, v{v_lane}")
    a(f"v_lshrrev_b32 v{v_h}, 5, v{v_lane}")
    a(f"s_and_b32 s{s_mi}, s{s_w}, 3")
    a(f"s_lshr_b32 s{s_ni}, s{s_w}, 2")
    d1 = dma_x(1) + dma_w(1) + dma_x(2)
    a(f"v_bfe_u32 v{t0}, v{v_n}, 1, 3")
    a(f"v_xor_b32 v{t0}, v{t0}, v{v_h}")
    a(f"s_lshl_b32 s{s_t0}, s{s_ni}, 13")
    a(f"v_lshlrev_b32 v{t1}, 7, v{v_n}")
    a(f"v_add_u32 v{t1}, s{s_t0}, v{t1}")
    a(f"v_lshl_add_u32 v{v_xa[0]}, v{t0}, 4, v{t1}")
    d1[0]()
    for j in range(1, 4):
        a(f"v_xor_b32 v{v_xa[j]}, {32 * j}, v{v_xa[0]}")
    d1[1]()
    a(f"v_bfe_u32 v{t2}, v{v_lane}, 4, 1")
    a(f"v_bfe_u32 v{t3}, v{v_lane}, 2, 2")
    a(f"v_lshl_add_u32 v{t4}, v{t3}, 1, v{t2}")
    a(f"s_lshl_b32 s{s_tile}, s{s_mi}, 1")
    a(f"s_add_u32 s{s_tile}, s{s_tile}, s{s_ni}")
    a(f"v_xor_b32 v{t4}, s{s_tile}, v{t4}")
    d1[2]()
    a(f"v_lshlrev_b32 v{t4}, 5, v{t4}")
    a(f"v_lshl_add_u32 v{t4}, v{t3}, 8, v{t4}")
    a(f"v_and_b32 v{t3}, 3, v{v_lane}")
    a(f"v_lshl_add_u32 v{t4}, v{t3}, 3, v{t4}")
    a(f"v_lshl_add_u32 v{t4}, v{v_h}, 11, v{t4}")
    d1[3]()
    a(f"v_mul_u32_u24 v{t2}, {K1_LDS_U - K1_LDS_G}, v{t2}")
    a(f"v_add_u32 v{t4}, v{t4}, v{t2}")
    a(f"v_add_u32 v{v_wa[0]}, {K1_LDS_G}, v{t4}")
    a(f"v_xor_b32 v{v_wa[1]}, 32, v{v_wa[0]}")
    d1[4]()
    a(f"v_bfe_u32 v{t2}, v{v_lane}, 4, 1")
    a(f"v_cmp_eq_u32 vcc, v{t3}, v{t2}")
    a(f"v_mov_b32 v{t2}, 0x3f803f80")
    a(f"v_mov_b32 v{t3}, 0")
    d1[5]()
    for i in range(4):
        a(f"v_cndmask_b32 v{v_sel + i}, v{t3}, v{t2}, vcc")
    if PBAR >= 2:
        a("s_barrier")
    if PBAR >= 1 and XRS < 0:
        xr_load()
    d1[6]()
    d1[7]()

    if TOUCH and not TEARLY:
        touch_setup()
        touch(None)
    srd(a, SRD_WS, s_p + 2, WS_SIZE)
    srd(a, SRD_WR, s_p + 8, 2048 * 514)
    srd(a, SRD_WI, s_p + 10, 2048 * 514)
    srd(a, SRD_WD, s_p + 12, 1792 * 1024)
    srd(a, SRD_D, SRD_D, 256)
    s_non = s_p + 4
    a(f"s_or_b32 s{s_t0}, s{s_w}, s2")
    a(f"s_cmp_lg_u32 s{s_t0}, 0")
    a(f"s_cbranch_scc1 {name}_nonon")
    a(f"s_memrealtime {sr(s_non, 2)}")
    a("s_waitcnt lgkmcnt(0)")
    a(f"s_or_b32 s{s_non}, s{s_non}, 1")
    a(f"v_mov_b32 v{t0}, s{s_non}")
    a(f"v_mov_b32 v{t1}, 0")
    a("s_mov_b64 exec, 1")
    a(f"buffer_store_dword v{t0}, v{t1}, {sr(SRD_D, 4)}, 0 offen sc1")
    a("s_mov_b64 exec, -1")
    a.label(f"{name}_nonon")

    side = {}

    def lines(txt):
        return [lambda l=l: a(l) for l in txt.strip().split("\n")]
    job = lines(f"""
v_lshrrev_b32 v{u0}, 3, v{v_lane}
v_and_b32 v{u1}, 7, v{v_lane}
s_and_b32 s{s_t0}, s2, 3
s_lshl_b32 s{s_t0}, s{s_t0}, 3
s_add_u32 s{s_t0}, s{s_t0}, s{s_w}
s_lshl_b32 s{s_t0}, s{s_t0}, 3
v_add_u32 v{u1}, s{s_t0}, v{u1}
s_lshr_b32 s{s_t1}, s2, 2
s_and_b32 s{s_t1}, s{s_t1}, 3
s_lshr_b32 s{s_t2}, s2, 4
v_lshrrev_b32 v{u2}, 2, v{u0}
v_lshlrev_b32 v{u2}, 4, v{u2}
v_and_b32 v{u3}, 3, v{u0}
v_add_u32 v{u2}, v{u2}, v{u3}
s_lshl_b32 s{s_t3}, s{s_t1}, 2
v_add_u32 v{u2}, s{s_t3}, v{u2}
s_lshl_b32 s{s_t3}, s{s_t2}, 7
v_add_u32 v{u2}, s{s_t3}, v{u2}
v_mul_u32_u24 v{u2}, 514, v{u2}
v_lshl_add_u32 v{v_f1a}, v{u1}, 1, v{u2}
v_add_u32 v{v_f2a}, 512, v{u2}
s_lshl_b32 s{s_t3}, s{s_t2}, 9
s_lshl_b32 s{s_t1}, s{s_t1}, 7
s_add_u32 s{s_t3}, s{s_t3}, s{s_t1}
s_add_u32 s{s_t3}, s{s_t3}, {WS_W}
v_lshl_add_u32 v{u0}, v{u0}, 4, s{s_t3}
v_lshl_add_u32 v{v_f1s}, v{u1}, 13, v{u0}
v_add_u32 v{v_f2s}, {256 * 8192}, v{u0}
""")
    addr_job = job

    def gl(dst, va, srdn, i):
        def f():
            a(f"s_mov_b32 s{s_t0}, {i * 32 * 514}")
            a.vmem(f"buffer_load_ushort v{dst}, v{va}, {sr(srdn, 4)}, s{s_t0} offen", "f1")
        return f
    job = []
    for i in range(4):
        job.append(gl(v_f1 + i, v_f1a, SRD_WR, i))
        job.append(gl(v_fi + i, v_f1a, SRD_WI, i))
    gath = job
    side[6] = []

    def c256_test(lbl):
        a(f"s_and_b32 s{s_t0}, s2, 3")
        a(f"s_lshl_b32 s{s_t0}, s{s_t0}, 3")
        a(f"s_add_u32 s{s_t0}, s{s_t0}, s{s_w}")
        a(f"s_cmp_lg_u32 s{s_t0}, 31")
        a(f"s_cbranch_scc1 {name}_{lbl}")

    def col256_load():
        c256_test("c256a")
        for i in range(4):
            a(f"s_mov_b32 s{s_t0}, {i * 32 * 514}")
            a(f"buffer_load_ushort v{v_f2 + i}, v{v_f2a}, {sr(SRD_WR, 4)}, s{s_t0} offen")
            a(f"buffer_load_ushort v{v_fi + 4 + i}, v{v_f2a}, {sr(SRD_WI, 4)}, s{s_t0} offen")
        a.label(f"{name}_c256a")

    def side_store():
        a.wait(vm="f1")
        for i in range(4):
            a(f"v_lshl_or_b32 v{v_f1 + i}, v{v_fi + i}, 16, v{v_f1 + i}")
        a.vmem(f"buffer_store_dwordx4 {vr(v_f1, 4)}, v{v_f1s}, {sr(SRD_WS, 4)}, 0 offen{WT}", "st")
        c256_test("c256b")
        for i in range(4):
            a(f"v_lshl_or_b32 v{v_f2 + i}, v{v_fi + 4 + i}, 16, v{v_f2 + i}")
        a(f"buffer_store_dwordx4 {vr(v_f2, 4)}, v{v_f2s}, {sr(SRD_WS, 4)}, 0 offen{WT}")
        a.label(f"{name}_c256b")

    def wd_job(part, nparts):
        def f():
            if TOUCH_WD == 1:
                per = 56 // nparts
                a(f"s_lshr_b32 s{s_t0}, s2, 3")
                a(f"s_lshl_b32 s{s_t0}, s{s_t0}, 3")
                a(f"s_add_u32 s{s_t0}, s{s_t0}, s{s_w}")
                a(f"s_mul_i32 s{s_t0}, s{s_t0}, {per * 128}")
                a(f"s_add_u32 s{s_t0}, s{s_t0}, {part * 256 * per * 128}")
                a(f"v_min_u32 v{u3}, {per - 1}, v{v_lane}")
            else:
                a(f"s_lshl_b32 s{s_t0}, s2, 3")
                a(f"s_add_u32 s{s_t0}, s{s_t0}, s{s_w}")
                a(f"s_mul_i32 s{s_t0}, s{s_t0}, {7 * 128}")
                a(f"v_min_u32 v{u3}, 6, v{v_lane}")
            a(f"v_lshlrev_b32 v{u3}, 7, v{u3}")
            a.vmem(f"buffer_load_dword v{v_pa[1]}, v{u3}, {sr(SRD_WD, 4)}, s{s_t0} offen", "pf")
        return f
    def flag_init():
        a(f"s_lshl_b32 s{s_t0}, s2, 3")
        a(f"s_add_u32 s{s_t0}, s{s_t0}, s{s_w}")
        a(f"s_lshl_b32 s{s_t0}, s{s_t0}, 10")
        a(f"s_add_u32 s{s_t0}, s{s_t0}, {WS_Z}")
        a(f"v_lshlrev_b32 v{u3}, 4, v{v_lane}")
        for i in range(4):
            a(f"v_mov_b32 v{v_sn + i}, -1")
        a.vmem(f"buffer_store_dwordx4 {vr(v_sn, 4)}, v{u3}, {sr(SRD_WS, 4)}, s{s_t0} offen sc1", "st")
    def touch_next():
        a(f"s_cmp_ge_u32 s2, 8")
        a(f"s_cbranch_scc1 {name}_notn")
        a(f"s_getpc_b64 {sr(SRD_T, 2)}")
        a(f"s_add_u32 s{SRD_T}, s{SRD_T}, ctab@rel32@lo+4")
        a(f"s_addc_u32 s{SRD_T + 1}, s{SRD_T + 1}, ctab@rel32@hi+12")
        a(f"s_mov_b32 s{SRD_T + 2}, 24576")
        a(f"s_lshl_b32 s{s_t0}, s{s_w}, 13")
        a(f"s_cmp_lt_u32 s{s_w}, 3")
        a(f"s_cbranch_scc1 {name}_tnc")
        a(f"s_getpc_b64 {sr(SRD_T, 2)}")
        a(f"s_add_u32 s{SRD_T}, s{SRD_T}, k23_begin@rel32@lo+4")
        a(f"s_addc_u32 s{SRD_T + 1}, s{SRD_T + 1}, k23_begin@rel32@hi+12")
        a(f"s_mov_b32 s{SRD_T + 2}, k23_end-k23_begin")
        a(f"s_sub_u32 s{s_t0}, s{s_t0}, {3 * 8192}")
        a.label(f"{name}_tnc")
        a(f"s_and_b32 s{SRD_T + 1}, s{SRD_T + 1}, 0xffff")
        a(f"s_mov_b32 s{SRD_T + 3}, 0x00020000")
        a(f"v_lshlrev_b32 v{u3}, 7, v{v_lane}")
        a(f"buffer_load_dword v{v_pa[1]}, v{u3}, {sr(SRD_T, 4)}, s{s_t0} offen")
        a.label(f"{name}_notn")

    def tlb_warm():
        a(f"v_min_u32 v{u3}, 7, v{v_lane}")
        a(f"v_lshlrev_b32 v{u3}, 21, v{u3}")
        a(f"s_cmp_lg_u32 s{s_w}, 7")
        a(f"s_cbranch_scc1 {name}_notlb")
        a(f"buffer_load_dword v{v_pa[1]}, v{u3}, {sr(SRD_WS, 4)}, 0 offen")
        a(f"buffer_load_dword v{v_pa[0]}, v{u3}, {sr(SRD_WR, 4)}, 0 offen")
        a(f"buffer_load_dword v{v_pa[2]}, v{u3}, {sr(SRD_WI, 4)}, 0 offen")
        a.label(f"{name}_notlb")
    if TOUCH:
        for st in range(4):
            side[st] = [lambda st=st: touch(st + 4)] + [lambda: None] * 3 + side.get(st, [])

    def read_ops(stage, j):
        bw = (stage % 3) * 16384 + j * 4096
        bx = (stage % 4) * 16384
        ops = []
        tag = f"r{stage}_{j}"
        for mt in range(2):
            for e in range(2):
                ops.append(lambda mt=mt, e=e: a.lds(
                    f"ds_read_b64_tr_b16 {vr(v_W[j % 2][mt] + 2 * e, 2)}, v{v_wa[mt]} offset:{bw + e * 1024}", tag))
            ops.append(lambda nt=mt: a.lds(
                f"ds_read_b128 {vr(v_X[j % 2][nt], 4)}, v{v_xa[j]} offset:{bx + nt * 4096}", tag))
        return ops

    def allreduce(v, t):
        return lines(f"""
s_nop 1
v_add_f32_dpp v{v}, v{v}, v{v} quad_perm:[1,0,3,2] row_mask:0xf bank_mask:0xf
s_nop 1
v_add_f32_dpp v{v}, v{v}, v{v} quad_perm:[2,3,0,1] row_mask:0xf bank_mask:0xf
s_nop 1
v_add_f32_dpp v{v}, v{v}, v{v} row_half_mirror row_mask:0xf bank_mask:0xf
s_nop 1
v_add_f32_dpp v{v}, v{v}, v{v} row_mirror row_mask:0xf bank_mask:0xf
v_mov_b32 v{t}, v{v}
s_nop 1
v_permlane16_swap_b32 v{v}, v{t}
v_add_f32 v{v}, v{v}, v{t}
v_mov_b32 v{t}, v{v}
s_nop 1
v_permlane32_swap_b32 v{v}, v{t}
v_add_f32 v{v}, v{v}, v{t}
""")
    el = [v_e + i for i in range(8)]
    m_, mb, dl, tt = v_t[:4]
    so0, so1 = v_st[0], v_st[0] + 1
    rowst = [lambda: a.wait(vm="xr")]
    for d in range(4):
        rowst += lines(f"v_lshlrev_b32 v{el[2 * d]}, 16, v{XR + d}\nv_and_b32 v{el[2 * d + 1]}, 0xffff0000, v{XR + d}")
    rowst += lines(f"""
v_add_f32 v{m_}, v{el[0]}, v{el[1]}
v_add_f32 v{mb}, v{el[2]}, v{el[3]}
v_add_f32 v{dl}, v{el[4]}, v{el[5]}
v_add_f32 v{tt}, v{el[6]}, v{el[7]}
v_add_f32 v{m_}, v{m_}, v{mb}
v_add_f32 v{dl}, v{dl}, v{tt}
v_add_f32 v{m_}, v{m_}, v{dl}
""") + allreduce(m_, tt) + lines(f"""
v_mul_f32 v{m_}, 0x3b000000, v{m_}
v_cvt_pk_bf16_f32 v{so0}, -v{m_}, -v{m_}
""")
    rowst += lines("\n".join(f"v_sub_f32 v{e_}, v{e_}, v{m_}" for e_ in el))
    rowst += lines(f"v_mul_f32 v{mb}, v{el[0]}, v{el[0]}\nv_mul_f32 v{dl}, v{el[1]}, v{el[1]}")
    rowst += lines("\n".join(f"v_fmac_f32 v{(mb, dl)[i % 2]}, v{el[i]}, v{el[i]}" for i in range(2, 8)))
    rowst += lines(f"v_add_f32 v{mb}, v{mb}, v{dl}") + allreduce(mb, tt) + lines(f"""
v_mul_f32 v{mb}, 0x3b000000, v{mb}
v_cvt_pk_bf16_f32 v{tt}, v{mb}, v{mb}
v_and_b32 v{tt}, 0xffff0000, v{tt}
v_add_f32 v{tt}, 0x3727c5ac, v{tt}
v_cvt_pk_bf16_f32 v{tt}, v{tt}, v{tt}
v_and_b32 v{tt}, 0xffff0000, v{tt}
v_sqrt_f32 v{tt}, v{tt}
v_and_b32 v{so0}, 0xffff, v{so0}
v_cvt_pk_bf16_f32 v{tt}, v{tt}, v{tt}
v_and_b32 v{tt}, 0xffff0000, v{tt}
v_or_b32 v{so0}, v{so0}, v{tt}
""")
    fl = v_XS[1]

    def nonce_load():
        a(f"v_mov_b32 v{fl + 2}, 0")
        a.vmem(f"buffer_load_dword v{fl}, v{fl + 2}, {sr(SRD_D, 4)}, 0 offen sc1", "nl")

    def rowst_store():
        a.wait(vm="nl")
        a(f"s_mov_b32 s{s_t3}, {SPIN_MAX}")
        a.label(f"{name}_nn")
        a(f"v_readfirstlane_b32 s{s_non}, v{fl}")
        a(f"s_cmp_lg_u32 s{s_non}, 0")
        a(f"s_cbranch_scc1 {name}_nnok")
        a(f"s_sub_u32 s{s_t3}, s{s_t3}, 1")
        a(f"s_cbranch_scc1 {name}_nnok")
        a("s_sleep 8")
        a(f"buffer_load_dword v{fl}, v{fl + 2}, {sr(SRD_D, 4)}, 0 offen sc1")
        a("s_waitcnt vmcnt(0)")
        a(f"s_branch {name}_nn")
        a.label(f"{name}_nnok")
        a(f"s_lshl_b32 s{s_t0}, s{s_rb}, 7")
        a(f"s_lshl_b32 s{s_t1}, s{s_cg}, 3")
        a(f"s_add_u32 s{s_t0}, s{s_t0}, s{s_t1}")
        a(f"s_add_u32 s{s_t0}, s{s_t0}, s{s_w}")
        a(f"s_lshl_b32 s{s_t0}, s{s_t0}, 3")
        a(f"s_add_u32 s{s_t0}, s{s_t0}, {WS_ST}")
        a(f"v_mov_b32 v{so1}, v{fl}")
        a("s_mov_b64 exec, 1")
        a.vmem(f"buffer_store_dwordx2 {vr(so0, 2)}, v{fl + 2}, {sr(SRD_WS, 4)}, s{s_t0} offen sc1", "ss")
        a("s_mov_b64 exec, -1")

    def st_loads(reg):
        for nt in range(2):
            txt = f"buffer_load_dwordx2 {vr(v_st[nt], 2)}, v{fl + 3}, {sr(SRD_WS, 4)}, s{s_sx} offen offset:{256 * nt} sc1"
            if reg:
                a.vmem(txt, "sl")
            else:
                a(txt)

    def st_poll_load():
        a(f"s_lshl_b32 s{s_sx}, s{s_rb}, 10")
        a(f"s_lshl_b32 s{s_t1}, s{s_ni}, 9")
        a(f"s_add_u32 s{s_sx}, s{s_sx}, s{s_t1}")
        a(f"s_add_u32 s{s_sx}, s{s_sx}, {WS_ST}")
        a(f"v_lshlrev_b32 v{fl + 3}, 3, v{v_n}")
        st_loads(True)

    def st_poll_check():
        a.wait(vm="sl")
        a(f"s_mov_b32 s{s_t3}, {SPIN_MAX}")
        a.label(f"{name}_sp")
        a(f"v_cmp_ne_u32 vcc, s{s_non}, v{v_st[0] + 1}")
        a(f"v_cmp_ne_u32 {sr(s_tab, 2)}, s{s_non}, v{v_st[1] + 1}")
        a("s_nop 0")
        a(f"s_or_b64 vcc, vcc, {sr(s_tab, 2)}")
        a(f"s_cbranch_scc0 {name}_spok")
        a(f"s_sub_u32 s{s_t3}, s{s_t3}, 1")
        a(f"s_cbranch_scc1 {name}_spok")
        a("s_sleep 8")
        st_loads(False)
        a("s_waitcnt vmcnt(0)")
        a(f"s_branch {name}_sp")
        a.label(f"{name}_spok")

    def sel_op(j, mt, first):
        c = "0" if first else vr(v_cs[mt], 4)
        return lambda: a(f"v_mfma_f32_16x16x32_bf16 {vr(v_cs[mt], 4)}, {vr(v_sel, 4)}, {vr(v_W[j % 2][mt], 4)}, {c}")

    ORDER = ((0, 0), (1, 0), (0, 1), (1, 1))

    def mfma_ops(stage, j):
        ops = []
        first = stage == 0 and j == 0
        for mt, nt in ORDER:
            acc = vr(v_acc[mt][nt], 16)
            ops.append(lambda mt=mt, nt=nt, acc=acc: a(
                f"v_mfma_f32_32x32x16_bf16 {acc}, {vr(v_W[j % 2][mt], 4)}, {vr(v_X[j % 2][nt], 4)}, {'0' if first else acc}"))
        return ops

    def merge(a_list, b_list):
        out = []
        na, nb = len(a_list), len(b_list)
        ia = ib = 0
        while ia < na or ib < nb:
            if ib >= nb or (ia < na and ia * nb <= ib * na):
                out.append(a_list[ia]); ia += 1
            else:
                out.append(b_list[ib]); ib += 1
        return out

    e = v_e
    rA, rB = v_st[0] + 1, v_st[1] + 1

    publish = lines(f"""
s_lshl_b32 s{s_t2}, s{s_tile}, 9
s_add_u32 s{s_t2}, s{s_t2}, {K1_LDS_CS}
v_lshlrev_b32 v{u1}, 3, v{v_lane}
v_add_u32 v{u1}, s{s_t2}, v{u1}
""")

    def publish_cs():
        a.lds(f"ds_write_b64 v{u1}, {vr(v_cs[0], 2)}", "w")

    gather = lines(f"v_xor_b32 v{u1}, 512, v{u1}")
    gather.append(lambda: a.lds(f"ds_read_b64 {vr(v_FA[1], 2)}, v{u1}", "s"))

    fin = lines(f"""
v_cmp_eq_u32 vcc, 0, v{v_h}
v_mov_b32 v{v_FB[0] + 2}, 0
v_mov_b32 v{v_FB[0] + 3}, 0
v_mov_b32 v{v_FB[1] + 2}, 0
v_mov_b32 v{v_FB[1] + 3}, 0
v_mov_b32 v{v_FA[0] + 2}, 0
v_mov_b32 v{v_FA[0] + 3}, 0
v_mov_b32 v{v_FA[1] + 2}, 0
v_mov_b32 v{v_FA[1] + 3}, 0
v_bfe_u32 v{t0}, v{v_lane}, 4, 1
v_and_b32 v{rA}, 0xffff0000, v{v_st[0]}
v_and_b32 v{rB}, 0xffff0000, v{v_st[1]}
v_rcp_f32 v{rA}, v{rA}
v_rcp_f32 v{rB}, v{rB}
v_and_b32 v{v_st[0]}, 0xffff, v{v_st[0]}
v_and_b32 v{v_st[1]}, 0xffff, v{v_st[1]}
v_lshl_or_b32 v{v_st[0]}, v{v_st[0]}, 16, v{v_st[0]}
v_lshl_or_b32 v{v_st[1]}, v{v_st[1]}, 16, v{v_st[1]}
v_cndmask_b32 v{v_FB[0]}, 0, v{v_st[0]}, vcc
v_cndmask_b32 v{v_FB[1]}, 0, v{v_st[1]}, vcc
v_cmp_eq_u32 vcc, 1, v{t0}
v_mov_b32 v{v_FB[0] + 1}, v{v_FB[0]}
v_mov_b32 v{v_FB[1] + 1}, v{v_FB[1]}
v_cndmask_b32 v{v_cso}, v{v_FA[1]}, v{v_FA[1] + 1}, vcc
""")

    def fold_a(mt):
        c, r1, hi = v_t[3 * mt], v_t[3 * mt + 1], v_t[3 * mt + 2]
        FA = v_FA[mt]
        txt = f"v_cndmask_b32 v{c}, v{v_cs[mt]}, v{v_cs[mt] + 1}, vcc\n"
        if mt == 1:
            txt += f"v_add_f32 v{c}, v{c}, v{v_cso}\n"
        txt += f"""v_and_b32 v{hi}, 0xffff0000, v{c}
v_sub_f32 v{r1}, v{c}, v{hi}
v_and_b32 v{c}, 0xffff0000, v{r1}
v_sub_f32 v{r1}, v{r1}, v{c}
v_lshrrev_b32 v{hi}, 16, v{hi}
v_or_b32 v{FA}, v{hi}, v{c}
v_lshrrev_b32 v{FA + 1}, 16, v{r1}"""
        return lines(txt)

    nop = lambda: None
    side.clear()

    def put(stage, frac, ops):
        b = side.setdefault(stage, [[] for _ in range(16)])
        if isinstance(ops, list) and len(ops) > 4:
            n = len(ops)
            lo = int(frac * 16)
            for i, op in enumerate(ops):
                b[lo + (16 - lo) * i // n].append(op)
        else:
            b[min(15, int(frac * 16))] += ops if isinstance(ops, list) else [ops]
    if G0S < 0:
        for op in addr_job + gath + [col256_load]:
            op()
        put(3, 0.5, side_store)
    else:
        put(2, 0.0, addr_job)
    if G0S >= 0:
        for i in range(4):
            put(G0S + i * GSTEP, 0.3 if GSTEP else 0.1 + 0.2 * i, gath[2 * i:2 * i + 2])
        put(G0S + 3 * GSTEP, 0.8, col256_load)
        put(6, 0.5, side_store) if G0S < 6 else None

    def wd_by_wave(k):
        def f():
            a(f"s_and_b32 s{s_t0}, s{s_w}, 3")
            a(f"s_cmp_lg_u32 s{s_t0}, {k}")
            a(f"s_cbranch_scc1 {name}_nwd{k}")
            saved = list(a.vm)
            wd_job(0, 1)()
            a.vm = saved
            a.label(f"{name}_nwd{k}")
        return f
    if TOUCH_WD and WDST < 0:
        wd_job(0, 1)()
    elif TOUCH_WD and WDST < 7:
        put(WDST, 0.9, wd_job(0, 1))
    if TOUCH:
        for st in range(4):
            put(max(0, st - TLEAD), 0.05 + 0.3 * (st % 2) * (1 if TLEAD else 0), lambda st=st: touch(st + 4))
    if TOUCH_NEXT:
        put(5, 0.8, touch_next)
    RS = max(XRS, -1) + 1
    if XRS >= 0:
        put(XRS, 0.1, xr_load)
    put(RS, 0.0, rowst)
    put(RS, 0.4, nonce_load)
    put(RS + 1, 0.1, rowst_store)
    put(6, 0.3, st_poll_load)
    side = {k: [op for bk in v for op in (bk if bk else [nop])] for k, v in side.items()}
    if SENT == -1:
        flag_init()
    elif SENT < 7:
        side[SENT] = side.get(SENT, []) + [flag_init]
    pf.stamp()
    a.wait(vm=["x0", "w0"])
    if PROF == 3:
        pf.stamp()
    a("s_barrier")
    pf.stamp()
    for f in read_ops(0, 0):
        f()
    LAST = NSTAGE - 1
    for stage in range(NSTAGE):
        dops = (dma_w(stage + 2) if stage + 2 < NSTAGE else []) + (dma_x(stage + 3) if stage + 3 < NSTAGE else [])
        extra = side.get(stage, [])
        for j in range(4):
            a.comment(f"stage {stage} step {j}")
            a.wait(lg="all")
            m = mfma_ops(stage, j)
            if stage < LAST:
                m = [sel_op(j, 0, stage == 0 and j == 0)] + m
                so = publish if (stage == 6 and j == 2) else []
                ex = extra[len(extra) * j // 4:len(extra) * (j + 1) // 4]
                if j < 3:
                    fill = read_ops(stage, j + 1) + merge(merge(so, ex), dops[2 * j:2 * j + 2])
                    interleave(a, m, fill)
                else:
                    interleave(a, m[:3], merge(so, ex))
                    if stage == 6:
                        a("s_nop 3")
                        publish_cs()
                        if fused:
                            a(f"v_lshlrev_b32 v{t0}, 2, v{v_lane}")
                            a(f"v_add_u32 v{t0}, {F_LF}, v{t0}")
                            a(f"v_mov_b32 v{t1}, 0")
                            a.lds(f"ds_write_b32 v{t0}, v{t1}", "w")
                        a.wait(lg="all")
                    tags = [f"w{stage + 1}", f"x{stage + 1}"] + (["st"] if fused and stage == 5 else [])
                    a.wait(vm=tags)
                    a("s_barrier")
                    if PROF == 1 and stage % 2 == 0:
                        pf.stamp()
                    for f in read_ops(stage + 1, 0):
                        f()
                    m[3]()
                    if fused and stage == 5:
                        a(f"s_cmp_lg_u32 s{s_w}, 0")
                        a(f"s_cbranch_scc1 {name}_nof0")
                        a(f"s_lshl_b32 s{s_t0}, s{s_rb}, 4")
                        a(f"s_add_u32 s{s_t0}, s{s_t0}, s{s_cg}")
                        a(f"s_lshl_b32 s{s_t0}, s{s_t0}, 7")
                        a(f"s_add_u32 s{s_t0}, s{s_t0}, {WS_FL + 4}")
                        a(f"v_mov_b32 v{t0}, s{s_non}")
                        a(f"v_mov_b32 v{t1}, 0")
                        a("s_mov_b64 exec, 1")
                        a(f"buffer_store_dword v{t0}, v{t1}, {sr(SRD_WS, 4)}, s{s_t0} offen sc1")
                        a("s_mov_b64 exec, -1")
                        a.label(f"{name}_nof0")
                    if stage == 6:
                        for f in gather:
                            f()
                    m[4]()
            else:
                m = [sel_op(j, 0, False), sel_op(j, 1, j == 0)] + m
                if j < 3:
                    n = len(fin)
                    interleave(a, m, read_ops(stage, j + 1) + ([st_poll_check] + ([wd_job(0, 1)] if WDST == 7 else []) if j == 0 else []) + fin[n * j // 3:n * (j + 1) // 3])
                else:
                    for f in m[:4]:
                        f()
                    a("s_nop 3")
                    interleave(a, m[4:], merge(fold_a(0), fold_a(1)))
    a("s_nop 1")
    for mt, nt in ORDER:
        acc = vr(v_acc[mt][nt], 16)
        a(f"v_mfma_f32_32x32x16_bf16 {acc}, {vr(v_FA[mt], 4)}, {vr(v_FB[nt], 4)}, {acc}")
    if G0S == 6:
        side_store()
    pf.stamp()
    rr = [rA, rB]
    a(f"s_cmp_ge_u32 s{s_cg}, 14")
    a(f"s_cbranch_scc1 {name}_epi_dft")
    r2 = [e + 4, e + 6]
    for nt in range(2):
        a(f"v_mul_f32 v{r2[nt]}, v{rr[nt]}, v{rr[nt]}")
    a(f"v_lshlrev_b32 v{t0}, 4, v{v_lane}")
    a(f"s_lshl_b32 s{s_t0}, s{s_rb}, 2")
    a(f"s_lshl_b32 s{s_t2}, s{s_ni}, 1")
    a(f"s_add_u32 s{s_t0}, s{s_t0}, s{s_t2}")
    a(f"s_mul_i32 s{s_t0}, s{s_t0}, 112")
    a(f"s_lshl_b32 s{s_t2}, s{s_cg}, 3")
    a(f"s_add_u32 s{s_t0}, s{s_t0}, s{s_t2}")
    for mt, nt in ORDER:
        acc = v_acc[mt][nt]
        for i in range(8):
            a(f"v_max_f32 v{acc + i}, 0, v{acc + i}")
            a(f"v_mul_f32 v{acc + 8 + i}, v{r2[nt]}, v{acc + 8 + i}")
        for i in range(8):
            a(f"v_mul_f32 v{acc + i}, v{acc + i}, v{acc + 8 + i}")
        for i in range(4):
            a(f"v_cvt_pk_bf16_f32 v{acc + 8 + i}, v{acc + 2 * i}, v{acc + 2 * i + 1}")
        a(f"s_xor_b32 s{s_t2}, s{s_tile}, {mt}")
        a(f"s_add_u32 s{s_t2}, s{s_t2}, s{s_t0}")
        if nt:
            a(f"s_add_u32 s{s_t2}, s{s_t2}, 112")
        a(f"s_lshl_b32 s{s_t2}, s{s_t2}, 10")
        a(f"buffer_store_dwordx4 {vr(acc + 8, 4)}, v{t0}, {sr(SRD_WS, 4)}, s{s_t2} offen{WTH}")
    if PROF and not fused:
        pf.stamp()
        a("s_waitcnt vmcnt(0)")
        pf.stamp()
        pf.stamp(real=True)
        pf.dump(SRD_WS, 2, s_w, v_t[0], s_t0, 8)
    a(f"s_branch {name}_join" if fused else "s_endpgm")
    a.label(f"{name}_epi_dft")
    for nt in range(2):
        a(f"v_mul_f32 v{rr[nt]}, 0x36000000, v{rr[nt]}")
    a(f"v_lshlrev_b32 v{t0}, 14, v{v_h}")
    a(f"v_lshl_add_u32 v{t0}, v{v_n}, 2, v{t0}")
    a(f"s_sub_u32 s{s_t0}, s{s_cg}, 14")
    a(f"s_lshl_b32 s{s_t0}, s{s_t0}, 20")
    a(f"s_add_u32 s{s_t0}, s{s_t0}, {WS_U}")
    a(f"s_lshl_b32 s{s_t2}, s{s_rb}, 9")
    a(f"s_add_u32 s{s_t0}, s{s_t0}, s{s_t2}")
    a(f"s_lshl_b32 s{s_t2}, s{s_ni}, 8")
    a(f"s_add_u32 s{s_t0}, s{s_t0}, s{s_t2}")
    for mt, nt in ORDER:
        a(f"s_xor_b32 s{s_t2}, s{s_tile}, {mt}")
        a(f"s_lshl_b32 s{s_t2}, s{s_t2}, 16")
        a(f"s_add_u32 s{s_t2}, s{s_t2}, s{s_t0}")
        acc = v_acc[mt][nt]
        for i in range(16):
            a(f"v_mul_f32 v{acc + i}, v{rr[nt]}, v{acc + i}")
        for i in range(8):
            a(f"v_cvt_pk_bf16_f32 v{acc + 2 * i}, v{acc + 2 * i}, v{acc + 2 * i + 1}")
        for g in range(4):
            for ip in range(2):
                koff = (g % 2) * 4 + (g // 2) * 64 + ip
                a(f"s_add_u32 s{s_t3}, s{s_t2}, {koff * 8192}")
                a(f"buffer_store_dword v{acc + 4 * g + 2 * ip}, v{t0}, {sr(SRD_WS, 4)}, s{s_t3} offen offset:{nt * 128}{WTH}")
    if fused:
        a.label(f"{name}_join")
        a("s_barrier")
        return locals()
    if PROF:
        pf.n -= 3
        pf.stamp()
        a("s_waitcnt vmcnt(0)")
        pf.stamp()
        pf.stamp(real=True)
        pf.dump(SRD_WS, 2, s_w, v_t[0], s_t0, 8)
    a.label(f"{name}_done")
    a("s_endpgm")
    return kernel_header(name) + a.text(), kernel_desc(name, V.hi, 102)


def gen_ftab():
    j = np.arange(512)
    c, s = exact_cos_sin(j, 512)
    cb, nb = bf16_bits(c), bf16_bits(-s + 0.0)
    t = ""
    for i in range(512):
        t += f".set tw_{i}, 0x{int(cb[i] | (nb[i] << 16)):08x}\n"
    t += """.macro twe idx
.long tw_\\idx
.endm
.altmacro
.p2align 8
ftab:
.set dd, 0
.rept 512
.long 0x3f003f00 | ((dd & 1) << 31)
.set kk, 1
.rept 255
twe %((dd*kk) & 511)
.set kk, kk+1
.endr
.set dd, dd+1
.endr
.noaltmacro
"""
    return t
```

```python
from gen_common import *
from gen_k2 import fhex, gen_ctab

R = int(os.environ.get("K3_R", "7"))
NKB, NKZ = 28, 8
L_Z = 0
L_RING = 65536
L_F = L_RING + 4 * R * 2048
K23_LDS = L_F + 256
FZ = None


def ring_base(a, s_dst, s_wave, s_tmp):
    if FZ:
        a(f"s_lshl_b32 s{s_dst}, s{s_wave}, 14")
        a(f"s_lshr_b32 s{s_tmp}, s{s_wave}, 1")
        a(f"s_lshl_b32 s{s_tmp}, s{s_tmp}, 14")
        a(f"s_add_u32 s{s_dst}, s{s_dst}, s{s_tmp}")
    else:
        a(f"s_mul_i32 s{s_dst}, s{s_wave}, {R * 2048}")
    a(f"s_add_u32 s{s_dst}, s{s_dst}, {L_RING}")
WS_FLAG = 15 << 20
SPIN_MAX = 1 << 14
FFT_PRIO = int(os.environ.get("FFT_PRIO", "3"))
G_PRIO = int(os.environ.get("G_PRIO", "0"))
Z_PRIO = int(os.environ.get("Z_PRIO", "1"))
B_PRIO = int(os.environ.get("B_PRIO", "0"))


def lds_spin(a, name, v_addr, off, v_tmp, s_tmp):
    a.label(name)
    a(f"ds_read_b32 v{v_tmp}, v{v_addr} offset:{off}")
    a("s_waitcnt lgkmcnt(0)")
    a(f"v_readfirstlane_b32 s{s_tmp}, v{v_tmp}")
    a(f"s_cmp_eq_u32 s{s_tmp}, 0")
    a(f"s_cbranch_scc1 {name}")
    a.lg = []


def fft_part(a, V, S, name, s_w, SRD_WS, SRD_C, v_lane, pf):
    s_a, s_b, s_job, s_t, s_lb = [S.alloc() for _ in range(5)]
    v_n, v_h = V.alloc(), V.alloc()
    v_t = [V.alloc() for _ in range(6)]
    v_au, v_al, v_xw, v_xr, v_fw, v_fr, v_one = [V.alloc() for _ in range(7)]
    U = V.alloc(16, 4)
    Wf = V.alloc(16, 4)
    C32r, C32i = V.alloc(16, 4), V.alloc(16, 4)
    F64r, F64i = V.alloc(16, 4), V.alloc(16, 4)
    Cr, Ci = V.alloc(16, 4), V.alloc(16, 4)
    P = [V.alloc(16, 4), V.alloc(16, 4), U]
    tw1c, tw1s, tw2c, tw2s = [V.alloc(16, 4) for _ in range(4)]
    t0, t1, t2, t3 = v_t[:4]

    a(f"s_sub_u32 s{s_b}, s{s_w}, 4")
    a(f"s_lshl_b32 s{s_b}, s{s_b}, 4")
    a(f"s_add_u32 s{s_b}, s{s_b}, {L_F}")
    a(f"v_mov_b32 v{v_fw}, s{s_b}")
    if not FZ:
        a(f"v_mov_b32 v{t0}, 0")
        a(f"ds_write_b32 v{v_fw}, v{t0}")
        a(f"ds_write_b32 v{v_fw}, v{t0} offset:4")
        a(f"ds_write_b32 v{v_fw}, v{t0} offset:8")
        a(f"ds_write_b32 v{v_fw}, v{t0} offset:12")
    a(f"v_xor_b32 v{v_fr}, 16, v{v_fw}")
    a(f"v_mov_b32 v{v_one}, 1")
    a(f"s_and_b32 s{s_t}, s{s_w}, 1")
    a(f"s_bfe_u32 s{s_lb}, s{s_w}, 0x10001")
    a(f"s_lshl_b32 s{s_job}, s{s_lb}, 8")
    a(f"s_add_u32 s{s_job}, s{s_job}, s2")
    a(f"v_and_b32 v{v_n}, 31, v{v_lane}")
    a(f"v_lshrrev_b32 v{v_h}, 5, v{v_lane}")
    a(f"v_lshlrev_b32 v{v_al}, 4, v{v_lane}")
    a(f"v_lshlrev_b32 v{v_au}, 7, v{v_n}")
    a(f"v_lshl_add_u32 v{v_au}, v{v_h}, 6, v{v_au}")
    a(f"s_and_b32 s{s_a}, s{s_job}, 255")
    a(f"s_lshl_b32 s{s_a}, s{s_a}, 13")
    a(f"s_lshl_b32 s{s_b}, s{s_t}, 12")
    a(f"s_add_u32 s{s_a}, s{s_a}, s{s_b}")
    a(f"s_add_u32 s{s_a}, s{s_a}, {WS_U}")
    if not FZ:
        a("s_waitcnt lgkmcnt(0)")
        a("s_barrier")
    return dict(locals())


def fft_main(L):
    a, name, pf = L["a"], L["name"], L["pf"]
    (s_a, s_b, s_job, s_t, s_lb, s_w, SRD_WS, SRD_C, v_lane, v_n, v_h, v_t, v_au, v_al, v_xw, v_xr, v_fw, v_fr, v_one,
     U, Wf, C32r, C32i, F64r, F64i, Cr, Ci, P, tw1c, tw1s, tw2c, tw2s) = [L[k] for k in (
        "s_a s_b s_job s_t s_lb s_w SRD_WS SRD_C v_lane v_n v_h v_t v_au v_al v_xw v_xr v_fw v_fr v_one "
        "U Wf C32r C32i F64r F64i Cr Ci P tw1c tw1s tw2c tw2s").split()]
    t0, t1, t2, t3 = v_t[:4]
    def u_loads():
        a(f"s_and_b32 s{s_a}, s{s_job}, 255")
        a(f"s_lshl_b32 s{s_a}, s{s_a}, 13")
        a(f"s_lshl_b32 s{s_b}, s{s_t}, 12")
        a(f"s_add_u32 s{s_a}, s{s_a}, s{s_b}")
        a(f"s_add_u32 s{s_a}, s{s_a}, {WS_U}")
        for j in range(4):
            a.vmem(f"buffer_load_dwordx4 {vr(U + 4 * j, 4)}, v{v_au}, {sr(SRD_WS, 4)}, s{s_a} offen offset:{16 * j}{' sc1' if FZ else ''}", "u")
    if not FZ:
        u_loads()
    for j in range(4):
        a.vmem(f"buffer_load_dwordx4 {vr(C32r + 4 * j, 4)}, v{v_al}, {sr(SRD_C, 4)}, 0 offen offset:{1024 * j}", "c32")
    a(f"s_movk_i32 s{s_a}, 4096")
    for j in range(4):
        a.vmem(f"buffer_load_dwordx4 {vr(C32i + 4 * j, 4)}, v{v_al}, {sr(SRD_C, 4)}, s{s_a} offen offset:{1024 * j}", "c32")
    a(f"s_lshl_b32 s{s_a}, s{s_t}, 13")
    a(f"s_add_u32 s{s_a}, s{s_a}, 8192")
    a(f"s_add_u32 s{s_b}, s{s_a}, 4096")
    for j in range(4):
        a.vmem(f"buffer_load_dwordx4 {vr(F64r + 4 * j, 4)}, v{v_al}, {sr(SRD_C, 4)}, s{s_a} offen offset:{1024 * j}", "c64")
        a.vmem(f"buffer_load_dwordx4 {vr(F64i + 4 * j, 4)}, v{v_al}, {sr(SRD_C, 4)}, s{s_b} offen offset:{1024 * j}", "c64")
    def w_loads():
        a(f"s_lshl_b32 s{s_a}, s{s_job}, 13")
        a(f"s_lshl_b32 s{s_b}, s{s_t}, 12")
        a(f"s_add_u32 s{s_a}, s{s_a}, s{s_b}")
        a(f"s_add_u32 s{s_a}, s{s_a}, {WS_W}")
        for g in range(4):
            a.vmem(f"buffer_load_dwordx4 {vr(Wf + 4 * g, 4)}, v{v_al}, {sr(SRD_WS, 4)}, s{s_a} offen offset:{1024 * g}{' sc1' if FZ else ''}", "w")
    if FZ:
        FZ["signal"](a, v_t, s_a, skip_hi=True)
    else:
        w_loads()
    a(f"s_sub_u32 s{s_a}, s{s_w}, 4")
    a(f"s_lshl_b32 s{s_a}, s{s_a}, 14")
    a(f"v_add_u32 v{v_xr}, s{s_a}, v{v_al}")
    a(f"v_xor_b32 v{v_xw}, 16384, v{v_xr}")
    a(f"v_bfe_u32 v{t0}, v{v_n}, 2, 1")
    a(f"v_lshlrev_b32 v{t0}, 4, v{t0}")
    a(f"v_lshrrev_b32 v{t1}, 3, v{v_n}")
    a(f"v_lshl_add_u32 v{t0}, v{t1}, 2, v{t0}")
    a(f"v_and_b32 v{t1}, 3, v{v_n}")
    a(f"v_add_u32 v{t0}, v{t0}, v{t1}")
    a(f"v_cvt_f32_u32 v{t0}, v{t0}")
    a(f"v_mul_f32 v{t0}, {fhex(1 / 2048)}, v{t0}")
    a(f"s_lshl_b32 s{s_a}, s{s_t}, 5")
    a(f"v_lshl_add_u32 v{t1}, v{v_h}, 2, s{s_a}")
    a(f"v_cvt_f32_u32 v{t1}, v{t1}")
    a(f"v_mul_f32 v{t1}, v{t1}, v{t0}")
    for r in range(16):
        k = 8 * (r // 4) + r % 4
        tt = v_t[2 + r % 4]
        a(f"v_fmamk_f32 v{tt}, v{t0}, {fhex(k)}, v{t1}")
        a(f"v_cos_f32 v{tw1c + r}, v{tt}")
        a(f"v_sin_f32 v{tw1s + r}, v{tt}")
    a(f"v_add_u32 v{t0}, s{s_a}, v{v_n}")
    a(f"v_cvt_f32_u32 v{t0}, v{t0}")
    a(f"v_mul_f32 v{t0}, {fhex(1 / 2048)}, v{t0}")
    a(f"v_lshlrev_b32 v{t1}, 4, v{v_h}")
    a(f"v_cvt_f32_u32 v{t1}, v{t1}")
    a(f"v_mul_f32 v{t1}, v{t1}, v{t0}")
    for r in range(16):
        tt = v_t[2 + r % 4]
        a(f"v_fmamk_f32 v{tt}, v{t0}, {fhex(r)}, v{t1}")
        a(f"v_cos_f32 v{tw2c + r}, v{tt}")
        a(f"v_sin_f32 v{tw2s + r}, v{tt}")
    if FZ:
        FZ["lwait"](a, f"{name}_uw", 136, t0, t1, s_a)
        u_loads()
        w_loads()
    pf.stamp()
    a.wait(vm="u")
    a(f"s_and_b32 s{s_a}, s{s_job}, 255")
    a(f"s_cmp_lg_u32 s{s_a}, 0")
    a(f"s_cbranch_scc1 {name}_nospec")
    a(f"s_lshr_b32 s{s_a}, s{s_job}, 4")
    for i in range(16):
        a(f"v_lshrrev_b32 v{U + i}, s{s_a}, v{U + i}")
        a(f"v_and_b32 v{U + i}, 0xffff, v{U + i}")
    a.label(f"{name}_nospec")
    a.wait(vm="c32")
    pf.stamp()

    def mf(acc, A, B, first):
        a(f"v_mfma_f32_32x32x16_bf16 {vr(acc, 16)}, {vr(A, 4)}, {vr(B, 4)}, {'0' if first else vr(acc, 16)}")

    for j in range(4):
        mf(Cr, U + 4 * j, C32r + 4 * j, j == 0)
        mf(Ci, U + 4 * j, C32i + 4 * j, j == 0)
    a("s_nop 11")

    def cmul(cs, sn, sign):
        ng1, ng2 = ("-", "") if sign > 0 else ("", "-")
        for r in range(16):
            tt = v_t[r % 4]
            a(f"v_mul_f32 v{tt}, v{Ci + r}, v{sn + r}")
            a(f"v_mul_f32 v{Ci + r}, v{Ci + r}, v{cs + r}")
            a(f"v_fma_f32 v{Ci + r}, {ng2}v{Cr + r}, v{sn + r}, v{Ci + r}")
            a(f"v_fma_f32 v{Cr + r}, v{Cr + r}, v{cs + r}, {ng1}v{tt}")

    def send(x, negq):
        off = x * 8192
        for p in range(8):
            a(f"v_cvt_pk_bf16_f32 v{P[0] + p}, v{Cr + 2 * p}, v{Cr + 2 * p + 1}")
            a(f"v_cvt_pk_bf16_f32 v{P[1] + p}, v{Ci + 2 * p}, v{Ci + 2 * p + 1}")
        for q in range(2):
            for hh in range(2):
                a.lds(f"ds_write_b128 v{v_xw}, {vr(P[q] + 4 * hh, 4)} offset:{off + (2 * q + hh) * 1024}", "xw")
        a.lds(f"ds_write_b32 v{v_fw}, v{v_one} offset:{4 * x}", "xw")
        for p in range(8):
            a(f"v_xor_b32 v{P[2] + p}, 0x80008000, v{P[negq] + p}")

    def recv(x, negq):
        off = x * 8192
        lds_spin(a, f"{name}_sp{x}", v_fr, 4 * x, t0, s_a)
        for q in (negq, 1 - negq):
            for hh in range(2):
                a.lds(f"ds_read_b128 {vr(P[q] + 8 + 4 * hh, 4)}, v{v_xr} offset:{off + (2 * q + hh) * 1024}", f"xr{q}")

    def recv_fin(negq):
        a.wait(lg=f"xr{negq}")
        for p in range(8):
            a(f"v_xor_b32 v{P[2] + 8 + p}, 0x80008000, v{P[negq] + 8 + p}")
        a.wait(lg="all")

    cmul(tw1c, tw1s, -1)
    pf.stamp()
    send(0, 1)
    a.wait(vm="c64")

    def step3(j):
        mf(Cr, F64r + 4 * j, P[0] + 4 * j, j == 0)
        mf(Ci, F64i + 4 * j, P[0] + 4 * j, j == 0)
        mf(Ci, F64r + 4 * j, P[1] + 4 * j, False)
        mf(Cr, F64i + 4 * j, P[2] + 4 * j, False)
    step3(0)
    recv(0, 1)
    step3(1)
    recv_fin(1)
    step3(2)
    step3(3)
    a.wait(vm="w")
    pf.stamp()
    for r in range(16):
        a(f"v_lshlrev_b32 v{tw1c + r}, 16, v{Wf + r}")
        a(f"v_and_b32 v{tw1s + r}, 0xffff0000, v{Wf + r}")
    cmul(tw1c, tw1s, +1)
    pf.stamp()
    send(1, 0)
    a("s_nop 0")

    def step4(j):
        mf(Cr, P[0] + 4 * j, F64r + 4 * j, j == 0)
        mf(Ci, P[1] + 4 * j, F64r + 4 * j, j == 0)
        mf(Cr, P[1] + 4 * j, F64i + 4 * j, False)
        mf(Ci, P[2] + 4 * j, F64i + 4 * j, False)
    step4(0)
    recv(1, 0)
    step4(1)
    recv_fin(0)
    step4(2)
    step4(3)
    a("s_nop 11")
    pf.stamp()
    cmul(tw2c, tw2s, +1)
    for r in range(16):
        a(f"v_cvt_pk_bf16_f32 v{P[0] + r}, v{Cr + r}, -v{Ci + r}")
    a("s_nop 1")
    for j in range(4):
        mf(Cr, C32r + 4 * j, P[0] + 4 * j, j == 0)
    for j in range(4):
        mf(Ci, C32i + 4 * j, P[0] + 4 * j, j == 0)
    a(f"v_lshlrev_b32 v{t0}, 6, v{v_n}")
    a(f"v_lshl_add_u32 v{t0}, v{v_h}, 5, v{t0}")
    a(f"s_and_b32 s{s_a}, s{s_job}, 255")
    a(f"s_lshl_b32 s{s_a}, s{s_a}, 13")
    a(f"s_lshr_b32 s{s_b}, s{s_job}, 8")
    a(f"s_lshl_b32 s{s_b}, s{s_b}, 12")
    a(f"s_add_u32 s{s_a}, s{s_a}, s{s_b}")
    a(f"s_lshl_b32 s{s_b}, s{s_t}, 11")
    a(f"s_add_u32 s{s_a}, s{s_a}, s{s_b}")
    a(f"s_add_u32 s{s_a}, s{s_a}, {WS_Z}")
    a(f"s_add_u32 s{s_b}, s{s_a}, 4096")
    a(f"v_sub_u32 v{t1}, v{v_xr}, v{v_al}")
    a(f"v_add_u32 v{t0}, v{t0}, v{t1}")
    for p in range(8):
        a(f"v_cvt_pk_bf16_f32 v{P[1] + p}, v{Cr + 2 * p}, v{Cr + 2 * p + 1}")
    for hh in range(2):
        a.lds(f"ds_write_b128 v{t0}, {vr(P[1] + 4 * hh, 4)} offset:{16 * hh}", "zb")
    for hh in range(2):
        a.lds(f"ds_read_b128 {vr(P[1] + 8 + 4 * hh, 4)}, v{v_xr} offset:{1024 * hh}", "zr")
    for p in range(8):
        a(f"v_cvt_pk_bf16_f32 v{P[2] + p}, -v{Ci + 2 * p}, -v{Ci + 2 * p + 1}")
    for hh in range(2):
        a.lds(f"ds_write_b128 v{t0}, {vr(P[2] + 4 * hh, 4)} offset:{2048 + 16 * hh}", "zb")
    for hh in range(2):
        a.lds(f"ds_read_b128 {vr(P[2] + 8 + 4 * hh, 4)}, v{v_xr} offset:{2048 + 1024 * hh}", "zi")
    a.wait(lg="zr")
    for hh in range(2):
        a.vmem(f"buffer_store_dwordx4 {vr(P[1] + 8 + 4 * hh, 4)}, v{v_al}, {sr(SRD_WS, 4)}, s{s_a} offen offset:{1024 * hh} sc1", "st")
    a(f"s_and_b32 s{s_a}, s{s_job}, 255")
    a(f"s_cmp_eq_u32 s{s_a}, 0")
    a.wait(lg="all")
    a(f"s_cbranch_scc1 {name}_noim")
    for hh in range(2):
        a.vmem(f"buffer_store_dwordx4 {vr(P[2] + 8 + 4 * hh, 4)}, v{v_al}, {sr(SRD_WS, 4)}, s{s_b} offen offset:{1024 * hh} sc1", "st")
    a.label(f"{name}_noim")
    pf.stamp()
    pf.stamp()


def tile_decode(a, s_sp, s_dp, s_t2):
    a(f"s_and_b32 s{s_sp}, s2, 7")
    a(f"s_lshl_b32 s{s_sp}, s{s_sp}, 2")
    a(f"s_bfe_u32 s{s_t2}, s2, 0x20003")
    a(f"s_add_u32 s{s_sp}, s{s_sp}, s{s_t2}")
    a(f"s_lshr_b32 s{s_dp}, s2, 5")


def out_addr(a, v_xo, v_n, v_h, s_sp, s_dp, s_sw, s_dw, s_t0, s_t1):
    a(f"v_lshlrev_b32 v{v_xo}, 16, v{v_n}")
    a(f"v_lshl_add_u32 v{v_xo}, v{v_h}, 5, v{v_xo}")
    a(f"s_lshl_b32 s{s_t0}, s{s_sp}, 11")
    a(f"s_lshl_b32 s{s_t1}, s{s_sw}, 10")
    a(f"s_add_u32 s{s_t0}, s{s_t0}, s{s_t1}")
    a(f"s_lshl_b32 s{s_t1}, s{s_dp}, 7")
    a(f"s_add_u32 s{s_t0}, s{s_t0}, s{s_t1}")
    a(f"s_lshl_b32 s{s_t1}, s{s_dw}, 6")
    a(f"s_add_u32 s{s_t0}, s{s_t0}, s{s_t1}")
    a(f"v_add_u32 v{v_xo}, s{s_t0}, v{v_xo}")


def z_part(a, V, S, name, s_w, v_lane, SRD_X, SRD_WS, pf):
    s_sp, s_dp, s_sw, s_dw, s_z = [S.alloc() for _ in range(5)]
    s_t0, s_t1, s_t2, s_oz, s_mz, s_spin = [S.alloc() for _ in range(6)]
    s_msk = S.alloc(2, 2)
    v_n, v_h = V.alloc(), V.alloc()
    v_t = [V.alloc() for _ in range(8)]
    v_dl, v_dz, v_xo, v_nyq, v_fa, v_one = [V.alloc() for _ in range(6)]
    v_rz = [V.alloc(), V.alloc()]
    v_step, v_base = [V.alloc(), V.alloc()], [V.alloc(), V.alloc()]
    v_x = V.alloc(8, 4)
    v_fl = V.alloc(4, 4)
    acc = [[V.alloc(16, 4) for _ in range(2)] for _ in range(2)]
    POOL = V.alloc(64, 4)
    ZF = lambda ps, kz: POOL + 32 * (1 - ps) + 4 * kz
    G = V.alloc(64, 4)
    t0, t1, t2, t3, t4 = v_t[:5]
    a(f"s_sub_u32 s{s_z}, s{s_w}, 4")
    tile_decode(a, s_sp, s_dp, s_t2)
    a(f"s_and_b32 s{s_sw}, s{s_z}, 1")
    a(f"s_lshr_b32 s{s_dw}, s{s_z}, 1")
    a(f"v_and_b32 v{v_n}, 31, v{v_lane}")
    a(f"v_lshrrev_b32 v{v_h}, 5, v{v_lane}")
    a(f"v_lshlrev_b32 v{v_dl}, 4, v{v_lane}")
    out_addr(a, v_xo, v_n, v_h, s_sp, s_dp, s_sw, s_dw, s_t0, s_t1)
    a.vmem(f"buffer_load_dwordx4 {vr(v_x, 4)}, v{v_xo}, {sr(SRD_X, 4)}, 0 offen", "x")
    a.vmem(f"buffer_load_dwordx4 {vr(v_x + 4, 4)}, v{v_xo}, {sr(SRD_X, 4)}, 0 offen offset:16", "x")
    a(f"s_setprio {G_PRIO}")
    a(f"v_lshrrev_b32 v{t0}, 3, v{v_lane}")
    a(f"v_bfe_u32 v{t1}, v{v_lane}, 4, 1")
    a(f"v_lshlrev_b32 v{t1}, 2, v{t1}")
    a(f"v_and_b32 v{t2}, 7, v{v_lane}")
    a(f"v_xor_b32 v{t1}, v{t1}, v{t2}")
    a(f"v_lshlrev_b32 v{t1}, 4, v{t1}")
    a(f"v_lshl_add_u32 v{v_dz}, v{t0}, 12, v{t1}")
    a(f"s_lshl_b32 s{s_mz}, s{s_z}, 14")
    a(f"s_add_u32 s{s_mz}, s{s_mz}, {L_Z}")
    a(f"s_lshl_b32 s{s_oz}, s{s_z}, 19")
    a(f"s_lshl_b32 s{s_t1}, s{s_sp}, 7")
    a(f"s_add_u32 s{s_oz}, s{s_oz}, s{s_t1}")
    a(f"s_add_u32 s{s_oz}, s{s_oz}, {WS_Z}")
    a(f"v_bfe_u32 v{t0}, v{v_lane}, 2, 2")
    a(f"v_and_b32 v{t1}, 3, v{v_lane}")
    a(f"v_bfe_u32 v{t2}, v{v_lane}, 4, 1")
    a(f"v_lshl_add_u32 v{t3}, v{v_h}, 2, v{t0}")
    a(f"v_lshlrev_b32 v{t3}, 7, v{t3}")
    a(f"v_lshrrev_b32 v{t0}, 1, v{t0}")
    a(f"v_xor_b32 v{t4}, s{s_sw}, v{t0}")
    a(f"v_lshl_add_u32 v{t4}, v{t4}, 6, v{t3}")
    a(f"v_add_u32 v{t4}, s{s_mz}, v{t4}")
    a(f"v_lshl_add_u32 v{t4}, v{t2}, 5, v{t4}")
    a(f"v_lshl_add_u32 v{v_rz[0]}, v{t1}, 3, v{t4}")
    a(f"v_xor_b32 v{v_rz[1]}, 64, v{v_rz[0]}")
    a(f"v_bfe_u32 v{t0}, v{v_n}, 2, 1")
    a(f"v_lshlrev_b32 v{t0}, 4, v{t0}")
    a(f"v_lshrrev_b32 v{t1}, 3, v{v_n}")
    a(f"v_lshl_add_u32 v{t0}, v{t1}, 2, v{t0}")
    a(f"v_and_b32 v{t1}, 3, v{v_n}")
    a(f"v_add_u32 v{t0}, v{t0}, v{t1}")
    a(f"s_lshl_b32 s{s_t1}, s{s_dp}, 6")
    a(f"s_lshl_b32 s{s_t2}, s{s_dw}, 5")
    a(f"s_add_u32 s{s_t1}, s{s_t1}, s{s_t2}")
    a(f"v_add_u32 v{t0}, s{s_t1}, v{t0}")
    a(f"v_lshlrev_b32 v{v_nyq}, 31, v{t0}")
    a(f"v_or_b32 v{v_nyq}, 0x3f803f80, v{v_nyq}")
    a(f"v_xor_b32 v{t2}, 32, v{t0}")
    a(f"v_cvt_f32_u32 v{v_step[0]}, v{t0}")
    a(f"v_cvt_f32_u32 v{v_step[1]}, v{t2}")
    a(f"v_mul_f32 v{v_step[0]}, {fhex(1 / 512)}, v{v_step[0]}")
    a(f"v_mul_f32 v{v_step[1]}, {fhex(1 / 512)}, v{v_step[1]}")
    a(f"s_lshl_b32 s{s_t1}, s{s_z}, 6")
    a(f"v_lshl_add_u32 v{t1}, v{v_h}, 1, s{s_t1}")
    a(f"v_cvt_f32_u32 v{t2}, v{t1}")
    for dt in range(2):
        a(f"v_mul_f32 v{v_base[dt]}, v{t2}, v{v_step[dt]}")
        a(f"v_fract_f32 v{v_base[dt]}, v{v_base[dt]}")
    a(f"v_cmp_eq_u32 {sr(s_msk, 2)}, 0, v{t1}")
    items = [(kz, dt, dd) for kz in range(NKZ) for dt in range(2) for dd in range(4)]
    prev = None
    for idx, (kz, dt, dd) in enumerate(items):
        K = 8 * kz + 4 * (dd // 2) + dd % 2
        ta, tb, tc = v_t[(3 * idx) % 6], v_t[(3 * idx + 1) % 6], v_t[(3 * idx + 2) % 6]
        a(f"v_fmamk_f32 v{ta}, v{v_step[dt]}, {fhex(K)}, v{v_base[dt]}")
        if prev:
            a(prev)
        a(f"v_cos_f32 v{tb}, v{ta}")
        a(f"v_sin_f32 v{tc}, v{ta}")
        prev = f"v_cvt_pk_bf16_f32 v{G + idx}, v{tb}, -v{tc}"
    a(f"v_cndmask_b32 v{G}, v{G}, v{v_nyq}, {sr(s_msk, 2)}")
    a(prev)
    a(f"v_cndmask_b32 v{G + 4}, v{G + 4}, v{v_nyq}, {sr(s_msk, 2)}")
    a.wait(vm="x")
    for i in range(8):
        a(f"v_lshlrev_b32 v{acc[0][0] + 2 * i}, 16, v{v_x + i}")
        a(f"v_and_b32 v{acc[0][0] + 2 * i + 1}, 0xffff0000, v{v_x + i}")
    a(f"v_add_u32 v{t0}, s{s_mz}, v{v_dl}")
    for q in (1, 2, 3):
        a(f"s_xor_b32 s{s_t0}, s{s_z}, {q}")
        a(f"s_lshl_b32 s{s_t0}, s{s_t0}, 14")
        a(f"s_add_u32 s{s_t0}, s{s_t0}, {L_Z + (q - 1) * 4096}")
        a(f"v_add_u32 v{v_t[q]}, s{s_t0}, v{v_dl}")
    a(f"v_and_b32 v{v_fa}, 3, v{v_lane}")
    a(f"v_lshlrev_b32 v{v_fa}, 4, v{v_fa}")
    a(f"v_add_u32 v{v_fa}, {L_F + 8}, v{v_fa}")
    a(f"s_lshl_b32 s{s_t1}, s{s_z}, 4")
    a(f"s_add_u32 s{s_t1}, s{s_t1}, {L_F + 8}")
    a(f"v_mov_b32 v{v_t[4]}, s{s_t1}")
    a(f"v_mov_b32 v{v_one}, 1")
    pf.stamp()
    a(f"v_mov_b32 v{v_t[6]}, {L_F + 12}")
    a(f"s_cmp_lg_u32 s{s_z}, 0")
    a(f"s_cbranch_scc1 {name}_lw")
    a(f"ds_write_b32 v{v_t[6]}, v{v_one}")
    a.label(f"{name}_lw")
    a(f"ds_read_b32 v{v_t[5]}, v{v_t[6]}")
    a("s_waitcnt lgkmcnt(0)")
    a(f"v_readfirstlane_b32 s{s_t0}, v{v_t[5]}")
    a(f"s_cmp_lg_u32 s{s_t0}, 0")
    a(f"s_cbranch_scc1 {name}_lwok")
    a("s_sleep 2")
    a(f"s_branch {name}_lw")
    a.label(f"{name}_lwok")
    a(f"s_mov_b32 s{s_spin}, {SPIN_MAX}")
    a(f"s_mov_b32 s{s_t1}, 0xffff")
    a(f"s_setprio {Z_PRIO}")
    pf.stamp()

    def zdma(q, reg=True):
        a(f"s_add_u32 m0, s{s_mz}, {1024 * q}")
        a(f"s_add_u32 s{s_t2}, s{s_oz}, {8 * q * 4096}")
        txt = f"buffer_load_dwordx4 v{v_dz}, {sr(SRD_WS, 4)}, s{s_t2} offen sc1 lds"
        if reg:
            a.vmem(txt, f"z{q // 2}")
        else:
            a(txt)
    for q in range(16):
        zdma(q)

    def zread(ps, kz):
        for e in range(2):
            a.lds(f"ds_read_b64_tr_b16 {vr(ZF(ps, kz) + 2 * e, 2)}, v{v_rz[ps]} offset:{kz * 2048 + e * 1024}", f"z{ps}_{kz}")

    def zm(pd, ps, kz):
        A = vr(acc[pd][ps], 16)
        C = "0" if (kz == 0 and (pd or ps)) else A
        a(f"v_mfma_f32_32x32x16_bf16 {A}, {vr(G + 8 * kz + 4 * pd, 4)}, {vr(ZF(ps, kz), 4)}, {C}")

    def qwrite(pd, ps, g):
        a.lds(f"ds_write_b128 v{t0}, {vr(acc[pd][ps] + 4 * g, 4)} offset:{(2 * pd + ps - 1) * 4096 + g * 1024}", "qw")

    def zcheck(kz):
        c0, c1 = v_t[5], v_t[6]
        a.label(f"{name}_zc{kz}")
        a(f"v_pk_max_u16 v{c0}, v{ZF(1, kz)}, v{ZF(1, kz) + 1}")
        a(f"v_pk_max_u16 v{c1}, v{ZF(1, kz) + 2}, v{ZF(1, kz) + 3}")
        for i in range(4):
            a(f"v_pk_max_u16 v{(c0, c1)[i % 2]}, v{(c0, c1)[i % 2]}, v{ZF(0, kz) + i}")
        a(f"v_pk_max_u16 v{c0}, v{c0}, v{c1}")
        a(f"v_lshrrev_b32 v{c1}, 16, v{c0}")
        a(f"v_max_u16 v{c0}, v{c0}, v{c1}")
        a(f"v_and_b32 v{c0}, 0xffff, v{c0}")
        a(f"v_cmp_eq_u32 vcc, s{s_t1}, v{c0}")
        a(f"s_cmp_eq_u32 s{s_spin}, 0")
        a(f"s_cbranch_scc1 {name}_zo{kz}")
        a("s_nop 2")
        a(f"s_cbranch_vccz {name}_zo{kz}")
        a(f"s_sub_u32 s{s_spin}, s{s_spin}, 1")
        a(f"s_sleep {POLL_SLEEP}")
        zdma(2 * kz, False)
        zdma(2 * kz + 1, False)
        a("s_waitcnt vmcnt(0)")
        for ps in (1, 0):
            for e in range(2):
                a(f"ds_read_b64_tr_b16 {vr(ZF(ps, kz) + 2 * e, 2)}, v{v_rz[ps]} offset:{kz * 2048 + e * 1024}")
        a("s_waitcnt lgkmcnt(0)")
        a(f"s_branch {name}_zc{kz}")
        a.label(f"{name}_zo{kz}")

    a.wait(vm="z0")
    zread(1, 0)
    zread(0, 0)
    for kz in range(8):
        if kz + 1 < 8:
            a.wait(vm=f"z{kz + 1}")
            zread(1, kz + 1)
            zread(0, kz + 1)
        a.wait(lg=f"z0_{kz}")
        zcheck(kz)
        zm(1, 1, kz)
        zm(0, 1, kz)
        zm(1, 0, kz)
    pf.stamp()
    zm(0, 0, 0)
    zm(0, 0, 1)
    seq = [(1, 1), (0, 1), (1, 0)]
    for n, (pd, ps) in enumerate(seq):
        for g in range(4):
            qwrite(pd, ps, g)
        zm(0, 0, 2 + n)
    a.lds(f"ds_write_b32 v{v_t[4]}, v{v_one}", "qw")
    zm(0, 0, 5)
    zm(0, 0, 6)
    zm(0, 0, 7)
    a.label(f"{name}_zsp")
    a(f"ds_read_b32 v{v_t[5]}, v{v_fa}")
    a("s_waitcnt lgkmcnt(0)")
    a.lg = []
    a(f"v_cmp_eq_u32 vcc, 0, v{v_t[5]}")
    a("s_nop 3")
    a(f"s_cbranch_vccnz {name}_zsp")
    RB = [acc[0][1], acc[1][0], acc[1][1]]
    for q in (1, 2, 3):
        for g in range(4):
            a.lds(f"ds_read_b128 {vr(RB[q - 1] + 4 * g, 4)}, v{v_t[q]} offset:{g * 1024}", f"q{q}")
    a.wait(lg="q1")
    for i in range(16):
        a(f"v_add_f32 v{acc[0][0] + i}, v{acc[0][0] + i}, v{RB[0] + i}")
    a.wait(lg="q3")
    for i in range(16):
        a(f"v_add_f32 v{RB[1] + i}, v{RB[1] + i}, v{RB[2] + i}")
    for g in range(4):
        for i in range(4 * g, 4 * g + 4):
            a(f"v_add_f32 v{acc[0][0] + i}, v{acc[0][0] + i}, v{RB[1] + i}")
        a.lds(f"ds_write_b128 v{t0}, {vr(acc[0][0] + 4 * g, 4)} offset:{12288 + g * 1024}", "o")
    a.wait(lg="all")
    if PROF:
        pf.stamp()
        pf.stamp(real=True)
        pf.dump(SRD_WS, 2, s_z, v_t[0], s_t0, 4)
    a("s_endpgm")


def gemm_part(a, V, S, name, s_w, v_lane, SRD_WD, SRD_WS, SRD_OUT, build_srds, pf):
    s_sp, s_dp, s_sw, s_dw = [S.alloc() for _ in range(4)]
    s_t0, s_t1, s_t2 = [S.alloc() for _ in range(3)]
    s_oh0, s_oh1, s_ow, s_ow2, s_m = [S.alloc() for _ in range(5)]
    v_n, v_h = V.alloc(), V.alloc()
    v_t = [V.alloc() for _ in range(8)]
    v_dl, v_dw = V.alloc(), V.alloc()
    v_rw = [V.alloc(), V.alloc()]
    v_xo = V.alloc()
    v_x = V.alloc(8, 4)
    acc = [[V.alloc(16, 4) for _ in range(2)] for _ in range(2)]
    HP = V.alloc(max(8 * R, 64), 4)
    HR = [HP + 8 * i for i in range(R)]
    WF = [V.alloc(8, 4), V.alloc(8, 4)]
    RB = [HP + 16 * i for i in range(4)]
    t0, t1, t2, t3, t4 = v_t[:5]

    a(f"s_setprio {B_PRIO}")
    tile_decode(a, s_sp, s_dp, s_t2)
    a(f"s_and_b32 s{s_sw}, s{s_w}, 1")
    a(f"s_lshr_b32 s{s_dw}, s{s_w}, 1")
    a(f"v_lshlrev_b32 v{v_dl}, 4, v{v_lane}")
    a(f"v_lshrrev_b32 v{t0}, 3, v{v_lane}")
    a(f"v_bfe_u32 v{t1}, v{v_lane}, 4, 1")
    a(f"v_lshlrev_b32 v{t1}, 2, v{t1}")
    a(f"v_and_b32 v{t2}, 7, v{v_lane}")
    a(f"v_xor_b32 v{t1}, v{t1}, v{t2}")
    a(f"v_lshlrev_b32 v{t1}, 4, v{t1}")
    a(f"v_lshl_add_u32 v{v_dw}, v{t0}, 10, v{t1}")
    a(f"s_mul_i32 s{s_oh0}, s{s_sp}, 224")
    a(f"s_mul_i32 s{s_t1}, s{s_w}, {NKB}")
    a(f"s_add_u32 s{s_oh0}, s{s_oh0}, s{s_t1}")
    a(f"s_mul_i32 s{s_t2}, s{s_sw}, 112")
    a(f"s_sub_u32 s{s_oh1}, s{s_oh0}, s{s_t2}")
    a(f"s_add_u32 s{s_oh1}, s{s_oh1}, 112")
    a(f"s_add_u32 s{s_oh0}, s{s_oh0}, s{s_t2}")
    a(f"s_lshl_b32 s{s_oh0}, s{s_oh0}, 10")
    a(f"s_lshl_b32 s{s_oh1}, s{s_oh1}, 10")
    a(f"s_lshl_b32 s{s_ow}, s{s_t1}, 14")
    a(f"s_lshl_b32 s{s_t1}, s{s_dp}, 7")
    a(f"s_add_u32 s{s_ow}, s{s_ow}, s{s_t1}")
    a(f"s_add_u32 s{s_ow2}, s{s_ow}, 8192")
    ring_base(a, s_m, s_w, s_t2)
    if not FZ:
        a("s_waitcnt lgkmcnt(0)")
        build_srds()
        a("s_barrier")

    HSC = " sc1" if FZ else ""

    def load_ops(i):
        sl = i % R
        tag = f"d{i}"

        def f0():
            a(f"s_add_u32 m0, s{s_m}, {sl * 2048}")
            a.vmem(f"buffer_load_dwordx4 {vr(HR[sl], 4)}, v{v_dl}, {sr(SRD_WS, 4)}, s{s_oh0} offen offset:{(i % 4) * 1024}{HSC}", tag)

        def f1():
            a.vmem(f"buffer_load_dwordx4 v{v_dw}, {sr(SRD_WD, 4)}, s{s_ow} offen lds", tag)
            a(f"s_add_u32 m0, s{s_m}, {sl * 2048 + 1024}")
            a(f"s_add_u32 s{s_ow}, s{s_ow}, 16384")

        def f2():
            a.vmem(f"buffer_load_dwordx4 v{v_dw}, {sr(SRD_WD, 4)}, s{s_ow2} offen lds", tag)
            a(f"s_add_u32 s{s_ow2}, s{s_ow2}, 16384")

        def f3():
            a.vmem(f"buffer_load_dwordx4 {vr(HR[sl] + 4, 4)}, v{v_dl}, {sr(SRD_WS, 4)}, s{s_oh1} offen offset:{(i % 4) * 1024}{HSC}", tag)
            if i % 4 == 3:
                a(f"s_add_u32 s{s_oh0}, s{s_oh0}, 4096")
                a(f"s_add_u32 s{s_oh1}, s{s_oh1}, 4096")
        return [f0, f1, f2, f3]

    pro = [load_ops(i) for i in range(R - 1)]
    if FZ:
        for i in range(R - 1):
            a(f"s_add_u32 m0, s{s_m}, {(i % R) * 2048}")
            a("s_nop 0")
            pro[i][1]()
            pro[i][2]()
        FZ["signal"](a, v_t, s_t0)
    else:
        for i in range(2):
            for f in pro[i]:
                f()
    a(f"v_and_b32 v{v_n}, 31, v{v_lane}")
    a(f"v_lshrrev_b32 v{v_h}, 5, v{v_lane}")
    a(f"v_bfe_u32 v{t0}, v{v_lane}, 2, 2")
    a(f"v_and_b32 v{t1}, 3, v{v_lane}")
    a(f"v_bfe_u32 v{t2}, v{v_lane}, 4, 1")
    a(f"v_lshl_add_u32 v{t3}, v{v_h}, 2, v{t0}")
    a(f"v_lshlrev_b32 v{t3}, 7, v{t3}")
    a(f"v_lshrrev_b32 v{t0}, 1, v{t0}")
    a(f"v_xor_b32 v{t4}, s{s_dw}, v{t0}")
    a(f"v_lshl_add_u32 v{t4}, v{t4}, 6, v{t3}")
    a(f"v_add_u32 v{t4}, s{s_m}, v{t4}")
    a(f"v_and_b32 v{v_t[5]}, 1, v{t1}")
    a(f"v_lshl_add_u32 v{t4}, v{v_t[5]}, 5, v{t4}")
    a(f"v_lshl_add_u32 v{t4}, v{t2}, 4, v{t4}")
    a(f"v_lshrrev_b32 v{v_t[5]}, 1, v{t1}")
    a(f"v_lshl_add_u32 v{v_rw[0]}, v{v_t[5]}, 3, v{t4}")
    a(f"v_xor_b32 v{v_rw[1]}, 64, v{v_rw[0]}")
    if not FZ:
        for i in range(2, R - 1):
            for f in pro[i]:
                f()
    out_addr(a, v_xo, v_n, v_h, s_sp, s_dp, s_sw, s_dw, s_t0, s_t1)
    a(f"v_add_u32 v{t0}, s{s_m}, v{v_dl}")
    for q in (1, 2, 3):
        a(f"s_xor_b32 s{s_t1}, s{s_w}, {q}")
        ring_base(a, s_t0, s_t1, s_t2)
        a(f"s_add_u32 s{s_t0}, s{s_t0}, {(q - 1) * 4096}")
        a(f"v_add_u32 v{v_t[q]}, s{s_t0}, v{v_dl}")
    a(f"s_lshl_b32 s{s_t0}, s{s_w}, 14")
    a(f"s_add_u32 s{s_t0}, s{s_t0}, {L_Z + 12288}")
    a(f"v_add_u32 v{t4}, s{s_t0}, v{v_dl}")
    assert R * 2048 >= 12288
    if FZ:
        pf.stamp()
        FZ["lwait"](a, f"{name}_bw", 132, v_t[5], v_t[6], s_t0)
        for i in range(R - 1):
            pro[i][0]()
            pro[i][3]()

    def read_ops(i):
        b = (i % R) * 2048
        F = WF[i % 2]
        return [lambda tl=tl, e=e: a.lds(f"ds_read_b64_tr_b16 {vr(F + 4 * tl + 2 * e, 2)}, v{v_rw[tl]} offset:{b + e * 1024}", f"r{i}")
                for tl in range(2) for e in range(2)]

    QORD = ((1, 1), (0, 1), (1, 0), (0, 0))

    def mfma_ops(i):
        F = WF[i % 2]
        ops = []
        for dt, st in QORD:
            A = vr(acc[dt][st], 16)
            C = "0" if i == 0 else A
            ops.append(lambda A=A, C=C, dt=dt, st=st: a(
                f"v_mfma_f32_32x32x16_bf16 {A}, {vr(F + 4 * dt, 4)}, {vr(HR[i % R] + 4 * st, 4)}, {C}"))
        return ops

    pf.stamp()
    a.wait(vm="d0")
    for f in read_ops(0):
        f()
    for i in range(NKB):
        a.comment(f"k-step {i}")
        if i % 4 == 0 and PROF != 4:
            pf.stamp()
        if i + 1 < NKB:
            a.wait(vm=f"d{i + 1}", lg=f"r{i}")
            for f in read_ops(i + 1):
                f()
        else:
            a.wait(lg=f"r{i}")
        nxt = i + R - 1
        lo = load_ops(nxt) if nxt < NKB else []
        m = mfma_ops(i)
        for q in range(4):
            m[q]()
            if q < len(lo):
                lo[q]()
    pf.stamp()
    a("s_nop 7")
    for pd, ps in QORD[:3]:
        for g in range(4):
            a.lds(f"ds_write_b128 v{t0}, {vr(acc[pd][ps] + 4 * g, 4)} offset:{(2 * pd + ps - 1) * 4096 + g * 1024}", "qw")
    a.wait(lg="all")
    a("s_barrier")
    pf.stamp()
    for q in (0, 3, 1, 2):
        for g in range(4):
            a.lds(f"ds_read_b128 {vr(RB[q] + 4 * g, 4)}, v{v_t[q] if q else t4} offset:{g * 1024}", f"q{q}")
    A0 = acc[0][0]
    a.wait(lg="q0")
    for i in range(16):
        a(f"v_add_f32 v{A0 + i}, v{A0 + i}, v{RB[0] + i}")
    a.wait(lg="q1")
    for i in range(16):
        a(f"v_add_f32 v{RB[3] + i}, v{RB[3] + i}, v{RB[1] + i}")
    a.wait(lg="q2")
    for i in range(16):
        a(f"v_add_f32 v{A0 + i}, v{A0 + i}, v{RB[2] + i}")
    for hh in range(2):
        for i in range(8 * hh, 8 * hh + 8):
            a(f"v_add_f32 v{A0 + i}, v{A0 + i}, v{RB[3] + i}")
        for i in range(4 * hh, 4 * hh + 4):
            a(f"v_cvt_pk_bf16_f32 v{v_x + i}, v{A0 + 2 * i}, v{A0 + 2 * i + 1}")
        a(f"buffer_store_dwordx4 {vr(v_x + 4 * hh, 4)}, v{v_xo}, {sr(SRD_OUT, 4)}, 0 offen offset:{16 * hh}")
    if PROF:
        if PROF != 4:
            pf.stamp()
            a("s_waitcnt vmcnt(0)")
        pf.stamp()
        pf.stamp(real=True)
        pf.dump(SRD_WS, 2, s_w, v_t[0], s_t0, 4)


TOUCH_H = int(os.environ.get("TOUCH_H", "0"))
POLL_SLEEP = int(os.environ.get("POLL_SLEEP", "4"))
TOUCH_W = int(os.environ.get("TOUCH_W", "0"))


def gen_k23(name):
    import copy
    a = Asm()
    SRD_X, SRD_WD, SRD_WS, SRD_OUT, SRD_C = 4, 8, 12, 16, 20
    S = Regs(24, 102)
    s_p = S.alloc(12, 4)
    s_w = S.alloc()
    v_lane = 1
    a.label("k23_begin")
    a("s_cmp_ge_u32 s2, 256")
    a(f"s_cbranch_scc1 {name}_done")
    pfg = Prof(a, S, 18, 2)
    pfg.stamp(real=True)
    pfg.stamp()
    a(f"s_load_dwordx2 {sr(s_p + 2, 2)}, s[0:1], {KA_WS}")
    a(f"s_load_dwordx2 {sr(s_p, 2)}, s[0:1], {KA_X}")
    a(f"s_load_dwordx4 {sr(s_p + 4, 4)}, s[0:1], {KA_WD}")
    a(f"v_lshrrev_b32 v{v_lane}, 6, v0")
    a(f"s_getpc_b64 {sr(s_p + 8, 2)}")
    a(f"s_add_u32 s{s_p + 8}, s{s_p + 8}, ctab@rel32@lo+4")
    a(f"s_addc_u32 s{s_p + 9}, s{s_p + 9}, ctab@rel32@hi+12")
    a(f"v_readfirstlane_b32 s{s_w}, v{v_lane}")
    a(f"v_and_b32 v{v_lane}, 63, v0")
    a(f"s_cmp_lt_u32 s{s_w}, 4")
    a(f"s_cbranch_scc1 {name}_gemm")
    if FFT_PRIO:
        a(f"s_setprio {FFT_PRIO}")
    srd(a, SRD_C, s_p + 8, 24576)
    Sn = S.n
    V1 = Regs(2, 256)
    pff = copy.copy(pfg)
    pff.region = 1
    L = fft_part(a, V1, S, name, s_w, SRD_WS, SRD_C, v_lane, pff)
    srd(a, SRD_WS, s_p + 2, WS_SIZE)
    srd(a, SRD_X, s_p, 2048 * 1024)
    a(f"s_cmp_gt_u32 s{L['s_job']}, 256")
    a(f"s_cbranch_scc1 {name}_nojob")
    fft_main(L)
    a(f"s_branch {name}_zpart")
    a.label(f"{name}_nojob")
    if PROF:
        n = pff.n
        pff.n = 2
        while pff.n < n:
            pff.stamp()
    if TOUCH_H:
        sa, sb, vt = L["s_a"], L["s_b"], L["v_t"]
        a(f"s_and_b32 s{sa}, s2, 7")
        a(f"s_lshl_b32 s{sa}, s{sa}, 2")
        a(f"s_bfe_u32 s{sb}, s2, 0x20003")
        a(f"s_add_u32 s{sa}, s{sa}, s{sb}")
        a(f"s_mul_i32 s{sa}, s{sa}, {224 * 1024}")
        a(f"s_and_b32 s{sb}, s{s_w}, 1")
        a(f"s_mul_i32 s{sb}, s{sb}, {112 * 1024}")
        a(f"s_add_u32 s{sa}, s{sa}, s{sb}")
        a(f"s_lshr_b32 s{sb}, s2, 5")
        a(f"s_lshl_b32 s{sb}, s{sb}, 7")
        a(f"s_add_u32 s{sa}, s{sa}, s{sb}")
        a(f"v_lshrrev_b32 v{vt[0]}, 2, v{v_lane}")
        a(f"v_min_u32 v{vt[0]}, 13, v{vt[0]}")
        a(f"v_and_b32 v{vt[1]}, 3, v{v_lane}")
        a(f"v_mul_u32_u24 v{vt[1]}, 28, v{vt[1]}")
        a(f"v_add_u32 v{vt[0]}, v{vt[0]}, v{vt[1]}")
        a(f"v_lshlrev_b32 v{vt[0]}, 10, v{vt[0]}")
        a(f"buffer_load_dword v{vt[2]}, v{vt[0]}, {sr(SRD_WS, 4)}, s{sa} offen")
        a(f"s_add_u32 s{sa}, s{sa}, {14 * 1024}")
        a(f"buffer_load_dword v{vt[3]}, v{vt[0]}, {sr(SRD_WS, 4)}, s{sa} offen")
        a("s_waitcnt vmcnt(0)")
    if TOUCH_W:
        sa, sb, vt = L["s_a"], L["s_b"], L["v_t"]
        srd(a, SRD_WD, s_p + 4, 1792 * 1024)
        a(f"s_lshr_b32 s{sa}, s2, 5")
        a(f"s_lshl_b32 s{sa}, s{sa}, 7")
        a(f"s_bfe_u32 s{sb}, s2, 0x20003")
        a(f"s_lshl_b32 s{sb}, s{sb}, 10")
        a(f"s_add_u32 s{sa}, s{sa}, s{sb}")
        a(f"s_and_b32 s{sb}, s{s_w}, 1")
        a(f"s_add_u32 s{sb}, s{sb}, 1")
        a(f"s_lshl_b32 s{sb}, s{sb}, 16")
        a(f"s_add_u32 s{sa}, s{sa}, s{sb}")
        a(f"v_and_b32 v{vt[1]}, 3, v{v_lane}")
        a(f"v_mul_u32_u24 v{vt[1]}, 448, v{vt[1]}")
        a(f"v_and_b32 v{vt[0]}, 60, v{v_lane}")
        a(f"v_add_u32 v{vt[0]}, v{vt[0]}, v{vt[1]}")
        a(f"v_lshlrev_b32 v{vt[0]}, 10, v{vt[0]}")
        for j in range(3):
            a(f"buffer_load_dword v{vt[2 + j]}, v{vt[0]}, {sr(SRD_WD, 4)}, s{sa} offen")
            a(f"s_add_u32 s{sa}, s{sa}, {128 * 1024}")
            if TOUCH_W == 2:
                a("s_waitcnt vmcnt(0)")
        a("s_waitcnt vmcnt(0)")
    a.label(f"{name}_zpart")
    a.vm, a.lg = [], []
    S.n = Sn
    V3 = Regs(2, 256)
    z_part(a, V3, S, name, s_w, v_lane, SRD_X, SRD_WS, pff)
    a.label(f"{name}_gemm")
    a.vm, a.lg = [], []
    S.n = Sn
    V2 = Regs(2, 256)

    def build_srds():
        srd(a, SRD_WS, s_p + 2, WS_SIZE)
        srd(a, SRD_WD, s_p + 4, 1792 * 1024)
        srd(a, SRD_OUT, s_p + 6, 2048 * 1024)
    gemm_part(a, V2, S, name, s_w, v_lane, SRD_WD, SRD_WS, SRD_OUT, build_srds, pfg)
    a.label(f"{name}_done")
    a("s_endpgm")
    a.label("k23_end")
    launch = f"; @launch kernel={name} grid=(256,1,1) block=(512,1,1) lds={K23_LDS}"
    return kernel_header(name) + a.text(), kernel_desc(name, max(V1.hi, V2.hi, V3.hi), 102), gen_ctab(), launch
```

```python
from gen_common import *
import gen_k1, gen_k23
from gen_k2 import gen_ctab
import copy

POLL_SLEEP = int(os.environ.get("F_SLEEP", "4"))


def gen_kf(name):
    C = gen_k1.gen_k1(name, fused=True)
    a, S, pf = C["a"], C["S"], C["pf"]
    s_w, s_non, s_rb, s_cg, s_out = C["s_w"], C["s_non"], C["s_rb"], C["s_cg"], C["s_out"]
    SRD_X, SRD_WS, SRD_WD = C["SRD_X"], C["SRD_WS"], C["SRD_WD"]
    SRD_OUT, SRD_C = C["SRD_G"], C["SRD_U"]
    v_lane = C["v_lane"]
    assert v_lane == 1
    L_F = gen_k1.F_LF
    gen_k23.L_F = L_F
    uid = [0]

    def signal(a, vt, st, skip_hi=False):
        uid[0] += 1
        if skip_hi:
            a(f"s_cmp_ge_u32 s{s_w}, 6")
            a(f"s_cbranch_scc1 {name}_sg{uid[0]}")
        a(f"s_waitcnt vmcnt({len(a.vm)})")
        a(f"v_mov_b32 v{vt[0]}, {L_F + 128}")
        a(f"v_mov_b32 v{vt[1]}, 1")
        a("s_mov_b64 exec, 1")
        a(f"ds_add_rtn_u32 v{vt[2]}, v{vt[0]}, v{vt[1]}")
        a("s_waitcnt lgkmcnt(0)")
        a(f"v_readfirstlane_b32 s{st}, v{vt[2]}")
        a(f"s_cmp_lg_u32 s{st}, 7")
        a(f"s_cbranch_scc1 {name}_sg{uid[0]}")
        a(f"s_lshl_b32 s{st}, s{s_rb}, 4")
        a(f"s_add_u32 s{st}, s{st}, s{s_cg}")
        a(f"s_lshl_b32 s{st}, s{st}, 7")
        a(f"s_add_u32 s{st}, s{st}, {gen_k1.WS_FL}")
        a(f"v_mov_b32 v{vt[0]}, s{s_non}")
        a(f"v_mov_b32 v{vt[1]}, 0")
        a(f"buffer_store_dword v{vt[0]}, v{vt[1]}, {sr(SRD_WS, 4)}, s{st} offen sc1")
        a.label(f"{name}_sg{uid[0]}")
        a("s_mov_b64 exec, -1")

    def poll(a, lbl, addrs, s_off, vdst, s_cnt):
        a(f"s_add_u32 s{s_off}, s{s_off}, {gen_k1.WS_FL}")
        a(f"s_mov_b32 s{s_cnt}, {gen_k1.SPIN_MAX}")
        a.label(lbl)
        for i, (va, off) in enumerate(addrs):
            a(f"buffer_load_dword v{vdst + i}, v{va}, {sr(SRD_WS, 4)}, s{s_off} offen offset:{off} sc1")
        a("s_waitcnt vmcnt(0)")
        a.vm = []
        for i in range(len(addrs)):
            a(f"v_xor_b32 v{vdst + i}, s{s_non}, v{vdst + i}")
        for i in range(1, len(addrs)):
            a(f"v_or_b32 v{vdst}, v{vdst}, v{vdst + i}")
        a(f"v_cmp_ne_u32 vcc, 0, v{vdst}")
        a(f"s_sub_u32 s{s_cnt}, s{s_cnt}, 1")
        a(f"s_cbranch_scc1 {lbl}_ok")
        a("s_nop 2")
        a(f"s_cbranch_vccz {lbl}_ok")
        a(f"s_sleep {POLL_SLEEP}")
        a(f"s_branch {lbl}")
        a.label(f"{lbl}_ok")

    def lwait(a, lbl, off, va, vd, st):
        a(f"v_mov_b32 v{va}, {L_F + off}")
        a.label(lbl)
        a(f"ds_read_b32 v{vd}, v{va}")
        a("s_waitcnt lgkmcnt(0)")
        a(f"v_readfirstlane_b32 s{st}, v{vd}")
        a(f"s_cmp_lg_u32 s{st}, 0")
        a(f"s_cbranch_scc1 {lbl}_ok")
        a("s_sleep 1")
        a(f"s_branch {lbl}")
        a.label(f"{lbl}_ok")
        a.lg = []
    gen_k23.FZ = dict(signal=signal, poll=poll, lwait=lwait)

    a.label("k23_begin")
    a.vm, a.lg = [], []
    free = [C[k] for k in "s_mi s_ni s_rs s_goff s_uoff s_t0 s_t1 s_t2 s_t3 s_sx s_sw s_sw2 s_rs4 s_rs64 s_m0x s_tile".split()]
    free += [C["s_p"] + i for i in range(14) if C["s_p"] + i != s_non]

    class Pool:
        def __init__(self):
            self.f = sorted(free)

        def alloc(self, cnt=1, align=1):
            for i, r in enumerate(self.f):
                if r % align == 0 and self.f[i:i + cnt] == list(range(r, r + cnt)):
                    del self.f[i:i + cnt]
                    return r
            raise AssertionError("out of scalar registers")
    pf.stamp()
    a(f"s_cmp_lt_u32 s{s_w}, 4")
    a(f"s_cbranch_scc1 {name}_gemm")
    a(f"s_setprio {gen_k23.FFT_PRIO}")
    a(f"s_getpc_b64 {sr(SRD_C, 2)}")
    a(f"s_add_u32 s{SRD_C}, s{SRD_C}, ctab@rel32@lo+4")
    a(f"s_addc_u32 s{SRD_C + 1}, s{SRD_C + 1}, ctab@rel32@hi+12")
    a(f"s_and_b32 s{SRD_C + 1}, s{SRD_C + 1}, 0xffff")
    a(f"s_mov_b32 s{SRD_C + 2}, 24576")
    a(f"s_mov_b32 s{SRD_C + 3}, 0x00020000")
    V1 = Regs(2, 256)
    nul = copy.copy(pf)
    nul.stamp = lambda real=False: None
    L = gen_k23.fft_part(a, V1, Pool(), name, s_w, SRD_WS, SRD_C, v_lane, nul)
    vt, sa, sb = L["v_t"], L["s_a"], L["s_b"]
    Cr = L["Cr"]
    a(f"s_cmp_lt_u32 s{s_w}, 6")
    a(f"s_cbranch_scc1 {name}_nopoll")
    signal(a, vt, sa)
    a(f"s_cmp_eq_u32 s{s_w}, 7")
    a(f"s_cbranch_scc1 {name}_poll7")
    a(f"v_min_u32 v{vt[0]}, 13, v{v_lane}")
    a(f"v_lshlrev_b32 v{vt[0]}, 7, v{vt[0]}")
    a(f"s_and_b32 s{sa}, s2, 7")
    a(f"s_lshl_b32 s{sa}, s{sa}, 1")
    a(f"s_bfe_u32 s{sb}, s2, 0x10004")
    a(f"s_add_u32 s{sa}, s{sa}, s{sb}")
    a(f"s_lshl_b32 s{sa}, s{sa}, 11")
    poll(a, f"{name}_bp", [(vt[0], 0)], sa, Cr, sb)
    a(f"v_mov_b32 v{vt[0]}, {L_F + 132}")
    a(f"s_branch {name}_pollset")
    a.label(f"{name}_poll7")
    a(f"v_lshlrev_b32 v{vt[0]}, 7, v{v_lane}")
    for q in range(1, 4):
        a(f"v_add_u32 v{vt[q]}, {8192 * q}, v{vt[0]}")
    a(f"s_mov_b32 s{sa}, 0")
    poll(a, f"{name}_ep", [(vt[q], 4) for q in range(4)], sa, Cr, sb)
    a(f"v_and_b32 v{vt[0]}, 15, v{v_lane}")
    a(f"v_lshlrev_b32 v{vt[0]}, 11, v{vt[0]}")
    a(f"s_lshr_b32 s{sa}, s2, 7")
    a(f"s_add_u32 s{sa}, s{sa}, 14")
    a(f"s_lshl_b32 s{sa}, s{sa}, 7")
    poll(a, f"{name}_up", [(vt[0], 0)], sa, Cr, sb)
    a(f"v_mov_b32 v{vt[0]}, {L_F + 136}")
    a.label(f"{name}_pollset")
    a(f"v_mov_b32 v{vt[1]}, 1")
    a(f"ds_write_b32 v{vt[0]}, v{vt[1]}")
    a(f"s_cmp_gt_u32 s{L['s_job']}, 256")
    a(f"s_cbranch_scc1 {name}_zpart")
    a.label(f"{name}_nopoll")
    a.vm, a.lg = [], []
    gen_k23.fft_main(L)
    a.label(f"{name}_zpart")
    a.vm, a.lg = [], []
    V3 = Regs(2, 256)
    pz = copy.copy(pf)
    pz.region = 1
    gen_k23.z_part(a, V3, Pool(), name, s_w, v_lane, SRD_X, SRD_WS, pz)
    a.label(f"{name}_gemm")
    a.vm, a.lg = [], []
    srd(a, SRD_OUT, s_out, 2048 * 1024)
    V2 = Regs(2, 256)
    pb = copy.copy(pf)
    pb.region = 2
    gen_k23.gemm_part(a, V2, Pool(), name, s_w, v_lane, SRD_WD, SRD_WS, SRD_OUT, None, pb)
    a.label(f"{name}_done")
    a("s_endpgm")
    a.label("k23_end")
    launch = f"; @launch grid=(256,1,1) block=(512,1,1) lds={gen_k1.K1_LDS}"
    vg = max(C["V"].hi, V1.hi, V2.hi, V3.hi)
    return kernel_header(name) + a.text(), kernel_desc(name, vg, 102), gen_k1.gen_ftab() + gen_ctab(), launch
```

```python
from gen_common import *

K1_LDS_X = 0
K1_LDS_G = 65536
K1_LDS_U = 114688
K1_LDS = 163840
K1_LDS_ST = K1_LDS_G + 2 * 16384
K1_LDS_CS = K1_LDS_ST + 8192
NSTAGE = 8
WS_ST = 15 << 20
SPIN_MAX = 1 << 14
SF = int(os.environ.get('K1_SF', '3'))
WT = os.environ.get("K1_WT", " sc1")
WTH = os.environ.get("K1_WTH", " sc1")
TOUCH_WD = int(os.environ.get("TOUCH_WD", "2"))
TOUCH = int(os.environ.get("TOUCH", "0"))
TOUCH_NEXT = int(os.environ.get("TOUCH_NEXT", "1"))
TLB_WARM = int(os.environ.get("TLB_WARM", "0"))
SENT = int(os.environ.get("SENT", "-1"))
WDST = int(os.environ.get("WDST", "3"))
WDN = int(os.environ.get("WDN", "1"))
G0S = int(os.environ.get("G0S", "4"))
GSTEP = int(os.environ.get("GSTEP", "0"))
XRS = int(os.environ.get("XRS", "-1"))
MAP = int(os.environ.get("MAP", "0"))
PBAR = int(os.environ.get("PBAR", "2"))
KROT = int(os.environ.get("KROT", "1"))
SCS = int(os.environ.get("SCS", "1"))
TLEAD = int(os.environ.get("TLEAD", "0"))
TEARLY = int(os.environ.get("TEARLY", "0"))


WS_CS = WS_ST + 131072
WS_FL = WS_ST + 65536
F_LF = K1_LDS_ST + 12288


def gen_k1(name, fused=False):
    global G0S, TOUCH_NEXT
    if fused:
        G0S = -1
    a = Asm()
    V = Regs(1, 256)
    S = Regs(40, 102)
    SRD_X, SRD_G, SRD_U, SRD_WS, SRD_WR, SRD_WI, SRD_WD, SRD_T, SRD_D = 4, 8, 12, 16, 20, 24, 28, 32, 36
    s_rb, s_cg, s_w, s_mi, s_ni, s_rs, s_goff, s_uoff = [S.alloc() for _ in range(8)]
    s_t0, s_t1, s_t2, s_t3 = [S.alloc() for _ in range(4)]
    s_sx, s_sw, s_sw2, s_rs4, s_rs64, s_m0x, s_tile = [S.alloc() for _ in range(7)]
    s_p = S.alloc(16, 4)
    s_tab = S.alloc(2, 2)

    v_lane, v_n, v_h = V.alloc(), V.alloc(), V.alloc()
    v_t = [V.alloc() for _ in range(8)]
    v_dx = [V.alloc(), V.alloc()]
    v_dg, v_du = V.alloc(), V.alloc()
    v_xa = [V.alloc() for _ in range(4)]
    v_xs = V.alloc()
    v_wa = [V.alloc(), V.alloc()]
    v_st = [V.alloc(2, 2), V.alloc(2, 2)]
    v_f1a, v_f1s, v_f2a, v_f2s = [V.alloc() for _ in range(4)]
    v_pa = [V.alloc() for _ in range(3)]
    v_f1 = V.alloc(4, 4)
    v_f2 = V.alloc(4, 4)
    v_fi = V.alloc(8, 4)
    v_cs = [V.alloc(4, 4), V.alloc(4, 4)]
    v_sel = V.alloc(4, 4)
    v_XS = [V.alloc(4, 4) for _ in range(2)]
    v_X = [[V.alloc(4, 4) for _ in range(2)] for _ in range(2)]
    v_W = [[V.alloc(4, 4) for _ in range(2)] for _ in range(2)]
    v_acc = [[V.alloc(16, 4) for _ in range(2)] for _ in range(2)]
    v_e = V.alloc(16, 4)
    v_FA = [V.alloc(4, 4) for _ in range(2)]
    v_FB = [V.alloc(4, 4) for _ in range(2)]
    v_cso = V.alloc()
    v_sn = V.alloc(4, 4)
    t0, t1, t2, t3, t4 = v_t[:5]
    u0, u1, u2, u3 = v_t[4:8]

    pf = Prof(a, S, 12, 0)
    a("s_cmp_ge_u32 s2, 256")
    a(f"s_cbranch_scc1 {name}_done")
    pf.stamp(real=True)
    pf.stamp()
    a(f"s_load_dwordx2 {sr(s_p, 2)}, s[0:1], {KA_X}")
    a(f"s_load_dwordx4 {sr(s_p + 4, 4)}, s[0:1], {KA_WG}")
    a(f"s_load_dwordx2 {sr(s_p + 2, 2)}, s[0:1], {KA_WS}")
    a(f"s_load_dwordx4 {sr(s_p + 8, 4)}, s[0:1], {KA_WR}")
    a(f"s_load_dwordx4 {sr(s_p + 12, 4)}, s[0:1], {KA_WD}")
    a(f"s_load_dwordx2 {sr(SRD_D, 2)}, s[0:1], {KA_DBG}")
    s_out = s_p + 14
    a(f"v_lshrrev_b32 v{t0}, 6, v0")
    a(f"v_and_b32 v{v_lane}, 63, v0")
    a(f"v_readfirstlane_b32 s{s_w}, v{t0}")
    if MAP == 0:
        a(f"s_bfe_u32 s{s_rb}, s2, 0x10002")
        a(f"s_lshl_b32 s{s_rb}, s{s_rb}, 3")
        a(f"s_bfe_u32 s{s_t2}, s2, 0x30003")
        a(f"s_add_u32 s{s_rb}, s{s_rb}, s{s_t2}")
        a(f"s_and_b32 s{s_cg}, s2, 3")
        a(f"s_lshl_b32 s{s_cg}, s{s_cg}, 2")
        a(f"s_lshr_b32 s{s_t2}, s2, 6")
        a(f"s_add_u32 s{s_cg}, s{s_cg}, s{s_t2}")
    elif MAP == 1:
        a(f"s_and_b32 s{s_rb}, s2, 7")
        a(f"s_lshl_b32 s{s_rb}, s{s_rb}, 1")
        a(f"s_bfe_u32 s{s_t2}, s2, 0x10003")
        a(f"s_add_u32 s{s_rb}, s{s_rb}, s{s_t2}")
        a(f"s_lshr_b32 s{s_cg}, s2, 4")
    else:
        a(f"s_bfe_u32 s{s_rb}, s2, 0x20001")
        a(f"s_lshl_b32 s{s_rb}, s{s_rb}, 2")
        a(f"s_bfe_u32 s{s_t2}, s2, 0x20003")
        a(f"s_add_u32 s{s_rb}, s{s_rb}, s{s_t2}")
        a(f"s_and_b32 s{s_cg}, s2, 1")
        a(f"s_lshl_b32 s{s_cg}, s{s_cg}, 3")
        a(f"s_lshr_b32 s{s_t2}, s2, 5")
        a(f"s_add_u32 s{s_cg}, s{s_cg}, s{s_t2}")
    a(f"s_sub_u32 s{s_t0}, s{s_cg}, 14")
    a(f"s_lshl_b32 s{s_t0}, s{s_t0}, 9")
    a(f"s_add_u32 s{s_t1}, s{s_t0}, 256")
    a(f"s_lshl_b32 s{s_t2}, s{s_cg}, 8")
    a(f"s_movk_i32 s{s_rs}, 3584")
    a(f"s_cmp_ge_u32 s{s_cg}, 14")
    a(f"s_cselect_b32 s{s_rs}, 1024, s{s_rs}")
    a(f"s_cselect_b32 s{s_goff}, s{s_t0}, s{s_t2}")
    a(f"s_cselect_b32 s{s_uoff}, s{s_t1}, s{s_t2}")
    a(f"s_lshl_b32 s{s_rs4}, s{s_rs}, 2")
    a(f"s_lshl_b32 s{s_rs64}, s{s_rs}, 6")
    a(f"s_getpc_b64 {sr(s_tab, 2)}")
    a(f"s_add_u32 s{s_tab}, s{s_tab}, ftab@rel32@lo+4")
    a(f"s_addc_u32 s{s_tab + 1}, s{s_tab + 1}, ftab@rel32@hi+12")

    a(f"v_lshrrev_b32 v{t0}, 3, v{v_lane}")
    a(f"v_and_b32 v{t1}, 7, v{v_lane}")
    a(f"v_lshrrev_b32 v{t2}, 4, v{v_lane}")
    a(f"v_xor_b32 v{t1}, v{t1}, v{t2}")
    a(f"v_lshlrev_b32 v{t1}, 4, v{t1}")
    a(f"v_lshl_add_u32 v{t1}, v{t0}, 16, v{t1}")
    a(f"s_and_b32 s{s_t0}, s{s_w}, 1")
    a(f"s_lshl_b32 s{s_t0}, s{s_t0}, 20")
    a(f"s_lshr_b32 s{s_t1}, s{s_w}, 1")
    a(f"s_lshl_b32 s{s_t1}, s{s_t1}, 10")
    a(f"s_add_u32 s{s_t0}, s{s_t0}, s{s_t1}")
    a(f"s_lshl_b32 s{s_t1}, s{s_rb}, 12")
    a(f"s_add_u32 s{s_t0}, s{s_t0}, s{s_t1}")
    a(f"v_add_u32 v{v_dx[0]}, s{s_t0}, v{t1}")
    a(f"v_xor_b32 v{t1}, 0x80040, v{t1}")
    a(f"v_add_u32 v{v_dx[1]}, s{s_t0}, v{t1}")
    a(f"v_lshlrev_b32 v{t3}, 6, v{t2}")
    a(f"v_and_b32 v{t1}, 15, v{v_lane}")
    a(f"v_lshlrev_b32 v{t1}, 4, v{t1}")
    a(f"v_xor_b32 v{t1}, v{t1}, v{t3}")
    a(f"s_lshl_b32 s{s_t0}, s{s_w}, 3")
    a(f"v_add_u32 v{t0}, s{s_t0}, v{t2}")
    a(f"v_mul_lo_u32 v{t0}, v{t0}, s{s_rs}")
    a(f"v_add3_u32 v{v_dg}, v{t0}, v{t1}, s{s_goff}")
    a(f"v_xor_b32 v{t1}, 32, v{t1}")
    a(f"v_add3_u32 v{v_du}, v{t0}, v{t1}, s{s_uoff}")
    a(f"s_lshl_b32 s{s_m0x}, s{s_w}, 11")
    a(f"s_lshl_b32 s{s_t0}, s{s_cg}, 3")
    a(f"s_add_u32 s{s_t0}, s{s_t0}, s{s_w}")
    a(f"s_and_b32 s{s_t1}, s{s_t0}, 31")
    a(f"s_lshl_b32 s{s_t1}, s{s_t1}, 16")
    a(f"s_lshr_b32 s{s_t0}, s{s_t0}, 5")
    a(f"s_lshl_b32 s{s_t0}, s{s_t0}, 10")
    a(f"s_add_u32 s{s_t1}, s{s_t1}, s{s_t0}")
    a(f"s_lshl_b32 s{s_t0}, s{s_rb}, 12")
    a(f"s_add_u32 s{s_t3}, s{s_t1}, s{s_t0}")
    a(f"v_lshlrev_b32 v{t1}, 4, v{v_lane}")
    if KROT:
        a(f"s_and_b32 s{s_t0}, s{s_rb}, 7")
        a(f"s_lshl_b32 s{s_sx}, s{s_t0}, 7")
        a(f"s_mul_i32 s{s_sw}, s{s_t0}, s{s_rs64}")
    else:
        a(f"s_mov_b32 s{s_sx}, 0")
        a(f"s_mov_b32 s{s_sw}, 0")
    a(f"s_mov_b32 s{SRD_X + 2}, {2048 * 1024}")
    a(f"s_mov_b32 s{SRD_X + 3}, 0x00020000")
    a(f"s_mov_b32 s{SRD_G + 3}, 0x00020000")
    a(f"s_mov_b32 s{SRD_U + 3}, 0x00020000")
    a(f"s_lshl_b32 s{SRD_G + 2}, s{s_rs}, 9")
    a(f"s_lshl_b32 s{SRD_U + 2}, s{s_rs}, 9")
    if PROF == 3:
        pf.stamp()
    a("s_waitcnt lgkmcnt(0)")
    if PROF == 3:
        pf.stamp()
    a(f"s_mov_b32 s{SRD_X}, s{s_p}")
    a(f"s_and_b32 s{SRD_X + 1}, s{s_p + 1}, 0xffff")
    a(f"s_cmp_ge_u32 s{s_cg}, 14")
    a(f"s_cselect_b32 s{SRD_G}, s{s_tab}, s{s_p + 4}")
    a(f"s_cselect_b32 s{SRD_G + 1}, s{s_tab + 1}, s{s_p + 5}")
    a(f"s_cselect_b32 s{SRD_U}, s{s_tab}, s{s_p + 6}")
    a(f"s_cselect_b32 s{SRD_U + 1}, s{s_tab + 1}, s{s_p + 7}")
    a(f"s_and_b32 s{SRD_G + 1}, s{SRD_G + 1}, 0xffff")
    a(f"s_and_b32 s{SRD_U + 1}, s{SRD_U + 1}, 0xffff")

    def mk(ldsbase, vaddr, srdn, soff, mid, tag, post=None):
        def f():
            a(f"s_add_u32 m0, s{s_m0x}, {ldsbase}")
            a(mid)
            a.vmem(f"buffer_load_dwordx4 v{vaddr}, {sr(srdn, 4)}, s{soff} offen lds", tag)
            if post:
                a(post)
        return f

    def dma_x(stage):
        b = K1_LDS_X + (stage % 4) * 16384
        return [mk(b, v_dx[0], SRD_X, s_sx, f"s_and_b32 s{s_sx}, s{s_sx}, 1023", f"x{stage}"),
                mk(b + 1024, v_dx[1], SRD_X, s_sx, "s_nop 0", f"x{stage}", post=f"s_add_u32 s{s_sx}, s{s_sx}, 128")]

    def dma_w(stage):
        b = (stage % 3) * 16384
        tag = f"w{stage}"
        return [mk(K1_LDS_G + b, v_dg, SRD_G, s_sw, f"s_add_u32 s{s_sw2}, s{s_sw}, s{s_rs4}", tag),
                mk(K1_LDS_U + b, v_du, SRD_U, s_sw, "s_nop 0", tag),
                mk(K1_LDS_G + b + 1024, v_dg, SRD_G, s_sw2, f"s_add_u32 s{s_sw}, s{s_sw}, s{s_rs64}", tag),
                mk(K1_LDS_U + b + 1024, v_du, SRD_U, s_sw2, "s_nop 0", tag,
                   post=(f"s_cmp_ge_u32 s{s_sw}, s{SRD_G + 2}\ns_cselect_b32 s{s_sw}, 0, s{s_sw}" if KROT else None))]

    for f in dma_x(0) + dma_w(0):
        f()
    if PROF == 3:
        pf.stamp()
    XR = v_XS[0]
    a(f"v_add_u32 v{v_xs}, s{s_t3}, v{t1}")

    def xr_load():
        a.vmem(f"buffer_load_dwordx4 {vr(XR, 4)}, v{v_xs}, {sr(SRD_X, 4)}, 0 offen", "xr")
    s_tpar, s_toff, s_tstep = s_tab, s_tab + 1, s_p

    def touch_setup():
        a(f"v_and_b32 v{u0}, 15, v{v_lane}")
        a(f"s_cmp_ge_u32 s{s_w}, 4")
        a(f"s_cbranch_scc1 {name}_tx")
        a(f"s_and_b32 s{s_tpar}, s{s_w}, 1")
        a(f"s_and_b32 s{s_t1}, s{s_rb}, 7")
        a(f"v_lshrrev_b32 v{u1}, 1, v{u0}")
        a(f"v_lshl_add_u32 v{u1}, v{u1}, 3, s{s_t1}")
        a(f"v_mul_lo_u32 v{u1}, v{u1}, s{s_rs}")
        a(f"v_and_b32 v{u0}, 1, v{u0}")
        a(f"v_lshl_add_u32 v{v_pa[2]}, v{u0}, 7, v{u1}")
        a(f"s_cmp_ge_u32 s{s_w}, 2")
        a(f"s_cselect_b32 s{s_toff}, s{s_uoff}, s{s_goff}")
        a(f"s_cselect_b32 s{SRD_T}, s{SRD_U}, s{SRD_G}")
        a(f"s_cselect_b32 s{SRD_T + 1}, s{SRD_U + 1}, s{SRD_G + 1}")
        a(f"s_mov_b32 s{SRD_T + 2}, s{SRD_G + 2}")
        a(f"s_mov_b32 s{s_tstep}, s{s_rs64}")
        a(f"s_branch {name}_tj")
        a.label(f"{name}_tx")
        a(f"s_bfe_u32 s{s_tpar}, s{s_w}, 0x10001")
        a(f"s_and_b32 s{s_toff}, s{s_w}, 1")
        a(f"s_lshl_b32 s{s_toff}, s{s_toff}, 20")
        a(f"s_and_b32 s{s_t1}, s{s_cg}, 3")
        a(f"s_lshl_b32 s{s_t1}, s{s_t1}, 10")
        a(f"s_add_u32 s{s_toff}, s{s_toff}, s{s_t1}")
        a(f"s_lshl_b32 s{s_t1}, s{s_rb}, 12")
        a(f"s_add_u32 s{s_toff}, s{s_toff}, s{s_t1}")
        a(f"v_lshlrev_b32 v{v_pa[2]}, 16, v{u0}")
        a(f"s_mov_b32 s{SRD_T}, s{SRD_X}")
        a(f"s_mov_b32 s{SRD_T + 1}, s{SRD_X + 1}")
        a(f"s_mov_b32 s{SRD_T + 2}, s{SRD_X + 2}")
        a(f"s_movk_i32 s{s_tstep}, 128")
        a.label(f"{name}_tj")
        a(f"s_mov_b32 s{SRD_T + 3}, 0x00020000")
        a(f"s_add_u32 s{s_t1}, s{s_tpar}, 2")
        a(f"s_mul_i32 s{s_t1}, s{s_t1}, s{s_tstep}")
        a(f"s_add_u32 s{s_toff}, s{s_toff}, s{s_t1}")
        a(f"s_lshl_b32 s{s_tstep}, s{s_tstep}, 1")

    def touch(stage):
        if stage is not None:
            a(f"s_cmp_lg_u32 s{s_tpar}, {stage & 1}")
            a(f"s_cbranch_scc1 {name}_tn{stage}")
        a(f"buffer_load_dword v{v_pa[1]}, v{v_pa[2]}, {sr(SRD_T, 4)}, s{s_toff} offen")
        a(f"s_add_u32 s{s_toff}, s{s_toff}, s{s_tstep}")
        if stage is not None:
            a.label(f"{name}_tn{stage}")
    if TOUCH and TEARLY:
        touch_setup()
    if PBAR >= 1:
        a("s_barrier")
        if TOUCH and TEARLY:
            touch(None)
    elif XRS < 0:
        xr_load()
    a(f"v_and_b32 v{v_n}, 31, v{v_lane}")
    a(f"v_lshrrev_b32 v{v_h}, 5, v{v_lane}")
    a(f"s_and_b32 s{s_mi}, s{s_w}, 3")
    a(f"s_lshr_b32 s{s_ni}, s{s_w}, 2")
    d1 = dma_x(1) + dma_w(1) + dma_x(2)
    a(f"v_bfe_u32 v{t0}, v{v_n}, 1, 3")
    a(f"v_xor_b32 v{t0}, v{t0}, v{v_h}")
    a(f"s_lshl_b32 s{s_t0}, s{s_ni}, 13")
    a(f"v_lshlrev_b32 v{t1}, 7, v{v_n}")
    a(f"v_add_u32 v{t1}, s{s_t0}, v{t1}")
    a(f"v_lshl_add_u32 v{v_xa[0]}, v{t0}, 4, v{t1}")
    d1[0]()
    for j in range(1, 4):
        a(f"v_xor_b32 v{v_xa[j]}, {32 * j}, v{v_xa[0]}")
    d1[1]()
    a(f"v_bfe_u32 v{t2}, v{v_lane}, 4, 1")
    a(f"v_bfe_u32 v{t3}, v{v_lane}, 2, 2")
    a(f"v_lshl_add_u32 v{t4}, v{t3}, 1, v{t2}")
    a(f"s_lshl_b32 s{s_tile}, s{s_mi}, 1")
    a(f"s_add_u32 s{s_tile}, s{s_tile}, s{s_ni}")
    a(f"v_xor_b32 v{t4}, s{s_tile}, v{t4}")
    d1[2]()
    a(f"v_lshlrev_b32 v{t4}, 5, v{t4}")
    a(f"v_lshl_add_u32 v{t4}, v{t3}, 8, v{t4}")
    a(f"v_and_b32 v{t3}, 3, v{v_lane}")
    a(f"v_lshl_add_u32 v{t4}, v{t3}, 3, v{t4}")
    a(f"v_lshl_add_u32 v{t4}, v{v_h}, 11, v{t4}")
    d1[3]()
    a(f"v_mul_u32_u24 v{t2}, {K1_LDS_U - K1_LDS_G}, v{t2}")
    a(f"v_add_u32 v{t4}, v{t4}, v{t2}")
    a(f"v_add_u32 v{v_wa[0]}, {K1_LDS_G}, v{t4}")
    a(f"v_xor_b32 v{v_wa[1]}, 32, v{v_wa[0]}")
    d1[4]()
    a(f"v_bfe_u32 v{t2}, v{v_lane}, 4, 1")
    a(f"v_cmp_eq_u32 vcc, v{t3}, v{t2}")
    a(f"v_mov_b32 v{t2}, 0x3f803f80")
    a(f"v_mov_b32 v{t3}, 0")
    d1[5]()
    for i in range(4):
        a(f"v_cndmask_b32 v{v_sel + i}, v{t3}, v{t2}, vcc")
    if PBAR >= 2:
        a("s_barrier")
    if PBAR >= 1 and XRS < 0:
        xr_load()
    d1[6]()
    d1[7]()

    if TOUCH and not TEARLY:
        touch_setup()
        touch(None)
    srd(a, SRD_WS, s_p + 2, WS_SIZE)
    srd(a, SRD_WR, s_p + 8, 2048 * 514)
    srd(a, SRD_WI, s_p + 10, 2048 * 514)
    srd(a, SRD_WD, s_p + 12, 1792 * 1024)
    srd(a, SRD_D, SRD_D, 256)
    s_non = s_p + 4
    a(f"s_or_b32 s{s_t0}, s{s_w}, s2")
    a(f"s_cmp_lg_u32 s{s_t0}, 0")
    a(f"s_cbranch_scc1 {name}_nonon")
    a(f"s_memrealtime {sr(s_non, 2)}")
    a("s_waitcnt lgkmcnt(0)")
    a(f"s_or_b32 s{s_non}, s{s_non}, 1")
    a(f"v_mov_b32 v{t0}, s{s_non}")
    a(f"v_mov_b32 v{t1}, 0")
    a("s_mov_b64 exec, 1")
    a(f"buffer_store_dword v{t0}, v{t1}, {sr(SRD_D, 4)}, 0 offen sc1")
    a("s_mov_b64 exec, -1")
    a.label(f"{name}_nonon")

    side = {}

    def lines(txt):
        return [lambda l=l: a(l) for l in txt.strip().split("\n")]
    job = lines(f"""
v_lshrrev_b32 v{u0}, 3, v{v_lane}
v_and_b32 v{u1}, 7, v{v_lane}
s_and_b32 s{s_t0}, s2, 3
s_lshl_b32 s{s_t0}, s{s_t0}, 3
s_add_u32 s{s_t0}, s{s_t0}, s{s_w}
s_lshl_b32 s{s_t0}, s{s_t0}, 3
v_add_u32 v{u1}, s{s_t0}, v{u1}
s_lshr_b32 s{s_t1}, s2, 2
s_and_b32 s{s_t1}, s{s_t1}, 3
s_lshr_b32 s{s_t2}, s2, 4
v_lshrrev_b32 v{u2}, 2, v{u0}
v_lshlrev_b32 v{u2}, 4, v{u2}
v_and_b32 v{u3}, 3, v{u0}
v_add_u32 v{u2}, v{u2}, v{u3}
s_lshl_b32 s{s_t3}, s{s_t1}, 2
v_add_u32 v{u2}, s{s_t3}, v{u2}
s_lshl_b32 s{s_t3}, s{s_t2}, 7
v_add_u32 v{u2}, s{s_t3}, v{u2}
v_mul_u32_u24 v{u2}, 514, v{u2}
v_lshl_add_u32 v{v_f1a}, v{u1}, 1, v{u2}
v_add_u32 v{v_f2a}, 512, v{u2}
s_lshl_b32 s{s_t3}, s{s_t2}, 9
s_lshl_b32 s{s_t1}, s{s_t1}, 7
s_add_u32 s{s_t3}, s{s_t3}, s{s_t1}
s_add_u32 s{s_t3}, s{s_t3}, {WS_W}
v_lshl_add_u32 v{u0}, v{u0}, 4, s{s_t3}
v_lshl_add_u32 v{v_f1s}, v{u1}, 13, v{u0}
v_add_u32 v{v_f2s}, {256 * 8192}, v{u0}
""")
    addr_job = job

    def gl(dst, va, srdn, i):
        def f():
            a(f"s_mov_b32 s{s_t0}, {i * 32 * 514}")
            a.vmem(f"buffer_load_ushort v{dst}, v{va}, {sr(srdn, 4)}, s{s_t0} offen", "f1")
        return f
    job = []
    for i in range(4):
        job.append(gl(v_f1 + i, v_f1a, SRD_WR, i))
        job.append(gl(v_fi + i, v_f1a, SRD_WI, i))
    gath = job
    side[6] = []

    def c256_test(lbl):
        a(f"s_and_b32 s{s_t0}, s2, 3")
        a(f"s_lshl_b32 s{s_t0}, s{s_t0}, 3")
        a(f"s_add_u32 s{s_t0}, s{s_t0}, s{s_w}")
        a(f"s_cmp_lg_u32 s{s_t0}, 31")
        a(f"s_cbranch_scc1 {name}_{lbl}")

    def col256_load():
        c256_test("c256a")
        for i in range(4):
            a(f"s_mov_b32 s{s_t0}, {i * 32 * 514}")
            a(f"buffer_load_ushort v{v_f2 + i}, v{v_f2a}, {sr(SRD_WR, 4)}, s{s_t0} offen")
            a(f"buffer_load_ushort v{v_fi + 4 + i}, v{v_f2a}, {sr(SRD_WI, 4)}, s{s_t0} offen")
        a.label(f"{name}_c256a")

    def side_store():
        a.wait(vm="f1")
        for i in range(4):
            a(f"v_lshl_or_b32 v{v_f1 + i}, v{v_fi + i}, 16, v{v_f1 + i}")
        a.vmem(f"buffer_store_dwordx4 {vr(v_f1, 4)}, v{v_f1s}, {sr(SRD_WS, 4)}, 0 offen{WT}", "st")
        c256_test("c256b")
        for i in range(4):
            a(f"v_lshl_or_b32 v{v_f2 + i}, v{v_fi + 4 + i}, 16, v{v_f2 + i}")
        a(f"buffer_store_dwordx4 {vr(v_f2, 4)}, v{v_f2s}, {sr(SRD_WS, 4)}, 0 offen{WT}")
        a.label(f"{name}_c256b")

    def wd_job(part, nparts):
        def f():
            if TOUCH_WD == 1:
                per = 56 // nparts
                a(f"s_lshr_b32 s{s_t0}, s2, 3")
                a(f"s_lshl_b32 s{s_t0}, s{s_t0}, 3")
                a(f"s_add_u32 s{s_t0}, s{s_t0}, s{s_w}")
                a(f"s_mul_i32 s{s_t0}, s{s_t0}, {per * 128}")
                a(f"s_add_u32 s{s_t0}, s{s_t0}, {part * 256 * per * 128}")
                a(f"v_min_u32 v{u3}, {per - 1}, v{v_lane}")
            else:
                a(f"s_lshl_b32 s{s_t0}, s2, 3")
                a(f"s_add_u32 s{s_t0}, s{s_t0}, s{s_w}")
                a(f"s_mul_i32 s{s_t0}, s{s_t0}, {7 * 128}")
                a(f"v_min_u32 v{u3}, 6, v{v_lane}")
            a(f"v_lshlrev_b32 v{u3}, 7, v{u3}")
            a.vmem(f"buffer_load_dword v{v_pa[1]}, v{u3}, {sr(SRD_WD, 4)}, s{s_t0} offen", "pf")
        return f
    def flag_init():
        a(f"s_lshl_b32 s{s_t0}, s2, 3")
        a(f"s_add_u32 s{s_t0}, s{s_t0}, s{s_w}")
        a(f"s_lshl_b32 s{s_t0}, s{s_t0}, 10")
        a(f"s_add_u32 s{s_t0}, s{s_t0}, {WS_Z}")
        a(f"v_lshlrev_b32 v{u3}, 4, v{v_lane}")
        for i in range(4):
            a(f"v_mov_b32 v{v_sn + i}, -1")
        a.vmem(f"buffer_store_dwordx4 {vr(v_sn, 4)}, v{u3}, {sr(SRD_WS, 4)}, s{s_t0} offen sc1", "st")
    def touch_next():
        a(f"s_cmp_ge_u32 s2, 8")
        a(f"s_cbranch_scc1 {name}_notn")
        a(f"s_getpc_b64 {sr(SRD_T, 2)}")
        a(f"s_add_u32 s{SRD_T}, s{SRD_T}, ctab@rel32@lo+4")
        a(f"s_addc_u32 s{SRD_T + 1}, s{SRD_T + 1}, ctab@rel32@hi+12")
        a(f"s_mov_b32 s{SRD_T + 2}, 24576")
        a(f"s_lshl_b32 s{s_t0}, s{s_w}, 13")
        a(f"s_cmp_lt_u32 s{s_w}, 3")
        a(f"s_cbranch_scc1 {name}_tnc")
        a(f"s_getpc_b64 {sr(SRD_T, 2)}")
        a(f"s_add_u32 s{SRD_T}, s{SRD_T}, k23_begin@rel32@lo+4")
        a(f"s_addc_u32 s{SRD_T + 1}, s{SRD_T + 1}, k23_begin@rel32@hi+12")
        a(f"s_mov_b32 s{SRD_T + 2}, k23_end-k23_begin")
        a(f"s_sub_u32 s{s_t0}, s{s_t0}, {3 * 8192}")
        a.label(f"{name}_tnc")
        a(f"s_and_b32 s{SRD_T + 1}, s{SRD_T + 1}, 0xffff")
        a(f"s_mov_b32 s{SRD_T + 3}, 0x00020000")
        a(f"v_lshlrev_b32 v{u3}, 7, v{v_lane}")
        a(f"buffer_load_dword v{v_pa[1]}, v{u3}, {sr(SRD_T, 4)}, s{s_t0} offen")
        a.label(f"{name}_notn")

    def tlb_warm():
        a(f"v_min_u32 v{u3}, 7, v{v_lane}")
        a(f"v_lshlrev_b32 v{u3}, 21, v{u3}")
        a(f"s_cmp_lg_u32 s{s_w}, 7")
        a(f"s_cbranch_scc1 {name}_notlb")
        a(f"buffer_load_dword v{v_pa[1]}, v{u3}, {sr(SRD_WS, 4)}, 0 offen")
        a(f"buffer_load_dword v{v_pa[0]}, v{u3}, {sr(SRD_WR, 4)}, 0 offen")
        a(f"buffer_load_dword v{v_pa[2]}, v{u3}, {sr(SRD_WI, 4)}, 0 offen")
        a.label(f"{name}_notlb")
    if TOUCH:
        for st in range(4):
            side[st] = [lambda st=st: touch(st + 4)] + [lambda: None] * 3 + side.get(st, [])

    def read_ops(stage, j):
        bw = (stage % 3) * 16384 + j * 4096
        bx = (stage % 4) * 16384
        ops = []
        tag = f"r{stage}_{j}"
        for mt in range(2):
            for e in range(2):
                ops.append(lambda mt=mt, e=e: a.lds(
                    f"ds_read_b64_tr_b16 {vr(v_W[j % 2][mt] + 2 * e, 2)}, v{v_wa[mt]} offset:{bw + e * 1024}", tag))
            ops.append(lambda nt=mt: a.lds(
                f"ds_read_b128 {vr(v_X[j % 2][nt], 4)}, v{v_xa[j]} offset:{bx + nt * 4096}", tag))
        return ops

    def allreduce(v, t):
        return lines(f"""
s_nop 1
v_add_f32_dpp v{v}, v{v}, v{v} quad_perm:[1,0,3,2] row_mask:0xf bank_mask:0xf
s_nop 1
v_add_f32_dpp v{v}, v{v}, v{v} quad_perm:[2,3,0,1] row_mask:0xf bank_mask:0xf
s_nop 1
v_add_f32_dpp v{v}, v{v}, v{v} row_half_mirror row_mask:0xf bank_mask:0xf
s_nop 1
v_add_f32_dpp v{v}, v{v}, v{v} row_mirror row_mask:0xf bank_mask:0xf
v_mov_b32 v{t}, v{v}
s_nop 1
v_permlane16_swap_b32 v{v}, v{t}
v_add_f32 v{v}, v{v}, v{t}
v_mov_b32 v{t}, v{v}
s_nop 1
v_permlane32_swap_b32 v{v}, v{t}
v_add_f32 v{v}, v{v}, v{t}
""")
    el = [v_e + i for i in range(8)]
    m_, mb, dl, tt = v_t[:4]
    so0, so1 = v_st[0], v_st[0] + 1
    rowst = [lambda: a.wait(vm="xr")]
    for d in range(4):
        rowst += lines(f"v_lshlrev_b32 v{el[2 * d]}, 16, v{XR + d}\nv_and_b32 v{el[2 * d + 1]}, 0xffff0000, v{XR + d}")
    rowst += lines(f"""
v_add_f32 v{m_}, v{el[0]}, v{el[1]}
v_add_f32 v{mb}, v{el[2]}, v{el[3]}
v_add_f32 v{dl}, v{el[4]}, v{el[5]}
v_add_f32 v{tt}, v{el[6]}, v{el[7]}
v_add_f32 v{m_}, v{m_}, v{mb}
v_add_f32 v{dl}, v{dl}, v{tt}
v_add_f32 v{m_}, v{m_}, v{dl}
""") + allreduce(m_, tt) + lines(f"""
v_mul_f32 v{m_}, 0x3b000000, v{m_}
v_cvt_pk_bf16_f32 v{so0}, -v{m_}, -v{m_}
""")
    rowst += lines("\n".join(f"v_sub_f32 v{e_}, v{e_}, v{m_}" for e_ in el))
    rowst += lines(f"v_mul_f32 v{mb}, v{el[0]}, v{el[0]}\nv_mul_f32 v{dl}, v{el[1]}, v{el[1]}")
    rowst += lines("\n".join(f"v_fmac_f32 v{(mb, dl)[i % 2]}, v{el[i]}, v{el[i]}" for i in range(2, 8)))
    rowst += lines(f"v_add_f32 v{mb}, v{mb}, v{dl}") + allreduce(mb, tt) + lines(f"""
v_mul_f32 v{mb}, 0x3b000000, v{mb}
v_cvt_pk_bf16_f32 v{tt}, v{mb}, v{mb}
v_and_b32 v{tt}, 0xffff0000, v{tt}
v_add_f32 v{tt}, 0x3727c5ac, v{tt}
v_cvt_pk_bf16_f32 v{tt}, v{tt}, v{tt}
v_and_b32 v{tt}, 0xffff0000, v{tt}
v_sqrt_f32 v{tt}, v{tt}
v_and_b32 v{so0}, 0xffff, v{so0}
v_cvt_pk_bf16_f32 v{tt}, v{tt}, v{tt}
v_and_b32 v{tt}, 0xffff0000, v{tt}
v_or_b32 v{so0}, v{so0}, v{tt}
""")
    fl = v_XS[1]

    def cs_base(sd, st):
        a(f"s_lshr_b32 s{sd}, s{s_rb}, 3")
        a(f"s_lshl_b32 s{sd}, s{sd}, 4")
        a(f"s_add_u32 s{sd}, s{sd}, s{s_cg}")
        a(f"s_lshl_b32 s{sd}, s{sd}, 14")
        a(f"s_add_u32 s{sd}, s{sd}, {WS_CS}")

    def nonce_load():
        a(f"v_mov_b32 v{fl + 2}, 0")
        a.vmem(f"buffer_load_dword v{fl}, v{fl + 2}, {sr(SRD_D, 4)}, 0 offen sc1", "nl")

    def rowst_store():
        a.wait(vm="nl")
        a(f"s_mov_b32 s{s_t3}, {SPIN_MAX}")
        a.label(f"{name}_nn")
        a(f"v_readfirstlane_b32 s{s_non}, v{fl}")
        a(f"s_cmp_lg_u32 s{s_non}, 0")
        a(f"s_cbranch_scc1 {name}_nnok")
        a(f"s_sub_u32 s{s_t3}, s{s_t3}, 1")
        a(f"s_cbranch_scc1 {name}_nnok")
        a("s_sleep 8")
        a(f"buffer_load_dword v{fl}, v{fl + 2}, {sr(SRD_D, 4)}, 0 offen sc1")
        a("s_waitcnt vmcnt(0)")
        a(f"s_branch {name}_nn")
        a.label(f"{name}_nnok")
        a(f"s_lshl_b32 s{s_t0}, s{s_rb}, 7")
        a(f"s_lshl_b32 s{s_t1}, s{s_cg}, 3")
        a(f"s_add_u32 s{s_t0}, s{s_t0}, s{s_t1}")
        a(f"s_add_u32 s{s_t0}, s{s_t0}, s{s_w}")
        a(f"s_lshl_b32 s{s_t0}, s{s_t0}, 3")
        a(f"s_add_u32 s{s_t0}, s{s_t0}, {WS_ST}")
        a(f"v_mov_b32 v{so1}, v{fl}")
        a("s_mov_b64 exec, 1")
        a.vmem(f"buffer_store_dwordx2 {vr(so0, 2)}, v{fl + 2}, {sr(SRD_WS, 4)}, s{s_t0} offen sc1", "ss")
        a("s_mov_b64 exec, -1")
        if SCS:
            a(f"v_bfe_u32 v{t0}, v{v_lane}, 4, 1")
            a(f"v_cmp_eq_u32 vcc, 1, v{t0}")
            cs_base(s_t0, s_t1)
            a(f"s_lshl_b32 s{s_t1}, s{s_tile}, 11")
            a(f"s_add_u32 s{s_t0}, s{s_t0}, s{s_t1}")
            a(f"s_and_b32 s{s_t1}, s{s_rb}, 7")
            a(f"s_lshl_b32 s{s_t1}, s{s_t1}, 8")
            a(f"s_add_u32 s{s_t0}, s{s_t0}, s{s_t1}")
            a(f"v_cndmask_b32 v{v_cs[1]}, v{v_cs[0]}, v{v_cs[0] + 1}, vcc")
            a(f"v_mov_b32 v{v_cs[1] + 1}, v{fl}")
            a(f"v_lshlrev_b32 v{t0}, 3, v{v_lane}")
            a("s_mov_b32 exec_hi, 0")
            a.vmem(f"buffer_store_dwordx2 {vr(v_cs[1], 2)}, v{t0}, {sr(SRD_WS, 4)}, s{s_t0} offen sc1", "ss")
            a("s_mov_b32 exec_hi, -1")

    def st_loads(reg):
        for nt in range(2):
            txt = f"buffer_load_dwordx2 {vr(v_st[nt], 2)}, v{fl + 3}, {sr(SRD_WS, 4)}, s{s_sx} offen offset:{256 * nt} sc1"
            if reg:
                a.vmem(txt, "sl")
            else:
                a(txt)
        if SCS:
            for q in range(8):
                txt = f"buffer_load_dwordx2 {vr(v_e + 2 * q, 2)}, v{v_xs}, {sr(SRD_WS, 4)}, s{s_sw} offen offset:{256 * q} sc1"
                if reg:
                    a.vmem(txt, "sl")
                else:
                    a(txt)

    def st_poll_load():
        a(f"s_lshl_b32 s{s_sx}, s{s_rb}, 10")
        a(f"s_lshl_b32 s{s_t1}, s{s_ni}, 9")
        a(f"s_add_u32 s{s_sx}, s{s_sx}, s{s_t1}")
        a(f"s_add_u32 s{s_sx}, s{s_sx}, {WS_ST}")
        a(f"v_lshlrev_b32 v{fl + 3}, 3, v{v_n}")
        if SCS:
            cs_base(s_sw, s_t1)
            a(f"v_xor_b32 v{v_xs}, s{s_tile}, v{v_h}")
            a(f"v_lshl_add_u32 v{v_xs}, v{v_xs}, 11, v{fl + 3}")
        st_loads(True)

    def st_poll_check():
        a.wait(vm="sl")
        a(f"s_mov_b32 s{s_t3}, {SPIN_MAX}")
        a.label(f"{name}_sp")
        tags_ = [v_st[0] + 1, v_st[1] + 1] + ([v_e + 2 * q + 1 for q in range(8)] if SCS else [])
        a(f"v_xor_b32 v{fl}, s{s_non}, v{tags_[0]}")
        for tg in tags_[1:]:
            a(f"v_xor_b32 v{fl + 1}, s{s_non}, v{tg}")
            a(f"v_or_b32 v{fl}, v{fl}, v{fl + 1}")
        a(f"v_cmp_ne_u32 vcc, 0, v{fl}")
        a("s_nop 3")
        a(f"s_cbranch_vccz {name}_spok")
        a(f"s_sub_u32 s{s_t3}, s{s_t3}, 1")
        a(f"s_cbranch_scc1 {name}_spok")
        a("s_sleep 8")
        st_loads(False)
        a("s_waitcnt vmcnt(0)")
        a(f"s_branch {name}_sp")
        a.label(f"{name}_spok")

    def sel_op(j, mt, first):
        c = "0" if first else vr(v_cs[mt], 4)
        return lambda: a(f"v_mfma_f32_16x16x32_bf16 {vr(v_cs[mt], 4)}, {vr(v_sel, 4)}, {vr(v_W[j % 2][mt], 4)}, {c}")

    ORDER = ((0, 0), (1, 0), (0, 1), (1, 1))

    def mfma_ops(stage, j):
        ops = []
        first = stage == 0 and j == 0
        for mt, nt in ORDER:
            acc = vr(v_acc[mt][nt], 16)
            ops.append(lambda mt=mt, nt=nt, acc=acc: a(
                f"v_mfma_f32_32x32x16_bf16 {acc}, {vr(v_W[j % 2][mt], 4)}, {vr(v_X[j % 2][nt], 4)}, {'0' if first else acc}"))
        return ops

    def merge(a_list, b_list):
        out = []
        na, nb = len(a_list), len(b_list)
        ia = ib = 0
        while ia < na or ib < nb:
            if ib >= nb or (ia < na and ia * nb <= ib * na):
                out.append(a_list[ia]); ia += 1
            else:
                out.append(b_list[ib]); ib += 1
        return out

    e = v_e
    rA, rB = v_st[0] + 1, v_st[1] + 1

    publish = lines(f"""
s_lshl_b32 s{s_t2}, s{s_tile}, 9
s_add_u32 s{s_t2}, s{s_t2}, {K1_LDS_CS}
v_lshlrev_b32 v{u1}, 3, v{v_lane}
v_add_u32 v{u1}, s{s_t2}, v{u1}
""")

    def publish_cs():
        a.lds(f"ds_write_b64 v{u1}, {vr(v_cs[0], 2)}", "w")

    gather = lines(f"v_xor_b32 v{u1}, 512, v{u1}")
    gather.append(lambda: a.lds(f"ds_read_b64 {vr(v_FA[1], 2)}, v{u1}", "s"))

    fin = lines(f"""
v_cmp_eq_u32 vcc, 0, v{v_h}
v_mov_b32 v{v_FB[0] + 2}, 0
v_mov_b32 v{v_FB[0] + 3}, 0
v_mov_b32 v{v_FB[1] + 2}, 0
v_mov_b32 v{v_FB[1] + 3}, 0
v_mov_b32 v{v_FA[0] + 2}, 0
v_mov_b32 v{v_FA[0] + 3}, 0
v_mov_b32 v{v_FA[1] + 2}, 0
v_mov_b32 v{v_FA[1] + 3}, 0
v_bfe_u32 v{t0}, v{v_lane}, 4, 1
v_and_b32 v{rA}, 0xffff0000, v{v_st[0]}
v_and_b32 v{rB}, 0xffff0000, v{v_st[1]}
v_rcp_f32 v{rA}, v{rA}
v_rcp_f32 v{rB}, v{rB}
v_and_b32 v{v_st[0]}, 0xffff, v{v_st[0]}
v_and_b32 v{v_st[1]}, 0xffff, v{v_st[1]}
v_lshl_or_b32 v{v_st[0]}, v{v_st[0]}, 16, v{v_st[0]}
v_lshl_or_b32 v{v_st[1]}, v{v_st[1]}, 16, v{v_st[1]}
v_cndmask_b32 v{v_FB[0]}, 0, v{v_st[0]}, vcc
v_cndmask_b32 v{v_FB[1]}, 0, v{v_st[1]}, vcc
v_cmp_eq_u32 vcc, 1, v{t0}
v_mov_b32 v{v_FB[0] + 1}, v{v_FB[0]}
v_mov_b32 v{v_FB[1] + 1}, v{v_FB[1]}
""")
    if SCS:
        fin += lines(f"""
v_add_f32 v{e}, v{e}, v{e + 2}
v_add_f32 v{e + 4}, v{e + 4}, v{e + 6}
v_add_f32 v{e + 8}, v{e + 8}, v{e + 10}
v_add_f32 v{e + 12}, v{e + 12}, v{e + 14}
v_add_f32 v{e}, v{e}, v{e + 4}
v_add_f32 v{e + 8}, v{e + 8}, v{e + 12}
v_add_f32 v{v_cs[0]}, v{e}, v{e + 8}
v_add_f32 v{v_cs[1]}, v{e}, v{e + 8}
s_nop 1
v_permlane32_swap_b32 v{v_cs[0]}, v{v_cs[1]}
""")
    else:
        fin += lines(f"v_cndmask_b32 v{v_cso}, v{v_FA[1]}, v{v_FA[1] + 1}, vcc")

    def fold_a(mt):
        c, r1, hi = v_t[3 * mt], v_t[3 * mt + 1], v_t[3 * mt + 2]
        FA = v_FA[mt]
        txt = f"v_cndmask_b32 v{c}, v{v_cs[mt]}, v{v_cs[mt] + 1}, vcc\n"
        if SCS:
            txt = f"v_mov_b32 v{c}, v{v_cs[mt]}\n"
        elif mt == 1:
            txt += f"v_add_f32 v{c}, v{c}, v{v_cso}\n"
        txt += f"""v_and_b32 v{hi}, 0xffff0000, v{c}
v_sub_f32 v{r1}, v{c}, v{hi}
v_and_b32 v{c}, 0xffff0000, v{r1}
v_sub_f32 v{r1}, v{r1}, v{c}
v_lshrrev_b32 v{hi}, 16, v{hi}
v_or_b32 v{FA}, v{hi}, v{c}
v_lshrrev_b32 v{FA + 1}, 16, v{r1}"""
        return lines(txt)

    nop = lambda: None
    side.clear()

    def put(stage, frac, ops):
        b = side.setdefault(stage, [[] for _ in range(16)])
        if isinstance(ops, list) and len(ops) > 4:
            n = len(ops)
            lo = int(frac * 16)
            for i, op in enumerate(ops):
                b[lo + (16 - lo) * i // n].append(op)
        else:
            b[min(15, int(frac * 16))] += ops if isinstance(ops, list) else [ops]
    if G0S < 0:
        for op in addr_job + gath + [col256_load]:
            op()
        put(3, 0.5, side_store)
    else:
        put(2, 0.0, addr_job)
    if G0S >= 0:
        for i in range(4):
            put(G0S + i * GSTEP, 0.3 if GSTEP else 0.1 + 0.2 * i, gath[2 * i:2 * i + 2])
        put(G0S + 3 * GSTEP, 0.8, col256_load)
        put(6, 0.5, side_store) if G0S < 6 else None

    def wd_by_wave(k):
        def f():
            a(f"s_and_b32 s{s_t0}, s{s_w}, 3")
            a(f"s_cmp_lg_u32 s{s_t0}, {k}")
            a(f"s_cbranch_scc1 {name}_nwd{k}")
            saved = list(a.vm)
            wd_job(0, 1)()
            a.vm = saved
            a.label(f"{name}_nwd{k}")
        return f
    if TOUCH_WD and WDST < 0:
        wd_job(0, 1)()
    elif TOUCH_WD and WDST < 7:
        put(WDST, 0.9, wd_job(0, 1))
    if TOUCH:
        for st in range(4):
            put(max(0, st - TLEAD), 0.05 + 0.3 * (st % 2) * (1 if TLEAD else 0), lambda st=st: touch(st + 4))
    if TOUCH_NEXT:
        put(5, 0.8, touch_next)
    RS = max(XRS, -1) + 1
    if XRS >= 0:
        put(XRS, 0.1, xr_load)
    put(RS, 0.0, rowst)
    put(RS, 0.4, nonce_load)
    put(RS + 1, 0.1, rowst_store)
    put(6, 0.3, st_poll_load)
    side = {k: [op for bk in v for op in (bk if bk else [nop])] for k, v in side.items()}
    if SENT == -1:
        flag_init()
    elif SENT < 7:
        side[SENT] = side.get(SENT, []) + [flag_init]
    pf.stamp()
    a.wait(vm=["x0", "w0"])
    if PROF == 3:
        pf.stamp()
    a("s_barrier")
    pf.stamp()
    for f in read_ops(0, 0):
        f()
    LAST = NSTAGE - 1
    for stage in range(NSTAGE):
        dops = (dma_w(stage + 2) if stage + 2 < NSTAGE else []) + (dma_x(stage + 3) if stage + 3 < NSTAGE else [])
        extra = side.get(stage, [])
        for j in range(4):
            a.comment(f"stage {stage} step {j}")
            a.wait(lg="all")
            m = mfma_ops(stage, j)
            if stage < LAST:
                m = ([sel_op(j, 0, stage == 0 and j == 0)] if (not SCS or stage == 0) else []) + m
                nb = len(m) - 2
                so = publish if (stage == 6 and j == 2 and not SCS) else []
                ex = extra[len(extra) * j // 4:len(extra) * (j + 1) // 4]
                if j < 3:
                    fill = read_ops(stage, j + 1) + merge(merge(so, ex), dops[2 * j:2 * j + 2])
                    interleave(a, m, fill)
                else:
                    interleave(a, m[:nb], merge(so, ex))
                    if stage == 6:
                        if not SCS:
                            a("s_nop 3")
                            publish_cs()
                        if fused:
                            a(f"v_lshlrev_b32 v{t0}, 2, v{v_lane}")
                            a(f"v_add_u32 v{t0}, {F_LF}, v{t0}")
                            a(f"v_mov_b32 v{t1}, 0")
                            a.lds(f"ds_write_b32 v{t0}, v{t1}", "w")
                        a.wait(lg="all")
                    tags = [f"w{stage + 1}", f"x{stage + 1}"] + (["st"] if fused and stage == 5 else [])
                    a.wait(vm=tags)
                    a("s_barrier")
                    if PROF == 1 and stage % 2 == 0:
                        pf.stamp()
                    for f in read_ops(stage + 1, 0):
                        f()
                    m[nb]()
                    if fused and stage == 5:
                        a(f"s_cmp_lg_u32 s{s_w}, 0")
                        a(f"s_cbranch_scc1 {name}_nof0")
                        a(f"s_lshl_b32 s{s_t0}, s{s_rb}, 4")
                        a(f"s_add_u32 s{s_t0}, s{s_t0}, s{s_cg}")
                        a(f"s_lshl_b32 s{s_t0}, s{s_t0}, 7")
                        a(f"s_add_u32 s{s_t0}, s{s_t0}, {WS_FL + 4}")
                        a(f"v_mov_b32 v{t0}, s{s_non}")
                        a(f"v_mov_b32 v{t1}, 0")
                        a("s_mov_b64 exec, 1")
                        a(f"buffer_store_dword v{t0}, v{t1}, {sr(SRD_WS, 4)}, s{s_t0} offen sc1")
                        a("s_mov_b64 exec, -1")
                        a.label(f"{name}_nof0")
                    if stage == 6 and not SCS:
                        for f in gather:
                            f()
                    m[nb + 1]()
            else:
                if not SCS:
                    m = [sel_op(j, 0, False), sel_op(j, 1, j == 0)] + m
                if j < 3:
                    n = len(fin)
                    interleave(a, m, read_ops(stage, j + 1) + ([st_poll_check] + ([wd_job(0, 1)] if WDST == 7 else []) if j == 0 else []) + fin[n * j // 3:n * (j + 1) // 3])
                else:
                    if SCS:
                        interleave(a, m, merge(fold_a(0), fold_a(1)))
                    else:
                        for f in m[:4]:
                            f()
                        a("s_nop 3")
                        interleave(a, m[4:], merge(fold_a(0), fold_a(1)))
    a("s_nop 1")
    for mt, nt in ORDER:
        acc = vr(v_acc[mt][nt], 16)
        a(f"v_mfma_f32_32x32x16_bf16 {acc}, {vr(v_FA[mt], 4)}, {vr(v_FB[nt], 4)}, {acc}")
    if G0S == 6:
        side_store()
    pf.stamp()
    rr = [rA, rB]
    a(f"s_cmp_ge_u32 s{s_cg}, 14")
    a(f"s_cbranch_scc1 {name}_epi_dft")
    r2 = [e + 4, e + 6]
    for nt in range(2):
        a(f"v_mul_f32 v{r2[nt]}, v{rr[nt]}, v{rr[nt]}")
    a(f"v_lshlrev_b32 v{t0}, 4, v{v_lane}")
    a(f"s_lshl_b32 s{s_t0}, s{s_rb}, 2")
    a(f"s_lshl_b32 s{s_t2}, s{s_ni}, 1")
    a(f"s_add_u32 s{s_t0}, s{s_t0}, s{s_t2}")
    a(f"s_mul_i32 s{s_t0}, s{s_t0}, 112")
    a(f"s_lshl_b32 s{s_t2}, s{s_cg}, 3")
    a(f"s_add_u32 s{s_t0}, s{s_t0}, s{s_t2}")
    for mt, nt in ORDER:
        acc = v_acc[mt][nt]
        for i in range(8):
            a(f"v_max_f32 v{acc + i}, 0, v{acc + i}")
            a(f"v_mul_f32 v{acc + 8 + i}, v{r2[nt]}, v{acc + 8 + i}")
        for i in range(8):
            a(f"v_mul_f32 v{acc + i}, v{acc + i}, v{acc + 8 + i}")
        for i in range(4):
            a(f"v_cvt_pk_bf16_f32 v{acc + 8 + i}, v{acc + 2 * i}, v{acc + 2 * i + 1}")
        a(f"s_xor_b32 s{s_t2}, s{s_tile}, {mt}")
        a(f"s_add_u32 s{s_t2}, s{s_t2}, s{s_t0}")
        if nt:
            a(f"s_add_u32 s{s_t2}, s{s_t2}, 112")
        a(f"s_lshl_b32 s{s_t2}, s{s_t2}, 10")
        a(f"buffer_store_dwordx4 {vr(acc + 8, 4)}, v{t0}, {sr(SRD_WS, 4)}, s{s_t2} offen{WTH}")
    if PROF and not fused:
        pf.stamp()
        a("s_waitcnt vmcnt(0)")
        pf.stamp()
        pf.stamp(real=True)
        pf.dump(SRD_WS, 2, s_w, v_t[0], s_t0, 8)
    a(f"s_branch {name}_join" if fused else "s_endpgm")
    a.label(f"{name}_epi_dft")
    for nt in range(2):
        a(f"v_mul_f32 v{rr[nt]}, 0x36000000, v{rr[nt]}")
    a(f"v_lshlrev_b32 v{t0}, 14, v{v_h}")
    a(f"v_lshl_add_u32 v{t0}, v{v_n}, 2, v{t0}")
    a(f"s_sub_u32 s{s_t0}, s{s_cg}, 14")
    a(f"s_lshl_b32 s{s_t0}, s{s_t0}, 20")
    a(f"s_add_u32 s{s_t0}, s{s_t0}, {WS_U}")
    a(f"s_lshl_b32 s{s_t2}, s{s_rb}, 9")
    a(f"s_add_u32 s{s_t0}, s{s_t0}, s{s_t2}")
    a(f"s_lshl_b32 s{s_t2}, s{s_ni}, 8")
    a(f"s_add_u32 s{s_t0}, s{s_t0}, s{s_t2}")
    for mt, nt in ORDER:
        a(f"s_xor_b32 s{s_t2}, s{s_tile}, {mt}")
        a(f"s_lshl_b32 s{s_t2}, s{s_t2}, 16")
        a(f"s_add_u32 s{s_t2}, s{s_t2}, s{s_t0}")
        acc = v_acc[mt][nt]
        for i in range(16):
            a(f"v_mul_f32 v{acc + i}, v{rr[nt]}, v{acc + i}")
        for i in range(8):
            a(f"v_cvt_pk_bf16_f32 v{acc + 2 * i}, v{acc + 2 * i}, v{acc + 2 * i + 1}")
        for g in range(4):
            for ip in range(2):
                koff = (g % 2) * 4 + (g // 2) * 64 + ip
                a(f"s_add_u32 s{s_t3}, s{s_t2}, {koff * 8192}")
                a(f"buffer_store_dword v{acc + 4 * g + 2 * ip}, v{t0}, {sr(SRD_WS, 4)}, s{s_t3} offen offset:{nt * 128}{WTH}")
    if fused:
        a.label(f"{name}_join")
        a("s_barrier")
        return locals()
    if PROF:
        pf.n -= 3
        pf.stamp()
        a("s_waitcnt vmcnt(0)")
        pf.stamp()
        pf.stamp(real=True)
        pf.dump(SRD_WS, 2, s_w, v_t[0], s_t0, 8)
    a.label(f"{name}_done")
    a("s_endpgm")
    return kernel_header(name) + a.text(), kernel_desc(name, V.hi, 102)


def gen_ftab():
    j = np.arange(512)
    c, s = exact_cos_sin(j, 512)
    cb, nb = bf16_bits(c), bf16_bits(-s + 0.0)
    t = ""
    for i in range(512):
        t += f".set tw_{i}, 0x{int(cb[i] | (nb[i] << 16)):08x}\n"
    t += """.macro twe idx
.long tw_\\idx
.endm
.altmacro
.p2align 8
ftab:
.set dd, 0
.rept 512
.long 0x3f003f00 | ((dd & 1) << 31)
.set kk, 1
.rept 255
twe %((dd*kk) & 511)
.set kk, kk+1
.endr
.set dd, dd+1
.endr
.noaltmacro
"""
    return t
```

```python
from gen_common import *

K1_LDS_X = 0
K1_LDS_G = 65536
K1_LDS_U = 114688
K1_LDS = 163840
K1_LDS_ST = K1_LDS_G + 2 * 16384
K1_LDS_CS = K1_LDS_ST + 8192
NSTAGE = 8
WS_ST = 15 << 20
SPIN_MAX = 1 << 14
SF = int(os.environ.get('K1_SF', '3'))
WT = os.environ.get("K1_WT", " sc1")
WTH = os.environ.get("K1_WTH", " sc1")
TOUCH_WD = int(os.environ.get("TOUCH_WD", "2"))
TOUCH = int(os.environ.get("TOUCH", "0"))
TOUCH_NEXT = int(os.environ.get("TOUCH_NEXT", "1"))
TLB_WARM = int(os.environ.get("TLB_WARM", "0"))
SENT = int(os.environ.get("SENT", "-1"))
WDST = int(os.environ.get("WDST", "3"))
WDN = int(os.environ.get("WDN", "1"))
G0S = int(os.environ.get("G0S", "4"))
GSTEP = int(os.environ.get("GSTEP", "0"))
XRS = int(os.environ.get("XRS", "-1"))
MAP = int(os.environ.get("MAP", "0"))
PBAR = int(os.environ.get("PBAR", "2"))
KROT = int(os.environ.get("KROT", "1"))
SCS = int(os.environ.get("SCS", "1"))
TLEAD = int(os.environ.get("TLEAD", "0"))
TEARLY = int(os.environ.get("TEARLY", "0"))


WS_CS = WS_ST + 131072
WS_FL = WS_ST + 65536
F_LF = K1_LDS_ST + 12288


def gen_k1(name, fused=False):
    global G0S, TOUCH_NEXT
    if fused:
        G0S = -1
    a = Asm()
    V = Regs(1, 256)
    S = Regs(40, 102)
    SRD_X, SRD_G, SRD_U, SRD_WS, SRD_WR, SRD_WI, SRD_WD, SRD_T, SRD_D = 4, 8, 12, 16, 20, 24, 28, 32, 36
    s_rb, s_cg, s_w, s_mi, s_ni, s_rs, s_goff, s_uoff = [S.alloc() for _ in range(8)]
    s_t0, s_t1, s_t2, s_t3 = [S.alloc() for _ in range(4)]
    s_sx, s_sw, s_sw2, s_rs4, s_rs64, s_m0x, s_tile = [S.alloc() for _ in range(7)]
    s_p = S.alloc(16, 4)
    s_tab = S.alloc(2, 2)

    v_lane, v_n, v_h = V.alloc(), V.alloc(), V.alloc()
    v_t = [V.alloc() for _ in range(8)]
    v_dx = [V.alloc(), V.alloc()]
    v_dg, v_du = V.alloc(), V.alloc()
    v_xa = [V.alloc() for _ in range(4)]
    v_xs = V.alloc()
    v_wa = [V.alloc(), V.alloc()]
    v_st = [V.alloc(2, 2), V.alloc(2, 2)]
    v_f1a, v_f1s, v_f2a, v_f2s = [V.alloc() for _ in range(4)]
    v_pa = [V.alloc() for _ in range(3)]
    v_f1 = V.alloc(4, 4)
    v_f2 = V.alloc(4, 4)
    v_fi = V.alloc(8, 4)
    v_cs = [V.alloc(4, 4), V.alloc(4, 4)]
    v_sel = V.alloc(4, 4)
    v_XS = [V.alloc(4, 4) for _ in range(2)]
    v_X = [[V.alloc(4, 4) for _ in range(2)] for _ in range(2)]
    v_W = [[V.alloc(4, 4) for _ in range(2)] for _ in range(2)]
    v_acc = [[V.alloc(16, 4) for _ in range(2)] for _ in range(2)]
    v_e = V.alloc(16, 4)
    v_FA = [V.alloc(4, 4) for _ in range(2)]
    v_FB = [V.alloc(4, 4) for _ in range(2)]
    v_cso = V.alloc()
    v_sn = V.alloc(4, 4)
    t0, t1, t2, t3, t4 = v_t[:5]
    u0, u1, u2, u3 = v_t[4:8]

    pf = Prof(a, S, 12, 0)
    a("s_cmp_ge_u32 s2, 256")
    a(f"s_cbranch_scc1 {name}_done")
    pf.stamp(real=True)
    pf.stamp()
    a(f"s_load_dwordx2 {sr(s_p, 2)}, s[0:1], {KA_X}")
    a(f"s_load_dwordx4 {sr(s_p + 4, 4)}, s[0:1], {KA_WG}")
    a(f"s_load_dwordx2 {sr(s_p + 2, 2)}, s[0:1], {KA_WS}")
    a(f"s_load_dwordx4 {sr(s_p + 8, 4)}, s[0:1], {KA_WR}")
    a(f"s_load_dwordx4 {sr(s_p + 12, 4)}, s[0:1], {KA_WD}")
    a(f"s_load_dwordx2 {sr(SRD_D, 2)}, s[0:1], {KA_DBG}")
    s_out = s_p + 14
    a(f"v_lshrrev_b32 v{t0}, 6, v0")
    a(f"v_and_b32 v{v_lane}, 63, v0")
    a(f"v_readfirstlane_b32 s{s_w}, v{t0}")
    if MAP == 0:
        a(f"s_bfe_u32 s{s_rb}, s2, 0x10002")
        a(f"s_lshl_b32 s{s_rb}, s{s_rb}, 3")
        a(f"s_bfe_u32 s{s_t2}, s2, 0x30003")
        a(f"s_add_u32 s{s_rb}, s{s_rb}, s{s_t2}")
        a(f"s_and_b32 s{s_cg}, s2, 3")
        a(f"s_lshl_b32 s{s_cg}, s{s_cg}, 2")
        a(f"s_lshr_b32 s{s_t2}, s2, 6")
        a(f"s_add_u32 s{s_cg}, s{s_cg}, s{s_t2}")
    elif MAP == 1:
        a(f"s_and_b32 s{s_rb}, s2, 7")
        a(f"s_lshl_b32 s{s_rb}, s{s_rb}, 1")
        a(f"s_bfe_u32 s{s_t2}, s2, 0x10003")
        a(f"s_add_u32 s{s_rb}, s{s_rb}, s{s_t2}")
        a(f"s_lshr_b32 s{s_cg}, s2, 4")
    else:
        a(f"s_bfe_u32 s{s_rb}, s2, 0x20001")
        a(f"s_lshl_b32 s{s_rb}, s{s_rb}, 2")
        a(f"s_bfe_u32 s{s_t2}, s2, 0x20003")
        a(f"s_add_u32 s{s_rb}, s{s_rb}, s{s_t2}")
        a(f"s_and_b32 s{s_cg}, s2, 1")
        a(f"s_lshl_b32 s{s_cg}, s{s_cg}, 3")
        a(f"s_lshr_b32 s{s_t2}, s2, 5")
        a(f"s_add_u32 s{s_cg}, s{s_cg}, s{s_t2}")
    a(f"s_sub_u32 s{s_t0}, s{s_cg}, 14")
    a(f"s_lshl_b32 s{s_t0}, s{s_t0}, 9")
    a(f"s_add_u32 s{s_t1}, s{s_t0}, 256")
    a(f"s_lshl_b32 s{s_t2}, s{s_cg}, 8")
    a(f"s_movk_i32 s{s_rs}, 3584")
    a(f"s_cmp_ge_u32 s{s_cg}, 14")
    a(f"s_cselect_b32 s{s_rs}, 1024, s{s_rs}")
    a(f"s_cselect_b32 s{s_goff}, s{s_t0}, s{s_t2}")
    a(f"s_cselect_b32 s{s_uoff}, s{s_t1}, s{s_t2}")
    a(f"s_lshl_b32 s{s_rs4}, s{s_rs}, 2")
    a(f"s_lshl_b32 s{s_rs64}, s{s_rs}, 6")
    a(f"s_getpc_b64 {sr(s_tab, 2)}")
    a(f"s_add_u32 s{s_tab}, s{s_tab}, ftab@rel32@lo+4")
    a(f"s_addc_u32 s{s_tab + 1}, s{s_tab + 1}, ftab@rel32@hi+12")

    a(f"v_lshrrev_b32 v{t0}, 3, v{v_lane}")
    a(f"v_and_b32 v{t1}, 7, v{v_lane}")
    a(f"v_lshrrev_b32 v{t2}, 4, v{v_lane}")
    a(f"v_xor_b32 v{t1}, v{t1}, v{t2}")
    a(f"v_lshlrev_b32 v{t1}, 4, v{t1}")
    a(f"v_lshl_add_u32 v{t1}, v{t0}, 16, v{t1}")
    a(f"s_and_b32 s{s_t0}, s{s_w}, 1")
    a(f"s_lshl_b32 s{s_t0}, s{s_t0}, 20")
    a(f"s_lshr_b32 s{s_t1}, s{s_w}, 1")
    a(f"s_lshl_b32 s{s_t1}, s{s_t1}, 10")
    a(f"s_add_u32 s{s_t0}, s{s_t0}, s{s_t1}")
    a(f"s_lshl_b32 s{s_t1}, s{s_rb}, 12")
    a(f"s_add_u32 s{s_t0}, s{s_t0}, s{s_t1}")
    a(f"v_add_u32 v{v_dx[0]}, s{s_t0}, v{t1}")
    a(f"v_xor_b32 v{t1}, 0x80040, v{t1}")
    a(f"v_add_u32 v{v_dx[1]}, s{s_t0}, v{t1}")
    a(f"v_lshlrev_b32 v{t3}, 6, v{t2}")
    a(f"v_and_b32 v{t1}, 15, v{v_lane}")
    a(f"v_lshlrev_b32 v{t1}, 4, v{t1}")
    a(f"v_xor_b32 v{t1}, v{t1}, v{t3}")
    a(f"s_lshl_b32 s{s_t0}, s{s_w}, 3")
    a(f"v_add_u32 v{t0}, s{s_t0}, v{t2}")
    a(f"v_mul_lo_u32 v{t0}, v{t0}, s{s_rs}")
    a(f"v_add3_u32 v{v_dg}, v{t0}, v{t1}, s{s_goff}")
    a(f"v_xor_b32 v{t1}, 32, v{t1}")
    a(f"v_add3_u32 v{v_du}, v{t0}, v{t1}, s{s_uoff}")
    a(f"s_lshl_b32 s{s_m0x}, s{s_w}, 11")
    a(f"s_lshl_b32 s{s_t0}, s{s_cg}, 3")
    a(f"s_add_u32 s{s_t0}, s{s_t0}, s{s_w}")
    a(f"s_and_b32 s{s_t1}, s{s_t0}, 31")
    a(f"s_lshl_b32 s{s_t1}, s{s_t1}, 16")
    a(f"s_lshr_b32 s{s_t0}, s{s_t0}, 5")
    a(f"s_lshl_b32 s{s_t0}, s{s_t0}, 10")
    a(f"s_add_u32 s{s_t1}, s{s_t1}, s{s_t0}")
    a(f"s_lshl_b32 s{s_t0}, s{s_rb}, 12")
    a(f"s_add_u32 s{s_t3}, s{s_t1}, s{s_t0}")
    a(f"v_lshlrev_b32 v{t1}, 4, v{v_lane}")
    if KROT:
        a(f"s_and_b32 s{s_t0}, s{s_rb}, 7")
        a(f"s_lshl_b32 s{s_sx}, s{s_t0}, 7")
        a(f"s_mul_i32 s{s_sw}, s{s_t0}, s{s_rs64}")
    else:
        a(f"s_mov_b32 s{s_sx}, 0")
        a(f"s_mov_b32 s{s_sw}, 0")
    a(f"s_mov_b32 s{SRD_X + 2}, {2048 * 1024}")
    a(f"s_mov_b32 s{SRD_X + 3}, 0x00020000")
    a(f"s_mov_b32 s{SRD_G + 3}, 0x00020000")
    a(f"s_mov_b32 s{SRD_U + 3}, 0x00020000")
    a(f"s_lshl_b32 s{SRD_G + 2}, s{s_rs}, 9")
    a(f"s_lshl_b32 s{SRD_U + 2}, s{s_rs}, 9")
    if PROF == 3:
        pf.stamp()
    a("s_waitcnt lgkmcnt(0)")
    if PROF == 3:
        pf.stamp()
    a(f"s_mov_b32 s{SRD_X}, s{s_p}")
    a(f"s_and_b32 s{SRD_X + 1}, s{s_p + 1}, 0xffff")
    a(f"s_cmp_ge_u32 s{s_cg}, 14")
    a(f"s_cselect_b32 s{SRD_G}, s{s_tab}, s{s_p + 4}")
    a(f"s_cselect_b32 s{SRD_G + 1}, s{s_tab + 1}, s{s_p + 5}")
    a(f"s_cselect_b32 s{SRD_U}, s{s_tab}, s{s_p + 6}")
    a(f"s_cselect_b32 s{SRD_U + 1}, s{s_tab + 1}, s{s_p + 7}")
    a(f"s_and_b32 s{SRD_G + 1}, s{SRD_G + 1}, 0xffff")
    a(f"s_and_b32 s{SRD_U + 1}, s{SRD_U + 1}, 0xffff")

    def mk(ldsbase, vaddr, srdn, soff, mid, tag, post=None):
        def f():
            a(f"s_add_u32 m0, s{s_m0x}, {ldsbase}")
            a(mid)
            a.vmem(f"buffer_load_dwordx4 v{vaddr}, {sr(srdn, 4)}, s{soff} offen lds", tag)
            if post:
                a(post)
        return f

    def dma_x(stage):
        b = K1_LDS_X + (stage % 4) * 16384
        return [mk(b, v_dx[0], SRD_X, s_sx, f"s_and_b32 s{s_sx}, s{s_sx}, 1023", f"x{stage}"),
                mk(b + 1024, v_dx[1], SRD_X, s_sx, "s_nop 0", f"x{stage}", post=f"s_add_u32 s{s_sx}, s{s_sx}, 128")]

    def dma_w(stage):
        b = (stage % 3) * 16384
        tag = f"w{stage}"
        return [mk(K1_LDS_G + b, v_dg, SRD_G, s_sw, f"s_add_u32 s{s_sw2}, s{s_sw}, s{s_rs4}", tag),
                mk(K1_LDS_U + b, v_du, SRD_U, s_sw, "s_nop 0", tag),
                mk(K1_LDS_G + b + 1024, v_dg, SRD_G, s_sw2, f"s_add_u32 s{s_sw}, s{s_sw}, s{s_rs64}", tag),
                mk(K1_LDS_U + b + 1024, v_du, SRD_U, s_sw2, "s_nop 0", tag,
                   post=(f"s_cmp_ge_u32 s{s_sw}, s{SRD_G + 2}\ns_cselect_b32 s{s_sw}, 0, s{s_sw}" if KROT else None))]

    for f in dma_x(0) + dma_w(0):
        f()
    if PROF == 3:
        pf.stamp()
    XR = v_XS[0]
    a(f"v_add_u32 v{v_xs}, s{s_t3}, v{t1}")

    def xr_load():
        a.vmem(f"buffer_load_dwordx4 {vr(XR, 4)}, v{v_xs}, {sr(SRD_X, 4)}, 0 offen", "xr")
    s_tpar, s_toff, s_tstep = s_tab, s_tab + 1, s_p

    def touch_setup():
        a(f"v_and_b32 v{u0}, 15, v{v_lane}")
        a(f"s_cmp_ge_u32 s{s_w}, 4")
        a(f"s_cbranch_scc1 {name}_tx")
        a(f"s_and_b32 s{s_tpar}, s{s_w}, 1")
        a(f"s_and_b32 s{s_t1}, s{s_rb}, 7")
        a(f"v_lshrrev_b32 v{u1}, 1, v{u0}")
        a(f"v_lshl_add_u32 v{u1}, v{u1}, 3, s{s_t1}")
        a(f"v_mul_lo_u32 v{u1}, v{u1}, s{s_rs}")
        a(f"v_and_b32 v{u0}, 1, v{u0}")
        a(f"v_lshl_add_u32 v{v_pa[2]}, v{u0}, 7, v{u1}")
        a(f"s_cmp_ge_u32 s{s_w}, 2")
        a(f"s_cselect_b32 s{s_toff}, s{s_uoff}, s{s_goff}")
        a(f"s_cselect_b32 s{SRD_T}, s{SRD_U}, s{SRD_G}")
        a(f"s_cselect_b32 s{SRD_T + 1}, s{SRD_U + 1}, s{SRD_G + 1}")
        a(f"s_mov_b32 s{SRD_T + 2}, s{SRD_G + 2}")
        a(f"s_mov_b32 s{s_tstep}, s{s_rs64}")
        a(f"s_branch {name}_tj")
        a.label(f"{name}_tx")
        a(f"s_bfe_u32 s{s_tpar}, s{s_w}, 0x10001")
        a(f"s_and_b32 s{s_toff}, s{s_w}, 1")
        a(f"s_lshl_b32 s{s_toff}, s{s_toff}, 20")
        a(f"s_and_b32 s{s_t1}, s{s_cg}, 3")
        a(f"s_lshl_b32 s{s_t1}, s{s_t1}, 10")
        a(f"s_add_u32 s{s_toff}, s{s_toff}, s{s_t1}")
        a(f"s_lshl_b32 s{s_t1}, s{s_rb}, 12")
        a(f"s_add_u32 s{s_toff}, s{s_toff}, s{s_t1}")
        a(f"v_lshlrev_b32 v{v_pa[2]}, 16, v{u0}")
        a(f"s_mov_b32 s{SRD_T}, s{SRD_X}")
        a(f"s_mov_b32 s{SRD_T + 1}, s{SRD_X + 1}")
        a(f"s_mov_b32 s{SRD_T + 2}, s{SRD_X + 2}")
        a(f"s_movk_i32 s{s_tstep}, 128")
        a.label(f"{name}_tj")
        a(f"s_mov_b32 s{SRD_T + 3}, 0x00020000")
        a(f"s_add_u32 s{s_t1}, s{s_tpar}, 2")
        a(f"s_mul_i32 s{s_t1}, s{s_t1}, s{s_tstep}")
        a(f"s_add_u32 s{s_toff}, s{s_toff}, s{s_t1}")
        a(f"s_lshl_b32 s{s_tstep}, s{s_tstep}, 1")

    def touch(stage):
        if stage is not None:
            a(f"s_cmp_lg_u32 s{s_tpar}, {stage & 1}")
            a(f"s_cbranch_scc1 {name}_tn{stage}")
        a(f"buffer_load_dword v{v_pa[1]}, v{v_pa[2]}, {sr(SRD_T, 4)}, s{s_toff} offen")
        a(f"s_add_u32 s{s_toff}, s{s_toff}, s{s_tstep}")
        if stage is not None:
            a.label(f"{name}_tn{stage}")
    if TLB_WARM:
        a(f"s_cmp_lg_u32 s{s_w}, 7")
        a(f"s_cbranch_scc1 {name}_notlb")
        a(f"v_min_u32 v{u0}, 7, v{v_lane}")
        a(f"v_lshlrev_b32 v{u0}, 21, v{u0}")
        a(f"v_and_b32 v{u1}, 1, v{v_lane}")
        for k, (ptr, size) in enumerate(((s_p + 2, WS_SIZE), (s_p + 8, 2048 * 514), (s_p + 10, 2048 * 514), (s_p + 12, 1792 * 1024), (s_p + 14, 2048 * 1024), (SRD_D, 256))):
            srd(a, SRD_T, ptr, size)
            if k:
                a(f"v_mul_u32_u24 v{u0}, {size - 4}, v{u1}")
            a(f"buffer_load_dword v{v_pa[k % 3]}, v{u0}, {sr(SRD_T, 4)}, 0 offen")
        a.label(f"{name}_notlb")
    if TOUCH and TEARLY:
        touch_setup()
    if PBAR >= 1:
        a("s_barrier")
        if TOUCH and TEARLY:
            touch(None)
    elif XRS < 0:
        xr_load()
    a(f"v_and_b32 v{v_n}, 31, v{v_lane}")
    a(f"v_lshrrev_b32 v{v_h}, 5, v{v_lane}")
    a(f"s_and_b32 s{s_mi}, s{s_w}, 3")
    a(f"s_lshr_b32 s{s_ni}, s{s_w}, 2")
    d1 = dma_x(1) + dma_w(1) + dma_x(2)
    a(f"v_bfe_u32 v{t0}, v{v_n}, 1, 3")
    a(f"v_xor_b32 v{t0}, v{t0}, v{v_h}")
    a(f"s_lshl_b32 s{s_t0}, s{s_ni}, 13")
    a(f"v_lshlrev_b32 v{t1}, 7, v{v_n}")
    a(f"v_add_u32 v{t1}, s{s_t0}, v{t1}")
    a(f"v_lshl_add_u32 v{v_xa[0]}, v{t0}, 4, v{t1}")
    d1[0]()
    for j in range(1, 4):
        a(f"v_xor_b32 v{v_xa[j]}, {32 * j}, v{v_xa[0]}")
    d1[1]()
    a(f"v_bfe_u32 v{t2}, v{v_lane}, 4, 1")
    a(f"v_bfe_u32 v{t3}, v{v_lane}, 2, 2")
    a(f"v_lshl_add_u32 v{t4}, v{t3}, 1, v{t2}")
    a(f"s_lshl_b32 s{s_tile}, s{s_mi}, 1")
    a(f"s_add_u32 s{s_tile}, s{s_tile}, s{s_ni}")
    a(f"v_xor_b32 v{t4}, s{s_tile}, v{t4}")
    d1[2]()
    a(f"v_lshlrev_b32 v{t4}, 5, v{t4}")
    a(f"v_lshl_add_u32 v{t4}, v{t3}, 8, v{t4}")
    a(f"v_and_b32 v{t3}, 3, v{v_lane}")
    a(f"v_lshl_add_u32 v{t4}, v{t3}, 3, v{t4}")
    a(f"v_lshl_add_u32 v{t4}, v{v_h}, 11, v{t4}")
    d1[3]()
    a(f"v_mul_u32_u24 v{t2}, {K1_LDS_U - K1_LDS_G}, v{t2}")
    a(f"v_add_u32 v{t4}, v{t4}, v{t2}")
    a(f"v_add_u32 v{v_wa[0]}, {K1_LDS_G}, v{t4}")
    a(f"v_xor_b32 v{v_wa[1]}, 32, v{v_wa[0]}")
    d1[4]()
    a(f"v_bfe_u32 v{t2}, v{v_lane}, 4, 1")
    a(f"v_cmp_eq_u32 vcc, v{t3}, v{t2}")
    a(f"v_mov_b32 v{t2}, 0x3f803f80")
    a(f"v_mov_b32 v{t3}, 0")
    d1[5]()
    for i in range(4):
        a(f"v_cndmask_b32 v{v_sel + i}, v{t3}, v{t2}, vcc")
    if PBAR >= 2:
        a("s_barrier")
    if PBAR >= 1 and XRS < 0:
        xr_load()
    d1[6]()
    d1[7]()

    if TOUCH and not TEARLY:
        touch_setup()
        touch(None)
    srd(a, SRD_WS, s_p + 2, WS_SIZE)
    srd(a, SRD_WR, s_p + 8, 2048 * 514)
    srd(a, SRD_WI, s_p + 10, 2048 * 514)
    srd(a, SRD_WD, s_p + 12, 1792 * 1024)
    srd(a, SRD_D, SRD_D, 256)
    s_non = s_p + 4
    a(f"s_or_b32 s{s_t0}, s{s_w}, s2")
    a(f"s_cmp_lg_u32 s{s_t0}, 0")
    a(f"s_cbranch_scc1 {name}_nonon")
    a(f"s_memrealtime {sr(s_non, 2)}")
    a("s_waitcnt lgkmcnt(0)")
    a(f"s_or_b32 s{s_non}, s{s_non}, 1")
    a(f"v_mov_b32 v{t0}, s{s_non}")
    a(f"v_mov_b32 v{t1}, 0")
    a("s_mov_b64 exec, 1")
    a(f"buffer_store_dword v{t0}, v{t1}, {sr(SRD_D, 4)}, 0 offen sc1")
    a("s_mov_b64 exec, -1")
    a.label(f"{name}_nonon")

    side = {}

    def lines(txt):
        return [lambda l=l: a(l) for l in txt.strip().split("\n")]
    job = lines(f"""
v_lshrrev_b32 v{u0}, 3, v{v_lane}
v_and_b32 v{u1}, 7, v{v_lane}
s_and_b32 s{s_t0}, s2, 3
s_lshl_b32 s{s_t0}, s{s_t0}, 3
s_add_u32 s{s_t0}, s{s_t0}, s{s_w}
s_lshl_b32 s{s_t0}, s{s_t0}, 3
v_add_u32 v{u1}, s{s_t0}, v{u1}
s_lshr_b32 s{s_t1}, s2, 2
s_and_b32 s{s_t1}, s{s_t1}, 3
s_lshr_b32 s{s_t2}, s2, 4
v_lshrrev_b32 v{u2}, 2, v{u0}
v_lshlrev_b32 v{u2}, 4, v{u2}
v_and_b32 v{u3}, 3, v{u0}
v_add_u32 v{u2}, v{u2}, v{u3}
s_lshl_b32 s{s_t3}, s{s_t1}, 2
v_add_u32 v{u2}, s{s_t3}, v{u2}
s_lshl_b32 s{s_t3}, s{s_t2}, 7
v_add_u32 v{u2}, s{s_t3}, v{u2}
v_mul_u32_u24 v{u2}, 514, v{u2}
v_lshl_add_u32 v{v_f1a}, v{u1}, 1, v{u2}
v_add_u32 v{v_f2a}, 512, v{u2}
s_lshl_b32 s{s_t3}, s{s_t2}, 9
s_lshl_b32 s{s_t1}, s{s_t1}, 7
s_add_u32 s{s_t3}, s{s_t3}, s{s_t1}
s_add_u32 s{s_t3}, s{s_t3}, {WS_W}
v_lshl_add_u32 v{u0}, v{u0}, 4, s{s_t3}
v_lshl_add_u32 v{v_f1s}, v{u1}, 13, v{u0}
v_add_u32 v{v_f2s}, {256 * 8192}, v{u0}
""")
    addr_job = job

    def gl(dst, va, srdn, i):
        def f():
            a(f"s_mov_b32 s{s_t0}, {i * 32 * 514}")
            a.vmem(f"buffer_load_ushort v{dst}, v{va}, {sr(srdn, 4)}, s{s_t0} offen", "f1")
        return f
    job = []
    for i in range(4):
        job.append(gl(v_f1 + i, v_f1a, SRD_WR, i))
        job.append(gl(v_fi + i, v_f1a, SRD_WI, i))
    gath = job
    side[6] = []

    def c256_test(lbl):
        a(f"s_and_b32 s{s_t0}, s2, 3")
        a(f"s_lshl_b32 s{s_t0}, s{s_t0}, 3")
        a(f"s_add_u32 s{s_t0}, s{s_t0}, s{s_w}")
        a(f"s_cmp_lg_u32 s{s_t0}, 31")
        a(f"s_cbranch_scc1 {name}_{lbl}")

    def col256_load():
        c256_test("c256a")
        for i in range(4):
            a(f"s_mov_b32 s{s_t0}, {i * 32 * 514}")
            a(f"buffer_load_ushort v{v_f2 + i}, v{v_f2a}, {sr(SRD_WR, 4)}, s{s_t0} offen")
            a(f"buffer_load_ushort v{v_fi + 4 + i}, v{v_f2a}, {sr(SRD_WI, 4)}, s{s_t0} offen")
        a.label(f"{name}_c256a")

    def side_store():
        a.wait(vm="f1")
        for i in range(4):
            a(f"v_lshl_or_b32 v{v_f1 + i}, v{v_fi + i}, 16, v{v_f1 + i}")
        a.vmem(f"buffer_store_dwordx4 {vr(v_f1, 4)}, v{v_f1s}, {sr(SRD_WS, 4)}, 0 offen{WT}", "st")
        c256_test("c256b")
        for i in range(4):
            a(f"v_lshl_or_b32 v{v_f2 + i}, v{v_fi + 4 + i}, 16, v{v_f2 + i}")
        a(f"buffer_store_dwordx4 {vr(v_f2, 4)}, v{v_f2s}, {sr(SRD_WS, 4)}, 0 offen{WT}")
        a.label(f"{name}_c256b")

    def wd_job(part, nparts):
        def f():
            if TOUCH_WD == 1:
                per = 56 // nparts
                a(f"s_lshr_b32 s{s_t0}, s2, 3")
                a(f"s_lshl_b32 s{s_t0}, s{s_t0}, 3")
                a(f"s_add_u32 s{s_t0}, s{s_t0}, s{s_w}")
                a(f"s_mul_i32 s{s_t0}, s{s_t0}, {per * 128}")
                a(f"s_add_u32 s{s_t0}, s{s_t0}, {part * 256 * per * 128}")
                a(f"v_min_u32 v{u3}, {per - 1}, v{v_lane}")
            else:
                a(f"s_lshl_b32 s{s_t0}, s2, 3")
                a(f"s_add_u32 s{s_t0}, s{s_t0}, s{s_w}")
                a(f"s_mul_i32 s{s_t0}, s{s_t0}, {7 * 128}")
                a(f"v_min_u32 v{u3}, 6, v{v_lane}")
            a(f"v_lshlrev_b32 v{u3}, 7, v{u3}")
            a.vmem(f"buffer_load_dword v{v_pa[1]}, v{u3}, {sr(SRD_WD, 4)}, s{s_t0} offen", "pf")
        return f
    def flag_init():
        a(f"s_lshl_b32 s{s_t0}, s2, 3")
        a(f"s_add_u32 s{s_t0}, s{s_t0}, s{s_w}")
        a(f"s_lshl_b32 s{s_t0}, s{s_t0}, 10")
        a(f"s_add_u32 s{s_t0}, s{s_t0}, {WS_Z}")
        a(f"v_lshlrev_b32 v{u3}, 4, v{v_lane}")
        for i in range(4):
            a(f"v_mov_b32 v{v_sn + i}, -1")
        a.vmem(f"buffer_store_dwordx4 {vr(v_sn, 4)}, v{u3}, {sr(SRD_WS, 4)}, s{s_t0} offen sc1", "st")
    def touch_next():
        a(f"s_cmp_ge_u32 s2, 8")
        a(f"s_cbranch_scc1 {name}_notn")
        a(f"s_getpc_b64 {sr(SRD_T, 2)}")
        a(f"s_add_u32 s{SRD_T}, s{SRD_T}, ctab@rel32@lo+4")
        a(f"s_addc_u32 s{SRD_T + 1}, s{SRD_T + 1}, ctab@rel32@hi+12")
        a(f"s_mov_b32 s{SRD_T + 2}, 24576")
        a(f"s_lshl_b32 s{s_t0}, s{s_w}, 13")
        a(f"s_cmp_lt_u32 s{s_w}, 3")
        a(f"s_cbranch_scc1 {name}_tnc")
        a(f"s_getpc_b64 {sr(SRD_T, 2)}")
        a(f"s_add_u32 s{SRD_T}, s{SRD_T}, k23_begin@rel32@lo+4")
        a(f"s_addc_u32 s{SRD_T + 1}, s{SRD_T + 1}, k23_begin@rel32@hi+12")
        a(f"s_mov_b32 s{SRD_T + 2}, k23_end-k23_begin")
        a(f"s_sub_u32 s{s_t0}, s{s_t0}, {3 * 8192}")
        a.label(f"{name}_tnc")
        a(f"s_and_b32 s{SRD_T + 1}, s{SRD_T + 1}, 0xffff")
        a(f"s_mov_b32 s{SRD_T + 3}, 0x00020000")
        a(f"v_lshlrev_b32 v{u3}, 7, v{v_lane}")
        a(f"buffer_load_dword v{v_pa[1]}, v{u3}, {sr(SRD_T, 4)}, s{s_t0} offen")
        a.label(f"{name}_notn")

    if TOUCH:
        for st in range(4):
            side[st] = [lambda st=st: touch(st + 4)] + [lambda: None] * 3 + side.get(st, [])

    def read_ops(stage, j):
        bw = (stage % 3) * 16384 + j * 4096
        bx = (stage % 4) * 16384
        ops = []
        tag = f"r{stage}_{j}"
        for mt in range(2):
            for e in range(2):
                ops.append(lambda mt=mt, e=e: a.lds(
                    f"ds_read_b64_tr_b16 {vr(v_W[j % 2][mt] + 2 * e, 2)}, v{v_wa[mt]} offset:{bw + e * 1024}", tag))
            ops.append(lambda nt=mt: a.lds(
                f"ds_read_b128 {vr(v_X[j % 2][nt], 4)}, v{v_xa[j]} offset:{bx + nt * 4096}", tag))
        return ops

    def allreduce(v, t):
        return lines(f"""
s_nop 1
v_add_f32_dpp v{v}, v{v}, v{v} quad_perm:[1,0,3,2] row_mask:0xf bank_mask:0xf
s_nop 1
v_add_f32_dpp v{v}, v{v}, v{v} quad_perm:[2,3,0,1] row_mask:0xf bank_mask:0xf
s_nop 1
v_add_f32_dpp v{v}, v{v}, v{v} row_half_mirror row_mask:0xf bank_mask:0xf
s_nop 1
v_add_f32_dpp v{v}, v{v}, v{v} row_mirror row_mask:0xf bank_mask:0xf
v_mov_b32 v{t}, v{v}
s_nop 1
v_permlane16_swap_b32 v{v}, v{t}
v_add_f32 v{v}, v{v}, v{t}
v_mov_b32 v{t}, v{v}
s_nop 1
v_permlane32_swap_b32 v{v}, v{t}
v_add_f32 v{v}, v{v}, v{t}
""")
    el = [v_e + i for i in range(8)]
    m_, mb, dl, tt = v_t[:4]
    so0, so1 = v_st[0], v_st[0] + 1
    rowst = [lambda: a.wait(vm="xr")]
    for d in range(4):
        rowst += lines(f"v_lshlrev_b32 v{el[2 * d]}, 16, v{XR + d}\nv_and_b32 v{el[2 * d + 1]}, 0xffff0000, v{XR + d}")
    rowst += lines(f"""
v_add_f32 v{m_}, v{el[0]}, v{el[1]}
v_add_f32 v{mb}, v{el[2]}, v{el[3]}
v_add_f32 v{dl}, v{el[4]}, v{el[5]}
v_add_f32 v{tt}, v{el[6]}, v{el[7]}
v_add_f32 v{m_}, v{m_}, v{mb}
v_add_f32 v{dl}, v{dl}, v{tt}
v_add_f32 v{m_}, v{m_}, v{dl}
""") + allreduce(m_, tt) + lines(f"""
v_mul_f32 v{m_}, 0x3b000000, v{m_}
v_cvt_pk_bf16_f32 v{so0}, -v{m_}, -v{m_}
""")
    rowst += lines("\n".join(f"v_sub_f32 v{e_}, v{e_}, v{m_}" for e_ in el))
    rowst += lines(f"v_mul_f32 v{mb}, v{el[0]}, v{el[0]}\nv_mul_f32 v{dl}, v{el[1]}, v{el[1]}")
    rowst += lines("\n".join(f"v_fmac_f32 v{(mb, dl)[i % 2]}, v{el[i]}, v{el[i]}" for i in range(2, 8)))
    rowst += lines(f"v_add_f32 v{mb}, v{mb}, v{dl}") + allreduce(mb, tt) + lines(f"""
v_mul_f32 v{mb}, 0x3b000000, v{mb}
v_cvt_pk_bf16_f32 v{tt}, v{mb}, v{mb}
v_and_b32 v{tt}, 0xffff0000, v{tt}
v_add_f32 v{tt}, 0x3727c5ac, v{tt}
v_cvt_pk_bf16_f32 v{tt}, v{tt}, v{tt}
v_and_b32 v{tt}, 0xffff0000, v{tt}
v_sqrt_f32 v{tt}, v{tt}
v_and_b32 v{so0}, 0xffff, v{so0}
v_cvt_pk_bf16_f32 v{tt}, v{tt}, v{tt}
v_and_b32 v{tt}, 0xffff0000, v{tt}
v_or_b32 v{so0}, v{so0}, v{tt}
""")
    fl = v_XS[1]

    def cs_base(sd, st):
        a(f"s_lshr_b32 s{sd}, s{s_rb}, 3")
        a(f"s_lshl_b32 s{sd}, s{sd}, 4")
        a(f"s_add_u32 s{sd}, s{sd}, s{s_cg}")
        a(f"s_lshl_b32 s{sd}, s{sd}, 14")
        a(f"s_add_u32 s{sd}, s{sd}, {WS_CS}")

    def nonce_load():
        a(f"v_mov_b32 v{fl + 2}, 0")
        a.vmem(f"buffer_load_dword v{fl}, v{fl + 2}, {sr(SRD_D, 4)}, 0 offen sc1", "nl")

    def rowst_store():
        a.wait(vm="nl")
        a(f"s_mov_b32 s{s_t3}, {SPIN_MAX}")
        a.label(f"{name}_nn")
        a(f"v_readfirstlane_b32 s{s_non}, v{fl}")
        a(f"s_cmp_lg_u32 s{s_non}, 0")
        a(f"s_cbranch_scc1 {name}_nnok")
        a(f"s_sub_u32 s{s_t3}, s{s_t3}, 1")
        a(f"s_cbranch_scc1 {name}_nnok")
        a("s_sleep 8")
        a(f"buffer_load_dword v{fl}, v{fl + 2}, {sr(SRD_D, 4)}, 0 offen sc1")
        a("s_waitcnt vmcnt(0)")
        a(f"s_branch {name}_nn")
        a.label(f"{name}_nnok")
        a(f"s_lshl_b32 s{s_t0}, s{s_rb}, 7")
        a(f"s_lshl_b32 s{s_t1}, s{s_cg}, 3")
        a(f"s_add_u32 s{s_t0}, s{s_t0}, s{s_t1}")
        a(f"s_add_u32 s{s_t0}, s{s_t0}, s{s_w}")
        a(f"s_lshl_b32 s{s_t0}, s{s_t0}, 3")
        a(f"s_add_u32 s{s_t0}, s{s_t0}, {WS_ST}")
        a(f"v_mov_b32 v{so1}, v{fl}")
        a("s_mov_b64 exec, 1")
        a.vmem(f"buffer_store_dwordx2 {vr(so0, 2)}, v{fl + 2}, {sr(SRD_WS, 4)}, s{s_t0} offen sc1", "ss")
        a("s_mov_b64 exec, -1")
        if SCS:
            a(f"v_bfe_u32 v{t0}, v{v_lane}, 4, 1")
            a(f"v_cmp_eq_u32 vcc, 1, v{t0}")
            cs_base(s_t0, s_t1)
            a(f"s_lshl_b32 s{s_t1}, s{s_tile}, 11")
            a(f"s_add_u32 s{s_t0}, s{s_t0}, s{s_t1}")
            a(f"s_and_b32 s{s_t1}, s{s_rb}, 7")
            a(f"s_lshl_b32 s{s_t1}, s{s_t1}, 8")
            a(f"s_add_u32 s{s_t0}, s{s_t0}, s{s_t1}")
            a(f"v_cndmask_b32 v{v_cs[1]}, v{v_cs[0]}, v{v_cs[0] + 1}, vcc")
            a(f"v_mov_b32 v{v_cs[1] + 1}, v{fl}")
            a(f"v_lshlrev_b32 v{t0}, 3, v{v_lane}")
            a("s_mov_b32 exec_hi, 0")
            a.vmem(f"buffer_store_dwordx2 {vr(v_cs[1], 2)}, v{t0}, {sr(SRD_WS, 4)}, s{s_t0} offen sc1", "ss")
            a("s_mov_b32 exec_hi, -1")

    def st_loads(reg):
        for nt in range(2):
            txt = f"buffer_load_dwordx2 {vr(v_st[nt], 2)}, v{fl + 3}, {sr(SRD_WS, 4)}, s{s_sx} offen offset:{256 * nt} sc1"
            if reg:
                a.vmem(txt, "sl")
            else:
                a(txt)
        if SCS:
            for q in range(8):
                txt = f"buffer_load_dwordx2 {vr(v_e + 2 * q, 2)}, v{v_xs}, {sr(SRD_WS, 4)}, s{s_sw} offen offset:{256 * q} sc1"
                if reg:
                    a.vmem(txt, "sl")
                else:
                    a(txt)

    def st_poll_load():
        a(f"s_lshl_b32 s{s_sx}, s{s_rb}, 10")
        a(f"s_lshl_b32 s{s_t1}, s{s_ni}, 9")
        a(f"s_add_u32 s{s_sx}, s{s_sx}, s{s_t1}")
        a(f"s_add_u32 s{s_sx}, s{s_sx}, {WS_ST}")
        a(f"v_lshlrev_b32 v{fl + 3}, 3, v{v_n}")
        if SCS:
            cs_base(s_sw, s_t1)
            a(f"v_xor_b32 v{v_xs}, s{s_tile}, v{v_h}")
            a(f"v_lshl_add_u32 v{v_xs}, v{v_xs}, 11, v{fl + 3}")
        st_loads(True)

    def st_poll_check():
        a.wait(vm="sl")
        a(f"s_mov_b32 s{s_t3}, {SPIN_MAX}")
        a.label(f"{name}_sp")
        tags_ = [v_st[0] + 1, v_st[1] + 1] + ([v_e + 2 * q + 1 for q in range(8)] if SCS else [])
        a(f"v_xor_b32 v{fl}, s{s_non}, v{tags_[0]}")
        for tg in tags_[1:]:
            a(f"v_xor_b32 v{fl + 1}, s{s_non}, v{tg}")
            a(f"v_or_b32 v{fl}, v{fl}, v{fl + 1}")
        a(f"v_cmp_ne_u32 vcc, 0, v{fl}")
        a("s_nop 3")
        a(f"s_cbranch_vccz {name}_spok")
        a(f"s_sub_u32 s{s_t3}, s{s_t3}, 1")
        a(f"s_cbranch_scc1 {name}_spok")
        a("s_sleep 8")
        st_loads(False)
        a("s_waitcnt vmcnt(0)")
        a(f"s_branch {name}_sp")
        a.label(f"{name}_spok")

    def sel_op(j, mt, first):
        c = "0" if first else vr(v_cs[mt], 4)
        return lambda: a(f"v_mfma_f32_16x16x32_bf16 {vr(v_cs[mt], 4)}, {vr(v_sel, 4)}, {vr(v_W[j % 2][mt], 4)}, {c}")

    ORDER = ((0, 0), (1, 0), (0, 1), (1, 1))

    def mfma_ops(stage, j):
        ops = []
        first = stage == 0 and j == 0
        for mt, nt in ORDER:
            acc = vr(v_acc[mt][nt], 16)
            ops.append(lambda mt=mt, nt=nt, acc=acc: a(
                f"v_mfma_f32_32x32x16_bf16 {acc}, {vr(v_W[j % 2][mt], 4)}, {vr(v_X[j % 2][nt], 4)}, {'0' if first else acc}"))
        return ops

    def merge(a_list, b_list):
        out = []
        na, nb = len(a_list), len(b_list)
        ia = ib = 0
        while ia < na or ib < nb:
            if ib >= nb or (ia < na and ia * nb <= ib * na):
                out.append(a_list[ia]); ia += 1
            else:
                out.append(b_list[ib]); ib += 1
        return out

    e = v_e
    rA, rB = v_st[0] + 1, v_st[1] + 1

    publish = lines(f"""
s_lshl_b32 s{s_t2}, s{s_tile}, 9
s_add_u32 s{s_t2}, s{s_t2}, {K1_LDS_CS}
v_lshlrev_b32 v{u1}, 3, v{v_lane}
v_add_u32 v{u1}, s{s_t2}, v{u1}
""")

    def publish_cs():
        a.lds(f"ds_write_b64 v{u1}, {vr(v_cs[0], 2)}", "w")

    gather = lines(f"v_xor_b32 v{u1}, 512, v{u1}")
    gather.append(lambda: a.lds(f"ds_read_b64 {vr(v_FA[1], 2)}, v{u1}", "s"))

    fin = lines(f"""
v_cmp_eq_u32 vcc, 0, v{v_h}
v_mov_b32 v{v_FB[0] + 2}, 0
v_mov_b32 v{v_FB[0] + 3}, 0
v_mov_b32 v{v_FB[1] + 2}, 0
v_mov_b32 v{v_FB[1] + 3}, 0
v_mov_b32 v{v_FA[0] + 2}, 0
v_mov_b32 v{v_FA[0] + 3}, 0
v_mov_b32 v{v_FA[1] + 2}, 0
v_mov_b32 v{v_FA[1] + 3}, 0
v_bfe_u32 v{t0}, v{v_lane}, 4, 1
v_and_b32 v{rA}, 0xffff0000, v{v_st[0]}
v_and_b32 v{rB}, 0xffff0000, v{v_st[1]}
v_rcp_f32 v{rA}, v{rA}
v_rcp_f32 v{rB}, v{rB}
v_and_b32 v{v_st[0]}, 0xffff, v{v_st[0]}
v_and_b32 v{v_st[1]}, 0xffff, v{v_st[1]}
v_lshl_or_b32 v{v_st[0]}, v{v_st[0]}, 16, v{v_st[0]}
v_lshl_or_b32 v{v_st[1]}, v{v_st[1]}, 16, v{v_st[1]}
v_cndmask_b32 v{v_FB[0]}, 0, v{v_st[0]}, vcc
v_cndmask_b32 v{v_FB[1]}, 0, v{v_st[1]}, vcc
v_cmp_eq_u32 vcc, 1, v{t0}
v_mov_b32 v{v_FB[0] + 1}, v{v_FB[0]}
v_mov_b32 v{v_FB[1] + 1}, v{v_FB[1]}
""")
    if SCS:
        fin += lines(f"""
v_add_f32 v{e}, v{e}, v{e + 2}
v_add_f32 v{e + 4}, v{e + 4}, v{e + 6}
v_add_f32 v{e + 8}, v{e + 8}, v{e + 10}
v_add_f32 v{e + 12}, v{e + 12}, v{e + 14}
v_add_f32 v{e}, v{e}, v{e + 4}
v_add_f32 v{e + 8}, v{e + 8}, v{e + 12}
v_add_f32 v{v_cs[0]}, v{e}, v{e + 8}
v_add_f32 v{v_cs[1]}, v{e}, v{e + 8}
s_nop 1
v_permlane32_swap_b32 v{v_cs[0]}, v{v_cs[1]}
""")
    else:
        fin += lines(f"v_cndmask_b32 v{v_cso}, v{v_FA[1]}, v{v_FA[1] + 1}, vcc")

    def fold_a(mt):
        c, r1, hi = v_t[3 * mt], v_t[3 * mt + 1], v_t[3 * mt + 2]
        FA = v_FA[mt]
        txt = f"v_cndmask_b32 v{c}, v{v_cs[mt]}, v{v_cs[mt] + 1}, vcc\n"
        if SCS:
            txt = f"v_mov_b32 v{c}, v{v_cs[mt]}\n"
        elif mt == 1:
            txt += f"v_add_f32 v{c}, v{c}, v{v_cso}\n"
        txt += f"""v_and_b32 v{hi}, 0xffff0000, v{c}
v_sub_f32 v{r1}, v{c}, v{hi}
v_and_b32 v{c}, 0xffff0000, v{r1}
v_sub_f32 v{r1}, v{r1}, v{c}
v_lshrrev_b32 v{hi}, 16, v{hi}
v_or_b32 v{FA}, v{hi}, v{c}
v_lshrrev_b32 v{FA + 1}, 16, v{r1}"""
        return lines(txt)

    nop = lambda: None
    side.clear()

    def put(stage, frac, ops):
        b = side.setdefault(stage, [[] for _ in range(16)])
        if isinstance(ops, list) and len(ops) > 4:
            n = len(ops)
            lo = int(frac * 16)
            for i, op in enumerate(ops):
                b[lo + (16 - lo) * i // n].append(op)
        else:
            b[min(15, int(frac * 16))] += ops if isinstance(ops, list) else [ops]
    if G0S < 0:
        for op in addr_job + gath + [col256_load]:
            op()
        put(3, 0.5, side_store)
    else:
        put(2, 0.0, addr_job)
    if G0S >= 0:
        for i in range(4):
            put(G0S + i * GSTEP, 0.3 if GSTEP else 0.1 + 0.2 * i, gath[2 * i:2 * i + 2])
        put(G0S + 3 * GSTEP, 0.8, col256_load)
        put(6, 0.5, side_store) if G0S < 6 else None

    def wd_by_wave(k):
        def f():
            a(f"s_and_b32 s{s_t0}, s{s_w}, 3")
            a(f"s_cmp_lg_u32 s{s_t0}, {k}")
            a(f"s_cbranch_scc1 {name}_nwd{k}")
            saved = list(a.vm)
            wd_job(0, 1)()
            a.vm = saved
            a.label(f"{name}_nwd{k}")
        return f
    if TOUCH_WD and WDST < 0:
        wd_job(0, 1)()
    elif TOUCH_WD and WDST < 7:
        put(WDST, 0.9, wd_job(0, 1))
    if TOUCH:
        for st in range(4):
            put(max(0, st - TLEAD), 0.05 + 0.3 * (st % 2) * (1 if TLEAD else 0), lambda st=st: touch(st + 4))
    if TOUCH_NEXT:
        put(5, 0.8, touch_next)
    RS = max(XRS, -1) + 1
    if XRS >= 0:
        put(XRS, 0.1, xr_load)
    put(RS, 0.0, rowst)
    put(RS, 0.4, nonce_load)
    put(RS + 1, 0.1, rowst_store)
    put(6, 0.3, st_poll_load)
    side = {k: [op for bk in v for op in (bk if bk else [nop])] for k, v in side.items()}
    if SENT == -1:
        flag_init()
    elif SENT < 7:
        side[SENT] = side.get(SENT, []) + [flag_init]
    pf.stamp()
    a.wait(vm=["x0", "w0"])
    if PROF == 3:
        pf.stamp()
    a("s_barrier")
    pf.stamp()
    for f in read_ops(0, 0):
        f()
    LAST = NSTAGE - 1
    for stage in range(NSTAGE):
        dops = (dma_w(stage + 2) if stage + 2 < NSTAGE else []) + (dma_x(stage + 3) if stage + 3 < NSTAGE else [])
        extra = side.get(stage, [])
        for j in range(4):
            a.comment(f"stage {stage} step {j}")
            a.wait(lg="all")
            m = mfma_ops(stage, j)
            if stage < LAST:
                m = ([sel_op(j, 0, stage == 0 and j == 0)] if (not SCS or stage == 0) else []) + m
                nb = len(m) - 2
                so = publish if (stage == 6 and j == 2 and not SCS) else []
                ex = extra[len(extra) * j // 4:len(extra) * (j + 1) // 4]
                if j < 3:
                    fill = read_ops(stage, j + 1) + merge(merge(so, ex), dops[2 * j:2 * j + 2])
                    interleave(a, m, fill)
                else:
                    interleave(a, m[:nb], merge(so, ex))
                    if stage == 6:
                        if not SCS:
                            a("s_nop 3")
                            publish_cs()
                        if fused:
                            a(f"v_lshlrev_b32 v{t0}, 2, v{v_lane}")
                            a(f"v_add_u32 v{t0}, {F_LF}, v{t0}")
                            a(f"v_mov_b32 v{t1}, 0")
                            a.lds(f"ds_write_b32 v{t0}, v{t1}", "w")
                        a.wait(lg="all")
                    tags = [f"w{stage + 1}", f"x{stage + 1}"] + (["st"] if fused and stage == 5 else [])
                    a.wait(vm=tags)
                    a("s_barrier")
                    if PROF == 1 and stage % 2 == 0:
                        pf.stamp()
                    for f in read_ops(stage + 1, 0):
                        f()
                    m[nb]()
                    if fused and stage == 5:
                        a(f"s_cmp_lg_u32 s{s_w}, 0")
                        a(f"s_cbranch_scc1 {name}_nof0")
                        a(f"s_lshl_b32 s{s_t0}, s{s_rb}, 4")
                        a(f"s_add_u32 s{s_t0}, s{s_t0}, s{s_cg}")
                        a(f"s_lshl_b32 s{s_t0}, s{s_t0}, 7")
                        a(f"s_add_u32 s{s_t0}, s{s_t0}, {WS_FL + 4}")
                        a(f"v_mov_b32 v{t0}, s{s_non}")
                        a(f"v_mov_b32 v{t1}, 0")
                        a("s_mov_b64 exec, 1")
                        a(f"buffer_store_dword v{t0}, v{t1}, {sr(SRD_WS, 4)}, s{s_t0} offen sc1")
                        a("s_mov_b64 exec, -1")
                        a.label(f"{name}_nof0")
                    if stage == 6 and not SCS:
                        for f in gather:
                            f()
                    m[nb + 1]()
            else:
                if not SCS:
                    m = [sel_op(j, 0, False), sel_op(j, 1, j == 0)] + m
                if j < 3:
                    n = len(fin)
                    interleave(a, m, read_ops(stage, j + 1) + ([st_poll_check] + ([wd_job(0, 1)] if WDST == 7 else []) if j == 0 else []) + fin[n * j // 3:n * (j + 1) // 3])
                else:
                    if SCS:
                        interleave(a, m, merge(fold_a(0), fold_a(1)))
                    else:
                        for f in m[:4]:
                            f()
                        a("s_nop 3")
                        interleave(a, m[4:], merge(fold_a(0), fold_a(1)))
    a("s_nop 1")
    for mt, nt in ORDER:
        acc = vr(v_acc[mt][nt], 16)
        a(f"v_mfma_f32_32x32x16_bf16 {acc}, {vr(v_FA[mt], 4)}, {vr(v_FB[nt], 4)}, {acc}")
    if G0S == 6:
        side_store()
    pf.stamp()
    rr = [rA, rB]
    a(f"s_cmp_ge_u32 s{s_cg}, 14")
    a(f"s_cbranch_scc1 {name}_epi_dft")
    r2 = [e + 4, e + 6]
    for nt in range(2):
        a(f"v_mul_f32 v{r2[nt]}, v{rr[nt]}, v{rr[nt]}")
    a(f"v_lshlrev_b32 v{t0}, 4, v{v_lane}")
    a(f"s_lshl_b32 s{s_t0}, s{s_rb}, 2")
    a(f"s_lshl_b32 s{s_t2}, s{s_ni}, 1")
    a(f"s_add_u32 s{s_t0}, s{s_t0}, s{s_t2}")
    a(f"s_mul_i32 s{s_t0}, s{s_t0}, 112")
    a(f"s_lshl_b32 s{s_t2}, s{s_cg}, 3")
    a(f"s_add_u32 s{s_t0}, s{s_t0}, s{s_t2}")
    for mt, nt in ORDER:
        acc = v_acc[mt][nt]
        for i in range(8):
            a(f"v_max_f32 v{acc + i}, 0, v{acc + i}")
            a(f"v_mul_f32 v{acc + 8 + i}, v{r2[nt]}, v{acc + 8 + i}")
        for i in range(8):
            a(f"v_mul_f32 v{acc + i}, v{acc + i}, v{acc + 8 + i}")
        for i in range(4):
            a(f"v_cvt_pk_bf16_f32 v{acc + 8 + i}, v{acc + 2 * i}, v{acc + 2 * i + 1}")
        a(f"s_xor_b32 s{s_t2}, s{s_tile}, {mt}")
        a(f"s_add_u32 s{s_t2}, s{s_t2}, s{s_t0}")
        if nt:
            a(f"s_add_u32 s{s_t2}, s{s_t2}, 112")
        a(f"s_lshl_b32 s{s_t2}, s{s_t2}, 10")
        a(f"buffer_store_dwordx4 {vr(acc + 8, 4)}, v{t0}, {sr(SRD_WS, 4)}, s{s_t2} offen{WTH}")
    if PROF and not fused:
        pf.stamp()
        a("s_waitcnt vmcnt(0)")
        pf.stamp()
        pf.stamp(real=True)
        pf.dump(SRD_WS, 2, s_w, v_t[0], s_t0, 8)
    a(f"s_branch {name}_join" if fused else "s_endpgm")
    a.label(f"{name}_epi_dft")
    for nt in range(2):
        a(f"v_mul_f32 v{rr[nt]}, 0x36000000, v{rr[nt]}")
    a(f"v_lshlrev_b32 v{t0}, 14, v{v_h}")
    a(f"v_lshl_add_u32 v{t0}, v{v_n}, 2, v{t0}")
    a(f"s_sub_u32 s{s_t0}, s{s_cg}, 14")
    a(f"s_lshl_b32 s{s_t0}, s{s_t0}, 20")
    a(f"s_add_u32 s{s_t0}, s{s_t0}, {WS_U}")
    a(f"s_lshl_b32 s{s_t2}, s{s_rb}, 9")
    a(f"s_add_u32 s{s_t0}, s{s_t0}, s{s_t2}")
    a(f"s_lshl_b32 s{s_t2}, s{s_ni}, 8")
    a(f"s_add_u32 s{s_t0}, s{s_t0}, s{s_t2}")
    for mt, nt in ORDER:
        a(f"s_xor_b32 s{s_t2}, s{s_tile}, {mt}")
        a(f"s_lshl_b32 s{s_t2}, s{s_t2}, 16")
        a(f"s_add_u32 s{s_t2}, s{s_t2}, s{s_t0}")
        acc = v_acc[mt][nt]
        for i in range(16):
            a(f"v_mul_f32 v{acc + i}, v{rr[nt]}, v{acc + i}")
        for i in range(8):
            a(f"v_cvt_pk_bf16_f32 v{acc + 2 * i}, v{acc + 2 * i}, v{acc + 2 * i + 1}")
        for g in range(4):
            for ip in range(2):
                koff = (g % 2) * 4 + (g // 2) * 64 + ip
                a(f"s_add_u32 s{s_t3}, s{s_t2}, {koff * 8192}")
                a(f"buffer_store_dword v{acc + 4 * g + 2 * ip}, v{t0}, {sr(SRD_WS, 4)}, s{s_t3} offen offset:{nt * 128}{WTH}")
    if fused:
        a.label(f"{name}_join")
        a("s_barrier")
        return locals()
    if PROF:
        pf.n -= 3
        pf.stamp()
        a("s_waitcnt vmcnt(0)")
        pf.stamp()
        pf.stamp(real=True)
        pf.dump(SRD_WS, 2, s_w, v_t[0], s_t0, 8)
    a.label(f"{name}_done")
    a("s_endpgm")
    return kernel_header(name) + a.text(), kernel_desc(name, V.hi, 102)


def gen_ftab():
    j = np.arange(512)
    c, s = exact_cos_sin(j, 512)
    cb, nb = bf16_bits(c), bf16_bits(-s + 0.0)
    t = ""
    for i in range(512):
        t += f".set tw_{i}, 0x{int(cb[i] | (nb[i] << 16)):08x}\n"
    t += """.macro twe idx
.long tw_\\idx
.endm
.altmacro
.p2align 8
ftab:
.set dd, 0
.rept 512
.long 0x3f003f00 | ((dd & 1) << 31)
.set kk, 1
.rept 255
twe %((dd*kk) & 511)
.set kk, kk+1
.endr
.set dd, dd+1
.endr
.noaltmacro
"""
    return t
```

```python
from gen_common import *

K1_LDS_X = 0
K1_LDS_G = 65536
K1_LDS_U = 114688
K1_LDS = 163840
K1_LDS_ST = K1_LDS_G + 2 * 16384
K1_LDS_CS = K1_LDS_ST + 8192
NSTAGE = 8
WS_ST = 15 << 20
SPIN_MAX = 1 << 14
SF = int(os.environ.get('K1_SF', '3'))
WT = os.environ.get("K1_WT", " sc1")
WTH = os.environ.get("K1_WTH", " sc1")
TOUCH_WD = int(os.environ.get("TOUCH_WD", "2"))
TOUCH = int(os.environ.get("TOUCH", "0"))
TOUCH_NEXT = int(os.environ.get("TOUCH_NEXT", "1"))
TLB_WARM = int(os.environ.get("TLB_WARM", "0"))
SENT = int(os.environ.get("SENT", "-1"))
WDST = int(os.environ.get("WDST", "3"))
WDN = int(os.environ.get("WDN", "1"))
G0S = int(os.environ.get("G0S", "4"))
GSTEP = int(os.environ.get("GSTEP", "0"))
XRS = int(os.environ.get("XRS", "-1"))
MAP = int(os.environ.get("MAP", "0"))
PBAR = int(os.environ.get("PBAR", "2"))
DSKIP = int(os.environ.get("DSKIP", "1"))
NAFTER = int(os.environ.get("NAFTER", "2"))
K1PRIO = int(os.environ.get("K1PRIO", "0"))
KROT = int(os.environ.get("KROT", "0"))
SCS = int(os.environ.get("SCS", "0"))
TLEAD = int(os.environ.get("TLEAD", "0"))
TEARLY = int(os.environ.get("TEARLY", "0"))


WS_CS = WS_ST + 131072
WS_FL = WS_ST + 65536
F_LF = K1_LDS_ST + 12288


def gen_k1(name, fused=False):
    global G0S, TOUCH_NEXT
    if fused:
        G0S = -1
    a = Asm()
    V = Regs(1, 256)
    S = Regs(40, 102)
    SRD_X, SRD_G, SRD_U, SRD_WS, SRD_WR, SRD_WI, SRD_WD, SRD_T, SRD_D = 4, 8, 12, 16, 20, 24, 28, 32, 36
    s_rb, s_cg, s_w, s_mi, s_ni, s_rs, s_goff, s_uoff = [S.alloc() for _ in range(8)]
    s_t0, s_t1, s_t2, s_t3 = [S.alloc() for _ in range(4)]
    s_sx, s_sw, s_sw2, s_rs4, s_rs64, s_m0x, s_tile = [S.alloc() for _ in range(7)]
    s_p = S.alloc(16, 4)
    s_tab = S.alloc(2, 2)

    v_lane, v_n, v_h = V.alloc(), V.alloc(), V.alloc()
    v_t = [V.alloc() for _ in range(8)]
    v_dx = [V.alloc(), V.alloc()]
    v_dg, v_du = V.alloc(), V.alloc()
    v_xa = [V.alloc() for _ in range(4)]
    v_xs = V.alloc()
    v_wa = [V.alloc(), V.alloc()]
    v_st = [V.alloc(2, 2), V.alloc(2, 2)]
    v_f1a, v_f1s, v_f2a, v_f2s = [V.alloc() for _ in range(4)]
    v_pa = [V.alloc() for _ in range(3)]
    v_f1 = V.alloc(4, 4)
    v_f2 = V.alloc(4, 4)
    v_fi = V.alloc(8, 4)
    v_cs = [V.alloc(4, 4), V.alloc(4, 4)]
    v_sel = V.alloc(4, 4)
    v_XS = [V.alloc(4, 4) for _ in range(2)]
    v_X = [[V.alloc(4, 4) for _ in range(2)] for _ in range(2)]
    v_W = [[V.alloc(4, 4) for _ in range(2)] for _ in range(2)]
    v_acc = [[V.alloc(16, 4) for _ in range(2)] for _ in range(2)]
    v_e = V.alloc(16, 4)
    v_FA = [V.alloc(4, 4) for _ in range(2)]
    v_FB = [V.alloc(4, 4) for _ in range(2)]
    v_cso = V.alloc()
    v_sn = V.alloc(4, 4)
    t0, t1, t2, t3, t4 = v_t[:5]
    u0, u1, u2, u3 = v_t[4:8]

    pf = Prof(a, S, 12, 0)
    a("s_cmp_ge_u32 s2, 256")
    a(f"s_cbranch_scc1 {name}_done")
    pf.stamp(real=True)
    pf.stamp()
    a(f"s_load_dwordx2 {sr(s_p, 2)}, s[0:1], {KA_X}")
    a(f"s_load_dwordx4 {sr(s_p + 4, 4)}, s[0:1], {KA_WG}")
    a(f"s_load_dwordx2 {sr(s_p + 2, 2)}, s[0:1], {KA_WS}")
    a(f"s_load_dwordx4 {sr(s_p + 8, 4)}, s[0:1], {KA_WR}")
    a(f"s_load_dwordx4 {sr(s_p + 12, 4)}, s[0:1], {KA_WD}")
    a(f"s_load_dwordx2 {sr(SRD_D, 2)}, s[0:1], {KA_DBG}")
    s_out = s_p + 14
    a(f"v_lshrrev_b32 v{t0}, 6, v0")
    a(f"v_and_b32 v{v_lane}, 63, v0")
    a(f"v_readfirstlane_b32 s{s_w}, v{t0}")
    if MAP == 0:
        a(f"s_bfe_u32 s{s_rb}, s2, 0x10002")
        a(f"s_lshl_b32 s{s_rb}, s{s_rb}, 3")
        a(f"s_bfe_u32 s{s_t2}, s2, 0x30003")
        a(f"s_add_u32 s{s_rb}, s{s_rb}, s{s_t2}")
        a(f"s_and_b32 s{s_cg}, s2, 3")
        a(f"s_lshl_b32 s{s_cg}, s{s_cg}, 2")
        a(f"s_lshr_b32 s{s_t2}, s2, 6")
        a(f"s_add_u32 s{s_cg}, s{s_cg}, s{s_t2}")
    elif MAP == 1:
        a(f"s_and_b32 s{s_rb}, s2, 7")
        a(f"s_lshl_b32 s{s_rb}, s{s_rb}, 1")
        a(f"s_bfe_u32 s{s_t2}, s2, 0x10003")
        a(f"s_add_u32 s{s_rb}, s{s_rb}, s{s_t2}")
        a(f"s_lshr_b32 s{s_cg}, s2, 4")
    else:
        a(f"s_bfe_u32 s{s_rb}, s2, 0x20001")
        a(f"s_lshl_b32 s{s_rb}, s{s_rb}, 2")
        a(f"s_bfe_u32 s{s_t2}, s2, 0x20003")
        a(f"s_add_u32 s{s_rb}, s{s_rb}, s{s_t2}")
        a(f"s_and_b32 s{s_cg}, s2, 1")
        a(f"s_lshl_b32 s{s_cg}, s{s_cg}, 3")
        a(f"s_lshr_b32 s{s_t2}, s2, 5")
        a(f"s_add_u32 s{s_cg}, s{s_cg}, s{s_t2}")
    a(f"s_sub_u32 s{s_t0}, s{s_cg}, 14")
    a(f"s_lshl_b32 s{s_t0}, s{s_t0}, 9")
    a(f"s_add_u32 s{s_t1}, s{s_t0}, 256")
    a(f"s_lshl_b32 s{s_t2}, s{s_cg}, 8")
    a(f"s_movk_i32 s{s_rs}, 3584")
    a(f"s_cmp_ge_u32 s{s_cg}, 14")
    a(f"s_cselect_b32 s{s_rs}, 1024, s{s_rs}")
    a(f"s_cselect_b32 s{s_goff}, s{s_t0}, s{s_t2}")
    a(f"s_cselect_b32 s{s_uoff}, s{s_t1}, s{s_t2}")
    a(f"s_lshl_b32 s{s_rs4}, s{s_rs}, 2")
    a(f"s_lshl_b32 s{s_rs64}, s{s_rs}, 6")
    a(f"s_getpc_b64 {sr(s_tab, 2)}")
    a(f"s_add_u32 s{s_tab}, s{s_tab}, ftab@rel32@lo+4")
    a(f"s_addc_u32 s{s_tab + 1}, s{s_tab + 1}, ftab@rel32@hi+12")

    a(f"v_lshrrev_b32 v{t0}, 3, v{v_lane}")
    a(f"v_and_b32 v{t1}, 7, v{v_lane}")
    a(f"v_lshrrev_b32 v{t2}, 4, v{v_lane}")
    a(f"v_xor_b32 v{t1}, v{t1}, v{t2}")
    a(f"v_lshlrev_b32 v{t1}, 4, v{t1}")
    a(f"v_lshl_add_u32 v{t1}, v{t0}, 16, v{t1}")
    a(f"s_and_b32 s{s_t0}, s{s_w}, 1")
    a(f"s_lshl_b32 s{s_t0}, s{s_t0}, 20")
    a(f"s_lshr_b32 s{s_t1}, s{s_w}, 1")
    a(f"s_lshl_b32 s{s_t1}, s{s_t1}, 10")
    a(f"s_add_u32 s{s_t0}, s{s_t0}, s{s_t1}")
    a(f"s_lshl_b32 s{s_t1}, s{s_rb}, 12")
    a(f"s_add_u32 s{s_t0}, s{s_t0}, s{s_t1}")
    a(f"v_add_u32 v{v_dx[0]}, s{s_t0}, v{t1}")
    a(f"v_xor_b32 v{t1}, 0x80040, v{t1}")
    a(f"v_add_u32 v{v_dx[1]}, s{s_t0}, v{t1}")
    a(f"v_lshlrev_b32 v{t3}, 6, v{t2}")
    a(f"v_and_b32 v{t1}, 15, v{v_lane}")
    a(f"v_lshlrev_b32 v{t1}, 4, v{t1}")
    a(f"v_xor_b32 v{t1}, v{t1}, v{t3}")
    a(f"s_lshl_b32 s{s_t0}, s{s_w}, 3")
    a(f"v_add_u32 v{t0}, s{s_t0}, v{t2}")
    a(f"v_mul_lo_u32 v{t0}, v{t0}, s{s_rs}")
    a(f"v_add3_u32 v{v_dg}, v{t0}, v{t1}, s{s_goff}")
    a(f"v_xor_b32 v{t1}, 32, v{t1}")
    a(f"v_add3_u32 v{v_du}, v{t0}, v{t1}, s{s_uoff}")
    a(f"s_lshl_b32 s{s_m0x}, s{s_w}, 11")
    a(f"s_lshl_b32 s{s_t0}, s{s_cg}, 3")
    a(f"s_add_u32 s{s_t0}, s{s_t0}, s{s_w}")
    a(f"s_and_b32 s{s_t1}, s{s_t0}, 31")
    a(f"s_lshl_b32 s{s_t1}, s{s_t1}, 16")
    a(f"s_lshr_b32 s{s_t0}, s{s_t0}, 5")
    a(f"s_lshl_b32 s{s_t0}, s{s_t0}, 10")
    a(f"s_add_u32 s{s_t1}, s{s_t1}, s{s_t0}")
    a(f"s_lshl_b32 s{s_t0}, s{s_rb}, 12")
    a(f"s_add_u32 s{s_t3}, s{s_t1}, s{s_t0}")
    a(f"v_lshlrev_b32 v{t1}, 4, v{v_lane}")
    if KROT:
        a(f"s_and_b32 s{s_t0}, s{s_rb}, 7")
        a(f"s_lshl_b32 s{s_sx}, s{s_t0}, 7")
        a(f"s_mul_i32 s{s_sw}, s{s_t0}, s{s_rs64}")
    else:
        a(f"s_mov_b32 s{s_sx}, 0")
        a(f"s_mov_b32 s{s_sw}, 0")
    a(f"s_mov_b32 s{SRD_X + 2}, {2048 * 1024}")
    a(f"s_mov_b32 s{SRD_X + 3}, 0x00020000")
    a(f"s_mov_b32 s{SRD_G + 3}, 0x00020000")
    a(f"s_mov_b32 s{SRD_U + 3}, 0x00020000")
    a(f"s_lshl_b32 s{SRD_G + 2}, s{s_rs}, 9")
    a(f"s_lshl_b32 s{SRD_U + 2}, s{s_rs}, 9")
    if PROF == 3:
        pf.stamp()
    a("s_waitcnt lgkmcnt(0)")
    if PROF == 3:
        pf.stamp()
    a(f"s_mov_b32 s{SRD_X}, s{s_p}")
    a(f"s_and_b32 s{SRD_X + 1}, s{s_p + 1}, 0xffff")
    a(f"s_cmp_ge_u32 s{s_cg}, 14")
    a(f"s_cselect_b32 s{SRD_G}, s{s_tab}, s{s_p + 4}")
    a(f"s_cselect_b32 s{SRD_G + 1}, s{s_tab + 1}, s{s_p + 5}")
    a(f"s_cselect_b32 s{SRD_U}, s{s_tab}, s{s_p + 6}")
    a(f"s_cselect_b32 s{SRD_U + 1}, s{s_tab + 1}, s{s_p + 7}")
    a(f"s_and_b32 s{SRD_G + 1}, s{SRD_G + 1}, 0xffff")
    a(f"s_and_b32 s{SRD_U + 1}, s{SRD_U + 1}, 0xffff")

    def mk(ldsbase, vaddr, srdn, soff, mid, tag, post=None):
        def f():
            a(f"s_add_u32 m0, s{s_m0x}, {ldsbase}")
            a(mid)
            a.vmem(f"buffer_load_dwordx4 v{vaddr}, {sr(srdn, 4)}, s{soff} offen lds", tag)
            if post:
                a(post)
        return f

    def dma_x(stage):
        b = K1_LDS_X + (stage % 4) * 16384
        return [mk(b, v_dx[0], SRD_X, s_sx, f"s_and_b32 s{s_sx}, s{s_sx}, 1023", f"x{stage}"),
                mk(b + 1024, v_dx[1], SRD_X, s_sx, "s_nop 0", f"x{stage}", post=f"s_add_u32 s{s_sx}, s{s_sx}, 128")]

    def dma_w(stage):
        b = (stage % 3) * 16384
        tag = f"w{stage}"
        return [mk(K1_LDS_G + b, v_dg, SRD_G, s_sw, f"s_add_u32 s{s_sw2}, s{s_sw}, s{s_rs4}", tag),
                mk(K1_LDS_U + b, v_du, SRD_U, s_sw, "s_nop 0", tag),
                mk(K1_LDS_G + b + 1024, v_dg, SRD_G, s_sw2, f"s_add_u32 s{s_sw}, s{s_sw}, s{s_rs64}", tag),
                mk(K1_LDS_U + b + 1024, v_du, SRD_U, s_sw2, "s_nop 0", tag,
                   post=(f"s_cmp_ge_u32 s{s_sw}, s{SRD_G + 2}\ns_cselect_b32 s{s_sw}, 0, s{s_sw}" if KROT else None))]

    for f in dma_x(0) + dma_w(0):
        f()
    if PROF == 3:
        pf.stamp()
    XR = v_XS[0]
    a(f"v_add_u32 v{v_xs}, s{s_t3}, v{t1}")

    def xr_load():
        a.vmem(f"buffer_load_dwordx4 {vr(XR, 4)}, v{v_xs}, {sr(SRD_X, 4)}, 0 offen", "xr")
    s_tpar, s_toff, s_tstep = s_tab, s_tab + 1, s_p

    def touch_setup():
        a(f"v_and_b32 v{u0}, 15, v{v_lane}")
        a(f"s_cmp_ge_u32 s{s_w}, 4")
        a(f"s_cbranch_scc1 {name}_tx")
        a(f"s_and_b32 s{s_tpar}, s{s_w}, 1")
        a(f"s_and_b32 s{s_t1}, s{s_rb}, 7")
        a(f"v_lshrrev_b32 v{u1}, 1, v{u0}")
        a(f"v_lshl_add_u32 v{u1}, v{u1}, 3, s{s_t1}")
        a(f"v_mul_lo_u32 v{u1}, v{u1}, s{s_rs}")
        a(f"v_and_b32 v{u0}, 1, v{u0}")
        a(f"v_lshl_add_u32 v{v_pa[2]}, v{u0}, 7, v{u1}")
        a(f"s_cmp_ge_u32 s{s_w}, 2")
        a(f"s_cselect_b32 s{s_toff}, s{s_uoff}, s{s_goff}")
        a(f"s_cselect_b32 s{SRD_T}, s{SRD_U}, s{SRD_G}")
        a(f"s_cselect_b32 s{SRD_T + 1}, s{SRD_U + 1}, s{SRD_G + 1}")
        a(f"s_mov_b32 s{SRD_T + 2}, s{SRD_G + 2}")
        a(f"s_mov_b32 s{s_tstep}, s{s_rs64}")
        a(f"s_branch {name}_tj")
        a.label(f"{name}_tx")
        a(f"s_bfe_u32 s{s_tpar}, s{s_w}, 0x10001")
        a(f"s_and_b32 s{s_toff}, s{s_w}, 1")
        a(f"s_lshl_b32 s{s_toff}, s{s_toff}, 20")
        a(f"s_and_b32 s{s_t1}, s{s_cg}, 3")
        a(f"s_lshl_b32 s{s_t1}, s{s_t1}, 10")
        a(f"s_add_u32 s{s_toff}, s{s_toff}, s{s_t1}")
        a(f"s_lshl_b32 s{s_t1}, s{s_rb}, 12")
        a(f"s_add_u32 s{s_toff}, s{s_toff}, s{s_t1}")
        a(f"v_lshlrev_b32 v{v_pa[2]}, 16, v{u0}")
        a(f"s_mov_b32 s{SRD_T}, s{SRD_X}")
        a(f"s_mov_b32 s{SRD_T + 1}, s{SRD_X + 1}")
        a(f"s_mov_b32 s{SRD_T + 2}, s{SRD_X + 2}")
        a(f"s_movk_i32 s{s_tstep}, 128")
        a.label(f"{name}_tj")
        a(f"s_mov_b32 s{SRD_T + 3}, 0x00020000")
        a(f"s_add_u32 s{s_t1}, s{s_tpar}, 2")
        a(f"s_mul_i32 s{s_t1}, s{s_t1}, s{s_tstep}")
        a(f"s_add_u32 s{s_toff}, s{s_toff}, s{s_t1}")
        a(f"s_lshl_b32 s{s_tstep}, s{s_tstep}, 1")

    def touch(stage):
        if stage is not None:
            a(f"s_cmp_lg_u32 s{s_tpar}, {stage & 1}")
            a(f"s_cbranch_scc1 {name}_tn{stage}")
        a(f"buffer_load_dword v{v_pa[1]}, v{v_pa[2]}, {sr(SRD_T, 4)}, s{s_toff} offen")
        a(f"s_add_u32 s{s_toff}, s{s_toff}, s{s_tstep}")
        if stage is not None:
            a.label(f"{name}_tn{stage}")
    if TLB_WARM:
        a(f"s_cmp_lg_u32 s{s_w}, 7")
        a(f"s_cbranch_scc1 {name}_notlb")
        a(f"v_min_u32 v{u0}, 7, v{v_lane}")
        a(f"v_lshlrev_b32 v{u0}, 21, v{u0}")
        a(f"v_and_b32 v{u1}, 1, v{v_lane}")
        for k, (ptr, size) in enumerate(((s_p + 2, WS_SIZE), (s_p + 8, 2048 * 514), (s_p + 10, 2048 * 514), (s_p + 12, 1792 * 1024), (s_p + 14, 2048 * 1024), (SRD_D, 256))):
            srd(a, SRD_T, ptr, size)
            if k:
                a(f"v_mul_u32_u24 v{u0}, {size - 4}, v{u1}")
            a(f"buffer_load_dword v{v_pa[k % 3]}, v{u0}, {sr(SRD_T, 4)}, 0 offen")
        a.label(f"{name}_notlb")
    if TOUCH and TEARLY:
        touch_setup()
    if PBAR >= 1:
        a("s_barrier")
        if TOUCH and TEARLY:
            touch(None)
    elif XRS < 0:
        xr_load()
    a(f"v_and_b32 v{v_n}, 31, v{v_lane}")
    a(f"v_lshrrev_b32 v{v_h}, 5, v{v_lane}")
    a(f"s_and_b32 s{s_mi}, s{s_w}, 3")
    a(f"s_lshr_b32 s{s_ni}, s{s_w}, 2")
    d1 = dma_x(1) + dma_w(1) + dma_x(2)
    a(f"v_bfe_u32 v{t0}, v{v_n}, 1, 3")
    a(f"v_xor_b32 v{t0}, v{t0}, v{v_h}")
    a(f"s_lshl_b32 s{s_t0}, s{s_ni}, 13")
    a(f"v_lshlrev_b32 v{t1}, 7, v{v_n}")
    a(f"v_add_u32 v{t1}, s{s_t0}, v{t1}")
    a(f"v_lshl_add_u32 v{v_xa[0]}, v{t0}, 4, v{t1}")
    d1[0]()
    for j in range(1, 4):
        a(f"v_xor_b32 v{v_xa[j]}, {32 * j}, v{v_xa[0]}")
    d1[1]()
    a(f"v_bfe_u32 v{t2}, v{v_lane}, 4, 1")
    a(f"v_bfe_u32 v{t3}, v{v_lane}, 2, 2")
    a(f"v_lshl_add_u32 v{t4}, v{t3}, 1, v{t2}")
    a(f"s_lshl_b32 s{s_tile}, s{s_mi}, 1")
    a(f"s_add_u32 s{s_tile}, s{s_tile}, s{s_ni}")
    a(f"v_xor_b32 v{t4}, s{s_tile}, v{t4}")
    d1[2]()
    a(f"v_lshlrev_b32 v{t4}, 5, v{t4}")
    a(f"v_lshl_add_u32 v{t4}, v{t3}, 8, v{t4}")
    a(f"v_and_b32 v{t3}, 3, v{v_lane}")
    a(f"v_lshl_add_u32 v{t4}, v{t3}, 3, v{t4}")
    a(f"v_lshl_add_u32 v{t4}, v{v_h}, 11, v{t4}")
    d1[3]()
    a(f"v_mul_u32_u24 v{t2}, {K1_LDS_U - K1_LDS_G}, v{t2}")
    a(f"v_add_u32 v{t4}, v{t4}, v{t2}")
    a(f"v_add_u32 v{v_wa[0]}, {K1_LDS_G}, v{t4}")
    a(f"v_xor_b32 v{v_wa[1]}, 32, v{v_wa[0]}")
    d1[4]()
    a(f"v_bfe_u32 v{t2}, v{v_lane}, 4, 1")
    a(f"v_cmp_eq_u32 vcc, v{t3}, v{t2}")
    a(f"v_mov_b32 v{t2}, 0x3f803f80")
    a(f"v_mov_b32 v{t3}, 0")
    d1[5]()
    for i in range(4):
        a(f"v_cndmask_b32 v{v_sel + i}, v{t3}, v{t2}, vcc")
    if PBAR >= 2:
        a("s_barrier")
    if PBAR >= 1 and XRS < 0:
        xr_load()
    d1[6]()
    d1[7]()

    if TOUCH and not TEARLY:
        touch_setup()
        touch(None)
    srd(a, SRD_WS, s_p + 2, WS_SIZE)
    srd(a, SRD_WR, s_p + 8, 2048 * 514)
    srd(a, SRD_WI, s_p + 10, 2048 * 514)
    srd(a, SRD_WD, s_p + 12, 1792 * 1024)
    srd(a, SRD_D, SRD_D, 256)
    s_non = s_p + 4
    a(f"s_or_b32 s{s_t0}, s{s_w}, s2")
    a(f"s_cmp_lg_u32 s{s_t0}, 0")
    a(f"s_cbranch_scc1 {name}_nonon")
    a(f"s_memrealtime {sr(s_non, 2)}")
    a("s_waitcnt lgkmcnt(0)")
    a(f"s_or_b32 s{s_non}, s{s_non}, 1")
    a(f"v_mov_b32 v{t0}, s{s_non}")
    a(f"v_mov_b32 v{t1}, 0")
    a("s_mov_b64 exec, 1")
    a(f"buffer_store_dword v{t0}, v{t1}, {sr(SRD_D, 4)}, 0 offen sc1")
    a("s_mov_b64 exec, -1")
    a.label(f"{name}_nonon")

    side = {}

    def lines(txt):
        return [lambda l=l: a(l) for l in txt.strip().split("\n")]
    job = lines(f"""
v_lshrrev_b32 v{u0}, 3, v{v_lane}
v_and_b32 v{u1}, 7, v{v_lane}
s_and_b32 s{s_t0}, s2, 3
s_lshl_b32 s{s_t0}, s{s_t0}, 3
s_add_u32 s{s_t0}, s{s_t0}, s{s_w}
s_lshl_b32 s{s_t0}, s{s_t0}, 3
v_add_u32 v{u1}, s{s_t0}, v{u1}
s_lshr_b32 s{s_t1}, s2, 2
s_and_b32 s{s_t1}, s{s_t1}, 3
s_lshr_b32 s{s_t2}, s2, 4
v_lshrrev_b32 v{u2}, 2, v{u0}
v_lshlrev_b32 v{u2}, 4, v{u2}
v_and_b32 v{u3}, 3, v{u0}
v_add_u32 v{u2}, v{u2}, v{u3}
s_lshl_b32 s{s_t3}, s{s_t1}, 2
v_add_u32 v{u2}, s{s_t3}, v{u2}
s_lshl_b32 s{s_t3}, s{s_t2}, 7
v_add_u32 v{u2}, s{s_t3}, v{u2}
v_mul_u32_u24 v{u2}, 514, v{u2}
v_lshl_add_u32 v{v_f1a}, v{u1}, 1, v{u2}
v_add_u32 v{v_f2a}, 512, v{u2}
s_lshl_b32 s{s_t3}, s{s_t2}, 9
s_lshl_b32 s{s_t1}, s{s_t1}, 7
s_add_u32 s{s_t3}, s{s_t3}, s{s_t1}
s_add_u32 s{s_t3}, s{s_t3}, {WS_W}
v_lshl_add_u32 v{u0}, v{u0}, 4, s{s_t3}
v_lshl_add_u32 v{v_f1s}, v{u1}, 13, v{u0}
v_add_u32 v{v_f2s}, {256 * 8192}, v{u0}
""")
    addr_job = job

    def gl(dst, va, srdn, i):
        def f():
            a(f"s_mov_b32 s{s_t0}, {i * 32 * 514}")
            a.vmem(f"buffer_load_ushort v{dst}, v{va}, {sr(srdn, 4)}, s{s_t0} offen", "f1")
        return f
    job = []
    for i in range(4):
        job.append(gl(v_f1 + i, v_f1a, SRD_WR, i))
        job.append(gl(v_fi + i, v_f1a, SRD_WI, i))
    gath = job
    side[6] = []

    def c256_test(lbl):
        a(f"s_and_b32 s{s_t0}, s2, 3")
        a(f"s_lshl_b32 s{s_t0}, s{s_t0}, 3")
        a(f"s_add_u32 s{s_t0}, s{s_t0}, s{s_w}")
        a(f"s_cmp_lg_u32 s{s_t0}, 31")
        a(f"s_cbranch_scc1 {name}_{lbl}")

    def col256_load():
        c256_test("c256a")
        for i in range(4):
            a(f"s_mov_b32 s{s_t0}, {i * 32 * 514}")
            a(f"buffer_load_ushort v{v_f2 + i}, v{v_f2a}, {sr(SRD_WR, 4)}, s{s_t0} offen")
            a(f"buffer_load_ushort v{v_fi + 4 + i}, v{v_f2a}, {sr(SRD_WI, 4)}, s{s_t0} offen")
        a.label(f"{name}_c256a")

    def side_store():
        a.wait(vm="f1")
        for i in range(4):
            a(f"v_lshl_or_b32 v{v_f1 + i}, v{v_fi + i}, 16, v{v_f1 + i}")
        a.vmem(f"buffer_store_dwordx4 {vr(v_f1, 4)}, v{v_f1s}, {sr(SRD_WS, 4)}, 0 offen{WT}", "st")
        c256_test("c256b")
        for i in range(4):
            a(f"v_lshl_or_b32 v{v_f2 + i}, v{v_fi + 4 + i}, 16, v{v_f2 + i}")
        a(f"buffer_store_dwordx4 {vr(v_f2, 4)}, v{v_f2s}, {sr(SRD_WS, 4)}, 0 offen{WT}")
        a.label(f"{name}_c256b")

    def wd_job(part, nparts):
        def f():
            if TOUCH_WD == 1:
                per = 56 // nparts
                a(f"s_lshr_b32 s{s_t0}, s2, 3")
                a(f"s_lshl_b32 s{s_t0}, s{s_t0}, 3")
                a(f"s_add_u32 s{s_t0}, s{s_t0}, s{s_w}")
                a(f"s_mul_i32 s{s_t0}, s{s_t0}, {per * 128}")
                a(f"s_add_u32 s{s_t0}, s{s_t0}, {part * 256 * per * 128}")
                a(f"v_min_u32 v{u3}, {per - 1}, v{v_lane}")
            else:
                a(f"s_lshl_b32 s{s_t0}, s2, 3")
                a(f"s_add_u32 s{s_t0}, s{s_t0}, s{s_w}")
                a(f"s_mul_i32 s{s_t0}, s{s_t0}, {7 * 128}")
                a(f"v_min_u32 v{u3}, 6, v{v_lane}")
            a(f"v_lshlrev_b32 v{u3}, 7, v{u3}")
            a.vmem(f"buffer_load_dword v{v_pa[1]}, v{u3}, {sr(SRD_WD, 4)}, s{s_t0} offen", "pf")
        return f
    def flag_init():
        a(f"s_lshl_b32 s{s_t0}, s2, 3")
        a(f"s_add_u32 s{s_t0}, s{s_t0}, s{s_w}")
        a(f"s_lshl_b32 s{s_t0}, s{s_t0}, 10")
        a(f"s_add_u32 s{s_t0}, s{s_t0}, {WS_Z}")
        a(f"v_lshlrev_b32 v{u3}, 4, v{v_lane}")
        for i in range(4):
            a(f"v_mov_b32 v{v_sn + i}, -1")
        a.vmem(f"buffer_store_dwordx4 {vr(v_sn, 4)}, v{u3}, {sr(SRD_WS, 4)}, s{s_t0} offen sc1", "st")
    def touch_next():
        a(f"s_cmp_ge_u32 s2, 8")
        a(f"s_cbranch_scc1 {name}_notn")
        a(f"s_getpc_b64 {sr(SRD_T, 2)}")
        a(f"s_add_u32 s{SRD_T}, s{SRD_T}, k23_begin@rel32@lo+4")
        a(f"s_addc_u32 s{SRD_T + 1}, s{SRD_T + 1}, k23_begin@rel32@hi+12")
        a(f"s_mov_b32 s{SRD_T + 2}, k23_end-k23_begin")
        a(f"s_lshl_b32 s{s_t0}, s{s_w}, 13")
        a(f"s_and_b32 s{SRD_T + 1}, s{SRD_T + 1}, 0xffff")
        a(f"s_mov_b32 s{SRD_T + 3}, 0x00020000")
        a(f"v_lshlrev_b32 v{u3}, 7, v{v_lane}")
        a(f"buffer_load_dword v{v_pa[1]}, v{u3}, {sr(SRD_T, 4)}, s{s_t0} offen")
        a.label(f"{name}_notn")

    if TOUCH:
        for st in range(4):
            side[st] = [lambda st=st: touch(st + 4)] + [lambda: None] * 3 + side.get(st, [])

    def read_ops(stage, j):
        bw = (stage % 3) * 16384 + j * 4096
        bx = (stage % 4) * 16384
        ops = []
        tag = f"r{stage}_{j}"
        for mt in range(2):
            for e in range(2):
                ops.append(lambda mt=mt, e=e: a.lds(
                    f"ds_read_b64_tr_b16 {vr(v_W[j % 2][mt] + 2 * e, 2)}, v{v_wa[mt]} offset:{bw + e * 1024}", tag))
            ops.append(lambda nt=mt: a.lds(
                f"ds_read_b128 {vr(v_X[j % 2][nt], 4)}, v{v_xa[j]} offset:{bx + nt * 4096}", tag))
        return ops

    def allreduce(v, t):
        return lines(f"""
s_nop 1
v_add_f32_dpp v{v}, v{v}, v{v} quad_perm:[1,0,3,2] row_mask:0xf bank_mask:0xf
s_nop 1
v_add_f32_dpp v{v}, v{v}, v{v} quad_perm:[2,3,0,1] row_mask:0xf bank_mask:0xf
s_nop 1
v_add_f32_dpp v{v}, v{v}, v{v} row_half_mirror row_mask:0xf bank_mask:0xf
s_nop 1
v_add_f32_dpp v{v}, v{v}, v{v} row_mirror row_mask:0xf bank_mask:0xf
v_mov_b32 v{t}, v{v}
s_nop 1
v_permlane16_swap_b32 v{v}, v{t}
v_add_f32 v{v}, v{v}, v{t}
v_mov_b32 v{t}, v{v}
s_nop 1
v_permlane32_swap_b32 v{v}, v{t}
v_add_f32 v{v}, v{v}, v{t}
""")
    el = [v_e + i for i in range(8)]
    m_, mb, dl, tt = v_t[:4]
    so0, so1 = v_st[0], v_st[0] + 1
    rowst = [lambda: a.wait(vm="xr")]
    for d in range(4):
        rowst += lines(f"v_lshlrev_b32 v{el[2 * d]}, 16, v{XR + d}\nv_and_b32 v{el[2 * d + 1]}, 0xffff0000, v{XR + d}")
    rowst += lines(f"""
v_add_f32 v{m_}, v{el[0]}, v{el[1]}
v_add_f32 v{mb}, v{el[2]}, v{el[3]}
v_add_f32 v{dl}, v{el[4]}, v{el[5]}
v_add_f32 v{tt}, v{el[6]}, v{el[7]}
v_add_f32 v{m_}, v{m_}, v{mb}
v_add_f32 v{dl}, v{dl}, v{tt}
v_add_f32 v{m_}, v{m_}, v{dl}
""") + allreduce(m_, tt) + lines(f"""
v_mul_f32 v{m_}, 0x3b000000, v{m_}
v_cvt_pk_bf16_f32 v{so0}, -v{m_}, -v{m_}
""")
    rowst += lines("\n".join(f"v_sub_f32 v{e_}, v{e_}, v{m_}" for e_ in el))
    rowst += lines(f"v_mul_f32 v{mb}, v{el[0]}, v{el[0]}\nv_mul_f32 v{dl}, v{el[1]}, v{el[1]}")
    rowst += lines("\n".join(f"v_fmac_f32 v{(mb, dl)[i % 2]}, v{el[i]}, v{el[i]}" for i in range(2, 8)))
    rowst += lines(f"v_add_f32 v{mb}, v{mb}, v{dl}") + allreduce(mb, tt) + lines(f"""
v_mul_f32 v{mb}, 0x3b000000, v{mb}
v_cvt_pk_bf16_f32 v{tt}, v{mb}, v{mb}
v_and_b32 v{tt}, 0xffff0000, v{tt}
v_add_f32 v{tt}, 0x3727c5ac, v{tt}
v_cvt_pk_bf16_f32 v{tt}, v{tt}, v{tt}
v_and_b32 v{tt}, 0xffff0000, v{tt}
v_sqrt_f32 v{tt}, v{tt}
v_and_b32 v{so0}, 0xffff, v{so0}
v_cvt_pk_bf16_f32 v{tt}, v{tt}, v{tt}
v_and_b32 v{tt}, 0xffff0000, v{tt}
v_or_b32 v{so0}, v{so0}, v{tt}
""")
    fl = v_XS[1]

    def cs_base(sd, st):
        a(f"s_lshr_b32 s{sd}, s{s_rb}, 3")
        a(f"s_lshl_b32 s{sd}, s{sd}, 4")
        a(f"s_add_u32 s{sd}, s{sd}, s{s_cg}")
        a(f"s_lshl_b32 s{sd}, s{sd}, 14")
        a(f"s_add_u32 s{sd}, s{sd}, {WS_CS}")

    def nonce_load():
        a(f"v_mov_b32 v{fl + 2}, 0")
        a.vmem(f"buffer_load_dword v{fl}, v{fl + 2}, {sr(SRD_D, 4)}, 0 offen sc1", "nl")

    def rowst_store():
        a.wait(vm="nl")
        a(f"s_mov_b32 s{s_t3}, {SPIN_MAX}")
        a.label(f"{name}_nn")
        a(f"v_readfirstlane_b32 s{s_non}, v{fl}")
        a(f"s_cmp_lg_u32 s{s_non}, 0")
        a(f"s_cbranch_scc1 {name}_nnok")
        a(f"s_sub_u32 s{s_t3}, s{s_t3}, 1")
        a(f"s_cbranch_scc1 {name}_nnok")
        a("s_sleep 8")
        a(f"buffer_load_dword v{fl}, v{fl + 2}, {sr(SRD_D, 4)}, 0 offen sc1")
        a("s_waitcnt vmcnt(0)")
        a(f"s_branch {name}_nn")
        a.label(f"{name}_nnok")
        a(f"s_lshl_b32 s{s_t0}, s{s_rb}, 7")
        a(f"s_lshl_b32 s{s_t1}, s{s_cg}, 3")
        a(f"s_add_u32 s{s_t0}, s{s_t0}, s{s_t1}")
        a(f"s_add_u32 s{s_t0}, s{s_t0}, s{s_w}")
        a(f"s_lshl_b32 s{s_t0}, s{s_t0}, 3")
        a(f"s_add_u32 s{s_t0}, s{s_t0}, {WS_ST}")
        a(f"v_mov_b32 v{so1}, v{fl}")
        a("s_mov_b64 exec, 1")
        a.vmem(f"buffer_store_dwordx2 {vr(so0, 2)}, v{fl + 2}, {sr(SRD_WS, 4)}, s{s_t0} offen sc1", "ss")
        a("s_mov_b64 exec, -1")
        if SCS:
            a(f"v_bfe_u32 v{t0}, v{v_lane}, 4, 1")
            a(f"v_cmp_eq_u32 vcc, 1, v{t0}")
            cs_base(s_t0, s_t1)
            a(f"s_lshl_b32 s{s_t1}, s{s_tile}, 11")
            a(f"s_add_u32 s{s_t0}, s{s_t0}, s{s_t1}")
            a(f"s_and_b32 s{s_t1}, s{s_rb}, 7")
            a(f"s_lshl_b32 s{s_t1}, s{s_t1}, 8")
            a(f"s_add_u32 s{s_t0}, s{s_t0}, s{s_t1}")
            a(f"v_cndmask_b32 v{v_cs[1]}, v{v_cs[0]}, v{v_cs[0] + 1}, vcc")
            a(f"v_mov_b32 v{v_cs[1] + 1}, v{fl}")
            a(f"v_lshlrev_b32 v{t0}, 3, v{v_lane}")
            a("s_mov_b32 exec_hi, 0")
            a.vmem(f"buffer_store_dwordx2 {vr(v_cs[1], 2)}, v{t0}, {sr(SRD_WS, 4)}, s{s_t0} offen sc1", "ss")
            a("s_mov_b32 exec_hi, -1")

    def st_loads(reg):
        for nt in range(2):
            txt = f"buffer_load_dwordx2 {vr(v_st[nt], 2)}, v{fl + 3}, {sr(SRD_WS, 4)}, s{s_sx} offen offset:{256 * nt} sc1"
            if reg:
                a.vmem(txt, "sl")
            else:
                a(txt)
        if SCS:
            for q in range(8):
                txt = f"buffer_load_dwordx2 {vr(v_e + 2 * q, 2)}, v{v_xs}, {sr(SRD_WS, 4)}, s{s_sw} offen offset:{256 * q} sc1"
                if reg:
                    a.vmem(txt, "sl")
                else:
                    a(txt)

    def st_poll_load():
        a(f"s_lshl_b32 s{s_sx}, s{s_rb}, 10")
        a(f"s_lshl_b32 s{s_t1}, s{s_ni}, 9")
        a(f"s_add_u32 s{s_sx}, s{s_sx}, s{s_t1}")
        a(f"s_add_u32 s{s_sx}, s{s_sx}, {WS_ST}")
        a(f"v_lshlrev_b32 v{fl + 3}, 3, v{v_n}")
        if SCS:
            cs_base(s_sw, s_t1)
            a(f"v_xor_b32 v{v_xs}, s{s_tile}, v{v_h}")
            a(f"v_lshl_add_u32 v{v_xs}, v{v_xs}, 11, v{fl + 3}")
        st_loads(True)

    def st_poll_check():
        a.wait(vm="sl")
        a(f"s_mov_b32 s{s_t3}, {SPIN_MAX}")
        a.label(f"{name}_sp")
        tags_ = [v_st[0] + 1, v_st[1] + 1] + ([v_e + 2 * q + 1 for q in range(8)] if SCS else [])
        a(f"v_xor_b32 v{fl}, s{s_non}, v{tags_[0]}")
        for tg in tags_[1:]:
            a(f"v_xor_b32 v{fl + 1}, s{s_non}, v{tg}")
            a(f"v_or_b32 v{fl}, v{fl}, v{fl + 1}")
        a(f"v_cmp_ne_u32 vcc, 0, v{fl}")
        a("s_nop 3")
        a(f"s_cbranch_vccz {name}_spok")
        a(f"s_sub_u32 s{s_t3}, s{s_t3}, 1")
        a(f"s_cbranch_scc1 {name}_spok")
        a("s_sleep 8")
        st_loads(False)
        a("s_waitcnt vmcnt(0)")
        a(f"s_branch {name}_sp")
        a.label(f"{name}_spok")

    skid = [0]

    def sel_op(j, mt, first, skip=False):
        c = "0" if first else vr(v_cs[mt], 4)

        def f():
            if skip:
                skid[0] += 1
                a(f"s_cbranch_vccz {name}_sk{skid[0]}")
            a(f"v_mfma_f32_16x16x32_bf16 {vr(v_cs[mt], 4)}, {vr(v_sel, 4)}, {vr(v_W[j % 2][mt], 4)}, {c}")
            if skip:
                a.label(f"{name}_sk{skid[0]}")
        return f

    ORDER = ((0, 0), (1, 0), (0, 1), (1, 1))

    def mfma_ops(stage, j):
        ops = []
        first = stage == 0 and j == 0
        for mt, nt in ORDER:
            acc = vr(v_acc[mt][nt], 16)
            ops.append(lambda mt=mt, nt=nt, acc=acc: a(
                f"v_mfma_f32_32x32x16_bf16 {acc}, {vr(v_W[j % 2][mt], 4)}, {vr(v_X[j % 2][nt], 4)}, {'0' if first else acc}"))
        return ops

    def merge(a_list, b_list):
        out = []
        na, nb = len(a_list), len(b_list)
        ia = ib = 0
        while ia < na or ib < nb:
            if ib >= nb or (ia < na and ia * nb <= ib * na):
                out.append(a_list[ia]); ia += 1
            else:
                out.append(b_list[ib]); ib += 1
        return out

    e = v_e
    rA, rB = v_st[0] + 1, v_st[1] + 1

    publish = lines(f"""
s_lshl_b32 s{s_t2}, s{s_tile}, 9
s_add_u32 s{s_t2}, s{s_t2}, {K1_LDS_CS}
v_lshlrev_b32 v{u1}, 3, v{v_lane}
v_add_u32 v{u1}, s{s_t2}, v{u1}
""")

    def publish_cs():
        a.lds(f"ds_write_b64 v{u1}, {vr(v_cs[0], 2)}", "w")

    gather = lines(f"v_xor_b32 v{u1}, 512, v{u1}")
    gather.append(lambda: a.lds(f"ds_read_b64 {vr(v_FA[1], 2)}, v{u1}", "s"))

    fin = lines(f"""
v_cmp_eq_u32 vcc, 0, v{v_h}
v_mov_b32 v{v_FB[0] + 2}, 0
v_mov_b32 v{v_FB[0] + 3}, 0
v_mov_b32 v{v_FB[1] + 2}, 0
v_mov_b32 v{v_FB[1] + 3}, 0
v_mov_b32 v{v_FA[0] + 2}, 0
v_mov_b32 v{v_FA[0] + 3}, 0
v_mov_b32 v{v_FA[1] + 2}, 0
v_mov_b32 v{v_FA[1] + 3}, 0
v_bfe_u32 v{t0}, v{v_lane}, 4, 1
v_and_b32 v{rA}, 0xffff0000, v{v_st[0]}
v_and_b32 v{rB}, 0xffff0000, v{v_st[1]}
v_rcp_f32 v{rA}, v{rA}
v_rcp_f32 v{rB}, v{rB}
v_and_b32 v{v_st[0]}, 0xffff, v{v_st[0]}
v_and_b32 v{v_st[1]}, 0xffff, v{v_st[1]}
v_lshl_or_b32 v{v_st[0]}, v{v_st[0]}, 16, v{v_st[0]}
v_lshl_or_b32 v{v_st[1]}, v{v_st[1]}, 16, v{v_st[1]}
v_cndmask_b32 v{v_FB[0]}, 0, v{v_st[0]}, vcc
v_cndmask_b32 v{v_FB[1]}, 0, v{v_st[1]}, vcc
v_cmp_eq_u32 vcc, 1, v{t0}
v_mov_b32 v{v_FB[0] + 1}, v{v_FB[0]}
v_mov_b32 v{v_FB[1] + 1}, v{v_FB[1]}
""")
    if SCS:
        fin += lines(f"""
v_add_f32 v{e}, v{e}, v{e + 2}
v_add_f32 v{e + 4}, v{e + 4}, v{e + 6}
v_add_f32 v{e + 8}, v{e + 8}, v{e + 10}
v_add_f32 v{e + 12}, v{e + 12}, v{e + 14}
v_add_f32 v{e}, v{e}, v{e + 4}
v_add_f32 v{e + 8}, v{e + 8}, v{e + 12}
v_add_f32 v{v_cs[0]}, v{e}, v{e + 8}
v_add_f32 v{v_cs[1]}, v{e}, v{e + 8}
s_nop 1
v_permlane32_swap_b32 v{v_cs[0]}, v{v_cs[1]}
""")
    else:
        fin += lines(f"v_cndmask_b32 v{v_cso}, v{v_FA[1]}, v{v_FA[1] + 1}, vcc")

    v_ana = [v_XS[0], v_XS[0] + 1]
    if DSKIP:
        grp = lines(f"""
s_cmp_ge_u32 s{s_cg}, 14
s_cselect_b64 {sr(s_tab, 2)}, -1, 0
""")
        fin += [lambda: [f() for f in grp]]
        for mt in range(2):
            fin += lines(f"""
s_xor_b32 s{s_t0}, s{s_tile}, {mt}
s_sub_u32 s{s_t1}, s{s_cg}, 14
s_or_b32 s{s_t0}, s{s_t0}, s{s_t1}
v_or_b32 v{v_ana[mt]}, s{s_t0}, v{v_n}
v_min_u32 v{v_ana[mt]}, 1, v{v_ana[mt]}
v_sub_u32 v{v_ana[mt]}, 1, v{v_ana[mt]}
v_mul_u32_u24 v{v_ana[mt]}, 0x4380, v{v_ana[mt]}
v_lshlrev_b32 v{v_ana[mt]}, 16, v{v_ana[mt]}
""")

    def fold_a(mt):
        c, r1, hi = v_t[3 * mt], v_t[3 * mt + 1], v_t[3 * mt + 2]
        FA = v_FA[mt]
        txt = f"v_cndmask_b32 v{c}, v{v_cs[mt]}, v{v_cs[mt] + 1}, vcc\n"
        if SCS:
            txt = f"v_mov_b32 v{c}, v{v_cs[mt]}\n"
        elif mt == 1:
            txt += f"v_add_f32 v{c}, v{c}, v{v_cso}\n"
        if DSKIP:
            txt += f"v_cndmask_b32 v{c}, v{c}, v{v_ana[mt]}, {sr(s_tab, 2)}\n"
        txt += f"""v_and_b32 v{hi}, 0xffff0000, v{c}
v_sub_f32 v{r1}, v{c}, v{hi}
v_and_b32 v{c}, 0xffff0000, v{r1}
v_sub_f32 v{r1}, v{r1}, v{c}
v_lshrrev_b32 v{hi}, 16, v{hi}
v_or_b32 v{FA}, v{hi}, v{c}
v_lshrrev_b32 v{FA + 1}, 16, v{r1}"""
        return lines(txt)

    nop = lambda: None
    side.clear()

    def put(stage, frac, ops):
        b = side.setdefault(stage, [[] for _ in range(16)])
        if isinstance(ops, list) and len(ops) > 4:
            n = len(ops)
            lo = int(frac * 16)
            for i, op in enumerate(ops):
                b[lo + (16 - lo) * i // n].append(op)
        else:
            b[min(15, int(frac * 16))] += ops if isinstance(ops, list) else [ops]
    if G0S < 0:
        for op in addr_job + gath + [col256_load]:
            op()
        put(3, 0.5, side_store)
    else:
        put(2, 0.0, addr_job)
    if G0S >= 0:
        for i in range(4):
            put(G0S + i * GSTEP, 0.3 if GSTEP else 0.1 + 0.2 * i, gath[2 * i:2 * i + 2])
        put(G0S + 3 * GSTEP, 0.8, col256_load)
        put(6, 0.5, side_store) if G0S < 6 else None

    def wd_by_wave(k):
        def f():
            a(f"s_and_b32 s{s_t0}, s{s_w}, 3")
            a(f"s_cmp_lg_u32 s{s_t0}, {k}")
            a(f"s_cbranch_scc1 {name}_nwd{k}")
            saved = list(a.vm)
            wd_job(0, 1)()
            a.vm = saved
            a.label(f"{name}_nwd{k}")
        return f
    if TOUCH_WD and WDST < 0:
        wd_job(0, 1)()
    elif TOUCH_WD and WDST < 7:
        put(WDST, 0.9, wd_job(0, 1))
    if TOUCH:
        for st in range(4):
            put(max(0, st - TLEAD), 0.05 + 0.3 * (st % 2) * (1 if TLEAD else 0), lambda st=st: touch(st + 4))
    if TOUCH_NEXT:
        put(5, 0.8, touch_next)
    RS = max(XRS, -1) + 1
    if XRS >= 0:
        put(XRS, 0.1, xr_load)
    put(RS, 0.0, rowst)
    put(RS, 0.4, nonce_load)
    put(RS + 1, 0.1, rowst_store)
    put(6, 0.3, st_poll_load)
    side = {k: [op for bk in v for op in (bk if bk else [nop])] for k, v in side.items()}
    if SENT == -1:
        flag_init()
    elif SENT < 7:
        side[SENT] = side.get(SENT, []) + [flag_init]
    if K1PRIO:
        a(f"s_cmp_lt_u32 s{s_w}, 4")
        a(f"s_cbranch_scc{K1PRIO - 1} {name}_noprio")
        a("s_setprio 1")
        a.label(f"{name}_noprio")
    if DSKIP:
        a(f"s_cmp_lt_u32 s{s_cg}, 14")
        a("s_cselect_b64 vcc, -1, 0")
    pf.stamp()
    a.wait(vm=["x0", "w0"])
    if PROF == 3:
        pf.stamp()
    a("s_barrier")
    pf.stamp()
    for f in read_ops(0, 0):
        f()
    LAST = NSTAGE - 1
    for stage in range(NSTAGE):
        dops = (dma_w(stage + 2) if stage + 2 < NSTAGE else []) + (dma_x(stage + 3) if stage + 3 < NSTAGE else [])
        extra = side.get(stage, [])
        for j in range(4):
            a.comment(f"stage {stage} step {j}")
            a.wait(lg="all")
            m = mfma_ops(stage, j)
            if stage < LAST:
                m = ([sel_op(j, 0, stage == 0 and j == 0, skip=DSKIP)] if (not SCS or stage == 0) else []) + m
                nb = len(m) - NAFTER
                so = publish if (stage == 6 and j == 2 and not SCS) else []
                ex = extra[len(extra) * j // 4:len(extra) * (j + 1) // 4]
                if j < 3:
                    fill = read_ops(stage, j + 1) + merge(merge(so, ex), dops[2 * j:2 * j + 2])
                    interleave(a, m, fill)
                else:
                    interleave(a, m[:nb], merge(so, ex))
                    if stage == 6:
                        if not SCS:
                            a("s_nop 3")
                            publish_cs()
                        if fused:
                            a(f"v_lshlrev_b32 v{t0}, 2, v{v_lane}")
                            a(f"v_add_u32 v{t0}, {F_LF}, v{t0}")
                            a(f"v_mov_b32 v{t1}, 0")
                            a.lds(f"ds_write_b32 v{t0}, v{t1}", "w")
                        a.wait(lg="all")
                    tags = [f"w{stage + 1}", f"x{stage + 1}"] + (["st"] if fused and stage == 5 else [])
                    a.wait(vm=tags)
                    a("s_barrier")
                    if PROF == 1 and stage % 2 == 0:
                        pf.stamp()
                    for f in read_ops(stage + 1, 0):
                        f()
                    m[nb]()
                    if fused and stage == 5:
                        a(f"s_cmp_lg_u32 s{s_w}, 0")
                        a(f"s_cbranch_scc1 {name}_nof0")
                        a(f"s_lshl_b32 s{s_t0}, s{s_rb}, 4")
                        a(f"s_add_u32 s{s_t0}, s{s_t0}, s{s_cg}")
                        a(f"s_lshl_b32 s{s_t0}, s{s_t0}, 7")
                        a(f"s_add_u32 s{s_t0}, s{s_t0}, {WS_FL + 4}")
                        a(f"v_mov_b32 v{t0}, s{s_non}")
                        a(f"v_mov_b32 v{t1}, 0")
                        a("s_mov_b64 exec, 1")
                        a(f"buffer_store_dword v{t0}, v{t1}, {sr(SRD_WS, 4)}, s{s_t0} offen sc1")
                        a("s_mov_b64 exec, -1")
                        a.label(f"{name}_nof0")
                    if stage == 6 and not SCS:
                        for f in gather:
                            f()
                    for f in m[nb + 1:]:
                        f()
            else:
                if not SCS:
                    m = [sel_op(j, 0, False), sel_op(j, 1, j == 0)] + m
                if j < 3:
                    n = len(fin)
                    interleave(a, m, read_ops(stage, j + 1) + ([st_poll_check] + ([wd_job(0, 1)] if WDST == 7 else []) if j == 0 else []) + fin[n * j // 3:n * (j + 1) // 3])
                else:
                    if SCS:
                        interleave(a, m, merge(fold_a(0), fold_a(1)))
                    else:
                        for f in m[:4]:
                            f()
                        a("s_nop 3")
                        interleave(a, m[4:], merge(fold_a(0), fold_a(1)))
    a("s_nop 1")
    for mt, nt in ORDER:
        acc = vr(v_acc[mt][nt], 16)
        a(f"v_mfma_f32_32x32x16_bf16 {acc}, {vr(v_FA[mt], 4)}, {vr(v_FB[nt], 4)}, {acc}")
    if G0S == 6:
        side_store()
    pf.stamp()
    rr = [rA, rB]
    a(f"s_cmp_ge_u32 s{s_cg}, 14")
    a(f"s_cbranch_scc1 {name}_epi_dft")
    r2 = [e + 4, e + 6]
    for nt in range(2):
        a(f"v_mul_f32 v{r2[nt]}, v{rr[nt]}, v{rr[nt]}")
    a(f"v_lshlrev_b32 v{t0}, 4, v{v_lane}")
    a(f"s_lshl_b32 s{s_t0}, s{s_rb}, 2")
    a(f"s_lshl_b32 s{s_t2}, s{s_ni}, 1")
    a(f"s_add_u32 s{s_t0}, s{s_t0}, s{s_t2}")
    a(f"s_mul_i32 s{s_t0}, s{s_t0}, 112")
    a(f"s_lshl_b32 s{s_t2}, s{s_cg}, 3")
    a(f"s_add_u32 s{s_t0}, s{s_t0}, s{s_t2}")
    for mt, nt in ORDER:
        acc = v_acc[mt][nt]
        for i in range(8):
            a(f"v_max_f32 v{acc + i}, 0, v{acc + i}")
            a(f"v_mul_f32 v{acc + 8 + i}, v{r2[nt]}, v{acc + 8 + i}")
        for i in range(8):
            a(f"v_mul_f32 v{acc + i}, v{acc + i}, v{acc + 8 + i}")
        for i in range(4):
            a(f"v_cvt_pk_bf16_f32 v{acc + 8 + i}, v{acc + 2 * i}, v{acc + 2 * i + 1}")
        a(f"s_xor_b32 s{s_t2}, s{s_tile}, {mt}")
        a(f"s_add_u32 s{s_t2}, s{s_t2}, s{s_t0}")
        if nt:
            a(f"s_add_u32 s{s_t2}, s{s_t2}, 112")
        a(f"s_lshl_b32 s{s_t2}, s{s_t2}, 10")
        a(f"buffer_store_dwordx4 {vr(acc + 8, 4)}, v{t0}, {sr(SRD_WS, 4)}, s{s_t2} offen{WTH}")
    if PROF and not fused:
        pf.stamp()
        a("s_waitcnt vmcnt(0)")
        pf.stamp()
        pf.stamp(real=True)
        pf.dump(SRD_WS, 2, s_w, v_t[0], s_t0, 8)
    a(f"s_branch {name}_join" if fused else "s_endpgm")
    a.label(f"{name}_epi_dft")
    for nt in range(2):
        a(f"v_mul_f32 v{rr[nt]}, 0x36000000, v{rr[nt]}")
    a(f"v_lshlrev_b32 v{t0}, 14, v{v_h}")
    a(f"v_lshl_add_u32 v{t0}, v{v_n}, 2, v{t0}")
    a(f"s_sub_u32 s{s_t0}, s{s_cg}, 14")
    a(f"s_lshl_b32 s{s_t0}, s{s_t0}, 20")
    a(f"s_add_u32 s{s_t0}, s{s_t0}, {WS_U}")
    a(f"s_lshl_b32 s{s_t2}, s{s_rb}, 9")
    a(f"s_add_u32 s{s_t0}, s{s_t0}, s{s_t2}")
    a(f"s_lshl_b32 s{s_t2}, s{s_ni}, 8")
    a(f"s_add_u32 s{s_t0}, s{s_t0}, s{s_t2}")
    for mt, nt in ORDER:
        a(f"s_xor_b32 s{s_t2}, s{s_tile}, {mt}")
        a(f"s_lshl_b32 s{s_t2}, s{s_t2}, 16")
        a(f"s_add_u32 s{s_t2}, s{s_t2}, s{s_t0}")
        acc = v_acc[mt][nt]
        for i in range(16):
            a(f"v_mul_f32 v{acc + i}, v{rr[nt]}, v{acc + i}")
        for i in range(8):
            a(f"v_cvt_pk_bf16_f32 v{acc + 2 * i}, v{acc + 2 * i}, v{acc + 2 * i + 1}")
        for g in range(4):
            for ip in range(2):
                koff = (g % 2) * 4 + (g // 2) * 64 + ip
                a(f"s_add_u32 s{s_t3}, s{s_t2}, {koff * 8192}")
                a(f"buffer_store_dword v{acc + 4 * g + 2 * ip}, v{t0}, {sr(SRD_WS, 4)}, s{s_t3} offen offset:{nt * 128}{WTH}")
    if fused:
        a.label(f"{name}_join")
        a("s_barrier")
        return locals()
    if PROF:
        pf.n -= 3
        pf.stamp()
        a("s_waitcnt vmcnt(0)")
        pf.stamp()
        pf.stamp(real=True)
        pf.dump(SRD_WS, 2, s_w, v_t[0], s_t0, 8)
    a.label(f"{name}_done")
    a("s_endpgm")
    return kernel_header(name) + a.text(), kernel_desc(name, V.hi, 102)


def gen_ftab():
    j = np.arange(512)
    c, s = exact_cos_sin(j, 512)
    cb, nb = bf16_bits(c), bf16_bits(-s + 0.0)
    t = ""
    for i in range(512):
        t += f".set tw_{i}, 0x{int(cb[i] | (nb[i] << 16)):08x}\n"
    t += """.macro twe idx
.long tw_\\idx
.endm
.altmacro
.p2align 8
ftab:
.set dd, 0
.rept 512
.long 0x3f003f00 | ((dd & 1) << 31)
.set kk, 1
.rept 255
twe %((dd*kk) & 511)
.set kk, kk+1
.endr
.set dd, dd+1
.endr
.noaltmacro
"""
    return t
```

```python
from gen_common import *
from gen_k2 import fhex, gen_ctab

R = int(os.environ.get("K3_R", "7"))
NKB, NKZ = 28, 8
L_Z = 0
L_RING = 65536
L_F = L_RING + 4 * R * 2048
K23_LDS = L_F + 256
FZ = None


def ring_base(a, s_dst, s_wave, s_tmp):
    if FZ:
        a(f"s_lshl_b32 s{s_dst}, s{s_wave}, 14")
        a(f"s_lshr_b32 s{s_tmp}, s{s_wave}, 1")
        a(f"s_lshl_b32 s{s_tmp}, s{s_tmp}, 14")
        a(f"s_add_u32 s{s_dst}, s{s_dst}, s{s_tmp}")
    else:
        a(f"s_mul_i32 s{s_dst}, s{s_wave}, {R * 2048}")
    a(f"s_add_u32 s{s_dst}, s{s_dst}, {L_RING}")
WS_FLAG = 15 << 20
SPIN_MAX = 1 << 14
GENC = int(os.environ.get("GENC", "1"))
KSKEW = int(os.environ.get("KSKEW", "0"))
FFT_PRIO = int(os.environ.get("FFT_PRIO", "3"))
G_PRIO = int(os.environ.get("G_PRIO", "0"))
Z_PRIO = int(os.environ.get("Z_PRIO", "1"))
B_PRIO = int(os.environ.get("B_PRIO", "0"))


def lds_spin(a, name, v_addr, off, v_tmp, s_tmp):
    a.label(name)
    a(f"ds_read_b32 v{v_tmp}, v{v_addr} offset:{off}")
    a("s_waitcnt lgkmcnt(0)")
    a(f"v_readfirstlane_b32 s{s_tmp}, v{v_tmp}")
    a(f"s_cmp_eq_u32 s{s_tmp}, 0")
    a(f"s_cbranch_scc1 {name}")
    a.lg = []


def fft_part(a, V, S, name, s_w, SRD_WS, SRD_C, v_lane, pf):
    s_a, s_b, s_job, s_t, s_lb = [S.alloc() for _ in range(5)]
    v_n, v_h = V.alloc(), V.alloc()
    v_t = [V.alloc() for _ in range(6)]
    v_au, v_al, v_xw, v_xr, v_fw, v_fr, v_one = [V.alloc() for _ in range(7)]
    U = V.alloc(16, 4)
    Wf = V.alloc(16, 4)
    C32r, C32i = V.alloc(16, 4), V.alloc(16, 4)
    F64r, F64i = V.alloc(16, 4), V.alloc(16, 4)
    Cr, Ci = V.alloc(16, 4), V.alloc(16, 4)
    P = [V.alloc(16, 4), V.alloc(16, 4), U]
    tw1c, tw1s, tw2c, tw2s = [V.alloc(16, 4) for _ in range(4)]
    t0, t1, t2, t3 = v_t[:4]

    a(f"s_sub_u32 s{s_b}, s{s_w}, 4")
    a(f"s_lshl_b32 s{s_b}, s{s_b}, 4")
    a(f"s_add_u32 s{s_b}, s{s_b}, {L_F}")
    a(f"v_mov_b32 v{v_fw}, s{s_b}")
    if not FZ:
        a(f"v_mov_b32 v{t0}, 0")
        a(f"ds_write_b32 v{v_fw}, v{t0}")
        a(f"ds_write_b32 v{v_fw}, v{t0} offset:4")
        a(f"ds_write_b32 v{v_fw}, v{t0} offset:8")
        a(f"ds_write_b32 v{v_fw}, v{t0} offset:12")
    a(f"v_xor_b32 v{v_fr}, 16, v{v_fw}")
    a(f"v_mov_b32 v{v_one}, 1")
    a(f"s_and_b32 s{s_t}, s{s_w}, 1")
    a(f"s_bfe_u32 s{s_lb}, s{s_w}, 0x10001")
    a(f"s_lshl_b32 s{s_job}, s{s_lb}, 8")
    a(f"s_add_u32 s{s_job}, s{s_job}, s2")
    a(f"v_and_b32 v{v_n}, 31, v{v_lane}")
    a(f"v_lshrrev_b32 v{v_h}, 5, v{v_lane}")
    a(f"v_lshlrev_b32 v{v_al}, 4, v{v_lane}")
    a(f"v_lshlrev_b32 v{v_au}, 7, v{v_n}")
    a(f"v_lshl_add_u32 v{v_au}, v{v_h}, 6, v{v_au}")
    a(f"s_and_b32 s{s_a}, s{s_job}, 255")
    a(f"s_lshl_b32 s{s_a}, s{s_a}, 13")
    a(f"s_lshl_b32 s{s_b}, s{s_t}, 12")
    a(f"s_add_u32 s{s_a}, s{s_a}, s{s_b}")
    a(f"s_add_u32 s{s_a}, s{s_a}, {WS_U}")
    if not FZ:
        a("s_waitcnt lgkmcnt(0)")
        a("s_barrier")
    return dict(locals())


def fft_main(L):
    a, name, pf = L["a"], L["name"], L["pf"]
    (s_a, s_b, s_job, s_t, s_lb, s_w, SRD_WS, SRD_C, v_lane, v_n, v_h, v_t, v_au, v_al, v_xw, v_xr, v_fw, v_fr, v_one,
     U, Wf, C32r, C32i, F64r, F64i, Cr, Ci, P, tw1c, tw1s, tw2c, tw2s) = [L[k] for k in (
        "s_a s_b s_job s_t s_lb s_w SRD_WS SRD_C v_lane v_n v_h v_t v_au v_al v_xw v_xr v_fw v_fr v_one "
        "U Wf C32r C32i F64r F64i Cr Ci P tw1c tw1s tw2c tw2s").split()]
    t0, t1, t2, t3 = v_t[:4]
    def u_loads():
        a(f"s_and_b32 s{s_a}, s{s_job}, 255")
        a(f"s_lshl_b32 s{s_a}, s{s_a}, 13")
        a(f"s_lshl_b32 s{s_b}, s{s_t}, 12")
        a(f"s_add_u32 s{s_a}, s{s_a}, s{s_b}")
        a(f"s_add_u32 s{s_a}, s{s_a}, {WS_U}")
        for j in range(4):
            a.vmem(f"buffer_load_dwordx4 {vr(U + 4 * j, 4)}, v{v_au}, {sr(SRD_WS, 4)}, s{s_a} offen offset:{16 * j}{' sc1' if FZ else ''}", "u")
    if not FZ:
        u_loads()
    if not GENC:
        for j in range(4):
            a.vmem(f"buffer_load_dwordx4 {vr(C32r + 4 * j, 4)}, v{v_al}, {sr(SRD_C, 4)}, 0 offen offset:{1024 * j}", "c32")
        a(f"s_movk_i32 s{s_a}, 4096")
        for j in range(4):
            a.vmem(f"buffer_load_dwordx4 {vr(C32i + 4 * j, 4)}, v{v_al}, {sr(SRD_C, 4)}, s{s_a} offen offset:{1024 * j}", "c32")
        a(f"s_lshl_b32 s{s_a}, s{s_t}, 13")
        a(f"s_add_u32 s{s_a}, s{s_a}, 8192")
        a(f"s_add_u32 s{s_b}, s{s_a}, 4096")
        for j in range(4):
            a.vmem(f"buffer_load_dwordx4 {vr(F64r + 4 * j, 4)}, v{v_al}, {sr(SRD_C, 4)}, s{s_a} offen offset:{1024 * j}", "c64")
            a.vmem(f"buffer_load_dwordx4 {vr(F64i + 4 * j, 4)}, v{v_al}, {sr(SRD_C, 4)}, s{s_b} offen offset:{1024 * j}", "c64")

    def w_loads():
        a(f"s_lshl_b32 s{s_a}, s{s_job}, 13")
        a(f"s_lshl_b32 s{s_b}, s{s_t}, 12")
        a(f"s_add_u32 s{s_a}, s{s_a}, s{s_b}")
        a(f"s_add_u32 s{s_a}, s{s_a}, {WS_W}")
        for g in range(4):
            a.vmem(f"buffer_load_dwordx4 {vr(Wf + 4 * g, 4)}, v{v_al}, {sr(SRD_WS, 4)}, s{s_a} offen offset:{1024 * g}{' sc1' if FZ else ''}", "w")
    if FZ:
        FZ["signal"](a, v_t, s_a, skip_hi=True)
    else:
        w_loads()
    a(f"s_sub_u32 s{s_a}, s{s_w}, 4")
    a(f"s_lshl_b32 s{s_a}, s{s_a}, 14")
    a(f"v_add_u32 v{v_xr}, s{s_a}, v{v_al}")
    a(f"v_xor_b32 v{v_xw}, 16384, v{v_xr}")
    a(f"v_bfe_u32 v{t0}, v{v_n}, 2, 1")
    a(f"v_lshlrev_b32 v{t0}, 4, v{t0}")
    a(f"v_lshrrev_b32 v{t1}, 3, v{v_n}")
    a(f"v_lshl_add_u32 v{t0}, v{t1}, 2, v{t0}")
    a(f"v_and_b32 v{t1}, 3, v{v_n}")
    a(f"v_add_u32 v{t0}, v{t0}, v{t1}")
    a(f"v_cvt_f32_u32 v{t0}, v{t0}")
    a(f"v_mul_f32 v{t0}, {fhex(1 / 2048)}, v{t0}")
    if GENC:
        st, bs = Cr, Cr + 1
        a(f"v_mul_f32 v{st}, 64.0, v{t0}" .replace("64.0", fhex(64.0)))
        a(f"v_lshlrev_b32 v{bs}, 4, v{v_h}")
        a(f"v_cvt_f32_u32 v{bs}, v{bs}")
        a(f"v_mul_f32 v{bs}, v{bs}, v{st}")
        pend = []
        for r in range(16):
            an, cc, ss = Ci + 3 * (r % 4), Ci + 3 * (r % 4) + 1, Ci + 3 * (r % 4) + 2
            a(f"v_fmamk_f32 v{an}, v{st}, {fhex(r)}, v{bs}")
            for l in pend:
                a(l)
            a(f"v_cos_f32 v{cc}, v{an}")
            a(f"v_sin_f32 v{ss}, v{an}")
            pend = [f"v_cvt_pk_bf16_f32 v{C32r + r}, v{cc}, v{ss}", f"v_cvt_pk_bf16_f32 v{C32i + r}, -v{ss}, v{cc}"]
        a("s_nop 0")
        for l in pend:
            a(l)
    a(f"s_lshl_b32 s{s_a}, s{s_t}, 5")
    a(f"v_lshl_add_u32 v{t1}, v{v_h}, 2, s{s_a}")
    a(f"v_cvt_f32_u32 v{t1}, v{t1}")
    a(f"v_mul_f32 v{t1}, v{t1}, v{t0}")
    for r in range(16):
        k = 8 * (r // 4) + r % 4
        tt = v_t[2 + r % 4]
        a(f"v_fmamk_f32 v{tt}, v{t0}, {fhex(k)}, v{t1}")
        a(f"v_cos_f32 v{tw1c + r}, v{tt}")
        a(f"v_sin_f32 v{tw1s + r}, v{tt}")
    if GENC:
        st, bs = Cr, Cr + 1
        a(f"v_add_u32 v{st}, s{s_a}, v{v_n}")
        a(f"v_cvt_f32_u32 v{st}, v{st}")
        a(f"v_mul_f32 v{st}, {fhex(1 / 64)}, v{st}")
        a(f"v_lshl_add_u32 v{bs}, v{v_h}, 2, s{s_a}")
        a(f"v_cvt_f32_u32 v{bs}, v{bs}")
        a(f"v_mul_f32 v{bs}, v{bs}, v{st}")
        pend = []
        for d in range(16):
            q = Ci + 6 * (d % 2)
            for x in range(2):
                e = 2 * (d % 4) + x
                K = 16 * (d // 4) + 8 * (e // 4) + e % 4
                a(f"v_fmamk_f32 v{q + 3 * x}, v{st}, {fhex(K)}, v{bs}")
                if x == 0:
                    for l in pend:
                        a(l)
                a(f"v_cos_f32 v{q + 3 * x + 1}, v{q + 3 * x}")
                a(f"v_sin_f32 v{q + 3 * x + 2}, v{q + 3 * x}")
            pend = [f"v_cvt_pk_bf16_f32 v{F64r + d}, v{q + 1}, v{q + 4}", f"v_cvt_pk_bf16_f32 v{F64i + d}, -v{q + 2}, -v{q + 5}"]
        a("s_nop 0")
        for l in pend:
            a(l)

    def tw2_gen():
        a(f"s_lshl_b32 s{s_b}, s{s_t}, 5")
        a(f"v_add_u32 v{t0}, s{s_b}, v{v_n}")
        a(f"v_cvt_f32_u32 v{t0}, v{t0}")
        a(f"v_mul_f32 v{t0}, {fhex(1 / 2048)}, v{t0}")
        a(f"v_lshlrev_b32 v{t1}, 4, v{v_h}")
        a(f"v_cvt_f32_u32 v{t1}, v{t1}")
        a(f"v_mul_f32 v{t1}, v{t1}, v{t0}")
        return [f for r in range(16) for f in (
            f"v_fmamk_f32 v{v_t[2 + r % 4]}, v{t0}, {fhex(r)}, v{t1}",
            f"v_cos_f32 v{tw2c + r}, v{v_t[2 + r % 4]}",
            f"v_sin_f32 v{tw2s + r}, v{v_t[2 + r % 4]}")]
    if not GENC:
        for l in tw2_gen():
            a(l)
    if FZ:
        FZ["lwait"](a, f"{name}_ww", 140, t0, t1, s_a)
        w_loads()
        FZ["lwait"](a, f"{name}_uw", 136, t0, t1, s_a)
        u_loads()
    pf.stamp()
    a.wait(vm="u")
    a(f"s_and_b32 s{s_a}, s{s_job}, 255")
    a(f"s_cmp_lg_u32 s{s_a}, 0")
    a(f"s_cbranch_scc1 {name}_nospec")
    a(f"s_lshr_b32 s{s_a}, s{s_job}, 4")
    for i in range(16):
        a(f"v_lshrrev_b32 v{U + i}, s{s_a}, v{U + i}")
        a(f"v_and_b32 v{U + i}, 0xffff, v{U + i}")
    a.label(f"{name}_nospec")
    a.wait(vm="c32")
    pf.stamp()

    def mf(acc, A, B, first):
        a(f"v_mfma_f32_32x32x16_bf16 {vr(acc, 16)}, {vr(A, 4)}, {vr(B, 4)}, {'0' if first else vr(acc, 16)}")

    for j in range(4):
        mf(Cr, U + 4 * j, C32r + 4 * j, j == 0)
        mf(Ci, U + 4 * j, C32i + 4 * j, j == 0)
    a("s_nop 11")

    def cmul(cs, sn, sign):
        ng1, ng2 = ("-", "") if sign > 0 else ("", "-")
        for r in range(16):
            tt = v_t[r % 4]
            a(f"v_mul_f32 v{tt}, v{Ci + r}, v{sn + r}")
            a(f"v_mul_f32 v{Ci + r}, v{Ci + r}, v{cs + r}")
            a(f"v_fma_f32 v{Ci + r}, {ng2}v{Cr + r}, v{sn + r}, v{Ci + r}")
            a(f"v_fma_f32 v{Cr + r}, v{Cr + r}, v{cs + r}, {ng1}v{tt}")

    def send(x, negq):
        off = x * 8192
        for p in range(8):
            a(f"v_cvt_pk_bf16_f32 v{P[0] + p}, v{Cr + 2 * p}, v{Cr + 2 * p + 1}")
            a(f"v_cvt_pk_bf16_f32 v{P[1] + p}, v{Ci + 2 * p}, v{Ci + 2 * p + 1}")
        for q in range(2):
            for hh in range(2):
                a.lds(f"ds_write_b128 v{v_xw}, {vr(P[q] + 4 * hh, 4)} offset:{off + (2 * q + hh) * 1024}", "xw")
        a.lds(f"ds_write_b32 v{v_fw}, v{v_one} offset:{4 * x}", "xw")
        for p in range(8):
            a(f"v_xor_b32 v{P[2] + p}, 0x80008000, v{P[negq] + p}")

    def recv(x, negq):
        off = x * 8192
        lds_spin(a, f"{name}_sp{x}", v_fr, 4 * x, t0, s_a)
        for q in (negq, 1 - negq):
            for hh in range(2):
                a.lds(f"ds_read_b128 {vr(P[q] + 8 + 4 * hh, 4)}, v{v_xr} offset:{off + (2 * q + hh) * 1024}", f"xr{q}")

    def recv_fin(negq):
        a.wait(lg=f"xr{negq}")
        for p in range(8):
            a(f"v_xor_b32 v{P[2] + 8 + p}, 0x80008000, v{P[negq] + 8 + p}")
        a.wait(lg="all")

    cmul(tw1c, tw1s, -1)
    pf.stamp()
    send(0, 1)
    a.wait(vm="c64")

    def step3(j):
        mf(Cr, F64r + 4 * j, P[0] + 4 * j, j == 0)
        mf(Ci, F64i + 4 * j, P[0] + 4 * j, j == 0)
        mf(Ci, F64r + 4 * j, P[1] + 4 * j, False)
        mf(Cr, F64i + 4 * j, P[2] + 4 * j, False)
    step3(0)
    recv(0, 1)
    step3(1)
    recv_fin(1)
    if GENC:
        tl = tw2_gen()
        mm = []
        for j in (2, 3):
            mm += [(Cr, F64r + 4 * j, P[0] + 4 * j), (Ci, F64i + 4 * j, P[0] + 4 * j), (Ci, F64r + 4 * j, P[1] + 4 * j), (Cr, F64i + 4 * j, P[2] + 4 * j)]
        for i, (x, y, z) in enumerate(mm):
            mf(x, y, z, False)
            for l in tl[6 * i:6 * i + 6]:
                a(l)
    else:
        step3(2)
        step3(3)
    a.wait(vm="w")
    pf.stamp()
    for r in range(16):
        a(f"v_lshlrev_b32 v{tw1c + r}, 16, v{Wf + r}")
        a(f"v_and_b32 v{tw1s + r}, 0xffff0000, v{Wf + r}")
    cmul(tw1c, tw1s, +1)
    pf.stamp()
    send(1, 0)
    a("s_nop 0")

    def step4(j):
        mf(Cr, P[0] + 4 * j, F64r + 4 * j, j == 0)
        mf(Ci, P[1] + 4 * j, F64r + 4 * j, j == 0)
        mf(Cr, P[1] + 4 * j, F64i + 4 * j, False)
        mf(Ci, P[2] + 4 * j, F64i + 4 * j, False)
    step4(0)
    recv(1, 0)
    step4(1)
    recv_fin(0)
    step4(2)
    step4(3)
    a("s_nop 11")
    pf.stamp()
    cmul(tw2c, tw2s, +1)
    for r in range(16):
        a(f"v_cvt_pk_bf16_f32 v{P[0] + r}, v{Cr + r}, -v{Ci + r}")
    a("s_nop 1")
    for j in range(4):
        mf(Cr, C32r + 4 * j, P[0] + 4 * j, j == 0)
    for j in range(4):
        mf(Ci, C32i + 4 * j, P[0] + 4 * j, j == 0)
    a(f"v_lshlrev_b32 v{t0}, 6, v{v_n}")
    a(f"v_lshl_add_u32 v{t0}, v{v_h}, 5, v{t0}")
    a(f"s_and_b32 s{s_a}, s{s_job}, 255")
    a(f"s_lshl_b32 s{s_a}, s{s_a}, 13")
    a(f"s_lshr_b32 s{s_b}, s{s_job}, 8")
    a(f"s_lshl_b32 s{s_b}, s{s_b}, 12")
    a(f"s_add_u32 s{s_a}, s{s_a}, s{s_b}")
    a(f"s_lshl_b32 s{s_b}, s{s_t}, 11")
    a(f"s_add_u32 s{s_a}, s{s_a}, s{s_b}")
    a(f"s_add_u32 s{s_a}, s{s_a}, {WS_Z}")
    a(f"s_add_u32 s{s_b}, s{s_a}, 4096")
    a(f"v_sub_u32 v{t1}, v{v_xr}, v{v_al}")
    a(f"v_add_u32 v{t0}, v{t0}, v{t1}")
    for p in range(8):
        a(f"v_cvt_pk_bf16_f32 v{P[1] + p}, v{Cr + 2 * p}, v{Cr + 2 * p + 1}")
    for hh in range(2):
        a.lds(f"ds_write_b128 v{t0}, {vr(P[1] + 4 * hh, 4)} offset:{16 * hh}", "zb")
    for hh in range(2):
        a.lds(f"ds_read_b128 {vr(P[1] + 8 + 4 * hh, 4)}, v{v_xr} offset:{1024 * hh}", "zr")
    for p in range(8):
        a(f"v_cvt_pk_bf16_f32 v{P[2] + p}, -v{Ci + 2 * p}, -v{Ci + 2 * p + 1}")
    for hh in range(2):
        a.lds(f"ds_write_b128 v{t0}, {vr(P[2] + 4 * hh, 4)} offset:{2048 + 16 * hh}", "zb")
    for hh in range(2):
        a.lds(f"ds_read_b128 {vr(P[2] + 8 + 4 * hh, 4)}, v{v_xr} offset:{2048 + 1024 * hh}", "zi")
    a.wait(lg="zr")
    for hh in range(2):
        a.vmem(f"buffer_store_dwordx4 {vr(P[1] + 8 + 4 * hh, 4)}, v{v_al}, {sr(SRD_WS, 4)}, s{s_a} offen offset:{1024 * hh} sc1", "st")
    a(f"s_and_b32 s{s_a}, s{s_job}, 255")
    a(f"s_cmp_eq_u32 s{s_a}, 0")
    a.wait(lg="all")
    a(f"s_cbranch_scc1 {name}_noim")
    for hh in range(2):
        a.vmem(f"buffer_store_dwordx4 {vr(P[2] + 8 + 4 * hh, 4)}, v{v_al}, {sr(SRD_WS, 4)}, s{s_b} offen offset:{1024 * hh} sc1", "st")
    a.label(f"{name}_noim")
    pf.stamp()
    pf.stamp()


def tile_decode(a, s_sp, s_dp, s_t2):
    a(f"s_and_b32 s{s_sp}, s2, 7")
    a(f"s_lshl_b32 s{s_sp}, s{s_sp}, 2")
    a(f"s_bfe_u32 s{s_t2}, s2, 0x20003")
    a(f"s_add_u32 s{s_sp}, s{s_sp}, s{s_t2}")
    a(f"s_lshr_b32 s{s_dp}, s2, 5")


def out_addr(a, v_xo, v_n, v_h, s_sp, s_dp, s_sw, s_dw, s_t0, s_t1):
    a(f"v_lshlrev_b32 v{v_xo}, 16, v{v_n}")
    a(f"v_lshl_add_u32 v{v_xo}, v{v_h}, 5, v{v_xo}")
    a(f"s_lshl_b32 s{s_t0}, s{s_sp}, 11")
    a(f"s_lshl_b32 s{s_t1}, s{s_sw}, 10")
    a(f"s_add_u32 s{s_t0}, s{s_t0}, s{s_t1}")
    a(f"s_lshl_b32 s{s_t1}, s{s_dp}, 7")
    a(f"s_add_u32 s{s_t0}, s{s_t0}, s{s_t1}")
    a(f"s_lshl_b32 s{s_t1}, s{s_dw}, 6")
    a(f"s_add_u32 s{s_t0}, s{s_t0}, s{s_t1}")
    a(f"v_add_u32 v{v_xo}, s{s_t0}, v{v_xo}")


def z_part(a, V, S, name, s_w, v_lane, SRD_X, SRD_WS, pf):
    s_sp, s_dp, s_sw, s_dw, s_z = [S.alloc() for _ in range(5)]
    s_t0, s_t1, s_t2, s_oz, s_mz, s_spin = [S.alloc() for _ in range(6)]
    s_msk = S.alloc(2, 2)
    v_n, v_h = V.alloc(), V.alloc()
    v_t = [V.alloc() for _ in range(8)]
    v_dl, v_dz, v_xo, v_nyq, v_fa, v_one = [V.alloc() for _ in range(6)]
    v_rz = [V.alloc(), V.alloc()]
    v_step, v_base = [V.alloc(), V.alloc()], [V.alloc(), V.alloc()]
    v_x = V.alloc(8, 4)
    v_fl = V.alloc(4, 4)
    acc = [[V.alloc(16, 4) for _ in range(2)] for _ in range(2)]
    POOL = V.alloc(64, 4)
    ZF = lambda ps, kz: POOL + 32 * (1 - ps) + 4 * kz
    G = V.alloc(64, 4)
    t0, t1, t2, t3, t4 = v_t[:5]
    a(f"s_sub_u32 s{s_z}, s{s_w}, 4")
    tile_decode(a, s_sp, s_dp, s_t2)
    a(f"s_and_b32 s{s_sw}, s{s_z}, 1")
    a(f"s_lshr_b32 s{s_dw}, s{s_z}, 1")
    a(f"v_and_b32 v{v_n}, 31, v{v_lane}")
    a(f"v_lshrrev_b32 v{v_h}, 5, v{v_lane}")
    a(f"v_lshlrev_b32 v{v_dl}, 4, v{v_lane}")
    out_addr(a, v_xo, v_n, v_h, s_sp, s_dp, s_sw, s_dw, s_t0, s_t1)
    a.vmem(f"buffer_load_dwordx4 {vr(v_x, 4)}, v{v_xo}, {sr(SRD_X, 4)}, 0 offen", "x")
    a.vmem(f"buffer_load_dwordx4 {vr(v_x + 4, 4)}, v{v_xo}, {sr(SRD_X, 4)}, 0 offen offset:16", "x")
    a(f"s_setprio {G_PRIO}")
    a(f"v_lshrrev_b32 v{t0}, 3, v{v_lane}")
    a(f"v_bfe_u32 v{t1}, v{v_lane}, 4, 1")
    a(f"v_lshlrev_b32 v{t1}, 2, v{t1}")
    a(f"v_and_b32 v{t2}, 7, v{v_lane}")
    a(f"v_xor_b32 v{t1}, v{t1}, v{t2}")
    a(f"v_lshlrev_b32 v{t1}, 4, v{t1}")
    a(f"v_lshl_add_u32 v{v_dz}, v{t0}, 12, v{t1}")
    a(f"s_lshl_b32 s{s_mz}, s{s_z}, 14")
    a(f"s_add_u32 s{s_mz}, s{s_mz}, {L_Z}")
    a(f"s_lshl_b32 s{s_oz}, s{s_z}, 19")
    a(f"s_lshl_b32 s{s_t1}, s{s_sp}, 7")
    a(f"s_add_u32 s{s_oz}, s{s_oz}, s{s_t1}")
    a(f"s_add_u32 s{s_oz}, s{s_oz}, {WS_Z}")
    a(f"v_bfe_u32 v{t0}, v{v_lane}, 2, 2")
    a(f"v_and_b32 v{t1}, 3, v{v_lane}")
    a(f"v_bfe_u32 v{t2}, v{v_lane}, 4, 1")
    a(f"v_lshl_add_u32 v{t3}, v{v_h}, 2, v{t0}")
    a(f"v_lshlrev_b32 v{t3}, 7, v{t3}")
    a(f"v_lshrrev_b32 v{t0}, 1, v{t0}")
    a(f"v_xor_b32 v{t4}, s{s_sw}, v{t0}")
    a(f"v_lshl_add_u32 v{t4}, v{t4}, 6, v{t3}")
    a(f"v_add_u32 v{t4}, s{s_mz}, v{t4}")
    a(f"v_lshl_add_u32 v{t4}, v{t2}, 5, v{t4}")
    a(f"v_lshl_add_u32 v{v_rz[0]}, v{t1}, 3, v{t4}")
    a(f"v_xor_b32 v{v_rz[1]}, 64, v{v_rz[0]}")
    a(f"v_bfe_u32 v{t0}, v{v_n}, 2, 1")
    a(f"v_lshlrev_b32 v{t0}, 4, v{t0}")
    a(f"v_lshrrev_b32 v{t1}, 3, v{v_n}")
    a(f"v_lshl_add_u32 v{t0}, v{t1}, 2, v{t0}")
    a(f"v_and_b32 v{t1}, 3, v{v_n}")
    a(f"v_add_u32 v{t0}, v{t0}, v{t1}")
    a(f"s_lshl_b32 s{s_t1}, s{s_dp}, 6")
    a(f"s_lshl_b32 s{s_t2}, s{s_dw}, 5")
    a(f"s_add_u32 s{s_t1}, s{s_t1}, s{s_t2}")
    a(f"v_add_u32 v{t0}, s{s_t1}, v{t0}")
    a(f"v_lshlrev_b32 v{v_nyq}, 31, v{t0}")
    a(f"v_or_b32 v{v_nyq}, 0x3f803f80, v{v_nyq}")
    a(f"v_xor_b32 v{t2}, 32, v{t0}")
    a(f"v_cvt_f32_u32 v{v_step[0]}, v{t0}")
    a(f"v_cvt_f32_u32 v{v_step[1]}, v{t2}")
    a(f"v_mul_f32 v{v_step[0]}, {fhex(1 / 512)}, v{v_step[0]}")
    a(f"v_mul_f32 v{v_step[1]}, {fhex(1 / 512)}, v{v_step[1]}")
    a(f"s_lshl_b32 s{s_t1}, s{s_z}, 6")
    a(f"v_lshl_add_u32 v{t1}, v{v_h}, 1, s{s_t1}")
    a(f"v_cvt_f32_u32 v{t2}, v{t1}")
    for dt in range(2):
        a(f"v_mul_f32 v{v_base[dt]}, v{t2}, v{v_step[dt]}")
        a(f"v_fract_f32 v{v_base[dt]}, v{v_base[dt]}")
    a(f"v_cmp_eq_u32 {sr(s_msk, 2)}, 0, v{t1}")
    items = [(kz, dt, dd) for kz in range(NKZ) for dt in range(2) for dd in range(4)]
    prev = None
    for idx, (kz, dt, dd) in enumerate(items):
        K = 8 * kz + 4 * (dd // 2) + dd % 2
        ta, tb, tc = v_t[(3 * idx) % 6], v_t[(3 * idx + 1) % 6], v_t[(3 * idx + 2) % 6]
        a(f"v_fmamk_f32 v{ta}, v{v_step[dt]}, {fhex(K)}, v{v_base[dt]}")
        if prev:
            a(prev)
        a(f"v_cos_f32 v{tb}, v{ta}")
        a(f"v_sin_f32 v{tc}, v{ta}")
        prev = f"v_cvt_pk_bf16_f32 v{G + idx}, v{tb}, -v{tc}"
    a(f"v_cndmask_b32 v{G}, v{G}, v{v_nyq}, {sr(s_msk, 2)}")
    a(prev)
    a(f"v_cndmask_b32 v{G + 4}, v{G + 4}, v{v_nyq}, {sr(s_msk, 2)}")
    a.wait(vm="x")
    for i in range(8):
        a(f"v_lshlrev_b32 v{acc[0][0] + 2 * i}, 16, v{v_x + i}")
        a(f"v_and_b32 v{acc[0][0] + 2 * i + 1}, 0xffff0000, v{v_x + i}")
    a(f"v_add_u32 v{t0}, s{s_mz}, v{v_dl}")
    for q in (1, 2, 3):
        a(f"s_xor_b32 s{s_t0}, s{s_z}, {q}")
        a(f"s_lshl_b32 s{s_t0}, s{s_t0}, 14")
        a(f"s_add_u32 s{s_t0}, s{s_t0}, {L_Z + (q - 1) * 4096}")
        a(f"v_add_u32 v{v_t[q]}, s{s_t0}, v{v_dl}")
    a(f"v_and_b32 v{v_fa}, 3, v{v_lane}")
    a(f"v_lshlrev_b32 v{v_fa}, 4, v{v_fa}")
    a(f"v_add_u32 v{v_fa}, {L_F + 8}, v{v_fa}")
    a(f"s_lshl_b32 s{s_t1}, s{s_z}, 4")
    a(f"s_add_u32 s{s_t1}, s{s_t1}, {L_F + 8}")
    a(f"v_mov_b32 v{v_t[4]}, s{s_t1}")
    a(f"v_mov_b32 v{v_one}, 1")
    pf.stamp()
    a(f"v_mov_b32 v{v_t[6]}, {L_F + 12}")
    a(f"s_cmp_lg_u32 s{s_z}, 0")
    a(f"s_cbranch_scc1 {name}_lw")
    a(f"ds_write_b32 v{v_t[6]}, v{v_one}")
    a.label(f"{name}_lw")
    a(f"ds_read_b32 v{v_t[5]}, v{v_t[6]}")
    a("s_waitcnt lgkmcnt(0)")
    a(f"v_readfirstlane_b32 s{s_t0}, v{v_t[5]}")
    a(f"s_cmp_lg_u32 s{s_t0}, 0")
    a(f"s_cbranch_scc1 {name}_lwok")
    a("s_sleep 2")
    a(f"s_branch {name}_lw")
    a.label(f"{name}_lwok")
    a(f"s_mov_b32 s{s_spin}, {SPIN_MAX}")
    a(f"s_mov_b32 s{s_t1}, 0xffff")
    a(f"s_setprio {Z_PRIO}")
    pf.stamp()

    def zdma(q, reg=True):
        a(f"s_add_u32 m0, s{s_mz}, {1024 * q}")
        a(f"s_add_u32 s{s_t2}, s{s_oz}, {8 * q * 4096}")
        txt = f"buffer_load_dwordx4 v{v_dz}, {sr(SRD_WS, 4)}, s{s_t2} offen sc1 lds"
        if reg:
            a.vmem(txt, f"z{q // 2}")
        else:
            a(txt)
    for q in range(16):
        zdma(q)

    def zread(ps, kz):
        for e in range(2):
            a.lds(f"ds_read_b64_tr_b16 {vr(ZF(ps, kz) + 2 * e, 2)}, v{v_rz[ps]} offset:{kz * 2048 + e * 1024}", f"z{ps}_{kz}")

    def zm(pd, ps, kz):
        A = vr(acc[pd][ps], 16)
        C = "0" if (kz == 0 and (pd or ps)) else A
        a(f"v_mfma_f32_32x32x16_bf16 {A}, {vr(G + 8 * kz + 4 * pd, 4)}, {vr(ZF(ps, kz), 4)}, {C}")

    def qwrite(pd, ps, g):
        a.lds(f"ds_write_b128 v{t0}, {vr(acc[pd][ps] + 4 * g, 4)} offset:{(2 * pd + ps - 1) * 4096 + g * 1024}", "qw")

    def zcheck(kz):
        c0, c1 = v_t[5], v_t[6]
        a.label(f"{name}_zc{kz}")
        a(f"v_pk_max_u16 v{c0}, v{ZF(1, kz)}, v{ZF(1, kz) + 1}")
        a(f"v_pk_max_u16 v{c1}, v{ZF(1, kz) + 2}, v{ZF(1, kz) + 3}")
        for i in range(4):
            a(f"v_pk_max_u16 v{(c0, c1)[i % 2]}, v{(c0, c1)[i % 2]}, v{ZF(0, kz) + i}")
        a(f"v_pk_max_u16 v{c0}, v{c0}, v{c1}")
        a(f"v_lshrrev_b32 v{c1}, 16, v{c0}")
        a(f"v_max_u16 v{c0}, v{c0}, v{c1}")
        a(f"v_and_b32 v{c0}, 0xffff, v{c0}")
        a(f"v_cmp_eq_u32 vcc, s{s_t1}, v{c0}")
        a(f"s_cmp_eq_u32 s{s_spin}, 0")
        a(f"s_cbranch_scc1 {name}_zo{kz}")
        a("s_nop 2")
        a(f"s_cbranch_vccz {name}_zo{kz}")
        a(f"s_sub_u32 s{s_spin}, s{s_spin}, 1")
        a(f"s_sleep {POLL_SLEEP}")
        zdma(2 * kz, False)
        zdma(2 * kz + 1, False)
        a("s_waitcnt vmcnt(0)")
        for ps in (1, 0):
            for e in range(2):
                a(f"ds_read_b64_tr_b16 {vr(ZF(ps, kz) + 2 * e, 2)}, v{v_rz[ps]} offset:{kz * 2048 + e * 1024}")
        a("s_waitcnt lgkmcnt(0)")
        a(f"s_branch {name}_zc{kz}")
        a.label(f"{name}_zo{kz}")

    a.wait(vm="z0")
    zread(1, 0)
    zread(0, 0)
    for kz in range(8):
        if kz + 1 < 8:
            a.wait(vm=f"z{kz + 1}")
            zread(1, kz + 1)
            zread(0, kz + 1)
        a.wait(lg=f"z0_{kz}")
        zcheck(kz)
        zm(1, 1, kz)
        zm(0, 1, kz)
        zm(1, 0, kz)
    pf.stamp()
    zm(0, 0, 0)
    zm(0, 0, 1)
    seq = [(1, 1), (0, 1), (1, 0)]
    for n, (pd, ps) in enumerate(seq):
        for g in range(4):
            qwrite(pd, ps, g)
        zm(0, 0, 2 + n)
    a.lds(f"ds_write_b32 v{v_t[4]}, v{v_one}", "qw")
    zm(0, 0, 5)
    zm(0, 0, 6)
    zm(0, 0, 7)
    a.label(f"{name}_zsp")
    a(f"ds_read_b32 v{v_t[5]}, v{v_fa}")
    a("s_waitcnt lgkmcnt(0)")
    a.lg = []
    a(f"v_cmp_eq_u32 vcc, 0, v{v_t[5]}")
    a("s_nop 3")
    a(f"s_cbranch_vccnz {name}_zsp")
    RB = [acc[0][1], acc[1][0], acc[1][1]]
    for q in (1, 2, 3):
        for g in range(4):
            a.lds(f"ds_read_b128 {vr(RB[q - 1] + 4 * g, 4)}, v{v_t[q]} offset:{g * 1024}", f"q{q}")
    a.wait(lg="q1")
    for i in range(16):
        a(f"v_add_f32 v{acc[0][0] + i}, v{acc[0][0] + i}, v{RB[0] + i}")
    a.wait(lg="q3")
    for i in range(16):
        a(f"v_add_f32 v{RB[1] + i}, v{RB[1] + i}, v{RB[2] + i}")
    for g in range(4):
        for i in range(4 * g, 4 * g + 4):
            a(f"v_add_f32 v{acc[0][0] + i}, v{acc[0][0] + i}, v{RB[1] + i}")
        a.lds(f"ds_write_b128 v{t0}, {vr(acc[0][0] + 4 * g, 4)} offset:{12288 + g * 1024}", "o")
    a.wait(lg="all")
    if PROF:
        pf.stamp()
        pf.stamp(real=True)
        pf.dump(SRD_WS, 2, s_z, v_t[0], s_t0, 4)
    a("s_endpgm")


def gemm_part(a, V, S, name, s_w, v_lane, SRD_WD, SRD_WS, SRD_OUT, build_srds, pf, NKB=28, K0=0):
    s_sp, s_dp, s_sw, s_dw = [S.alloc() for _ in range(4)]
    s_t0, s_t1, s_t2 = [S.alloc() for _ in range(3)]
    s_oh0, s_oh1, s_ow, s_ow2, s_m = [S.alloc() for _ in range(5)]
    v_n, v_h = V.alloc(), V.alloc()
    v_t = [V.alloc() for _ in range(8)]
    v_dl, v_dw = V.alloc(), V.alloc()
    v_rw = [V.alloc(), V.alloc()]
    v_xo = V.alloc()
    v_x = V.alloc(8, 4)
    acc = [[V.alloc(16, 4) for _ in range(2)] for _ in range(2)]
    HP = V.alloc(max(8 * R, 64), 4)
    HR = [HP + 8 * i for i in range(R)]
    WF = [V.alloc(8, 4), V.alloc(8, 4)]
    RB = [HP + 16 * i for i in range(4)]
    t0, t1, t2, t3, t4 = v_t[:5]

    a(f"s_setprio {B_PRIO}")
    tile_decode(a, s_sp, s_dp, s_t2)
    a(f"s_and_b32 s{s_sw}, s{s_w}, 1")
    a(f"s_lshr_b32 s{s_dw}, s{s_w}, 1")
    a(f"v_lshlrev_b32 v{v_dl}, 4, v{v_lane}")
    a(f"v_lshrrev_b32 v{t0}, 3, v{v_lane}")
    a(f"v_bfe_u32 v{t1}, v{v_lane}, 4, 1")
    a(f"v_lshlrev_b32 v{t1}, 2, v{t1}")
    a(f"v_and_b32 v{t2}, 7, v{v_lane}")
    a(f"v_xor_b32 v{t1}, v{t1}, v{t2}")
    a(f"v_lshlrev_b32 v{t1}, 4, v{t1}")
    a(f"v_lshl_add_u32 v{v_dw}, v{t0}, 10, v{t1}")
    a(f"s_mul_i32 s{s_oh0}, s{s_sp}, 224")
    a(f"s_mul_i32 s{s_t1}, s{s_w}, {NKB}")
    if K0:
        a(f"s_add_u32 s{s_t1}, s{s_t1}, {K0 & 0xffffffff}")
    a(f"s_add_u32 s{s_oh0}, s{s_oh0}, s{s_t1}")
    a(f"s_mul_i32 s{s_t2}, s{s_sw}, 112")
    a(f"s_sub_u32 s{s_oh1}, s{s_oh0}, s{s_t2}")
    a(f"s_add_u32 s{s_oh1}, s{s_oh1}, 112")
    a(f"s_add_u32 s{s_oh0}, s{s_oh0}, s{s_t2}")
    a(f"s_lshl_b32 s{s_oh0}, s{s_oh0}, 10")
    a(f"s_lshl_b32 s{s_oh1}, s{s_oh1}, 10")
    a(f"s_lshl_b32 s{s_ow}, s{s_t1}, 14")
    a(f"s_lshl_b32 s{s_t1}, s{s_dp}, 7")
    a(f"s_add_u32 s{s_ow}, s{s_ow}, s{s_t1}")
    a(f"s_add_u32 s{s_ow2}, s{s_ow}, 8192")
    ring_base(a, s_m, s_w, s_t2)
    if not FZ:
        a("s_waitcnt lgkmcnt(0)")
        build_srds()
        a("s_barrier")

    HSC = " sc1" if FZ else ""

    def load_ops(i):
        sl = i % R
        tag = f"d{i}"

        def f0():
            a(f"s_add_u32 m0, s{s_m}, {sl * 2048}")
            a.vmem(f"buffer_load_dwordx4 {vr(HR[sl], 4)}, v{v_dl}, {sr(SRD_WS, 4)}, s{s_oh0} offen offset:{(i % 4) * 1024}{HSC}", tag)

        def f1():
            a.vmem(f"buffer_load_dwordx4 v{v_dw}, {sr(SRD_WD, 4)}, s{s_ow} offen lds", tag)
            a(f"s_add_u32 m0, s{s_m}, {sl * 2048 + 1024}")
            a(f"s_add_u32 s{s_ow}, s{s_ow}, 16384")

        def f2():
            a.vmem(f"buffer_load_dwordx4 v{v_dw}, {sr(SRD_WD, 4)}, s{s_ow2} offen lds", tag)
            a(f"s_add_u32 s{s_ow2}, s{s_ow2}, 16384")

        def f3():
            a.vmem(f"buffer_load_dwordx4 {vr(HR[sl] + 4, 4)}, v{v_dl}, {sr(SRD_WS, 4)}, s{s_oh1} offen offset:{(i % 4) * 1024}{HSC}", tag)
            if i % 4 == 3:
                a(f"s_add_u32 s{s_oh0}, s{s_oh0}, 4096")
                a(f"s_add_u32 s{s_oh1}, s{s_oh1}, 4096")
        return [f0, f1, f2, f3]

    pro = [load_ops(i) for i in range(R - 1)]
    if FZ:
        for i in range(R - 1):
            a(f"s_add_u32 m0, s{s_m}, {(i % R) * 2048}")
            a("s_nop 0")
            pro[i][1]()
            pro[i][2]()
        FZ["signal"](a, v_t, s_t0)
    else:
        for i in range(2):
            for f in pro[i]:
                f()
    a(f"v_and_b32 v{v_n}, 31, v{v_lane}")
    a(f"v_lshrrev_b32 v{v_h}, 5, v{v_lane}")
    a(f"v_bfe_u32 v{t0}, v{v_lane}, 2, 2")
    a(f"v_and_b32 v{t1}, 3, v{v_lane}")
    a(f"v_bfe_u32 v{t2}, v{v_lane}, 4, 1")
    a(f"v_lshl_add_u32 v{t3}, v{v_h}, 2, v{t0}")
    a(f"v_lshlrev_b32 v{t3}, 7, v{t3}")
    a(f"v_lshrrev_b32 v{t0}, 1, v{t0}")
    a(f"v_xor_b32 v{t4}, s{s_dw}, v{t0}")
    a(f"v_lshl_add_u32 v{t4}, v{t4}, 6, v{t3}")
    a(f"v_add_u32 v{t4}, s{s_m}, v{t4}")
    a(f"v_and_b32 v{v_t[5]}, 1, v{t1}")
    a(f"v_lshl_add_u32 v{t4}, v{v_t[5]}, 5, v{t4}")
    a(f"v_lshl_add_u32 v{t4}, v{t2}, 4, v{t4}")
    a(f"v_lshrrev_b32 v{v_t[5]}, 1, v{t1}")
    a(f"v_lshl_add_u32 v{v_rw[0]}, v{v_t[5]}, 3, v{t4}")
    a(f"v_xor_b32 v{v_rw[1]}, 64, v{v_rw[0]}")
    if not FZ:
        for i in range(2, R - 1):
            for f in pro[i]:
                f()
    out_addr(a, v_xo, v_n, v_h, s_sp, s_dp, s_sw, s_dw, s_t0, s_t1)
    a(f"v_add_u32 v{t0}, s{s_m}, v{v_dl}")
    for q in (1, 2, 3):
        a(f"s_xor_b32 s{s_t1}, s{s_w}, {q}")
        ring_base(a, s_t0, s_t1, s_t2)
        a(f"s_add_u32 s{s_t0}, s{s_t0}, {(q - 1) * 4096}")
        a(f"v_add_u32 v{v_t[q]}, s{s_t0}, v{v_dl}")
    a(f"s_lshl_b32 s{s_t0}, s{s_w}, 14")
    a(f"s_add_u32 s{s_t0}, s{s_t0}, {L_Z + 12288}")
    a(f"v_add_u32 v{t4}, s{s_t0}, v{v_dl}")
    assert R * 2048 >= 12288
    if FZ:
        pf.stamp()
        FZ["lwait"](a, f"{name}_bw", 132, v_t[5], v_t[6], s_t0)
        for i in range(R - 1):
            pro[i][0]()
            pro[i][3]()

    def read_ops(i):
        b = (i % R) * 2048
        F = WF[i % 2]
        return [lambda tl=tl, e=e: a.lds(f"ds_read_b64_tr_b16 {vr(F + 4 * tl + 2 * e, 2)}, v{v_rw[tl]} offset:{b + e * 1024}", f"r{i}")
                for tl in range(2) for e in range(2)]

    QORD = ((1, 1), (0, 1), (1, 0), (0, 0))

    def mfma_ops(i):
        F = WF[i % 2]
        ops = []
        for dt, st in QORD:
            A = vr(acc[dt][st], 16)
            C = "0" if i == 0 else A
            ops.append(lambda A=A, C=C, dt=dt, st=st: a(
                f"v_mfma_f32_32x32x16_bf16 {A}, {vr(F + 4 * dt, 4)}, {vr(HR[i % R] + 4 * st, 4)}, {C}"))
        return ops

    pf.stamp()
    a.wait(vm="d0")
    for f in read_ops(0):
        f()
    for i in range(NKB):
        a.comment(f"k-step {i}")
        if i % 4 == 0 and i < 28 and PROF != 4:
            pf.stamp()
        if i + 1 < NKB:
            a.wait(vm=f"d{i + 1}", lg=f"r{i}")
            for f in read_ops(i + 1):
                f()
        else:
            a.wait(lg=f"r{i}")
        nxt = i + R - 1
        lo = load_ops(nxt) if nxt < NKB else []
        m = mfma_ops(i)
        for q in range(4):
            m[q]()
            if q < len(lo):
                lo[q]()
    pf.stamp()
    a("s_nop 7")
    for pd, ps in QORD[:3]:
        for g in range(4):
            a.lds(f"ds_write_b128 v{t0}, {vr(acc[pd][ps] + 4 * g, 4)} offset:{(2 * pd + ps - 1) * 4096 + g * 1024}", "qw")
    a.wait(lg="all")
    a("s_barrier")
    pf.stamp()
    for q in (0, 3, 1, 2):
        for g in range(4):
            a.lds(f"ds_read_b128 {vr(RB[q] + 4 * g, 4)}, v{v_t[q] if q else t4} offset:{g * 1024}", f"q{q}")
    A0 = acc[0][0]
    a.wait(lg="q0")
    for i in range(16):
        a(f"v_add_f32 v{A0 + i}, v{A0 + i}, v{RB[0] + i}")
    a.wait(lg="q1")
    for i in range(16):
        a(f"v_add_f32 v{RB[3] + i}, v{RB[3] + i}, v{RB[1] + i}")
    a.wait(lg="q2")
    for i in range(16):
        a(f"v_add_f32 v{A0 + i}, v{A0 + i}, v{RB[2] + i}")
    for hh in range(2):
        for i in range(8 * hh, 8 * hh + 8):
            a(f"v_add_f32 v{A0 + i}, v{A0 + i}, v{RB[3] + i}")
        for i in range(4 * hh, 4 * hh + 4):
            a(f"v_cvt_pk_bf16_f32 v{v_x + i}, v{A0 + 2 * i}, v{A0 + 2 * i + 1}")
        a(f"buffer_store_dwordx4 {vr(v_x + 4 * hh, 4)}, v{v_xo}, {sr(SRD_OUT, 4)}, 0 offen offset:{16 * hh}")
    if PROF:
        if PROF != 4:
            pf.stamp()
            a("s_waitcnt vmcnt(0)")
        pf.stamp()
        pf.stamp(real=True)
        pf.dump(SRD_WS, 2, s_w, v_t[0], s_t0, 4)


TOUCH_H = int(os.environ.get("TOUCH_H", "0"))
POLL_SLEEP = int(os.environ.get("POLL_SLEEP", "4"))
TOUCH_W = int(os.environ.get("TOUCH_W", "0"))


def gen_k23(name):
    import copy
    a = Asm()
    SRD_X, SRD_WD, SRD_WS, SRD_OUT, SRD_C = 4, 8, 12, 16, 20
    S = Regs(24, 102)
    s_p = S.alloc(12, 4)
    s_w = S.alloc()
    v_lane = 1
    a.label("k23_begin")
    a("s_cmp_ge_u32 s2, 256")
    a(f"s_cbranch_scc1 {name}_done")
    pfg = Prof(a, S, 18, 2)
    pfg.stamp(real=True)
    pfg.stamp()
    a(f"s_load_dwordx2 {sr(s_p + 2, 2)}, s[0:1], {KA_WS}")
    a(f"s_load_dwordx2 {sr(s_p, 2)}, s[0:1], {KA_X}")
    a(f"s_load_dwordx4 {sr(s_p + 4, 4)}, s[0:1], {KA_WD}")
    a(f"v_lshrrev_b32 v{v_lane}, 6, v0")
    if not GENC:
        a(f"s_getpc_b64 {sr(s_p + 8, 2)}")
        a(f"s_add_u32 s{s_p + 8}, s{s_p + 8}, ctab@rel32@lo+4")
        a(f"s_addc_u32 s{s_p + 9}, s{s_p + 9}, ctab@rel32@hi+12")
    a("s_nop 0")
    a(f"v_readfirstlane_b32 s{s_w}, v{v_lane}")
    a(f"v_and_b32 v{v_lane}, 63, v0")
    a(f"s_cmp_lt_u32 s{s_w}, 4")
    a(f"s_cbranch_scc1 {name}_gemm")
    if FFT_PRIO:
        a(f"s_setprio {FFT_PRIO}")
    if not GENC:
        srd(a, SRD_C, s_p + 8, 24576)
    Sn = S.n
    V1 = Regs(2, 256)
    pff = copy.copy(pfg)
    pff.region = 1
    L = fft_part(a, V1, S, name, s_w, SRD_WS, SRD_C, v_lane, pff)
    srd(a, SRD_WS, s_p + 2, WS_SIZE)
    srd(a, SRD_X, s_p, 2048 * 1024)
    a(f"s_cmp_gt_u32 s{L['s_job']}, 256")
    a(f"s_cbranch_scc1 {name}_nojob")
    fft_main(L)
    a(f"s_branch {name}_zpart")
    a.label(f"{name}_nojob")
    if PROF:
        n = pff.n
        pff.n = 2
        while pff.n < n:
            pff.stamp()
    if TOUCH_H:
        sa, sb, vt = L["s_a"], L["s_b"], L["v_t"]
        a(f"s_and_b32 s{sa}, s2, 7")
        a(f"s_lshl_b32 s{sa}, s{sa}, 2")
        a(f"s_bfe_u32 s{sb}, s2, 0x20003")
        a(f"s_add_u32 s{sa}, s{sa}, s{sb}")
        a(f"s_mul_i32 s{sa}, s{sa}, {224 * 1024}")
        a(f"s_and_b32 s{sb}, s{s_w}, 1")
        a(f"s_mul_i32 s{sb}, s{sb}, {112 * 1024}")
        a(f"s_add_u32 s{sa}, s{sa}, s{sb}")
        a(f"s_lshr_b32 s{sb}, s2, 5")
        a(f"s_lshl_b32 s{sb}, s{sb}, 7")
        a(f"s_add_u32 s{sa}, s{sa}, s{sb}")
        a(f"v_lshrrev_b32 v{vt[0]}, 2, v{v_lane}")
        a(f"v_min_u32 v{vt[0]}, 13, v{vt[0]}")
        a(f"v_and_b32 v{vt[1]}, 3, v{v_lane}")
        a(f"v_mul_u32_u24 v{vt[1]}, 28, v{vt[1]}")
        a(f"v_add_u32 v{vt[0]}, v{vt[0]}, v{vt[1]}")
        a(f"v_lshlrev_b32 v{vt[0]}, 10, v{vt[0]}")
        a(f"buffer_load_dword v{vt[2]}, v{vt[0]}, {sr(SRD_WS, 4)}, s{sa} offen")
        a(f"s_add_u32 s{sa}, s{sa}, {14 * 1024}")
        a(f"buffer_load_dword v{vt[3]}, v{vt[0]}, {sr(SRD_WS, 4)}, s{sa} offen")
        a("s_waitcnt vmcnt(0)")
    if TOUCH_W:
        sa, sb, vt = L["s_a"], L["s_b"], L["v_t"]
        srd(a, SRD_WD, s_p + 4, 1792 * 1024)
        a(f"s_lshr_b32 s{sa}, s2, 5")
        a(f"s_lshl_b32 s{sa}, s{sa}, 7")
        a(f"s_bfe_u32 s{sb}, s2, 0x20003")
        a(f"s_lshl_b32 s{sb}, s{sb}, 10")
        a(f"s_add_u32 s{sa}, s{sa}, s{sb}")
        a(f"s_and_b32 s{sb}, s{s_w}, 1")
        a(f"s_add_u32 s{sb}, s{sb}, 1")
        a(f"s_lshl_b32 s{sb}, s{sb}, 16")
        a(f"s_add_u32 s{sa}, s{sa}, s{sb}")
        a(f"v_and_b32 v{vt[1]}, 3, v{v_lane}")
        a(f"v_mul_u32_u24 v{vt[1]}, 448, v{vt[1]}")
        a(f"v_and_b32 v{vt[0]}, 60, v{v_lane}")
        a(f"v_add_u32 v{vt[0]}, v{vt[0]}, v{vt[1]}")
        a(f"v_lshlrev_b32 v{vt[0]}, 10, v{vt[0]}")
        for j in range(3):
            a(f"buffer_load_dword v{vt[2 + j]}, v{vt[0]}, {sr(SRD_WD, 4)}, s{sa} offen")
            a(f"s_add_u32 s{sa}, s{sa}, {128 * 1024}")
            if TOUCH_W == 2:
                a("s_waitcnt vmcnt(0)")
        a("s_waitcnt vmcnt(0)")
    a.label(f"{name}_zpart")
    a.vm, a.lg = [], []
    S.n = Sn
    V3 = Regs(2, 256)
    z_part(a, V3, S, name, s_w, v_lane, SRD_X, SRD_WS, pff)
    a.label(f"{name}_gemm")
    a.vm, a.lg = [], []
    S.n = Sn
    V2 = Regs(2, 256)

    def build_srds():
        srd(a, SRD_WS, s_p + 2, WS_SIZE)
        srd(a, SRD_WD, s_p + 4, 1792 * 1024)
        srd(a, SRD_OUT, s_p + 6, 2048 * 1024)
    if KSKEW:
        a(f"s_cmp_ge_u32 s{s_w}, 2")
        a(f"s_cbranch_scc1 {name}_gemm2")
        n0 = pfg.n
        gemm_part(a, V2, S, name, s_w, v_lane, SRD_WD, SRD_WS, SRD_OUT, build_srds, pfg, NKB=28 - KSKEW)
        a("s_endpgm")
        a.label(f"{name}_gemm2")
        a.vm, a.lg = [], []
        S.n = Sn
        pfg.n = n0
        gemm_part(a, Regs(2, 256), S, name, s_w, v_lane, SRD_WD, SRD_WS, SRD_OUT, build_srds, pfg, NKB=28 + KSKEW, K0=-4 * KSKEW)
    else:
        gemm_part(a, V2, S, name, s_w, v_lane, SRD_WD, SRD_WS, SRD_OUT, build_srds, pfg)
    a.label(f"{name}_done")
    a("s_endpgm")
    a.label("k23_end")
    launch = f"; @launch kernel={name} grid=(256,1,1) block=(512,1,1) lds={K23_LDS}"
    return kernel_header(name) + a.text(), kernel_desc(name, max(V1.hi, V2.hi, V3.hi), 102), ('' if GENC else gen_ctab()), launch
```

```python
from gen_common import *
import gen_k1, gen_k23
from gen_k2 import gen_ctab
import copy

POLL_SLEEP = int(os.environ.get("F_SLEEP", "4"))


def gen_kf(name):
    C = gen_k1.gen_k1(name, fused=True)
    a, S, pf = C["a"], C["S"], C["pf"]
    s_w, s_non, s_rb, s_cg, s_out = C["s_w"], C["s_non"], C["s_rb"], C["s_cg"], C["s_out"]
    SRD_X, SRD_WS, SRD_WD = C["SRD_X"], C["SRD_WS"], C["SRD_WD"]
    SRD_OUT, SRD_C = C["SRD_G"], C["SRD_U"]
    v_lane = C["v_lane"]
    assert v_lane == 1
    L_F = gen_k1.F_LF
    gen_k23.L_F = L_F
    uid = [0]

    def signal(a, vt, st, skip_hi=False):
        uid[0] += 1
        if skip_hi:
            a(f"s_cmp_ge_u32 s{s_w}, 6")
            a(f"s_cbranch_scc1 {name}_sg{uid[0]}")
        a(f"s_waitcnt vmcnt({len(a.vm)})")
        a(f"v_mov_b32 v{vt[0]}, {L_F + 128}")
        a(f"v_mov_b32 v{vt[1]}, 1")
        a("s_mov_b64 exec, 1")
        a(f"ds_add_rtn_u32 v{vt[2]}, v{vt[0]}, v{vt[1]}")
        a("s_waitcnt lgkmcnt(0)")
        a(f"v_readfirstlane_b32 s{st}, v{vt[2]}")
        a(f"s_cmp_lg_u32 s{st}, 7")
        a(f"s_cbranch_scc1 {name}_sg{uid[0]}")
        a(f"s_lshl_b32 s{st}, s{s_rb}, 4")
        a(f"s_add_u32 s{st}, s{st}, s{s_cg}")
        a(f"s_lshl_b32 s{st}, s{st}, 7")
        a(f"s_add_u32 s{st}, s{st}, {gen_k1.WS_FL}")
        a(f"v_mov_b32 v{vt[0]}, s{s_non}")
        a(f"v_mov_b32 v{vt[1]}, 0")
        a(f"buffer_store_dword v{vt[0]}, v{vt[1]}, {sr(SRD_WS, 4)}, s{st} offen sc1")
        a.label(f"{name}_sg{uid[0]}")
        a("s_mov_b64 exec, -1")

    def poll(a, lbl, addrs, s_off, vdst, s_cnt):
        a(f"s_add_u32 s{s_off}, s{s_off}, {gen_k1.WS_FL}")
        a(f"s_mov_b32 s{s_cnt}, {gen_k1.SPIN_MAX}")
        a.label(lbl)
        for i, (va, off) in enumerate(addrs):
            a(f"buffer_load_dword v{vdst + i}, v{va}, {sr(SRD_WS, 4)}, s{s_off} offen offset:{off} sc1")
        a("s_waitcnt vmcnt(0)")
        a.vm = []
        for i in range(len(addrs)):
            a(f"v_xor_b32 v{vdst + i}, s{s_non}, v{vdst + i}")
        for i in range(1, len(addrs)):
            a(f"v_or_b32 v{vdst}, v{vdst}, v{vdst + i}")
        a(f"v_cmp_ne_u32 vcc, 0, v{vdst}")
        a(f"s_sub_u32 s{s_cnt}, s{s_cnt}, 1")
        a(f"s_cbranch_scc1 {lbl}_ok")
        a("s_nop 2")
        a(f"s_cbranch_vccz {lbl}_ok")
        a(f"s_sleep {POLL_SLEEP}")
        a(f"s_branch {lbl}")
        a.label(f"{lbl}_ok")

    def lwait(a, lbl, off, va, vd, st):
        a(f"v_mov_b32 v{va}, {L_F + off}")
        a.label(lbl)
        a(f"ds_read_b32 v{vd}, v{va}")
        a("s_waitcnt lgkmcnt(0)")
        a(f"v_readfirstlane_b32 s{st}, v{vd}")
        a(f"s_cmp_lg_u32 s{st}, 0")
        a(f"s_cbranch_scc1 {lbl}_ok")
        a("s_sleep 1")
        a(f"s_branch {lbl}")
        a.label(f"{lbl}_ok")
        a.lg = []
    gen_k23.FZ = dict(signal=signal, poll=poll, lwait=lwait)

    a.label("k23_begin")
    a.vm, a.lg = [], []
    free = [C[k] for k in "s_mi s_ni s_rs s_goff s_uoff s_t0 s_t1 s_t2 s_t3 s_sx s_sw s_sw2 s_rs4 s_rs64 s_m0x s_tile".split()]
    free += [C["s_p"] + i for i in range(14) if C["s_p"] + i != s_non]

    class Pool:
        def __init__(self):
            self.f = sorted(free)

        def alloc(self, cnt=1, align=1):
            for i, r in enumerate(self.f):
                if r % align == 0 and self.f[i:i + cnt] == list(range(r, r + cnt)):
                    del self.f[i:i + cnt]
                    return r
            raise AssertionError("out of scalar registers")
    pf.stamp()
    a(f"s_cmp_lt_u32 s{s_w}, 4")
    a(f"s_cbranch_scc1 {name}_gemm")
    a(f"s_setprio {gen_k23.FFT_PRIO}")
    a(f"s_getpc_b64 {sr(SRD_C, 2)}")
    a(f"s_add_u32 s{SRD_C}, s{SRD_C}, ctab@rel32@lo+4")
    a(f"s_addc_u32 s{SRD_C + 1}, s{SRD_C + 1}, ctab@rel32@hi+12")
    a(f"s_and_b32 s{SRD_C + 1}, s{SRD_C + 1}, 0xffff")
    a(f"s_mov_b32 s{SRD_C + 2}, 24576")
    a(f"s_mov_b32 s{SRD_C + 3}, 0x00020000")
    V1 = Regs(2, 256)
    nul = copy.copy(pf)
    nul.stamp = lambda real=False: None
    L = gen_k23.fft_part(a, V1, Pool(), name, s_w, SRD_WS, SRD_C, v_lane, nul)
    vt, sa, sb = L["v_t"], L["s_a"], L["s_b"]
    Cr = L["Cr"]
    a(f"s_cmp_lt_u32 s{s_w}, 6")
    a(f"s_cbranch_scc1 {name}_nopoll")
    a(f"s_cmp_eq_u32 s{s_w}, 7")
    a(f"s_cbranch_scc1 {name}_poll7")
    signal(a, vt, sa)
    a(f"v_min_u32 v{vt[0]}, 13, v{v_lane}")
    a(f"v_lshlrev_b32 v{vt[0]}, 7, v{vt[0]}")
    a(f"s_and_b32 s{sa}, s2, 7")
    a(f"s_lshl_b32 s{sa}, s{sa}, 1")
    a(f"s_bfe_u32 s{sb}, s2, 0x10004")
    a(f"s_add_u32 s{sa}, s{sa}, s{sb}")
    a(f"s_lshl_b32 s{sa}, s{sa}, 11")
    poll(a, f"{name}_bp", [(vt[0], 0)], sa, Cr, sb)
    a(f"v_mov_b32 v{vt[0]}, {L_F + 132}")
    a(f"s_branch {name}_pollset")
    a.label(f"{name}_poll7")
    a(f"v_lshlrev_b32 v{vt[0]}, 7, v{v_lane}")
    for q in range(1, 4):
        a(f"v_add_u32 v{vt[q]}, {8192 * q}, v{vt[0]}")
    a(f"s_mov_b32 s{sa}, 0")
    poll(a, f"{name}_ep", [(vt[q], 4) for q in range(4)], sa, Cr, sb)
    signal(a, vt, sa)
    a(f"v_mov_b32 v{vt[0]}, {L_F + 140}")
    a(f"v_mov_b32 v{vt[1]}, 1")
    a(f"ds_write_b32 v{vt[0]}, v{vt[1]}")
    a(f"v_and_b32 v{vt[0]}, 15, v{v_lane}")
    a(f"v_lshlrev_b32 v{vt[0]}, 11, v{vt[0]}")
    a(f"s_lshr_b32 s{sa}, s2, 7")
    a(f"s_add_u32 s{sa}, s{sa}, 14")
    a(f"s_lshl_b32 s{sa}, s{sa}, 7")
    poll(a, f"{name}_up", [(vt[0], 0)], sa, Cr, sb)
    a(f"v_mov_b32 v{vt[0]}, {L_F + 136}")
    a.label(f"{name}_pollset")
    a(f"v_mov_b32 v{vt[1]}, 1")
    a(f"ds_write_b32 v{vt[0]}, v{vt[1]}")
    a(f"s_cmp_gt_u32 s{L['s_job']}, 256")
    a(f"s_cbranch_scc1 {name}_zpart")
    a.label(f"{name}_nopoll")
    a.vm, a.lg = [], []
    gen_k23.fft_main(L)
    a.label(f"{name}_zpart")
    a.vm, a.lg = [], []
    V3 = Regs(2, 256)
    pz = copy.copy(pf)
    pz.region = 1
    gen_k23.z_part(a, V3, Pool(), name, s_w, v_lane, SRD_X, SRD_WS, pz)
    a.label(f"{name}_gemm")
    a.vm, a.lg = [], []
    srd(a, SRD_OUT, s_out, 2048 * 1024)
    V2 = Regs(2, 256)
    pb = copy.copy(pf)
    pb.region = 2
    gen_k23.gemm_part(a, V2, Pool(), name, s_w, v_lane, SRD_WD, SRD_WS, SRD_OUT, None, pb)
    a.label(f"{name}_done")
    a("s_endpgm")
    a.label("k23_end")
    launch = f"; @launch grid=(256,1,1) block=(512,1,1) lds={gen_k1.K1_LDS}"
    vg = max(C["V"].hi, V1.hi, V2.hi, V3.hi)
    return kernel_header(name) + a.text(), kernel_desc(name, vg, 102), gen_k1.gen_ftab() + gen_ctab(), launch
```

```python
from gen_common import *

def gen_pf(name, wait=True):
    a = Asm()
    a("s_cmp_ge_u32 s2, 256")
    a(f"s_cbranch_scc1 {name}_done")
    a("s_load_dwordx4 s[8:11], s[0:1], 0")
    a("s_load_dwordx2 s[12:13], s[0:1], 16")
    a("s_load_dwordx4 s[16:19], s[0:1], 32")
    a("s_load_dwordx2 s[20:21], s[0:1], 48")
    a("s_getpc_b64 s[22:23]")
    a("s_add_u32 s22, s22, ftab@rel32@lo+4")
    a("s_addc_u32 s23, s23, ftab@rel32@hi+12")
    a("s_getpc_b64 s[24:25]")
    a("s_add_u32 s24, s24, k1_kernel@rel32@lo+4")
    a("s_addc_u32 s25, s25, k1_kernel@rel32@hi+12")
    a("s_lshl_b32 s3, s2, 6")
    a("v_add_u32 v1, s3, v0")
    a("v_lshlrev_b32 v1, 7, v1")
    a("s_waitcnt lgkmcnt(0)")
    bufs = [(8, 2048 * 1024), (16, 512 * 3584), (18, 512 * 3584), (22, 512 * 1024 + 24576), (24, "k23_end-k1_kernel"), (10, 2048 * 514), (12, 2048 * 514), (20, 1792 * 1024)]
    for i, (p, sz) in enumerate(bufs):
        srd(a, 28 + 4 * i, p, sz)
        a(f"buffer_load_dword v{2 + i}, v1, {sr(28 + 4 * i, 4)}, 0 offen")
    if wait:
        a("s_waitcnt vmcnt(0)")
    a.label(f"{name}_done")
    a("s_endpgm")
    launch = f"; @launch kernel={name} grid=(256,1,1) block=(64,1,1) lds=0"
    return kernel_header(name) + a.text(), kernel_desc(name, 16, 64), launch
```

```python
from gen_common import *

K1_LDS_X = 0
K1_LDS_G = 65536
K1_LDS_U = 114688
K1_LDS = 163840
K1_LDS_ST = K1_LDS_G + 2 * 16384
K1_LDS_CS = K1_LDS_ST + 8192
NSTAGE = 8
WS_ST = 15 << 20
SPIN_MAX = 1 << 14
SF = int(os.environ.get('K1_SF', '3'))
WT = os.environ.get("K1_WT", " sc1")
WTH = os.environ.get("K1_WTH", " sc1")
TOUCH_WD = int(os.environ.get("TOUCH_WD", "2"))
TOUCH = int(os.environ.get("TOUCH", "0"))
TOUCH_NEXT = int(os.environ.get("TOUCH_NEXT", "1"))
TLB_WARM = int(os.environ.get("TLB_WARM", "0"))
SENT = int(os.environ.get("SENT", "-1"))
WDST = int(os.environ.get("WDST", "3"))
WDN = int(os.environ.get("WDN", "1"))
G0S = int(os.environ.get("G0S", "4"))
GSTEP = int(os.environ.get("GSTEP", "0"))
XRS = int(os.environ.get("XRS", "-1"))
MAP = int(os.environ.get("MAP", "3"))
PBAR = int(os.environ.get("PBAR", "2"))
DSKIP = int(os.environ.get("DSKIP", "1"))
FRS = int(os.environ.get("FRS", "1152"))
WDCOPY = int(os.environ.get("WDCOPY", "1"))
F0S = int(os.environ.get("F0S", "3"))
NAFTER = int(os.environ.get("NAFTER", "2"))
K1PRIO = int(os.environ.get("K1PRIO", "0"))
KROT = int(os.environ.get("KROT", "0"))
SCS = int(os.environ.get("SCS", "0"))
TLEAD = int(os.environ.get("TLEAD", "0"))
TEARLY = int(os.environ.get("TEARLY", "0"))


WS_CS = WS_ST + 131072
WS_FL = WS_ST + 65536
F_LF = K1_LDS_ST + 12288


def gen_k1(name, fused=False):
    global G0S, TOUCH_NEXT
    if fused:
        G0S = -1
    a = Asm()
    V = Regs(1, 256)
    S = Regs(40, 102)
    SRD_X, SRD_G, SRD_U, SRD_WS, SRD_WR, SRD_WI, SRD_WD, SRD_T, SRD_D = 4, 8, 12, 16, 20, 24, 28, 32, 36
    s_rb, s_cg, s_w, s_mi, s_ni, s_rs, s_goff, s_uoff = [S.alloc() for _ in range(8)]
    s_t0, s_t1, s_t2, s_t3 = [S.alloc() for _ in range(4)]
    s_sx, s_sw, s_sw2, s_rs4, s_rs64, s_m0x, s_tile = [S.alloc() for _ in range(7)]
    s_p = S.alloc(16, 4)
    s_tab = S.alloc(2, 2)

    v_lane, v_n, v_h = V.alloc(), V.alloc(), V.alloc()
    v_t = [V.alloc() for _ in range(8)]
    v_dx = [V.alloc(), V.alloc()]
    v_dg, v_du = V.alloc(), V.alloc()
    v_xa = [V.alloc() for _ in range(4)]
    v_xs = V.alloc()
    v_wa = [V.alloc(), V.alloc()]
    v_st = [V.alloc(2, 2), V.alloc(2, 2)]
    v_f1a, v_f1s, v_f2a, v_f2s = [V.alloc() for _ in range(4)]
    v_pa = [V.alloc() for _ in range(3)]
    v_f1 = V.alloc(4, 4)
    v_f2 = V.alloc(4, 4)
    v_fi = V.alloc(8, 4)
    v_cs = [V.alloc(4, 4), V.alloc(4, 4)]
    v_sel = V.alloc(4, 4)
    v_XS = [V.alloc(4, 4) for _ in range(2)]
    v_X = [[V.alloc(4, 4) for _ in range(2)] for _ in range(2)]
    v_W = [[V.alloc(4, 4) for _ in range(2)] for _ in range(2)]
    v_acc = [[V.alloc(16, 4) for _ in range(2)] for _ in range(2)]
    v_e = V.alloc(16, 4)
    v_FA = [V.alloc(4, 4) for _ in range(2)]
    v_FB = [V.alloc(4, 4) for _ in range(2)]
    v_cso = V.alloc()
    v_sn = V.alloc(4, 4)
    t0, t1, t2, t3, t4 = v_t[:5]
    u0, u1, u2, u3 = v_t[4:8]

    pf = Prof(a, S, 12, 0)
    a("s_cmp_ge_u32 s2, 256")
    a(f"s_cbranch_scc1 {name}_done")
    pf.stamp(real=True)
    pf.stamp()
    a(f"s_load_dwordx2 {sr(s_p, 2)}, s[0:1], {KA_X}")
    a(f"s_load_dwordx4 {sr(s_p + 4, 4)}, s[0:1], {KA_WG}")
    a(f"s_load_dwordx2 {sr(s_p + 2, 2)}, s[0:1], {KA_WS}")
    a(f"s_load_dwordx4 {sr(s_p + 8, 4)}, s[0:1], {KA_WR}")
    a(f"s_load_dwordx4 {sr(s_p + 12, 4)}, s[0:1], {KA_WD}")
    a(f"s_load_dwordx2 {sr(SRD_D, 2)}, s[0:1], {KA_DBG}")
    s_out = s_p + 14
    a(f"v_lshrrev_b32 v{t0}, 6, v0")
    a(f"v_and_b32 v{v_lane}, 63, v0")
    a(f"v_readfirstlane_b32 s{s_w}, v{t0}")
    if MAP == 0:
        a(f"s_bfe_u32 s{s_rb}, s2, 0x10002")
        a(f"s_lshl_b32 s{s_rb}, s{s_rb}, 3")
        a(f"s_bfe_u32 s{s_t2}, s2, 0x30003")
        a(f"s_add_u32 s{s_rb}, s{s_rb}, s{s_t2}")
        a(f"s_and_b32 s{s_cg}, s2, 3")
        a(f"s_lshl_b32 s{s_cg}, s{s_cg}, 2")
        a(f"s_lshr_b32 s{s_t2}, s2, 6")
        a(f"s_add_u32 s{s_cg}, s{s_cg}, s{s_t2}")
    elif MAP == 3:
        a(f"s_bfe_u32 s{s_rb}, s2, 0x10002")
        a(f"s_lshl_b32 s{s_rb}, s{s_rb}, 3")
        a(f"s_bfe_u32 s{s_t2}, s2, 0x30003")
        a(f"s_add_u32 s{s_rb}, s{s_rb}, s{s_t2}")
        a(f"s_lshr_b32 s{s_cg}, s2, 6")
        a(f"s_add_u32 s{s_t2}, s{s_cg}, 1")
        a(f"s_lshr_b32 s{s_t2}, s{s_t2}, 2")
        a(f"s_and_b32 s{s_t2}, s{s_t2}, s{s_rb}")
        a(f"s_lshl_b32 s{s_t2}, s{s_t2}, 1")
        a(f"s_xor_b32 s{s_t2}, s{s_t2}, s2")
        a(f"s_and_b32 s{s_t2}, s{s_t2}, 3")
        a(f"s_lshl_b32 s{s_cg}, s{s_cg}, 2")
        a(f"s_add_u32 s{s_cg}, s{s_cg}, s{s_t2}")
    elif MAP == 1:
        a(f"s_and_b32 s{s_rb}, s2, 7")
        a(f"s_lshl_b32 s{s_rb}, s{s_rb}, 1")
        a(f"s_bfe_u32 s{s_t2}, s2, 0x10003")
        a(f"s_add_u32 s{s_rb}, s{s_rb}, s{s_t2}")
        a(f"s_lshr_b32 s{s_cg}, s2, 4")
    else:
        a(f"s_bfe_u32 s{s_rb}, s2, 0x20001")
        a(f"s_lshl_b32 s{s_rb}, s{s_rb}, 2")
        a(f"s_bfe_u32 s{s_t2}, s2, 0x20003")
        a(f"s_add_u32 s{s_rb}, s{s_rb}, s{s_t2}")
        a(f"s_and_b32 s{s_cg}, s2, 1")
        a(f"s_lshl_b32 s{s_cg}, s{s_cg}, 3")
        a(f"s_lshr_b32 s{s_t2}, s2, 5")
        a(f"s_add_u32 s{s_cg}, s{s_cg}, s{s_t2}")
    a(f"s_sub_u32 s{s_t0}, s{s_cg}, 14")
    a(f"s_lshl_b32 s{s_t0}, s{s_t0}, 9")
    a(f"s_add_u32 s{s_t1}, s{s_t0}, 256")
    a(f"s_lshl_b32 s{s_t2}, s{s_cg}, 8")
    a(f"s_movk_i32 s{s_rs}, 3584")
    a(f"s_cmp_ge_u32 s{s_cg}, 14")
    a(f"s_cselect_b32 s{s_rs}, {FRS}, s{s_rs}")
    a(f"s_cselect_b32 s{s_goff}, s{s_t0}, s{s_t2}")
    a(f"s_cselect_b32 s{s_uoff}, s{s_t1}, s{s_t2}")
    a(f"s_lshl_b32 s{s_rs4}, s{s_rs}, 2")
    a(f"s_lshl_b32 s{s_rs64}, s{s_rs}, 6")
    a(f"s_getpc_b64 {sr(s_tab, 2)}")
    a(f"s_add_u32 s{s_tab}, s{s_tab}, ftab@rel32@lo+4")
    a(f"s_addc_u32 s{s_tab + 1}, s{s_tab + 1}, ftab@rel32@hi+12")

    a(f"v_lshrrev_b32 v{t0}, 3, v{v_lane}")
    a(f"v_and_b32 v{t1}, 7, v{v_lane}")
    a(f"v_lshrrev_b32 v{t2}, 4, v{v_lane}")
    a(f"v_xor_b32 v{t1}, v{t1}, v{t2}")
    a(f"v_lshlrev_b32 v{t1}, 4, v{t1}")
    a(f"v_lshl_add_u32 v{t1}, v{t0}, 16, v{t1}")
    a(f"s_and_b32 s{s_t0}, s{s_w}, 1")
    a(f"s_lshl_b32 s{s_t0}, s{s_t0}, 20")
    a(f"s_lshr_b32 s{s_t1}, s{s_w}, 1")
    a(f"s_lshl_b32 s{s_t1}, s{s_t1}, 10")
    a(f"s_add_u32 s{s_t0}, s{s_t0}, s{s_t1}")
    a(f"s_lshl_b32 s{s_t1}, s{s_rb}, 12")
    a(f"s_add_u32 s{s_t0}, s{s_t0}, s{s_t1}")
    a(f"v_add_u32 v{v_dx[0]}, s{s_t0}, v{t1}")
    a(f"v_xor_b32 v{t1}, 0x80040, v{t1}")
    a(f"v_add_u32 v{v_dx[1]}, s{s_t0}, v{t1}")
    a(f"v_lshlrev_b32 v{t3}, 6, v{t2}")
    a(f"v_and_b32 v{t1}, 15, v{v_lane}")
    a(f"v_lshlrev_b32 v{t1}, 4, v{t1}")
    a(f"v_xor_b32 v{t1}, v{t1}, v{t3}")
    a(f"s_lshl_b32 s{s_t0}, s{s_w}, 3")
    a(f"v_add_u32 v{t0}, s{s_t0}, v{t2}")
    a(f"v_mul_lo_u32 v{t0}, v{t0}, s{s_rs}")
    a(f"v_add3_u32 v{v_dg}, v{t0}, v{t1}, s{s_goff}")
    a(f"v_xor_b32 v{t1}, 32, v{t1}")
    a(f"v_add3_u32 v{v_du}, v{t0}, v{t1}, s{s_uoff}")
    a(f"s_lshl_b32 s{s_m0x}, s{s_w}, 11")
    a(f"s_lshl_b32 s{s_t0}, s{s_cg}, 3")
    a(f"s_add_u32 s{s_t0}, s{s_t0}, s{s_w}")
    a(f"s_and_b32 s{s_t1}, s{s_t0}, 31")
    a(f"s_lshl_b32 s{s_t1}, s{s_t1}, 16")
    a(f"s_lshr_b32 s{s_t0}, s{s_t0}, 5")
    a(f"s_lshl_b32 s{s_t0}, s{s_t0}, 10")
    a(f"s_add_u32 s{s_t1}, s{s_t1}, s{s_t0}")
    a(f"s_lshl_b32 s{s_t0}, s{s_rb}, 12")
    a(f"s_add_u32 s{s_t3}, s{s_t1}, s{s_t0}")
    a(f"v_lshlrev_b32 v{t1}, 4, v{v_lane}")
    if KROT:
        a(f"s_and_b32 s{s_t0}, s{s_rb}, 7")
        a(f"s_lshl_b32 s{s_sx}, s{s_t0}, 7")
        a(f"s_mul_i32 s{s_sw}, s{s_t0}, s{s_rs64}")
    else:
        a(f"s_mov_b32 s{s_sx}, 0")
        a(f"s_mov_b32 s{s_sw}, 0")
    a(f"s_mov_b32 s{SRD_X + 2}, {2048 * 1024}")
    a(f"s_mov_b32 s{SRD_X + 3}, 0x00020000")
    a(f"s_mov_b32 s{SRD_G + 3}, 0x00020000")
    a(f"s_mov_b32 s{SRD_U + 3}, 0x00020000")
    a(f"s_lshl_b32 s{SRD_G + 2}, s{s_rs}, 9")
    a(f"s_lshl_b32 s{SRD_U + 2}, s{s_rs}, 9")
    if PROF == 3:
        pf.stamp()
    a("s_waitcnt lgkmcnt(0)")
    if PROF == 3:
        pf.stamp()
    a(f"s_mov_b32 s{SRD_X}, s{s_p}")
    a(f"s_and_b32 s{SRD_X + 1}, s{s_p + 1}, 0xffff")
    a(f"s_cmp_ge_u32 s{s_cg}, 14")
    a(f"s_cselect_b32 s{SRD_G}, s{s_tab}, s{s_p + 4}")
    a(f"s_cselect_b32 s{SRD_G + 1}, s{s_tab + 1}, s{s_p + 5}")
    a(f"s_cselect_b32 s{SRD_U}, s{s_tab}, s{s_p + 6}")
    a(f"s_cselect_b32 s{SRD_U + 1}, s{s_tab + 1}, s{s_p + 7}")
    a(f"s_and_b32 s{SRD_G + 1}, s{SRD_G + 1}, 0xffff")
    a(f"s_and_b32 s{SRD_U + 1}, s{SRD_U + 1}, 0xffff")

    def mk(ldsbase, vaddr, srdn, soff, mid, tag, post=None):
        def f():
            a(f"s_add_u32 m0, s{s_m0x}, {ldsbase}")
            a(mid)
            a.vmem(f"buffer_load_dwordx4 v{vaddr}, {sr(srdn, 4)}, s{soff} offen lds", tag)
            if post:
                a(post)
        return f

    def dma_x(stage):
        b = K1_LDS_X + (stage % 4) * 16384
        return [mk(b, v_dx[0], SRD_X, s_sx, f"s_and_b32 s{s_sx}, s{s_sx}, 1023", f"x{stage}"),
                mk(b + 1024, v_dx[1], SRD_X, s_sx, "s_nop 0", f"x{stage}", post=f"s_add_u32 s{s_sx}, s{s_sx}, 128")]

    def dma_w(stage):
        b = (stage % 3) * 16384
        tag = f"w{stage}"
        return [mk(K1_LDS_G + b, v_dg, SRD_G, s_sw, f"s_add_u32 s{s_sw2}, s{s_sw}, s{s_rs4}", tag),
                mk(K1_LDS_U + b, v_du, SRD_U, s_sw, "s_nop 0", tag),
                mk(K1_LDS_G + b + 1024, v_dg, SRD_G, s_sw2, f"s_add_u32 s{s_sw}, s{s_sw}, s{s_rs64}", tag),
                mk(K1_LDS_U + b + 1024, v_du, SRD_U, s_sw2, "s_nop 0", tag,
                   post=(f"s_cmp_ge_u32 s{s_sw}, s{SRD_G + 2}\ns_cselect_b32 s{s_sw}, 0, s{s_sw}" if KROT else None))]

    for f in dma_x(0) + dma_w(0):
        f()
    if PROF == 3:
        pf.stamp()
    XR = v_XS[0]
    a(f"v_add_u32 v{v_xs}, s{s_t3}, v{t1}")

    def xr_load():
        a.vmem(f"buffer_load_dwordx4 {vr(XR, 4)}, v{v_xs}, {sr(SRD_X, 4)}, 0 offen", "xr")
    s_tpar, s_toff, s_tstep = s_tab, s_tab + 1, s_p

    def touch_setup():
        a(f"v_and_b32 v{u0}, 15, v{v_lane}")
        a(f"s_cmp_ge_u32 s{s_w}, 4")
        a(f"s_cbranch_scc1 {name}_tx")
        a(f"s_and_b32 s{s_tpar}, s{s_w}, 1")
        a(f"s_and_b32 s{s_t1}, s{s_rb}, 7")
        a(f"v_lshrrev_b32 v{u1}, 1, v{u0}")
        a(f"v_lshl_add_u32 v{u1}, v{u1}, 3, s{s_t1}")
        a(f"v_mul_lo_u32 v{u1}, v{u1}, s{s_rs}")
        a(f"v_and_b32 v{u0}, 1, v{u0}")
        a(f"v_lshl_add_u32 v{v_pa[2]}, v{u0}, 7, v{u1}")
        a(f"s_cmp_ge_u32 s{s_w}, 2")
        a(f"s_cselect_b32 s{s_toff}, s{s_uoff}, s{s_goff}")
        a(f"s_cselect_b32 s{SRD_T}, s{SRD_U}, s{SRD_G}")
        a(f"s_cselect_b32 s{SRD_T + 1}, s{SRD_U + 1}, s{SRD_G + 1}")
        a(f"s_mov_b32 s{SRD_T + 2}, s{SRD_G + 2}")
        a(f"s_mov_b32 s{s_tstep}, s{s_rs64}")
        a(f"s_branch {name}_tj")
        a.label(f"{name}_tx")
        a(f"s_bfe_u32 s{s_tpar}, s{s_w}, 0x10001")
        a(f"s_and_b32 s{s_toff}, s{s_w}, 1")
        a(f"s_lshl_b32 s{s_toff}, s{s_toff}, 20")
        a(f"s_and_b32 s{s_t1}, s{s_cg}, 3")
        a(f"s_lshl_b32 s{s_t1}, s{s_t1}, 10")
        a(f"s_add_u32 s{s_toff}, s{s_toff}, s{s_t1}")
        a(f"s_lshl_b32 s{s_t1}, s{s_rb}, 12")
        a(f"s_add_u32 s{s_toff}, s{s_toff}, s{s_t1}")
        a(f"v_lshlrev_b32 v{v_pa[2]}, 16, v{u0}")
        a(f"s_mov_b32 s{SRD_T}, s{SRD_X}")
        a(f"s_mov_b32 s{SRD_T + 1}, s{SRD_X + 1}")
        a(f"s_mov_b32 s{SRD_T + 2}, s{SRD_X + 2}")
        a(f"s_movk_i32 s{s_tstep}, 128")
        a.label(f"{name}_tj")
        a(f"s_mov_b32 s{SRD_T + 3}, 0x00020000")
        a(f"s_add_u32 s{s_t1}, s{s_tpar}, 2")
        a(f"s_mul_i32 s{s_t1}, s{s_t1}, s{s_tstep}")
        a(f"s_add_u32 s{s_toff}, s{s_toff}, s{s_t1}")
        a(f"s_lshl_b32 s{s_tstep}, s{s_tstep}, 1")

    def touch(stage):
        if stage is not None:
            a(f"s_cmp_lg_u32 s{s_tpar}, {stage & 1}")
            a(f"s_cbranch_scc1 {name}_tn{stage}")
        a(f"buffer_load_dword v{v_pa[1]}, v{v_pa[2]}, {sr(SRD_T, 4)}, s{s_toff} offen")
        a(f"s_add_u32 s{s_toff}, s{s_toff}, s{s_tstep}")
        if stage is not None:
            a.label(f"{name}_tn{stage}")
    if TLB_WARM:
        a(f"s_cmp_lg_u32 s{s_w}, 7")
        a(f"s_cbranch_scc1 {name}_notlb")
        a(f"v_min_u32 v{u0}, 7, v{v_lane}")
        a(f"v_lshlrev_b32 v{u0}, 21, v{u0}")
        a(f"v_and_b32 v{u1}, 1, v{v_lane}")
        for k, (ptr, size) in enumerate(((s_p + 2, WS_SIZE), (s_p + 8, 2048 * 514), (s_p + 10, 2048 * 514), (s_p + 12, 1792 * 1024), (s_p + 14, 2048 * 1024), (SRD_D, 256))):
            srd(a, SRD_T, ptr, size)
            if k:
                a(f"v_mul_u32_u24 v{u0}, {size - 4}, v{u1}")
            a(f"buffer_load_dword v{v_pa[k % 3]}, v{u0}, {sr(SRD_T, 4)}, 0 offen")
        a.label(f"{name}_notlb")
    if TOUCH and TEARLY:
        touch_setup()
    if PBAR >= 1:
        a("s_barrier")
        if TOUCH and TEARLY:
            touch(None)
    elif XRS < 0:
        xr_load()
    a(f"v_and_b32 v{v_n}, 31, v{v_lane}")
    a(f"v_lshrrev_b32 v{v_h}, 5, v{v_lane}")
    a(f"s_and_b32 s{s_mi}, s{s_w}, 3")
    a(f"s_lshr_b32 s{s_ni}, s{s_w}, 2")
    d1 = dma_x(1) + dma_w(1) + dma_x(2)
    a(f"v_bfe_u32 v{t0}, v{v_n}, 1, 3")
    a(f"v_xor_b32 v{t0}, v{t0}, v{v_h}")
    a(f"s_lshl_b32 s{s_t0}, s{s_ni}, 13")
    a(f"v_lshlrev_b32 v{t1}, 7, v{v_n}")
    a(f"v_add_u32 v{t1}, s{s_t0}, v{t1}")
    a(f"v_lshl_add_u32 v{v_xa[0]}, v{t0}, 4, v{t1}")
    d1[0]()
    for j in range(1, 4):
        a(f"v_xor_b32 v{v_xa[j]}, {32 * j}, v{v_xa[0]}")
    d1[1]()
    a(f"v_bfe_u32 v{t2}, v{v_lane}, 4, 1")
    a(f"v_bfe_u32 v{t3}, v{v_lane}, 2, 2")
    a(f"v_lshl_add_u32 v{t4}, v{t3}, 1, v{t2}")
    a(f"s_lshl_b32 s{s_tile}, s{s_mi}, 1")
    a(f"s_add_u32 s{s_tile}, s{s_tile}, s{s_ni}")
    a(f"v_xor_b32 v{t4}, s{s_tile}, v{t4}")
    d1[2]()
    a(f"v_lshlrev_b32 v{t4}, 5, v{t4}")
    a(f"v_lshl_add_u32 v{t4}, v{t3}, 8, v{t4}")
    a(f"v_and_b32 v{t3}, 3, v{v_lane}")
    a(f"v_lshl_add_u32 v{t4}, v{t3}, 3, v{t4}")
    a(f"v_lshl_add_u32 v{t4}, v{v_h}, 11, v{t4}")
    d1[3]()
    a(f"v_mul_u32_u24 v{t2}, {K1_LDS_U - K1_LDS_G}, v{t2}")
    a(f"v_add_u32 v{t4}, v{t4}, v{t2}")
    a(f"v_add_u32 v{v_wa[0]}, {K1_LDS_G}, v{t4}")
    a(f"v_xor_b32 v{v_wa[1]}, 32, v{v_wa[0]}")
    d1[4]()
    a(f"v_bfe_u32 v{t2}, v{v_lane}, 4, 1")
    a(f"v_cmp_eq_u32 vcc, v{t3}, v{t2}")
    a(f"v_mov_b32 v{t2}, 0x3f803f80")
    a(f"v_mov_b32 v{t3}, 0")
    d1[5]()
    for i in range(4):
        a(f"v_cndmask_b32 v{v_sel + i}, v{t3}, v{t2}, vcc")
    if PBAR >= 2:
        a("s_barrier")
    if PBAR >= 1 and XRS < 0:
        xr_load()
    d1[6]()
    d1[7]()

    if TOUCH and not TEARLY:
        touch_setup()
        touch(None)
    srd(a, SRD_WS, s_p + 2, WS_SIZE)
    srd(a, SRD_WR, s_p + 8, 2048 * 514)
    srd(a, SRD_WI, s_p + 10, 2048 * 514)
    srd(a, SRD_WD, s_p + 12, 1792 * 1024)
    srd(a, SRD_D, SRD_D, 256)
    s_non = s_p + 4
    a(f"s_or_b32 s{s_t0}, s{s_w}, s2")
    a(f"s_cmp_lg_u32 s{s_t0}, 0")
    a(f"s_cbranch_scc1 {name}_nonon")
    a(f"s_memrealtime {sr(s_non, 2)}")
    a("s_waitcnt lgkmcnt(0)")
    a(f"s_or_b32 s{s_non}, s{s_non}, 1")
    a(f"v_mov_b32 v{t0}, s{s_non}")
    a(f"v_mov_b32 v{t1}, 0")
    a("s_mov_b64 exec, 1")
    a(f"buffer_store_dword v{t0}, v{t1}, {sr(SRD_D, 4)}, 0 offen sc1")
    a("s_mov_b64 exec, -1")
    a.label(f"{name}_nonon")

    side = {}

    def lines(txt):
        return [lambda l=l: a(l) for l in txt.strip().split("\n")]
    job = lines(f"""
v_lshrrev_b32 v{u0}, 3, v{v_lane}
v_and_b32 v{u1}, 7, v{v_lane}
s_and_b32 s{s_t0}, s2, 3
s_lshl_b32 s{s_t0}, s{s_t0}, 3
s_add_u32 s{s_t0}, s{s_t0}, s{s_w}
s_lshl_b32 s{s_t0}, s{s_t0}, 3
v_add_u32 v{u1}, s{s_t0}, v{u1}
s_lshr_b32 s{s_t1}, s2, 2
s_and_b32 s{s_t1}, s{s_t1}, 3
s_lshr_b32 s{s_t2}, s2, 4
v_lshrrev_b32 v{u2}, 2, v{u0}
v_lshlrev_b32 v{u2}, 4, v{u2}
v_and_b32 v{u3}, 3, v{u0}
v_add_u32 v{u2}, v{u2}, v{u3}
s_lshl_b32 s{s_t3}, s{s_t1}, 2
v_add_u32 v{u2}, s{s_t3}, v{u2}
s_lshl_b32 s{s_t3}, s{s_t2}, 7
v_add_u32 v{u2}, s{s_t3}, v{u2}
v_mul_u32_u24 v{u2}, 514, v{u2}
v_lshl_add_u32 v{v_f1a}, v{u1}, 1, v{u2}
v_add_u32 v{v_f2a}, 512, v{u2}
s_lshl_b32 s{s_t3}, s{s_t2}, 9
s_lshl_b32 s{s_t1}, s{s_t1}, 7
s_add_u32 s{s_t3}, s{s_t3}, s{s_t1}
s_add_u32 s{s_t3}, s{s_t3}, {WS_W}
v_lshl_add_u32 v{u0}, v{u0}, 4, s{s_t3}
v_lshl_add_u32 v{v_f1s}, v{u1}, 13, v{u0}
v_add_u32 v{v_f2s}, {256 * 8192}, v{u0}
""")
    addr_job = job

    def gl(dst, va, srdn, i):
        def f():
            a(f"s_mov_b32 s{s_t0}, {i * 32 * 514}")
            a.vmem(f"buffer_load_ushort v{dst}, v{va}, {sr(srdn, 4)}, s{s_t0} offen", "f1")
        return f
    job = []
    for i in range(4):
        job.append(gl(v_f1 + i, v_f1a, SRD_WR, i))
        job.append(gl(v_fi + i, v_f1a, SRD_WI, i))
    gath = job
    side[6] = []

    def c256_test(lbl):
        a(f"s_and_b32 s{s_t0}, s2, 3")
        a(f"s_lshl_b32 s{s_t0}, s{s_t0}, 3")
        a(f"s_add_u32 s{s_t0}, s{s_t0}, s{s_w}")
        a(f"s_cmp_lg_u32 s{s_t0}, 31")
        a(f"s_cbranch_scc1 {name}_{lbl}")

    def col256_load():
        c256_test("c256a")
        for i in range(4):
            a(f"s_mov_b32 s{s_t0}, {i * 32 * 514}")
            a(f"buffer_load_ushort v{v_f2 + i}, v{v_f2a}, {sr(SRD_WR, 4)}, s{s_t0} offen")
            a(f"buffer_load_ushort v{v_fi + 4 + i}, v{v_f2a}, {sr(SRD_WI, 4)}, s{s_t0} offen")
        a.label(f"{name}_c256a")

    def side_store():
        a.wait(vm="f1")
        for i in range(4):
            a(f"v_lshl_or_b32 v{v_f1 + i}, v{v_fi + i}, 16, v{v_f1 + i}")
        a.vmem(f"buffer_store_dwordx4 {vr(v_f1, 4)}, v{v_f1s}, {sr(SRD_WS, 4)}, 0 offen{WT}", "st")
        c256_test("c256b")
        for i in range(4):
            a(f"v_lshl_or_b32 v{v_f2 + i}, v{v_fi + 4 + i}, 16, v{v_f2 + i}")
        a(f"buffer_store_dwordx4 {vr(v_f2, 4)}, v{v_f2s}, {sr(SRD_WS, 4)}, 0 offen{WT}")
        a.label(f"{name}_c256b")

    def wd_job(part, nparts):
        def f():
            if TOUCH_WD == 1:
                per = 56 // nparts
                a(f"s_lshr_b32 s{s_t0}, s2, 3")
                a(f"s_lshl_b32 s{s_t0}, s{s_t0}, 3")
                a(f"s_add_u32 s{s_t0}, s{s_t0}, s{s_w}")
                a(f"s_mul_i32 s{s_t0}, s{s_t0}, {per * 128}")
                a(f"s_add_u32 s{s_t0}, s{s_t0}, {part * 256 * per * 128}")
                a(f"v_min_u32 v{u3}, {per - 1}, v{v_lane}")
            else:
                a(f"s_lshl_b32 s{s_t0}, s2, 3")
                a(f"s_add_u32 s{s_t0}, s{s_t0}, s{s_w}")
                a(f"s_mul_i32 s{s_t0}, s{s_t0}, {7 * 128}")
                a(f"v_min_u32 v{u3}, 6, v{v_lane}")
            a(f"v_lshlrev_b32 v{u3}, 7, v{u3}")
            a.vmem(f"buffer_load_dword v{v_pa[1]}, v{u3}, {sr(SRD_WD, 4)}, s{s_t0} offen", "pf")
        return f
    def flag_init():
        a(f"s_lshl_b32 s{s_t0}, s2, 3")
        a(f"s_add_u32 s{s_t0}, s{s_t0}, s{s_w}")
        a(f"s_lshl_b32 s{s_t0}, s{s_t0}, 10")
        a(f"s_add_u32 s{s_t0}, s{s_t0}, {WS_Z}")
        a(f"v_lshlrev_b32 v{u3}, 4, v{v_lane}")
        for i in range(4):
            a(f"v_mov_b32 v{v_sn + i}, -1")
        a.vmem(f"buffer_store_dwordx4 {vr(v_sn, 4)}, v{u3}, {sr(SRD_WS, 4)}, s{s_t0} offen sc1", "st")
        if fused:
            a(f"s_add_u32 s{s_t0}, s{s_t0}, {(WS_U - WS_Z) & 0xffffffff}")
            a.vmem(f"buffer_store_dwordx4 {vr(v_sn, 4)}, v{u3}, {sr(SRD_WS, 4)}, s{s_t0} offen sc1", "st")
    def touch_next():
        a(f"s_cmp_ge_u32 s2, 8")
        a(f"s_cbranch_scc1 {name}_notn")
        a(f"s_getpc_b64 {sr(SRD_T, 2)}")
        a(f"s_add_u32 s{SRD_T}, s{SRD_T}, k23_begin@rel32@lo+4")
        a(f"s_addc_u32 s{SRD_T + 1}, s{SRD_T + 1}, k23_begin@rel32@hi+12")
        a(f"s_mov_b32 s{SRD_T + 2}, k23_end-k23_begin")
        a(f"s_lshl_b32 s{s_t0}, s{s_w}, 13")
        a(f"s_and_b32 s{SRD_T + 1}, s{SRD_T + 1}, 0xffff")
        a(f"s_mov_b32 s{SRD_T + 3}, 0x00020000")
        a(f"v_lshlrev_b32 v{u3}, 7, v{v_lane}")
        a(f"buffer_load_dword v{v_pa[1]}, v{u3}, {sr(SRD_T, 4)}, s{s_t0} offen")
        a.label(f"{name}_notn")

    if TOUCH:
        for st in range(4):
            side[st] = [lambda st=st: touch(st + 4)] + [lambda: None] * 3 + side.get(st, [])

    def read_ops(stage, j):
        bw = (stage % 3) * 16384 + j * 4096
        bx = (stage % 4) * 16384
        ops = []
        tag = f"r{stage}_{j}"
        for mt in range(2):
            for e in range(2):
                ops.append(lambda mt=mt, e=e: a.lds(
                    f"ds_read_b64_tr_b16 {vr(v_W[j % 2][mt] + 2 * e, 2)}, v{v_wa[mt]} offset:{bw + e * 1024}", tag))
            ops.append(lambda nt=mt: a.lds(
                f"ds_read_b128 {vr(v_X[j % 2][nt], 4)}, v{v_xa[j]} offset:{bx + nt * 4096}", tag))
        return ops

    def allreduce(v, t):
        return lines(f"""
s_nop 1
v_add_f32_dpp v{v}, v{v}, v{v} quad_perm:[1,0,3,2] row_mask:0xf bank_mask:0xf
s_nop 1
v_add_f32_dpp v{v}, v{v}, v{v} quad_perm:[2,3,0,1] row_mask:0xf bank_mask:0xf
s_nop 1
v_add_f32_dpp v{v}, v{v}, v{v} row_half_mirror row_mask:0xf bank_mask:0xf
s_nop 1
v_add_f32_dpp v{v}, v{v}, v{v} row_mirror row_mask:0xf bank_mask:0xf
v_mov_b32 v{t}, v{v}
s_nop 1
v_permlane16_swap_b32 v{v}, v{t}
v_add_f32 v{v}, v{v}, v{t}
v_mov_b32 v{t}, v{v}
s_nop 1
v_permlane32_swap_b32 v{v}, v{t}
v_add_f32 v{v}, v{v}, v{t}
""")
    el = [v_e + i for i in range(8)]
    m_, mb, dl, tt = v_t[:4]
    so0, so1 = v_st[0], v_st[0] + 1
    rowst = [lambda: a.wait(vm="xr")]
    for d in range(4):
        rowst += lines(f"v_lshlrev_b32 v{el[2 * d]}, 16, v{XR + d}\nv_and_b32 v{el[2 * d + 1]}, 0xffff0000, v{XR + d}")
    rowst += lines(f"""
v_add_f32 v{m_}, v{el[0]}, v{el[1]}
v_add_f32 v{mb}, v{el[2]}, v{el[3]}
v_add_f32 v{dl}, v{el[4]}, v{el[5]}
v_add_f32 v{tt}, v{el[6]}, v{el[7]}
v_add_f32 v{m_}, v{m_}, v{mb}
v_add_f32 v{dl}, v{dl}, v{tt}
v_add_f32 v{m_}, v{m_}, v{dl}
""") + allreduce(m_, tt) + lines(f"""
v_mul_f32 v{m_}, 0x3b000000, v{m_}
v_cvt_pk_bf16_f32 v{so0}, -v{m_}, -v{m_}
""")
    rowst += lines("\n".join(f"v_sub_f32 v{e_}, v{e_}, v{m_}" for e_ in el))
    rowst += lines(f"v_mul_f32 v{mb}, v{el[0]}, v{el[0]}\nv_mul_f32 v{dl}, v{el[1]}, v{el[1]}")
    rowst += lines("\n".join(f"v_fmac_f32 v{(mb, dl)[i % 2]}, v{el[i]}, v{el[i]}" for i in range(2, 8)))
    rowst += lines(f"v_add_f32 v{mb}, v{mb}, v{dl}") + allreduce(mb, tt) + lines(f"""
v_mul_f32 v{mb}, 0x3b000000, v{mb}
v_cvt_pk_bf16_f32 v{tt}, v{mb}, v{mb}
v_and_b32 v{tt}, 0xffff0000, v{tt}
v_add_f32 v{tt}, 0x3727c5ac, v{tt}
v_cvt_pk_bf16_f32 v{tt}, v{tt}, v{tt}
v_and_b32 v{tt}, 0xffff0000, v{tt}
v_sqrt_f32 v{tt}, v{tt}
v_and_b32 v{so0}, 0xffff, v{so0}
v_cvt_pk_bf16_f32 v{tt}, v{tt}, v{tt}
v_and_b32 v{tt}, 0xffff0000, v{tt}
v_or_b32 v{so0}, v{so0}, v{tt}
""")
    fl = v_XS[1]

    def cs_base(sd, st):
        a(f"s_lshr_b32 s{sd}, s{s_rb}, 3")
        a(f"s_lshl_b32 s{sd}, s{sd}, 4")
        a(f"s_add_u32 s{sd}, s{sd}, s{s_cg}")
        a(f"s_lshl_b32 s{sd}, s{sd}, 14")
        a(f"s_add_u32 s{sd}, s{sd}, {WS_CS}")

    def nonce_load():
        a(f"v_mov_b32 v{fl + 2}, 0")
        a.vmem(f"buffer_load_dword v{fl}, v{fl + 2}, {sr(SRD_D, 4)}, 0 offen sc1", "nl")

    def rowst_store():
        a.wait(vm="nl")
        a(f"s_mov_b32 s{s_t3}, {SPIN_MAX}")
        a.label(f"{name}_nn")
        a(f"v_readfirstlane_b32 s{s_non}, v{fl}")
        a(f"s_cmp_lg_u32 s{s_non}, 0")
        a(f"s_cbranch_scc1 {name}_nnok")
        a(f"s_sub_u32 s{s_t3}, s{s_t3}, 1")
        a(f"s_cbranch_scc1 {name}_nnok")
        a("s_sleep 8")
        a(f"buffer_load_dword v{fl}, v{fl + 2}, {sr(SRD_D, 4)}, 0 offen sc1")
        a("s_waitcnt vmcnt(0)")
        a(f"s_branch {name}_nn")
        a.label(f"{name}_nnok")
        a(f"s_lshl_b32 s{s_t0}, s{s_rb}, 7")
        a(f"s_lshl_b32 s{s_t1}, s{s_cg}, 3")
        a(f"s_add_u32 s{s_t0}, s{s_t0}, s{s_t1}")
        a(f"s_add_u32 s{s_t0}, s{s_t0}, s{s_w}")
        a(f"s_lshl_b32 s{s_t0}, s{s_t0}, 3")
        a(f"s_add_u32 s{s_t0}, s{s_t0}, {WS_ST}")
        a(f"v_mov_b32 v{so1}, v{fl}")
        a("s_mov_b64 exec, 1")
        a.vmem(f"buffer_store_dwordx2 {vr(so0, 2)}, v{fl + 2}, {sr(SRD_WS, 4)}, s{s_t0} offen sc1", "ss")
        a("s_mov_b64 exec, -1")
        if SCS:
            a(f"v_bfe_u32 v{t0}, v{v_lane}, 4, 1")
            a(f"v_cmp_eq_u32 vcc, 1, v{t0}")
            cs_base(s_t0, s_t1)
            a(f"s_lshl_b32 s{s_t1}, s{s_tile}, 11")
            a(f"s_add_u32 s{s_t0}, s{s_t0}, s{s_t1}")
            a(f"s_and_b32 s{s_t1}, s{s_rb}, 7")
            a(f"s_lshl_b32 s{s_t1}, s{s_t1}, 8")
            a(f"s_add_u32 s{s_t0}, s{s_t0}, s{s_t1}")
            a(f"v_cndmask_b32 v{v_cs[1]}, v{v_cs[0]}, v{v_cs[0] + 1}, vcc")
            a(f"v_mov_b32 v{v_cs[1] + 1}, v{fl}")
            a(f"v_lshlrev_b32 v{t0}, 3, v{v_lane}")
            a("s_mov_b32 exec_hi, 0")
            a.vmem(f"buffer_store_dwordx2 {vr(v_cs[1], 2)}, v{t0}, {sr(SRD_WS, 4)}, s{s_t0} offen sc1", "ss")
            a("s_mov_b32 exec_hi, -1")

    def st_loads(reg):
        for nt in range(2):
            txt = f"buffer_load_dwordx2 {vr(v_st[nt], 2)}, v{fl + 3}, {sr(SRD_WS, 4)}, s{s_sx} offen offset:{256 * nt} sc1"
            if reg:
                a.vmem(txt, "sl")
            else:
                a(txt)
        if SCS:
            for q in range(8):
                txt = f"buffer_load_dwordx2 {vr(v_e + 2 * q, 2)}, v{v_xs}, {sr(SRD_WS, 4)}, s{s_sw} offen offset:{256 * q} sc1"
                if reg:
                    a.vmem(txt, "sl")
                else:
                    a(txt)

    def st_poll_load():
        a(f"s_lshl_b32 s{s_sx}, s{s_rb}, 10")
        a(f"s_lshl_b32 s{s_t1}, s{s_ni}, 9")
        a(f"s_add_u32 s{s_sx}, s{s_sx}, s{s_t1}")
        a(f"s_add_u32 s{s_sx}, s{s_sx}, {WS_ST}")
        a(f"v_lshlrev_b32 v{fl + 3}, 3, v{v_n}")
        if SCS:
            cs_base(s_sw, s_t1)
            a(f"v_xor_b32 v{v_xs}, s{s_tile}, v{v_h}")
            a(f"v_lshl_add_u32 v{v_xs}, v{v_xs}, 11, v{fl + 3}")
        st_loads(True)

    def st_poll_check():
        a.wait(vm="sl")
        a(f"s_mov_b32 s{s_t3}, {SPIN_MAX}")
        a.label(f"{name}_sp")
        tags_ = [v_st[0] + 1, v_st[1] + 1] + ([v_e + 2 * q + 1 for q in range(8)] if SCS else [])
        a(f"v_xor_b32 v{fl}, s{s_non}, v{tags_[0]}")
        for tg in tags_[1:]:
            a(f"v_xor_b32 v{fl + 1}, s{s_non}, v{tg}")
            a(f"v_or_b32 v{fl}, v{fl}, v{fl + 1}")
        a(f"v_cmp_ne_u32 vcc, 0, v{fl}")
        a("s_nop 3")
        a(f"s_cbranch_vccz {name}_spok")
        a(f"s_sub_u32 s{s_t3}, s{s_t3}, 1")
        a(f"s_cbranch_scc1 {name}_spok")
        a("s_sleep 8")
        st_loads(False)
        a("s_waitcnt vmcnt(0)")
        a(f"s_branch {name}_sp")
        a.label(f"{name}_spok")

    skid = [0]

    def sel_op(j, mt, first, skip=False):
        c = "0" if first else vr(v_cs[mt], 4)

        def f():
            if skip:
                skid[0] += 1
                a(f"s_cbranch_vccz {name}_sk{skid[0]}")
            a(f"v_mfma_f32_16x16x32_bf16 {vr(v_cs[mt], 4)}, {vr(v_sel, 4)}, {vr(v_W[j % 2][mt], 4)}, {c}")
            if skip:
                a.label(f"{name}_sk{skid[0]}")
        return f

    ORDER = ((0, 0), (1, 0), (0, 1), (1, 1))

    def mfma_ops(stage, j):
        ops = []
        first = stage == 0 and j == 0
        for mt, nt in ORDER:
            acc = vr(v_acc[mt][nt], 16)
            ops.append(lambda mt=mt, nt=nt, acc=acc: a(
                f"v_mfma_f32_32x32x16_bf16 {acc}, {vr(v_W[j % 2][mt], 4)}, {vr(v_X[j % 2][nt], 4)}, {'0' if first else acc}"))
        return ops

    def merge(a_list, b_list):
        out = []
        na, nb = len(a_list), len(b_list)
        ia = ib = 0
        while ia < na or ib < nb:
            if ib >= nb or (ia < na and ia * nb <= ib * na):
                out.append(a_list[ia]); ia += 1
            else:
                out.append(b_list[ib]); ib += 1
        return out

    e = v_e
    rA, rB = v_st[0] + 1, v_st[1] + 1

    publish = lines(f"""
s_lshl_b32 s{s_t2}, s{s_tile}, 9
s_add_u32 s{s_t2}, s{s_t2}, {K1_LDS_CS}
v_lshlrev_b32 v{u1}, 3, v{v_lane}
v_add_u32 v{u1}, s{s_t2}, v{u1}
""")

    def publish_cs():
        a.lds(f"ds_write_b64 v{u1}, {vr(v_cs[0], 2)}", "w")

    gather = lines(f"v_xor_b32 v{u1}, 512, v{u1}")
    gather.append(lambda: a.lds(f"ds_read_b64 {vr(v_FA[1], 2)}, v{u1}", "s"))

    fin = lines(f"""
v_cmp_eq_u32 vcc, 0, v{v_h}
v_mov_b32 v{v_FB[0] + 2}, 0
v_mov_b32 v{v_FB[0] + 3}, 0
v_mov_b32 v{v_FB[1] + 2}, 0
v_mov_b32 v{v_FB[1] + 3}, 0
v_mov_b32 v{v_FA[0] + 2}, 0
v_mov_b32 v{v_FA[0] + 3}, 0
v_mov_b32 v{v_FA[1] + 2}, 0
v_mov_b32 v{v_FA[1] + 3}, 0
v_bfe_u32 v{t0}, v{v_lane}, 4, 1
v_and_b32 v{rA}, 0xffff0000, v{v_st[0]}
v_and_b32 v{rB}, 0xffff0000, v{v_st[1]}
v_rcp_f32 v{rA}, v{rA}
v_rcp_f32 v{rB}, v{rB}
v_and_b32 v{v_st[0]}, 0xffff, v{v_st[0]}
v_and_b32 v{v_st[1]}, 0xffff, v{v_st[1]}
v_lshl_or_b32 v{v_st[0]}, v{v_st[0]}, 16, v{v_st[0]}
v_lshl_or_b32 v{v_st[1]}, v{v_st[1]}, 16, v{v_st[1]}
v_cndmask_b32 v{v_FB[0]}, 0, v{v_st[0]}, vcc
v_cndmask_b32 v{v_FB[1]}, 0, v{v_st[1]}, vcc
v_cmp_eq_u32 vcc, 1, v{t0}
v_mov_b32 v{v_FB[0] + 1}, v{v_FB[0]}
v_mov_b32 v{v_FB[1] + 1}, v{v_FB[1]}
""")
    if SCS:
        fin += lines(f"""
v_add_f32 v{e}, v{e}, v{e + 2}
v_add_f32 v{e + 4}, v{e + 4}, v{e + 6}
v_add_f32 v{e + 8}, v{e + 8}, v{e + 10}
v_add_f32 v{e + 12}, v{e + 12}, v{e + 14}
v_add_f32 v{e}, v{e}, v{e + 4}
v_add_f32 v{e + 8}, v{e + 8}, v{e + 12}
v_add_f32 v{v_cs[0]}, v{e}, v{e + 8}
v_add_f32 v{v_cs[1]}, v{e}, v{e + 8}
s_nop 1
v_permlane32_swap_b32 v{v_cs[0]}, v{v_cs[1]}
""")
    else:
        fin += lines(f"v_cndmask_b32 v{v_cso}, v{v_FA[1]}, v{v_FA[1] + 1}, vcc")

    v_ana = [v_XS[0], v_XS[0] + 1]
    if DSKIP:
        grp = lines(f"""
s_cmp_ge_u32 s{s_cg}, 14
s_cselect_b64 {sr(s_tab, 2)}, -1, 0
""")
        fin += [lambda: [f() for f in grp]]
        for mt in range(2):
            fin += lines(f"""
s_xor_b32 s{s_t0}, s{s_tile}, {mt}
s_sub_u32 s{s_t1}, s{s_cg}, 14
s_or_b32 s{s_t0}, s{s_t0}, s{s_t1}
v_or_b32 v{v_ana[mt]}, s{s_t0}, v{v_n}
v_min_u32 v{v_ana[mt]}, 1, v{v_ana[mt]}
v_sub_u32 v{v_ana[mt]}, 1, v{v_ana[mt]}
v_mul_u32_u24 v{v_ana[mt]}, 0x4380, v{v_ana[mt]}
v_lshlrev_b32 v{v_ana[mt]}, 16, v{v_ana[mt]}
""")

    def fold_a(mt):
        c, r1, hi = v_t[3 * mt], v_t[3 * mt + 1], v_t[3 * mt + 2]
        FA = v_FA[mt]
        txt = f"v_cndmask_b32 v{c}, v{v_cs[mt]}, v{v_cs[mt] + 1}, vcc\n"
        if SCS:
            txt = f"v_mov_b32 v{c}, v{v_cs[mt]}\n"
        elif mt == 1:
            txt += f"v_add_f32 v{c}, v{c}, v{v_cso}\n"
        if DSKIP:
            txt += f"v_cndmask_b32 v{c}, v{c}, v{v_ana[mt]}, {sr(s_tab, 2)}\n"
        txt += f"""v_and_b32 v{hi}, 0xffff0000, v{c}
v_sub_f32 v{r1}, v{c}, v{hi}
v_and_b32 v{c}, 0xffff0000, v{r1}
v_sub_f32 v{r1}, v{r1}, v{c}
v_lshrrev_b32 v{hi}, 16, v{hi}
v_or_b32 v{FA}, v{hi}, v{c}
v_lshrrev_b32 v{FA + 1}, 16, v{r1}"""
        return lines(txt)

    nop = lambda: None
    side.clear()

    def put(stage, frac, ops):
        b = side.setdefault(stage, [[] for _ in range(16)])
        if isinstance(ops, list) and len(ops) > 4:
            n = len(ops)
            lo = int(frac * 16)
            for i, op in enumerate(ops):
                b[lo + (16 - lo) * i // n].append(op)
        else:
            b[min(15, int(frac * 16))] += ops if isinstance(ops, list) else [ops]
    if G0S < 0:
        for op in addr_job + gath + [col256_load]:
            op()
        put(1, 0.8, side_store)
    else:
        put(2, 0.0, addr_job)
    if G0S >= 0:
        for i in range(4):
            put(G0S + i * GSTEP, 0.3 if GSTEP else 0.1 + 0.2 * i, gath[2 * i:2 * i + 2])
        put(G0S + 3 * GSTEP, 0.8, col256_load)
        put(6, 0.5, side_store) if G0S < 6 else None

    def wd_by_wave(k):
        def f():
            a(f"s_and_b32 s{s_t0}, s{s_w}, 3")
            a(f"s_cmp_lg_u32 s{s_t0}, {k}")
            a(f"s_cbranch_scc1 {name}_nwd{k}")
            saved = list(a.vm)
            wd_job(0, 1)()
            a.vm = saved
            a.label(f"{name}_nwd{k}")
        return f
    if WDCOPY:
        def wd_ld():
            a(f"s_lshl_b32 s{s_t0}, s2, 3")
            a(f"s_add_u32 s{s_t0}, s{s_t0}, s{s_w}")
            a(f"s_lshl_b32 s{s_t0}, s{s_t0}, 10")
            a(f"v_lshlrev_b32 v{u3}, 4, v{v_lane}")
            a.vmem(f"buffer_load_dwordx4 {vr(v_sn, 4)}, v{u3}, {sr(SRD_WD, 4)}, s{s_t0} offen", "wdl")

        def wd_st():
            a.wait(vm="wdl")
            a(f"s_cmp_ge_u32 s2, 224")
            a(f"s_cbranch_scc1 {name}_nowds")
            a(f"s_lshl_b32 s{s_t0}, s2, 3")
            a(f"s_add_u32 s{s_t0}, s{s_t0}, s{s_w}")
            a(f"s_lshl_b32 s{s_t0}, s{s_t0}, 7")
            a(f"s_add_u32 s{s_t0}, s{s_t0}, {WS_WD}")
            a(f"v_lshrrev_b32 v{u3}, 3, v{v_lane}")
            a(f"v_mul_u32_u24 v{u3}, {1792 * 128}, v{u3}")
            a(f"v_and_b32 v{u2}, 7, v{v_lane}")
            a(f"v_lshl_add_u32 v{u3}, v{u2}, 4, v{u3}")
            a(f"buffer_store_dwordx4 {vr(v_sn, 4)}, v{u3}, {sr(SRD_WS, 4)}, s{s_t0} offen sc1")
            a.label(f"{name}_nowds")
        put(WDST, 0.9, wd_ld)
        put(WDST + 2, 0.5, wd_st)
    elif TOUCH_WD and WDST < 0:
        wd_job(0, 1)()
    elif TOUCH_WD and WDST < 7:
        put(WDST, 0.9, wd_job(0, 1))
    if TOUCH:
        for st in range(4):
            put(max(0, st - TLEAD), 0.05 + 0.3 * (st % 2) * (1 if TLEAD else 0), lambda st=st: touch(st + 4))
    if TOUCH_NEXT:
        put(5, 0.8, touch_next)
    RS = max(XRS, -1) + 1
    if XRS >= 0:
        put(XRS, 0.1, xr_load)
    put(RS, 0.0, rowst)
    put(RS, 0.4, nonce_load)
    put(RS + 1, 0.1, rowst_store)
    put(6, 0.3, st_poll_load)
    if fused:
        def ep_loads():
            for q in range(4):
                a(f"buffer_load_dword v{v_fi + q}, v{v_f1 + q}, {sr(SRD_WS, 4)}, s{s_sw2} offen offset:4 sc1")

        def ep_issue():
            a(f"s_cmp_lg_u32 s{s_w}, 7")
            a(f"s_cbranch_scc1 {name}_ep1")
            a(f"v_lshlrev_b32 v{v_f1}, 7, v{v_lane}")
            for q in range(1, 4):
                a(f"v_add_u32 v{v_f1 + q}, {8192 * q}, v{v_f1}")
            a(f"s_mov_b32 s{s_sw2}, {WS_FL}")
            ep_loads()
            a.label(f"{name}_ep1")

        def ep_check():
            a(f"s_cmp_lg_u32 s{s_w}, 7")
            a(f"s_cbranch_scc1 {name}_ep2")
            a(f"s_mov_b32 s{s_t3}, {SPIN_MAX}")
            a.label(f"{name}_epl")
            a("s_waitcnt vmcnt(0)")
            for q in range(4):
                a(f"v_xor_b32 v{v_fi + q}, s{s_non}, v{v_fi + q}")
            for q in range(1, 4):
                a(f"v_or_b32 v{v_fi}, v{v_fi}, v{v_fi + q}")
            a(f"v_cmp_ne_u32 {sr(s_tab, 2)}, 0, v{v_fi}")
            a(f"s_sub_u32 s{s_t3}, s{s_t3}, 1")
            a(f"s_cbranch_scc1 {name}_ep2")
            a(f"s_cmp_eq_u64 {sr(s_tab, 2)}, 0")
            a(f"s_cbranch_scc1 {name}_ep2")
            a("s_sleep 4")
            ep_loads()
            a(f"s_branch {name}_epl")
            a.label(f"{name}_ep2")
        put(6, 0.0, ep_issue)
        put(6, 0.95, ep_check)
    side = {k: [op for bk in v for op in (bk if bk else [nop])] for k, v in side.items()}
    if SENT == -1:
        flag_init()
    elif SENT < 7:
        side[SENT] = side.get(SENT, []) + [flag_init]
    if K1PRIO:
        a(f"s_cmp_lt_u32 s{s_w}, 4")
        a(f"s_cbranch_scc{K1PRIO - 1} {name}_noprio")
        a("s_setprio 1")
        a.label(f"{name}_noprio")
    if DSKIP:
        a(f"s_cmp_lt_u32 s{s_cg}, 14")
        a("s_cselect_b64 vcc, -1, 0")
    pf.stamp()
    a.wait(vm=["x0", "w0"])
    if PROF == 3:
        pf.stamp()
    a("s_barrier")
    pf.stamp()
    for f in read_ops(0, 0):
        f()
    LAST = NSTAGE - 1
    for stage in range(NSTAGE):
        dops = (dma_w(stage + 2) if stage + 2 < NSTAGE else []) + (dma_x(stage + 3) if stage + 3 < NSTAGE else [])
        extra = side.get(stage, [])
        for j in range(4):
            a.comment(f"stage {stage} step {j}")
            a.wait(lg="all")
            m = mfma_ops(stage, j)
            if stage < LAST:
                m = ([sel_op(j, 0, stage == 0 and j == 0, skip=DSKIP)] if (not SCS or stage == 0) else []) + m
                nb = len(m) - NAFTER
                so = publish if (stage == 6 and j == 2 and not SCS) else []
                ex = extra[len(extra) * j // 4:len(extra) * (j + 1) // 4]
                if j < 3:
                    fill = read_ops(stage, j + 1) + merge(merge(so, ex), dops[2 * j:2 * j + 2])
                    interleave(a, m, fill)
                else:
                    interleave(a, m[:nb], merge(so, ex))
                    if stage == 6:
                        if not SCS:
                            a("s_nop 3")
                            publish_cs()
                        if fused:
                            a(f"v_lshlrev_b32 v{t0}, 2, v{v_lane}")
                            a(f"v_add_u32 v{t0}, {F_LF}, v{t0}")
                            a(f"v_mov_b32 v{t1}, 0")
                            a.lds(f"ds_write_b32 v{t0}, v{t1}", "w")
                        a.wait(lg="all")
                    tags = [f"w{stage + 1}", f"x{stage + 1}"] + (["st"] if fused and stage == F0S else [])
                    a.wait(vm=tags)
                    a("s_barrier")
                    if PROF == 1 and stage % 2 == 0:
                        pf.stamp()
                    for f in read_ops(stage + 1, 0):
                        f()
                    m[nb]()
                    if fused and stage == F0S:
                        a(f"s_cmp_lg_u32 s{s_w}, 0")
                        a(f"s_cbranch_scc1 {name}_nof0")
                        a(f"s_lshl_b32 s{s_t0}, s{s_rb}, 4")
                        a(f"s_add_u32 s{s_t0}, s{s_t0}, s{s_cg}")
                        a(f"s_lshl_b32 s{s_t0}, s{s_t0}, 7")
                        a(f"s_add_u32 s{s_t0}, s{s_t0}, {WS_FL + 4}")
                        a(f"v_mov_b32 v{t0}, s{s_non}")
                        a(f"v_mov_b32 v{t1}, 0")
                        a("s_mov_b64 exec, 1")
                        a(f"buffer_store_dword v{t0}, v{t1}, {sr(SRD_WS, 4)}, s{s_t0} offen sc1")
                        a("s_mov_b64 exec, -1")
                        a.label(f"{name}_nof0")
                    if stage == 6 and not SCS:
                        for f in gather:
                            f()
                    for f in m[nb + 1:]:
                        f()
            else:
                if not SCS:
                    m = [sel_op(j, 0, False), sel_op(j, 1, j == 0)] + m
                if j < 3:
                    n = len(fin)
                    interleave(a, m, read_ops(stage, j + 1) + ([st_poll_check] + ([wd_job(0, 1)] if WDST == 7 else []) if j == 0 else []) + fin[n * j // 3:n * (j + 1) // 3])
                else:
                    if SCS:
                        interleave(a, m, merge(fold_a(0), fold_a(1)))
                    else:
                        for f in m[:4]:
                            f()
                        a("s_nop 3")
                        interleave(a, m[4:], merge(fold_a(0), fold_a(1)))
    a("s_nop 1")
    for mt, nt in ORDER:
        acc = vr(v_acc[mt][nt], 16)
        a(f"v_mfma_f32_32x32x16_bf16 {acc}, {vr(v_FA[mt], 4)}, {vr(v_FB[nt], 4)}, {acc}")
    if G0S == 6:
        side_store()
    pf.stamp()
    rr = [rA, rB]
    a(f"s_cmp_ge_u32 s{s_cg}, 14")
    a(f"s_cbranch_scc1 {name}_epi_dft")
    r2 = [e + 4, e + 6]
    for nt in range(2):
        a(f"v_mul_f32 v{r2[nt]}, v{rr[nt]}, v{rr[nt]}")
    a(f"v_lshlrev_b32 v{t0}, 4, v{v_lane}")
    a(f"s_lshl_b32 s{s_t0}, s{s_rb}, 2")
    a(f"s_lshl_b32 s{s_t2}, s{s_ni}, 1")
    a(f"s_add_u32 s{s_t0}, s{s_t0}, s{s_t2}")
    a(f"s_mul_i32 s{s_t0}, s{s_t0}, 112")
    a(f"s_lshl_b32 s{s_t2}, s{s_cg}, 3")
    a(f"s_add_u32 s{s_t0}, s{s_t0}, s{s_t2}")
    for mt, nt in ORDER:
        acc = v_acc[mt][nt]
        for i in range(8):
            a(f"v_max_f32 v{acc + i}, 0, v{acc + i}")
            a(f"v_mul_f32 v{acc + 8 + i}, v{r2[nt]}, v{acc + 8 + i}")
        for i in range(8):
            a(f"v_mul_f32 v{acc + i}, v{acc + i}, v{acc + 8 + i}")
        for i in range(4):
            a(f"v_cvt_pk_bf16_f32 v{acc + 8 + i}, v{acc + 2 * i}, v{acc + 2 * i + 1}")
        a(f"s_xor_b32 s{s_t2}, s{s_tile}, {mt}")
        a(f"s_add_u32 s{s_t2}, s{s_t2}, s{s_t0}")
        if nt:
            a(f"s_add_u32 s{s_t2}, s{s_t2}, 112")
        a(f"s_lshl_b32 s{s_t2}, s{s_t2}, 10")
        a(f"buffer_store_dwordx4 {vr(acc + 8, 4)}, v{t0}, {sr(SRD_WS, 4)}, s{s_t2} offen{WTH}")
    if PROF and not fused:
        pf.stamp()
        a("s_waitcnt vmcnt(0)")
        pf.stamp()
        pf.stamp(real=True)
        pf.dump(SRD_WS, 2, s_w, v_t[0], s_t0, 8)
    a(f"s_branch {name}_join" if fused else "s_endpgm")
    a.label(f"{name}_epi_dft")
    for nt in range(2):
        a(f"v_mul_f32 v{rr[nt]}, 0x36000000, v{rr[nt]}")
    a(f"v_lshlrev_b32 v{t0}, 14, v{v_h}")
    a(f"v_lshl_add_u32 v{t0}, v{v_n}, 2, v{t0}")
    a(f"s_sub_u32 s{s_t0}, s{s_cg}, 14")
    a(f"s_lshl_b32 s{s_t0}, s{s_t0}, 20")
    a(f"s_add_u32 s{s_t0}, s{s_t0}, {WS_U}")
    a(f"s_lshl_b32 s{s_t2}, s{s_rb}, 9")
    a(f"s_add_u32 s{s_t0}, s{s_t0}, s{s_t2}")
    a(f"s_lshl_b32 s{s_t2}, s{s_ni}, 8")
    a(f"s_add_u32 s{s_t0}, s{s_t0}, s{s_t2}")
    for mt, nt in ORDER:
        a(f"s_xor_b32 s{s_t2}, s{s_tile}, {mt}")
        a(f"s_lshl_b32 s{s_t2}, s{s_t2}, 16")
        a(f"s_add_u32 s{s_t2}, s{s_t2}, s{s_t0}")
        acc = v_acc[mt][nt]
        for i in range(16):
            a(f"v_mul_f32 v{acc + i}, v{rr[nt]}, v{acc + i}")
        for i in range(8):
            a(f"v_cvt_pk_bf16_f32 v{acc + 2 * i}, v{acc + 2 * i}, v{acc + 2 * i + 1}")
        for g in range(4):
            for ip in range(2):
                koff = (g % 2) * 4 + (g // 2) * 64 + ip
                a(f"s_add_u32 s{s_t3}, s{s_t2}, {koff * 8192}")
                a(f"buffer_store_dword v{acc + 4 * g + 2 * ip}, v{t0}, {sr(SRD_WS, 4)}, s{s_t3} offen offset:{nt * 128}{WTH}")
    if fused:
        a.label(f"{name}_join")
        a("s_barrier")
        return locals()
    if PROF:
        pf.n -= 3
        pf.stamp()
        a("s_waitcnt vmcnt(0)")
        pf.stamp()
        pf.stamp(real=True)
        pf.dump(SRD_WS, 2, s_w, v_t[0], s_t0, 8)
    a.label(f"{name}_done")
    a("s_endpgm")
    return kernel_header(name) + a.text(), kernel_desc(name, V.hi, 102)


def gen_ftab():
    j = np.arange(512)
    c, s = exact_cos_sin(j, 512)
    cb, nb = bf16_bits(c), bf16_bits(-s + 0.0)
    t = ""
    for i in range(512):
        t += f".set tw_{i}, 0x{int(cb[i] | (nb[i] << 16)):08x}\n"
    t += """.macro twe idx
.long tw_\\idx
.endm
.altmacro
.p2align 8
ftab:
.set dd, 0
.rept 512
.long 0x3f003f00 | ((dd & 1) << 31)
.set kk, 1
.rept 255
twe %((dd*kk) & 511)
.set kk, kk+1
.endr
""" + (f".fill {(FRS - 1024) // 4}, 4, 0\n" if FRS > 1024 else "") + """.set dd, dd+1
.endr
.noaltmacro
"""
    return t
```

```python
from gen_common import *
from gen_k2 import fhex, gen_ctab

R = int(os.environ.get("K3_R", "7"))
NKB, NKZ = 28, 8
L_Z = 0
L_RING = 65536
L_F = L_RING + 4 * R * 2048
K23_LDS = L_F + 256
FZ = None


def ring_base(a, s_dst, s_wave, s_tmp):
    if FZ:
        a(f"s_lshl_b32 s{s_dst}, s{s_wave}, 14")
        a(f"s_lshr_b32 s{s_tmp}, s{s_wave}, 1")
        a(f"s_lshl_b32 s{s_tmp}, s{s_tmp}, 14")
        a(f"s_add_u32 s{s_dst}, s{s_dst}, s{s_tmp}")
    else:
        a(f"s_mul_i32 s{s_dst}, s{s_wave}, {R * 2048}")
    a(f"s_add_u32 s{s_dst}, s{s_dst}, {L_RING}")
WS_FLAG = 15 << 20
SPIN_MAX = 1 << 14
GENC = int(os.environ.get("GENC", "1"))
WDCOPY = int(os.environ.get("WDCOPY", "1"))
DPX = int(os.environ.get("DPX", "0"))
U_SLEEP = int(os.environ.get("U_SLEEP", "6"))
KSKEW = int(os.environ.get("KSKEW", "0"))
FFT_PRIO = int(os.environ.get("FFT_PRIO", "3"))
G_PRIO = int(os.environ.get("G_PRIO", "0"))
Z_PRIO = int(os.environ.get("Z_PRIO", "1"))
B_PRIO = int(os.environ.get("B_PRIO", "0"))


def lds_spin(a, name, v_addr, off, v_tmp, s_tmp):
    a.label(name)
    a(f"ds_read_b32 v{v_tmp}, v{v_addr} offset:{off}")
    a("s_waitcnt lgkmcnt(0)")
    a(f"v_readfirstlane_b32 s{s_tmp}, v{v_tmp}")
    a(f"s_cmp_eq_u32 s{s_tmp}, 0")
    a(f"s_cbranch_scc1 {name}")
    a.lg = []


def fft_part(a, V, S, name, s_w, SRD_WS, SRD_C, v_lane, pf):
    s_a, s_b, s_job, s_t, s_lb = [S.alloc() for _ in range(5)]
    v_n, v_h = V.alloc(), V.alloc()
    v_t = [V.alloc() for _ in range(6)]
    v_au, v_al, v_xw, v_xr, v_fw, v_fr, v_one = [V.alloc() for _ in range(7)]
    U = V.alloc(16, 4)
    Wf = V.alloc(16, 4)
    C32r, C32i = V.alloc(16, 4), V.alloc(16, 4)
    F64r, F64i = V.alloc(16, 4), V.alloc(16, 4)
    Cr, Ci = V.alloc(16, 4), V.alloc(16, 4)
    P = [V.alloc(16, 4), V.alloc(16, 4), U]
    tw1c, tw1s, tw2c, tw2s = [V.alloc(16, 4) for _ in range(4)]
    t0, t1, t2, t3 = v_t[:4]

    a(f"s_sub_u32 s{s_b}, s{s_w}, 4")
    a(f"s_lshl_b32 s{s_b}, s{s_b}, 4")
    a(f"s_add_u32 s{s_b}, s{s_b}, {L_F}")
    a(f"v_mov_b32 v{v_fw}, s{s_b}")
    if not FZ:
        a(f"v_mov_b32 v{t0}, 0")
        a(f"ds_write_b32 v{v_fw}, v{t0}")
        a(f"ds_write_b32 v{v_fw}, v{t0} offset:4")
        a(f"ds_write_b32 v{v_fw}, v{t0} offset:8")
        a(f"ds_write_b32 v{v_fw}, v{t0} offset:12")
    a(f"v_xor_b32 v{v_fr}, 16, v{v_fw}")
    a(f"v_mov_b32 v{v_one}, 1")
    a(f"s_and_b32 s{s_t}, s{s_w}, 1")
    a(f"s_bfe_u32 s{s_lb}, s{s_w}, 0x10001")
    a(f"s_lshl_b32 s{s_job}, s{s_lb}, 8")
    a(f"s_add_u32 s{s_job}, s{s_job}, s2")
    a(f"v_and_b32 v{v_n}, 31, v{v_lane}")
    a(f"v_lshrrev_b32 v{v_h}, 5, v{v_lane}")
    a(f"v_lshlrev_b32 v{v_al}, 4, v{v_lane}")
    a(f"v_lshlrev_b32 v{v_au}, 7, v{v_n}")
    a(f"v_lshl_add_u32 v{v_au}, v{v_h}, 6, v{v_au}")
    a(f"s_and_b32 s{s_a}, s{s_job}, 255")
    a(f"s_lshl_b32 s{s_a}, s{s_a}, 13")
    a(f"s_lshl_b32 s{s_b}, s{s_t}, 12")
    a(f"s_add_u32 s{s_a}, s{s_a}, s{s_b}")
    a(f"s_add_u32 s{s_a}, s{s_a}, {WS_U}")
    if not FZ:
        a("s_waitcnt lgkmcnt(0)")
        a("s_barrier")
    return dict(locals())


def fft_main(L):
    a, name, pf = L["a"], L["name"], L["pf"]
    (s_a, s_b, s_job, s_t, s_lb, s_w, SRD_WS, SRD_C, v_lane, v_n, v_h, v_t, v_au, v_al, v_xw, v_xr, v_fw, v_fr, v_one,
     U, Wf, C32r, C32i, F64r, F64i, Cr, Ci, P, tw1c, tw1s, tw2c, tw2s) = [L[k] for k in (
        "s_a s_b s_job s_t s_lb s_w SRD_WS SRD_C v_lane v_n v_h v_t v_au v_al v_xw v_xr v_fw v_fr v_one "
        "U Wf C32r C32i F64r F64i Cr Ci P tw1c tw1s tw2c tw2s").split()]
    t0, t1, t2, t3 = v_t[:4]
    def u_loads():
        a(f"s_and_b32 s{s_a}, s{s_job}, 255")
        a(f"s_lshl_b32 s{s_a}, s{s_a}, 13")
        a(f"s_lshl_b32 s{s_b}, s{s_t}, 12")
        a(f"s_add_u32 s{s_a}, s{s_a}, s{s_b}")
        a(f"s_add_u32 s{s_a}, s{s_a}, {WS_U}")
        for j in range(4):
            a.vmem(f"buffer_load_dwordx4 {vr(U + 4 * j, 4)}, v{v_au}, {sr(SRD_WS, 4)}, s{s_a} offen offset:{16 * j}{' sc1' if FZ else ''}", "u")
    if not FZ:
        u_loads()
    if not GENC:
        for j in range(4):
            a.vmem(f"buffer_load_dwordx4 {vr(C32r + 4 * j, 4)}, v{v_al}, {sr(SRD_C, 4)}, 0 offen offset:{1024 * j}", "c32")
        a(f"s_movk_i32 s{s_a}, 4096")
        for j in range(4):
            a.vmem(f"buffer_load_dwordx4 {vr(C32i + 4 * j, 4)}, v{v_al}, {sr(SRD_C, 4)}, s{s_a} offen offset:{1024 * j}", "c32")
        a(f"s_lshl_b32 s{s_a}, s{s_t}, 13")
        a(f"s_add_u32 s{s_a}, s{s_a}, 8192")
        a(f"s_add_u32 s{s_b}, s{s_a}, 4096")
        for j in range(4):
            a.vmem(f"buffer_load_dwordx4 {vr(F64r + 4 * j, 4)}, v{v_al}, {sr(SRD_C, 4)}, s{s_a} offen offset:{1024 * j}", "c64")
            a.vmem(f"buffer_load_dwordx4 {vr(F64i + 4 * j, 4)}, v{v_al}, {sr(SRD_C, 4)}, s{s_b} offen offset:{1024 * j}", "c64")

    def w_loads():
        a(f"s_lshl_b32 s{s_a}, s{s_job}, 13")
        a(f"s_lshl_b32 s{s_b}, s{s_t}, 12")
        a(f"s_add_u32 s{s_a}, s{s_a}, s{s_b}")
        a(f"s_add_u32 s{s_a}, s{s_a}, {WS_W}")
        for g in range(4):
            a.vmem(f"buffer_load_dwordx4 {vr(Wf + 4 * g, 4)}, v{v_al}, {sr(SRD_WS, 4)}, s{s_a} offen offset:{1024 * g}{' sc1' if FZ else ''}", "w")
    w_loads()
    if FZ:
        FZ["signal"](a, v_t, s_a)
    a(f"s_sub_u32 s{s_a}, s{s_w}, 4")
    a(f"s_lshl_b32 s{s_a}, s{s_a}, 14")
    a(f"v_add_u32 v{v_xr}, s{s_a}, v{v_al}")
    a(f"v_xor_b32 v{v_xw}, 16384, v{v_xr}")
    a(f"v_bfe_u32 v{t0}, v{v_n}, 2, 1")
    a(f"v_lshlrev_b32 v{t0}, 4, v{t0}")
    a(f"v_lshrrev_b32 v{t1}, 3, v{v_n}")
    a(f"v_lshl_add_u32 v{t0}, v{t1}, 2, v{t0}")
    a(f"v_and_b32 v{t1}, 3, v{v_n}")
    a(f"v_add_u32 v{t0}, v{t0}, v{t1}")
    a(f"v_cvt_f32_u32 v{t0}, v{t0}")
    a(f"v_mul_f32 v{t0}, {fhex(1 / 2048)}, v{t0}")
    if GENC:
        st, bs = Cr, Cr + 1
        a(f"v_mul_f32 v{st}, 64.0, v{t0}" .replace("64.0", fhex(64.0)))
        a(f"v_lshlrev_b32 v{bs}, 4, v{v_h}")
        a(f"v_cvt_f32_u32 v{bs}, v{bs}")
        a(f"v_mul_f32 v{bs}, v{bs}, v{st}")
        pend = []
        for r in range(16):
            an, cc, ss = Ci + 3 * (r % 4), Ci + 3 * (r % 4) + 1, Ci + 3 * (r % 4) + 2
            a(f"v_fmamk_f32 v{an}, v{st}, {fhex(r)}, v{bs}")
            for l in pend:
                a(l)
            a(f"v_cos_f32 v{cc}, v{an}")
            a(f"v_sin_f32 v{ss}, v{an}")
            pend = [f"v_cvt_pk_bf16_f32 v{C32r + r}, v{cc}, v{ss}", f"v_cvt_pk_bf16_f32 v{C32i + r}, -v{ss}, v{cc}"]
        a("s_nop 0")
        for l in pend:
            a(l)
    a(f"s_lshl_b32 s{s_a}, s{s_t}, 5")
    a(f"v_lshl_add_u32 v{t1}, v{v_h}, 2, s{s_a}")
    a(f"v_cvt_f32_u32 v{t1}, v{t1}")
    a(f"v_mul_f32 v{t1}, v{t1}, v{t0}")
    for r in range(16):
        k = 8 * (r // 4) + r % 4
        tt = v_t[2 + r % 4]
        a(f"v_fmamk_f32 v{tt}, v{t0}, {fhex(k)}, v{t1}")
        a(f"v_cos_f32 v{tw1c + r}, v{tt}")
        a(f"v_sin_f32 v{tw1s + r}, v{tt}")
    if GENC:
        st, bs = Cr, Cr + 1
        a(f"v_add_u32 v{st}, s{s_a}, v{v_n}")
        a(f"v_cvt_f32_u32 v{st}, v{st}")
        a(f"v_mul_f32 v{st}, {fhex(1 / 64)}, v{st}")
        a(f"v_lshl_add_u32 v{bs}, v{v_h}, 2, s{s_a}")
        a(f"v_cvt_f32_u32 v{bs}, v{bs}")
        a(f"v_mul_f32 v{bs}, v{bs}, v{st}")
        pend = []
        for d in range(16):
            q = Ci + 6 * (d % 2)
            for x in range(2):
                e = 2 * (d % 4) + x
                K = 16 * (d // 4) + 8 * (e // 4) + e % 4
                a(f"v_fmamk_f32 v{q + 3 * x}, v{st}, {fhex(K)}, v{bs}")
                if x == 0:
                    for l in pend:
                        a(l)
                a(f"v_cos_f32 v{q + 3 * x + 1}, v{q + 3 * x}")
                a(f"v_sin_f32 v{q + 3 * x + 2}, v{q + 3 * x}")
            pend = [f"v_cvt_pk_bf16_f32 v{F64r + d}, v{q + 1}, v{q + 4}", f"v_cvt_pk_bf16_f32 v{F64i + d}, -v{q + 2}, -v{q + 5}"]
        a("s_nop 0")
        for l in pend:
            a(l)

    def tw2_gen():
        a(f"s_lshl_b32 s{s_b}, s{s_t}, 5")
        a(f"v_add_u32 v{t0}, s{s_b}, v{v_n}")
        a(f"v_cvt_f32_u32 v{t0}, v{t0}")
        a(f"v_mul_f32 v{t0}, {fhex(1 / 2048)}, v{t0}")
        a(f"v_lshlrev_b32 v{t1}, 4, v{v_h}")
        a(f"v_cvt_f32_u32 v{t1}, v{t1}")
        a(f"v_mul_f32 v{t1}, v{t1}, v{t0}")
        return [f for r in range(16) for f in (
            f"v_fmamk_f32 v{v_t[2 + r % 4]}, v{t0}, {fhex(r)}, v{t1}",
            f"v_cos_f32 v{tw2c + r}, v{v_t[2 + r % 4]}",
            f"v_sin_f32 v{tw2s + r}, v{v_t[2 + r % 4]}")]
    if not GENC:
        for l in tw2_gen():
            a(l)
    if FZ:
        a(f"s_mov_b32 s{s_lb}, {SPIN_MAX}")
        a.label(f"{name}_ul")
        u_loads()
        a("s_waitcnt vmcnt(0)")
        a.vm = []
        a(f"v_max_u32 v{t0}, v{U}, v{U + 1}")
        for i in range(2, 16, 2):
            a(f"v_max3_u32 v{t0}, v{t0}, v{U + i}, v{U + i + 1}")
        a(f"v_cmp_eq_u32 vcc, -1, v{t0}")
        a(f"s_sub_u32 s{s_lb}, s{s_lb}, 1")
        a(f"s_cbranch_scc1 {name}_ul_ok")
        a("s_nop 2")
        a(f"s_cbranch_vccz {name}_ul_ok")
        a(f"s_sleep {U_SLEEP}")
        a(f"s_branch {name}_ul")
        a.label(f"{name}_ul_ok")
    pf.stamp()
    a.wait(vm="u")
    a(f"s_and_b32 s{s_a}, s{s_job}, 255")
    a(f"s_cmp_lg_u32 s{s_a}, 0")
    a(f"s_cbranch_scc1 {name}_nospec")
    a(f"s_lshr_b32 s{s_a}, s{s_job}, 4")
    for i in range(16):
        a(f"v_lshrrev_b32 v{U + i}, s{s_a}, v{U + i}")
        a(f"v_and_b32 v{U + i}, 0xffff, v{U + i}")
    a.label(f"{name}_nospec")
    a.wait(vm="c32")
    pf.stamp()

    def mf(acc, A, B, first):
        a(f"v_mfma_f32_32x32x16_bf16 {vr(acc, 16)}, {vr(A, 4)}, {vr(B, 4)}, {'0' if first else vr(acc, 16)}")

    for j in range(4):
        mf(Cr, U + 4 * j, C32r + 4 * j, j == 0)
        mf(Ci, U + 4 * j, C32i + 4 * j, j == 0)
    a("s_nop 11")

    def cmul(cs, sn, sign):
        ng1, ng2 = ("-", "") if sign > 0 else ("", "-")
        for r in range(16):
            tt = v_t[r % 4]
            a(f"v_mul_f32 v{tt}, v{Ci + r}, v{sn + r}")
            a(f"v_mul_f32 v{Ci + r}, v{Ci + r}, v{cs + r}")
            a(f"v_fma_f32 v{Ci + r}, {ng2}v{Cr + r}, v{sn + r}, v{Ci + r}")
            a(f"v_fma_f32 v{Cr + r}, v{Cr + r}, v{cs + r}, {ng1}v{tt}")

    def send(x, negq):
        off = x * 8192
        for p in range(8):
            a(f"v_cvt_pk_bf16_f32 v{P[0] + p}, v{Cr + 2 * p}, v{Cr + 2 * p + 1}")
            a(f"v_cvt_pk_bf16_f32 v{P[1] + p}, v{Ci + 2 * p}, v{Ci + 2 * p + 1}")
        for q in range(2):
            for hh in range(2):
                a.lds(f"ds_write_b128 v{v_xw}, {vr(P[q] + 4 * hh, 4)} offset:{off + (2 * q + hh) * 1024}", "xw")
        a.lds(f"ds_write_b32 v{v_fw}, v{v_one} offset:{4 * x}", "xw")
        for p in range(8):
            a(f"v_xor_b32 v{P[2] + p}, 0x80008000, v{P[negq] + p}")

    def recv(x, negq):
        off = x * 8192
        lds_spin(a, f"{name}_sp{x}", v_fr, 4 * x, t0, s_a)
        for q in (negq, 1 - negq):
            for hh in range(2):
                a.lds(f"ds_read_b128 {vr(P[q] + 8 + 4 * hh, 4)}, v{v_xr} offset:{off + (2 * q + hh) * 1024}", f"xr{q}")

    def recv_fin(negq):
        a.wait(lg=f"xr{negq}")
        for p in range(8):
            a(f"v_xor_b32 v{P[2] + 8 + p}, 0x80008000, v{P[negq] + 8 + p}")
        a.wait(lg="all")

    cmul(tw1c, tw1s, -1)
    pf.stamp()
    send(0, 1)
    a.wait(vm="c64")

    def step3(j):
        mf(Cr, F64r + 4 * j, P[0] + 4 * j, j == 0)
        mf(Ci, F64i + 4 * j, P[0] + 4 * j, j == 0)
        mf(Ci, F64r + 4 * j, P[1] + 4 * j, False)
        mf(Cr, F64i + 4 * j, P[2] + 4 * j, False)
    step3(0)
    recv(0, 1)
    step3(1)
    recv_fin(1)
    if GENC:
        tl = tw2_gen()
        mm = []
        for j in (2, 3):
            mm += [(Cr, F64r + 4 * j, P[0] + 4 * j), (Ci, F64i + 4 * j, P[0] + 4 * j), (Ci, F64r + 4 * j, P[1] + 4 * j), (Cr, F64i + 4 * j, P[2] + 4 * j)]
        for i, (x, y, z) in enumerate(mm):
            mf(x, y, z, False)
            for l in tl[6 * i:6 * i + 6]:
                a(l)
    else:
        step3(2)
        step3(3)
    a.wait(vm="w")
    pf.stamp()
    for r in range(16):
        a(f"v_lshlrev_b32 v{tw1c + r}, 16, v{Wf + r}")
        a(f"v_and_b32 v{tw1s + r}, 0xffff0000, v{Wf + r}")
    cmul(tw1c, tw1s, +1)
    pf.stamp()
    send(1, 0)
    a("s_nop 0")

    def step4(j):
        mf(Cr, P[0] + 4 * j, F64r + 4 * j, j == 0)
        mf(Ci, P[1] + 4 * j, F64r + 4 * j, j == 0)
        mf(Cr, P[1] + 4 * j, F64i + 4 * j, False)
        mf(Ci, P[2] + 4 * j, F64i + 4 * j, False)
    step4(0)
    recv(1, 0)
    step4(1)
    recv_fin(0)
    step4(2)
    step4(3)
    a("s_nop 11")
    pf.stamp()
    cmul(tw2c, tw2s, +1)
    for r in range(16):
        a(f"v_cvt_pk_bf16_f32 v{P[0] + r}, v{Cr + r}, -v{Ci + r}")
    a("s_nop 1")
    for j in range(4):
        mf(Cr, C32r + 4 * j, P[0] + 4 * j, j == 0)
    for j in range(4):
        mf(Ci, C32i + 4 * j, P[0] + 4 * j, j == 0)
    a(f"v_lshlrev_b32 v{t0}, 6, v{v_n}")
    a(f"v_lshl_add_u32 v{t0}, v{v_h}, 5, v{t0}")
    a(f"s_and_b32 s{s_a}, s{s_job}, 255")
    a(f"s_lshl_b32 s{s_a}, s{s_a}, 8")
    a(f"s_lshr_b32 s{s_b}, s{s_job}, 8")
    a(f"s_lshl_b32 s{s_b}, s{s_b}, 7")
    a(f"s_add_u32 s{s_a}, s{s_a}, s{s_b}")
    a(f"s_lshl_b32 s{s_b}, s{s_t}, 20")
    a(f"s_add_u32 s{s_a}, s{s_a}, s{s_b}")
    a(f"s_add_u32 s{s_a}, s{s_a}, {WS_Z}")
    a(f"s_add_u32 s{s_b}, s{s_a}, {8 * 65536}")
    a(f"v_lshrrev_b32 v{t2}, 3, v{v_lane}")
    a(f"v_and_b32 v{t3}, 7, v{v_lane}")
    a(f"v_lshlrev_b32 v{t2}, 16, v{t2}")
    a(f"v_lshl_add_u32 v{t2}, v{t3}, 4, v{t2}")
    a(f"v_sub_u32 v{t1}, v{v_xr}, v{v_al}")
    a(f"v_add_u32 v{t0}, v{t0}, v{t1}")
    for p in range(8):
        a(f"v_cvt_pk_bf16_f32 v{P[1] + p}, v{Cr + 2 * p}, v{Cr + 2 * p + 1}")
    for hh in range(2):
        a.lds(f"ds_write_b128 v{t0}, {vr(P[1] + 4 * hh, 4)} offset:{16 * hh}", "zb")
    for hh in range(2):
        a.lds(f"ds_read_b128 {vr(P[1] + 8 + 4 * hh, 4)}, v{v_xr} offset:{1024 * hh}", "zr")
    for p in range(8):
        a(f"v_cvt_pk_bf16_f32 v{P[2] + p}, -v{Ci + 2 * p}, -v{Ci + 2 * p + 1}")
    for hh in range(2):
        a.lds(f"ds_write_b128 v{t0}, {vr(P[2] + 4 * hh, 4)} offset:{2048 + 16 * hh}", "zb")
    for hh in range(2):
        a.lds(f"ds_read_b128 {vr(P[2] + 8 + 4 * hh, 4)}, v{v_xr} offset:{2048 + 1024 * hh}", "zi")
    a.wait(lg="zr")
    for hh in range(2):
        a.vmem(f"buffer_store_dwordx4 {vr(P[1] + 8 + 4 * hh, 4)}, v{t2}, {sr(SRD_WS, 4)}, s{(s_a, s_b)[hh]} offen sc1", "st")
    a(f"s_and_b32 s{s_lb}, s{s_job}, 255")
    a(f"s_cmp_eq_u32 s{s_lb}, 0")
    a.wait(lg="all")
    a(f"s_cbranch_scc1 {name}_noim")
    for hh in range(2):
        a.vmem(f"buffer_store_dwordx4 {vr(P[2] + 8 + 4 * hh, 4)}, v{t2}, {sr(SRD_WS, 4)}, s{(s_a, s_b)[hh]} offen offset:128 sc1", "st")
    a.label(f"{name}_noim")
    pf.stamp()
    pf.stamp()


def tile_decode(a, s_sp, s_dp, s_t2):
    a(f"s_and_b32 s{s_sp}, s2, 7")
    a(f"s_lshl_b32 s{s_sp}, s{s_sp}, 2")
    a(f"s_bfe_u32 s{s_t2}, s2, 0x20003")
    a(f"s_add_u32 s{s_sp}, s{s_sp}, s{s_t2}")
    a(f"s_lshr_b32 s{s_dp}, s2, 5")
    if DPX:
        a(f"s_xor_b32 s{s_dp}, s{s_dp}, {DPX}")


def out_addr(a, v_xo, v_n, v_h, s_sp, s_dp, s_sw, s_dw, s_t0, s_t1):
    a(f"v_lshlrev_b32 v{v_xo}, 16, v{v_n}")
    a(f"v_lshl_add_u32 v{v_xo}, v{v_h}, 5, v{v_xo}")
    a(f"s_lshl_b32 s{s_t0}, s{s_sp}, 11")
    a(f"s_lshl_b32 s{s_t1}, s{s_sw}, 10")
    a(f"s_add_u32 s{s_t0}, s{s_t0}, s{s_t1}")
    a(f"s_lshl_b32 s{s_t1}, s{s_dp}, 7")
    a(f"s_add_u32 s{s_t0}, s{s_t0}, s{s_t1}")
    a(f"s_lshl_b32 s{s_t1}, s{s_dw}, 6")
    a(f"s_add_u32 s{s_t0}, s{s_t0}, s{s_t1}")
    a(f"v_add_u32 v{v_xo}, s{s_t0}, v{v_xo}")


def z_part(a, V, S, name, s_w, v_lane, SRD_X, SRD_WS, pf):
    s_sp, s_dp, s_sw, s_dw, s_z = [S.alloc() for _ in range(5)]
    s_t0, s_t1, s_t2, s_oz, s_mz, s_spin = [S.alloc() for _ in range(6)]
    s_msk = S.alloc(2, 2)
    v_n, v_h = V.alloc(), V.alloc()
    v_t = [V.alloc() for _ in range(8)]
    v_dl, v_dz, v_xo, v_nyq, v_fa, v_one = [V.alloc() for _ in range(6)]
    v_rz = [V.alloc(), V.alloc()]
    v_step, v_base = [V.alloc(), V.alloc()], [V.alloc(), V.alloc()]
    v_x = V.alloc(8, 4)
    v_fl = V.alloc(4, 4)
    acc = [[V.alloc(16, 4) for _ in range(2)] for _ in range(2)]
    POOL = V.alloc(64, 4)
    ZF = lambda ps, kz: POOL + 32 * (1 - ps) + 4 * kz
    G = V.alloc(64, 4)
    t0, t1, t2, t3, t4 = v_t[:5]
    a(f"s_sub_u32 s{s_z}, s{s_w}, 4")
    tile_decode(a, s_sp, s_dp, s_t2)
    a(f"s_and_b32 s{s_sw}, s{s_z}, 1")
    a(f"s_lshr_b32 s{s_dw}, s{s_z}, 1")
    a(f"v_and_b32 v{v_n}, 31, v{v_lane}")
    a(f"v_lshrrev_b32 v{v_h}, 5, v{v_lane}")
    a(f"v_lshlrev_b32 v{v_dl}, 4, v{v_lane}")
    out_addr(a, v_xo, v_n, v_h, s_sp, s_dp, s_sw, s_dw, s_t0, s_t1)
    a.vmem(f"buffer_load_dwordx4 {vr(v_x, 4)}, v{v_xo}, {sr(SRD_X, 4)}, 0 offen", "x")
    a.vmem(f"buffer_load_dwordx4 {vr(v_x + 4, 4)}, v{v_xo}, {sr(SRD_X, 4)}, 0 offen offset:16", "x")
    a(f"s_setprio {G_PRIO}")
    a(f"v_lshrrev_b32 v{t0}, 3, v{v_lane}")
    a(f"v_bfe_u32 v{t1}, v{v_lane}, 4, 1")
    a(f"v_lshlrev_b32 v{t1}, 2, v{t1}")
    a(f"v_and_b32 v{t2}, 7, v{v_lane}")
    a(f"v_xor_b32 v{t1}, v{t1}, v{t2}")
    a(f"v_lshlrev_b32 v{t1}, 4, v{t1}")
    a(f"v_lshl_add_u32 v{v_dz}, v{t0}, 7, v{t1}")
    a(f"s_lshl_b32 s{s_mz}, s{s_z}, 14")
    a(f"s_add_u32 s{s_mz}, s{s_mz}, {L_Z}")
    a(f"s_lshl_b32 s{s_oz}, s{s_z}, 14")
    a(f"s_lshl_b32 s{s_t1}, s{s_sp}, 16")
    a(f"s_add_u32 s{s_oz}, s{s_oz}, s{s_t1}")
    a(f"s_add_u32 s{s_oz}, s{s_oz}, {WS_Z}")
    a(f"v_bfe_u32 v{t0}, v{v_lane}, 2, 2")
    a(f"v_and_b32 v{t1}, 3, v{v_lane}")
    a(f"v_bfe_u32 v{t2}, v{v_lane}, 4, 1")
    a(f"v_lshl_add_u32 v{t3}, v{v_h}, 2, v{t0}")
    a(f"v_lshlrev_b32 v{t3}, 7, v{t3}")
    a(f"v_lshrrev_b32 v{t0}, 1, v{t0}")
    a(f"v_xor_b32 v{t4}, s{s_sw}, v{t0}")
    a(f"v_lshl_add_u32 v{t4}, v{t4}, 6, v{t3}")
    a(f"v_add_u32 v{t4}, s{s_mz}, v{t4}")
    a(f"v_lshl_add_u32 v{t4}, v{t2}, 5, v{t4}")
    a(f"v_lshl_add_u32 v{v_rz[0]}, v{t1}, 3, v{t4}")
    a(f"v_xor_b32 v{v_rz[1]}, 64, v{v_rz[0]}")
    a(f"v_bfe_u32 v{t0}, v{v_n}, 2, 1")
    a(f"v_lshlrev_b32 v{t0}, 4, v{t0}")
    a(f"v_lshrrev_b32 v{t1}, 3, v{v_n}")
    a(f"v_lshl_add_u32 v{t0}, v{t1}, 2, v{t0}")
    a(f"v_and_b32 v{t1}, 3, v{v_n}")
    a(f"v_add_u32 v{t0}, v{t0}, v{t1}")
    a(f"s_lshl_b32 s{s_t1}, s{s_dp}, 6")
    a(f"s_lshl_b32 s{s_t2}, s{s_dw}, 5")
    a(f"s_add_u32 s{s_t1}, s{s_t1}, s{s_t2}")
    a(f"v_add_u32 v{t0}, s{s_t1}, v{t0}")
    a(f"v_lshlrev_b32 v{v_nyq}, 31, v{t0}")
    a(f"v_or_b32 v{v_nyq}, 0x3f803f80, v{v_nyq}")
    a(f"v_xor_b32 v{t2}, 32, v{t0}")
    a(f"v_cvt_f32_u32 v{v_step[0]}, v{t0}")
    a(f"v_cvt_f32_u32 v{v_step[1]}, v{t2}")
    a(f"v_mul_f32 v{v_step[0]}, {fhex(1 / 512)}, v{v_step[0]}")
    a(f"v_mul_f32 v{v_step[1]}, {fhex(1 / 512)}, v{v_step[1]}")
    a(f"s_lshl_b32 s{s_t1}, s{s_z}, 6")
    a(f"v_lshl_add_u32 v{t1}, v{v_h}, 1, s{s_t1}")
    a(f"v_cvt_f32_u32 v{t2}, v{t1}")
    for dt in range(2):
        a(f"v_mul_f32 v{v_base[dt]}, v{t2}, v{v_step[dt]}")
        a(f"v_fract_f32 v{v_base[dt]}, v{v_base[dt]}")
    a(f"v_cmp_eq_u32 {sr(s_msk, 2)}, 0, v{t1}")
    items = [(kz, dt, dd) for kz in range(NKZ) for dt in range(2) for dd in range(4)]
    prev = None
    for idx, (kz, dt, dd) in enumerate(items):
        K = 8 * kz + 4 * (dd // 2) + dd % 2
        ta, tb, tc = v_t[(3 * idx) % 6], v_t[(3 * idx + 1) % 6], v_t[(3 * idx + 2) % 6]
        a(f"v_fmamk_f32 v{ta}, v{v_step[dt]}, {fhex(K)}, v{v_base[dt]}")
        if prev:
            a(prev)
        a(f"v_cos_f32 v{tb}, v{ta}")
        a(f"v_sin_f32 v{tc}, v{ta}")
        prev = f"v_cvt_pk_bf16_f32 v{G + idx}, v{tb}, -v{tc}"
    a(f"v_cndmask_b32 v{G}, v{G}, v{v_nyq}, {sr(s_msk, 2)}")
    a(prev)
    a(f"v_cndmask_b32 v{G + 4}, v{G + 4}, v{v_nyq}, {sr(s_msk, 2)}")
    a.wait(vm="x")
    for i in range(8):
        a(f"v_lshlrev_b32 v{acc[0][0] + 2 * i}, 16, v{v_x + i}")
        a(f"v_and_b32 v{acc[0][0] + 2 * i + 1}, 0xffff0000, v{v_x + i}")
    a(f"v_add_u32 v{t0}, s{s_mz}, v{v_dl}")
    for q in (1, 2, 3):
        a(f"s_xor_b32 s{s_t0}, s{s_z}, {q}")
        a(f"s_lshl_b32 s{s_t0}, s{s_t0}, 14")
        a(f"s_add_u32 s{s_t0}, s{s_t0}, {L_Z + (q - 1) * 4096}")
        a(f"v_add_u32 v{v_t[q]}, s{s_t0}, v{v_dl}")
    a(f"v_and_b32 v{v_fa}, 3, v{v_lane}")
    a(f"v_lshlrev_b32 v{v_fa}, 4, v{v_fa}")
    a(f"v_add_u32 v{v_fa}, {L_F + 8}, v{v_fa}")
    a(f"s_lshl_b32 s{s_t1}, s{s_z}, 4")
    a(f"s_add_u32 s{s_t1}, s{s_t1}, {L_F + 8}")
    a(f"v_mov_b32 v{v_t[4]}, s{s_t1}")
    a(f"v_mov_b32 v{v_one}, 1")
    pf.stamp()
    a(f"v_mov_b32 v{v_t[6]}, {L_F + 12}")
    a(f"s_cmp_lg_u32 s{s_z}, 0")
    a(f"s_cbranch_scc1 {name}_lw")
    a(f"ds_write_b32 v{v_t[6]}, v{v_one}")
    a.label(f"{name}_lw")
    a(f"ds_read_b32 v{v_t[5]}, v{v_t[6]}")
    a("s_waitcnt lgkmcnt(0)")
    a(f"v_readfirstlane_b32 s{s_t0}, v{v_t[5]}")
    a(f"s_cmp_lg_u32 s{s_t0}, 0")
    a(f"s_cbranch_scc1 {name}_lwok")
    a("s_sleep 2")
    a(f"s_branch {name}_lw")
    a.label(f"{name}_lwok")
    a(f"s_mov_b32 s{s_spin}, {SPIN_MAX}")
    a(f"s_mov_b32 s{s_t1}, 0xffff")
    a(f"s_setprio {Z_PRIO}")
    pf.stamp()

    def zdma(q, reg=True):
        a(f"s_add_u32 m0, s{s_mz}, {1024 * q}")
        a(f"s_add_u32 s{s_t2}, s{s_oz}, {1024 * q}")
        txt = f"buffer_load_dwordx4 v{v_dz}, {sr(SRD_WS, 4)}, s{s_t2} offen sc1 lds"
        if reg:
            a.vmem(txt, f"z{q // 2}")
        else:
            a(txt)
    for q in range(16):
        zdma(q)

    def zread(ps, kz):
        for e in range(2):
            a.lds(f"ds_read_b64_tr_b16 {vr(ZF(ps, kz) + 2 * e, 2)}, v{v_rz[ps]} offset:{kz * 2048 + e * 1024}", f"z{ps}_{kz}")

    def zm(pd, ps, kz):
        A = vr(acc[pd][ps], 16)
        C = "0" if (kz == 0 and (pd or ps)) else A
        a(f"v_mfma_f32_32x32x16_bf16 {A}, {vr(G + 8 * kz + 4 * pd, 4)}, {vr(ZF(ps, kz), 4)}, {C}")

    def qwrite(pd, ps, g):
        a.lds(f"ds_write_b128 v{t0}, {vr(acc[pd][ps] + 4 * g, 4)} offset:{(2 * pd + ps - 1) * 4096 + g * 1024}", "qw")

    def zcheck(kz):
        c0, c1 = v_t[5], v_t[6]
        a.label(f"{name}_zc{kz}")
        a(f"v_pk_max_u16 v{c0}, v{ZF(1, kz)}, v{ZF(1, kz) + 1}")
        a(f"v_pk_max_u16 v{c1}, v{ZF(1, kz) + 2}, v{ZF(1, kz) + 3}")
        for i in range(4):
            a(f"v_pk_max_u16 v{(c0, c1)[i % 2]}, v{(c0, c1)[i % 2]}, v{ZF(0, kz) + i}")
        a(f"v_pk_max_u16 v{c0}, v{c0}, v{c1}")
        a(f"v_lshrrev_b32 v{c1}, 16, v{c0}")
        a(f"v_max_u16 v{c0}, v{c0}, v{c1}")
        a(f"v_and_b32 v{c0}, 0xffff, v{c0}")
        a(f"v_cmp_eq_u32 vcc, s{s_t1}, v{c0}")
        a(f"s_cmp_eq_u32 s{s_spin}, 0")
        a(f"s_cbranch_scc1 {name}_zo{kz}")
        a("s_nop 2")
        a(f"s_cbranch_vccz {name}_zo{kz}")
        a(f"s_sub_u32 s{s_spin}, s{s_spin}, 1")
        a(f"s_sleep {POLL_SLEEP}")
        zdma(2 * kz, False)
        zdma(2 * kz + 1, False)
        a("s_waitcnt vmcnt(0)")
        for ps in (1, 0):
            for e in range(2):
                a(f"ds_read_b64_tr_b16 {vr(ZF(ps, kz) + 2 * e, 2)}, v{v_rz[ps]} offset:{kz * 2048 + e * 1024}")
        a("s_waitcnt lgkmcnt(0)")
        a(f"s_branch {name}_zc{kz}")
        a.label(f"{name}_zo{kz}")

    a.wait(vm="z0")
    zread(1, 0)
    zread(0, 0)
    for kz in range(8):
        if kz + 1 < 8:
            a.wait(vm=f"z{kz + 1}")
            zread(1, kz + 1)
            zread(0, kz + 1)
        a.wait(lg=f"z0_{kz}")
        zcheck(kz)
        zm(1, 1, kz)
        zm(0, 1, kz)
        zm(1, 0, kz)
    pf.stamp()
    zm(0, 0, 0)
    zm(0, 0, 1)
    seq = [(1, 1), (0, 1), (1, 0)]
    for n, (pd, ps) in enumerate(seq):
        for g in range(4):
            qwrite(pd, ps, g)
        zm(0, 0, 2 + n)
    a.lds(f"ds_write_b32 v{v_t[4]}, v{v_one}", "qw")
    zm(0, 0, 5)
    zm(0, 0, 6)
    zm(0, 0, 7)
    a.label(f"{name}_zsp")
    a(f"ds_read_b32 v{v_t[5]}, v{v_fa}")
    a("s_waitcnt lgkmcnt(0)")
    a.lg = []
    a(f"v_cmp_eq_u32 vcc, 0, v{v_t[5]}")
    a("s_nop 3")
    a(f"s_cbranch_vccnz {name}_zsp")
    RB = [acc[0][1], acc[1][0], acc[1][1]]
    for q in (1, 2, 3):
        for g in range(4):
            a.lds(f"ds_read_b128 {vr(RB[q - 1] + 4 * g, 4)}, v{v_t[q]} offset:{g * 1024}", f"q{q}")
    a.wait(lg="q1")
    for i in range(16):
        a(f"v_add_f32 v{acc[0][0] + i}, v{acc[0][0] + i}, v{RB[0] + i}")
    a.wait(lg="q3")
    for i in range(16):
        a(f"v_add_f32 v{RB[1] + i}, v{RB[1] + i}, v{RB[2] + i}")
    for g in range(4):
        for i in range(4 * g, 4 * g + 4):
            a(f"v_add_f32 v{acc[0][0] + i}, v{acc[0][0] + i}, v{RB[1] + i}")
        a.lds(f"ds_write_b128 v{t0}, {vr(acc[0][0] + 4 * g, 4)} offset:{12288 + g * 1024}", "o")
    a.wait(lg="all")
    if PROF:
        pf.stamp()
        pf.stamp(real=True)
        pf.dump(SRD_WS, 2, s_z, v_t[0], s_t0, 4)
    a("s_endpgm")


def gemm_part(a, V, S, name, s_w, v_lane, SRD_WD, SRD_WS, SRD_OUT, build_srds, pf, NKB=28, K0=0):
    s_sp, s_dp, s_sw, s_dw = [S.alloc() for _ in range(4)]
    s_t0, s_t1, s_t2 = [S.alloc() for _ in range(3)]
    s_oh0, s_oh1, s_ow, s_ow2, s_m = [S.alloc() for _ in range(5)]
    v_n, v_h = V.alloc(), V.alloc()
    v_t = [V.alloc() for _ in range(8)]
    v_dl, v_dw = V.alloc(), V.alloc()
    v_rw = [V.alloc(), V.alloc()]
    v_xo = V.alloc()
    v_x = V.alloc(8, 4)
    acc = [[V.alloc(16, 4) for _ in range(2)] for _ in range(2)]
    HP = V.alloc(max(8 * R, 64), 4)
    HR = [HP + 8 * i for i in range(R)]
    WF = [V.alloc(8, 4), V.alloc(8, 4)]
    RB = [HP + 16 * i for i in range(4)]
    t0, t1, t2, t3, t4 = v_t[:5]

    a(f"s_setprio {B_PRIO}")
    tile_decode(a, s_sp, s_dp, s_t2)
    a(f"s_and_b32 s{s_sw}, s{s_w}, 1")
    a(f"s_lshr_b32 s{s_dw}, s{s_w}, 1")
    a(f"v_lshlrev_b32 v{v_dl}, 4, v{v_lane}")
    a(f"v_lshrrev_b32 v{t0}, 3, v{v_lane}")
    a(f"v_bfe_u32 v{t1}, v{v_lane}, 4, 1")
    a(f"v_lshlrev_b32 v{t1}, 2, v{t1}")
    a(f"v_and_b32 v{t2}, 7, v{v_lane}")
    a(f"v_xor_b32 v{t1}, v{t1}, v{t2}")
    a(f"v_lshlrev_b32 v{t1}, 4, v{t1}")
    a(f"v_lshl_add_u32 v{v_dw}, v{t0}, {7 if WDCOPY else 10}, v{t1}")
    if WDCOPY:
        SRD_WD = SRD_WS
    WROW = 128 if WDCOPY else 1024
    a(f"s_mul_i32 s{s_oh0}, s{s_sp}, 224")
    a(f"s_mul_i32 s{s_t1}, s{s_w}, {NKB}")
    if K0:
        a(f"s_add_u32 s{s_t1}, s{s_t1}, {K0 & 0xffffffff}")
    a(f"s_add_u32 s{s_oh0}, s{s_oh0}, s{s_t1}")
    a(f"s_mul_i32 s{s_t2}, s{s_sw}, 112")
    a(f"s_sub_u32 s{s_oh1}, s{s_oh0}, s{s_t2}")
    a(f"s_add_u32 s{s_oh1}, s{s_oh1}, 112")
    a(f"s_add_u32 s{s_oh0}, s{s_oh0}, s{s_t2}")
    a(f"s_lshl_b32 s{s_oh0}, s{s_oh0}, 10")
    a(f"s_lshl_b32 s{s_oh1}, s{s_oh1}, 10")
    if WDCOPY:
        a(f"s_lshl_b32 s{s_ow}, s{s_t1}, 11")
        a(f"s_mul_i32 s{s_t1}, s{s_dp}, {1792 * 128}")
        a(f"s_add_u32 s{s_ow}, s{s_ow}, {WS_WD}")
    else:
        a(f"s_lshl_b32 s{s_ow}, s{s_t1}, 14")
        a(f"s_lshl_b32 s{s_t1}, s{s_dp}, 7")
    a(f"s_add_u32 s{s_ow}, s{s_ow}, s{s_t1}")
    a(f"s_add_u32 s{s_ow2}, s{s_ow}, {8 * WROW}")
    ring_base(a, s_m, s_w, s_t2)
    if not FZ:
        a("s_waitcnt lgkmcnt(0)")
        build_srds()
        a("s_barrier")

    HSC = " sc1" if FZ else ""

    def load_ops(i):
        sl = i % R
        tag = f"d{i}"

        def f0():
            a(f"s_add_u32 m0, s{s_m}, {sl * 2048}")
            a.vmem(f"buffer_load_dwordx4 {vr(HR[sl], 4)}, v{v_dl}, {sr(SRD_WS, 4)}, s{s_oh0} offen offset:{(i % 4) * 1024}{HSC}", tag)

        def f1():
            a.vmem(f"buffer_load_dwordx4 v{v_dw}, {sr(SRD_WD, 4)}, s{s_ow} offen lds", tag)
            a(f"s_add_u32 m0, s{s_m}, {sl * 2048 + 1024}")
            a(f"s_add_u32 s{s_ow}, s{s_ow}, {16 * WROW}")

        def f2():
            a.vmem(f"buffer_load_dwordx4 v{v_dw}, {sr(SRD_WD, 4)}, s{s_ow2} offen lds", tag)
            a(f"s_add_u32 s{s_ow2}, s{s_ow2}, {16 * WROW}")

        def f3():
            a.vmem(f"buffer_load_dwordx4 {vr(HR[sl] + 4, 4)}, v{v_dl}, {sr(SRD_WS, 4)}, s{s_oh1} offen offset:{(i % 4) * 1024}{HSC}", tag)
            if i % 4 == 3:
                a(f"s_add_u32 s{s_oh0}, s{s_oh0}, 4096")
                a(f"s_add_u32 s{s_oh1}, s{s_oh1}, 4096")
        return [f0, f1, f2, f3]

    pro = [load_ops(i) for i in range(R - 1)]
    if FZ:
        for i in range(R - 1):
            a(f"s_add_u32 m0, s{s_m}, {(i % R) * 2048}")
            a("s_nop 0")
            pro[i][1]()
            pro[i][2]()
        FZ["signal"](a, v_t, s_t0)
    else:
        for i in range(2):
            for f in pro[i]:
                f()
    a(f"v_and_b32 v{v_n}, 31, v{v_lane}")
    a(f"v_lshrrev_b32 v{v_h}, 5, v{v_lane}")
    a(f"v_bfe_u32 v{t0}, v{v_lane}, 2, 2")
    a(f"v_and_b32 v{t1}, 3, v{v_lane}")
    a(f"v_bfe_u32 v{t2}, v{v_lane}, 4, 1")
    a(f"v_lshl_add_u32 v{t3}, v{v_h}, 2, v{t0}")
    a(f"v_lshlrev_b32 v{t3}, 7, v{t3}")
    a(f"v_lshrrev_b32 v{t0}, 1, v{t0}")
    a(f"v_xor_b32 v{t4}, s{s_dw}, v{t0}")
    a(f"v_lshl_add_u32 v{t4}, v{t4}, 6, v{t3}")
    a(f"v_add_u32 v{t4}, s{s_m}, v{t4}")
    a(f"v_and_b32 v{v_t[5]}, 1, v{t1}")
    a(f"v_lshl_add_u32 v{t4}, v{v_t[5]}, 5, v{t4}")
    a(f"v_lshl_add_u32 v{t4}, v{t2}, 4, v{t4}")
    a(f"v_lshrrev_b32 v{v_t[5]}, 1, v{t1}")
    a(f"v_lshl_add_u32 v{v_rw[0]}, v{v_t[5]}, 3, v{t4}")
    a(f"v_xor_b32 v{v_rw[1]}, 64, v{v_rw[0]}")
    if not FZ:
        for i in range(2, R - 1):
            for f in pro[i]:
                f()
    out_addr(a, v_xo, v_n, v_h, s_sp, s_dp, s_sw, s_dw, s_t0, s_t1)
    a(f"v_add_u32 v{t0}, s{s_m}, v{v_dl}")
    for q in (1, 2, 3):
        a(f"s_xor_b32 s{s_t1}, s{s_w}, {q}")
        ring_base(a, s_t0, s_t1, s_t2)
        a(f"s_add_u32 s{s_t0}, s{s_t0}, {(q - 1) * 4096}")
        a(f"v_add_u32 v{v_t[q]}, s{s_t0}, v{v_dl}")
    a(f"s_lshl_b32 s{s_t0}, s{s_w}, 14")
    a(f"s_add_u32 s{s_t0}, s{s_t0}, {L_Z + 12288}")
    a(f"v_add_u32 v{t4}, s{s_t0}, v{v_dl}")
    assert R * 2048 >= 12288
    if FZ:
        pf.stamp()
        a(f"s_cmp_lg_u32 s{s_w}, 0")
        a(f"s_cbranch_scc1 {name}_bnp")
        a(f"v_min_u32 v{v_t[5]}, 13, v{v_lane}")
        a(f"v_lshlrev_b32 v{v_t[5]}, 7, v{v_t[5]}")
        a(f"s_lshr_b32 s{s_t0}, s{s_sp}, 1")
        a(f"s_lshl_b32 s{s_t0}, s{s_t0}, 11")
        saved = list(a.vm)
        FZ["poll"](a, f"{name}_bp", [(v_t[5], 0)], s_t0, v_t[6], s_t1)
        a.vm = saved
        a(f"v_mov_b32 v{v_t[5]}, {L_F + 132}")
        a(f"v_mov_b32 v{v_t[6]}, 1")
        a(f"ds_write_b32 v{v_t[5]}, v{v_t[6]}")
        a.label(f"{name}_bnp")
        FZ["lwait"](a, f"{name}_bw", 132, v_t[5], v_t[6], s_t0)
        for i in range(R - 1):
            pro[i][0]()
            pro[i][3]()

    def read_ops(i):
        b = (i % R) * 2048
        F = WF[i % 2]
        return [lambda tl=tl, e=e: a.lds(f"ds_read_b64_tr_b16 {vr(F + 4 * tl + 2 * e, 2)}, v{v_rw[tl]} offset:{b + e * 1024}", f"r{i}")
                for tl in range(2) for e in range(2)]

    QORD = ((1, 1), (0, 1), (1, 0), (0, 0))

    def mfma_ops(i):
        F = WF[i % 2]
        ops = []
        for dt, st in QORD:
            A = vr(acc[dt][st], 16)
            C = "0" if i == 0 else A
            ops.append(lambda A=A, C=C, dt=dt, st=st: a(
                f"v_mfma_f32_32x32x16_bf16 {A}, {vr(F + 4 * dt, 4)}, {vr(HR[i % R] + 4 * st, 4)}, {C}"))
        return ops

    pf.stamp()
    a.wait(vm="d0")
    for f in read_ops(0):
        f()
    for i in range(NKB):
        a.comment(f"k-step {i}")
        if i % 4 == 0 and i < 28 and PROF != 4:
            pf.stamp()
        if i + 1 < NKB:
            a.wait(vm=f"d{i + 1}", lg=f"r{i}")
            for f in read_ops(i + 1):
                f()
        else:
            a.wait(lg=f"r{i}")
        nxt = i + R - 1
        lo = load_ops(nxt) if nxt < NKB else []
        m = mfma_ops(i)
        for q in range(4):
            m[q]()
            if q < len(lo):
                lo[q]()
    pf.stamp()
    a("s_nop 7")
    for pd, ps in QORD[:3]:
        for g in range(4):
            a.lds(f"ds_write_b128 v{t0}, {vr(acc[pd][ps] + 4 * g, 4)} offset:{(2 * pd + ps - 1) * 4096 + g * 1024}", "qw")
    a.wait(lg="all")
    a("s_barrier")
    pf.stamp()
    for q in (0, 3, 1, 2):
        for g in range(4):
            a.lds(f"ds_read_b128 {vr(RB[q] + 4 * g, 4)}, v{v_t[q] if q else t4} offset:{g * 1024}", f"q{q}")
    A0 = acc[0][0]
    a.wait(lg="q0")
    for i in range(16):
        a(f"v_add_f32 v{A0 + i}, v{A0 + i}, v{RB[0] + i}")
    a.wait(lg="q1")
    for i in range(16):
        a(f"v_add_f32 v{RB[3] + i}, v{RB[3] + i}, v{RB[1] + i}")
    a.wait(lg="q2")
    for i in range(16):
        a(f"v_add_f32 v{A0 + i}, v{A0 + i}, v{RB[2] + i}")
    for hh in range(2):
        for i in range(8 * hh, 8 * hh + 8):
            a(f"v_add_f32 v{A0 + i}, v{A0 + i}, v{RB[3] + i}")
        for i in range(4 * hh, 4 * hh + 4):
            a(f"v_cvt_pk_bf16_f32 v{v_x + i}, v{A0 + 2 * i}, v{A0 + 2 * i + 1}")
        a(f"buffer_store_dwordx4 {vr(v_x + 4 * hh, 4)}, v{v_xo}, {sr(SRD_OUT, 4)}, 0 offen offset:{16 * hh}")
    if PROF:
        if PROF != 4:
            pf.stamp()
            a("s_waitcnt vmcnt(0)")
        pf.stamp()
        pf.stamp(real=True)
        pf.dump(SRD_WS, 2, s_w, v_t[0], s_t0, 4)


TOUCH_H = int(os.environ.get("TOUCH_H", "0"))
POLL_SLEEP = int(os.environ.get("POLL_SLEEP", "4"))
TOUCH_W = int(os.environ.get("TOUCH_W", "0"))


def gen_k23(name):
    import copy
    a = Asm()
    SRD_X, SRD_WD, SRD_WS, SRD_OUT, SRD_C = 4, 8, 12, 16, 20
    S = Regs(24, 102)
    s_p = S.alloc(12, 4)
    s_w = S.alloc()
    v_lane = 1
    a.label("k23_begin")
    a("s_cmp_ge_u32 s2, 256")
    a(f"s_cbranch_scc1 {name}_done")
    pfg = Prof(a, S, 18, 2)
    pfg.stamp(real=True)
    pfg.stamp()
    a(f"s_load_dwordx2 {sr(s_p + 2, 2)}, s[0:1], {KA_WS}")
    a(f"s_load_dwordx2 {sr(s_p, 2)}, s[0:1], {KA_X}")
    a(f"s_load_dwordx4 {sr(s_p + 4, 4)}, s[0:1], {KA_WD}")
    a(f"v_lshrrev_b32 v{v_lane}, 6, v0")
    if not GENC:
        a(f"s_getpc_b64 {sr(s_p + 8, 2)}")
        a(f"s_add_u32 s{s_p + 8}, s{s_p + 8}, ctab@rel32@lo+4")
        a(f"s_addc_u32 s{s_p + 9}, s{s_p + 9}, ctab@rel32@hi+12")
    a("s_nop 0")
    a(f"v_readfirstlane_b32 s{s_w}, v{v_lane}")
    a(f"v_and_b32 v{v_lane}, 63, v0")
    a(f"s_cmp_lt_u32 s{s_w}, 4")
    a(f"s_cbranch_scc1 {name}_gemm")
    if FFT_PRIO:
        a(f"s_setprio {FFT_PRIO}")
    if not GENC:
        srd(a, SRD_C, s_p + 8, 24576)
    Sn = S.n
    V1 = Regs(2, 256)
    pff = copy.copy(pfg)
    pff.region = 1
    L = fft_part(a, V1, S, name, s_w, SRD_WS, SRD_C, v_lane, pff)
    srd(a, SRD_WS, s_p + 2, WS_SIZE)
    srd(a, SRD_X, s_p, 2048 * 1024)
    a(f"s_cmp_gt_u32 s{L['s_job']}, 256")
    a(f"s_cbranch_scc1 {name}_nojob")
    fft_main(L)
    a(f"s_branch {name}_zpart")
    a.label(f"{name}_nojob")
    if PROF:
        n = pff.n
        pff.n = 2
        while pff.n < n:
            pff.stamp()
    if TOUCH_H:
        sa, sb, vt = L["s_a"], L["s_b"], L["v_t"]
        a(f"s_and_b32 s{sa}, s2, 7")
        a(f"s_lshl_b32 s{sa}, s{sa}, 2")
        a(f"s_bfe_u32 s{sb}, s2, 0x20003")
        a(f"s_add_u32 s{sa}, s{sa}, s{sb}")
        a(f"s_mul_i32 s{sa}, s{sa}, {224 * 1024}")
        a(f"s_and_b32 s{sb}, s{s_w}, 1")
        a(f"s_mul_i32 s{sb}, s{sb}, {112 * 1024}")
        a(f"s_add_u32 s{sa}, s{sa}, s{sb}")
        a(f"s_lshr_b32 s{sb}, s2, 5")
        a(f"s_lshl_b32 s{sb}, s{sb}, 7")
        a(f"s_add_u32 s{sa}, s{sa}, s{sb}")
        a(f"v_lshrrev_b32 v{vt[0]}, 2, v{v_lane}")
        a(f"v_min_u32 v{vt[0]}, 13, v{vt[0]}")
        a(f"v_and_b32 v{vt[1]}, 3, v{v_lane}")
        a(f"v_mul_u32_u24 v{vt[1]}, 28, v{vt[1]}")
        a(f"v_add_u32 v{vt[0]}, v{vt[0]}, v{vt[1]}")
        a(f"v_lshlrev_b32 v{vt[0]}, 10, v{vt[0]}")
        a(f"buffer_load_dword v{vt[2]}, v{vt[0]}, {sr(SRD_WS, 4)}, s{sa} offen")
        a(f"s_add_u32 s{sa}, s{sa}, {14 * 1024}")
        a(f"buffer_load_dword v{vt[3]}, v{vt[0]}, {sr(SRD_WS, 4)}, s{sa} offen")
        a("s_waitcnt vmcnt(0)")
    if TOUCH_W:
        sa, sb, vt = L["s_a"], L["s_b"], L["v_t"]
        srd(a, SRD_WD, s_p + 4, 1792 * 1024)
        a(f"s_lshr_b32 s{sa}, s2, 5")
        a(f"s_lshl_b32 s{sa}, s{sa}, 7")
        a(f"s_bfe_u32 s{sb}, s2, 0x20003")
        a(f"s_lshl_b32 s{sb}, s{sb}, 10")
        a(f"s_add_u32 s{sa}, s{sa}, s{sb}")
        a(f"s_and_b32 s{sb}, s{s_w}, 1")
        a(f"s_add_u32 s{sb}, s{sb}, 1")
        a(f"s_lshl_b32 s{sb}, s{sb}, 16")
        a(f"s_add_u32 s{sa}, s{sa}, s{sb}")
        a(f"v_and_b32 v{vt[1]}, 3, v{v_lane}")
        a(f"v_mul_u32_u24 v{vt[1]}, 448, v{vt[1]}")
        a(f"v_and_b32 v{vt[0]}, 60, v{v_lane}")
        a(f"v_add_u32 v{vt[0]}, v{vt[0]}, v{vt[1]}")
        a(f"v_lshlrev_b32 v{vt[0]}, 10, v{vt[0]}")
        for j in range(3):
            a(f"buffer_load_dword v{vt[2 + j]}, v{vt[0]}, {sr(SRD_WD, 4)}, s{sa} offen")
            a(f"s_add_u32 s{sa}, s{sa}, {128 * 1024}")
            if TOUCH_W == 2:
                a("s_waitcnt vmcnt(0)")
        a("s_waitcnt vmcnt(0)")
    a.label(f"{name}_zpart")
    a.vm, a.lg = [], []
    S.n = Sn
    V3 = Regs(2, 256)
    z_part(a, V3, S, name, s_w, v_lane, SRD_X, SRD_WS, pff)
    a.label(f"{name}_gemm")
    a.vm, a.lg = [], []
    S.n = Sn
    V2 = Regs(2, 256)

    def build_srds():
        srd(a, SRD_WS, s_p + 2, WS_SIZE)
        srd(a, SRD_WD, s_p + 4, 1792 * 1024)
        srd(a, SRD_OUT, s_p + 6, 2048 * 1024)
    if KSKEW:
        a(f"s_cmp_ge_u32 s{s_w}, 2")
        a(f"s_cbranch_scc1 {name}_gemm2")
        n0 = pfg.n
        gemm_part(a, V2, S, name, s_w, v_lane, SRD_WD, SRD_WS, SRD_OUT, build_srds, pfg, NKB=28 - KSKEW)
        a("s_endpgm")
        a.label(f"{name}_gemm2")
        a.vm, a.lg = [], []
        S.n = Sn
        pfg.n = n0
        gemm_part(a, Regs(2, 256), S, name, s_w, v_lane, SRD_WD, SRD_WS, SRD_OUT, build_srds, pfg, NKB=28 + KSKEW, K0=-4 * KSKEW)
    else:
        gemm_part(a, V2, S, name, s_w, v_lane, SRD_WD, SRD_WS, SRD_OUT, build_srds, pfg)
    a.label(f"{name}_done")
    a("s_endpgm")
    a.label("k23_end")
    launch = f"; @launch kernel={name} grid=(256,1,1) block=(512,1,1) lds={K23_LDS}"
    return kernel_header(name) + a.text(), kernel_desc(name, max(V1.hi, V2.hi, V3.hi), 102), ('' if GENC else gen_ctab()), launch
```

```python
from gen_common import *
import gen_k1, gen_k23
from gen_k2 import gen_ctab
import copy

POLL_SLEEP = int(os.environ.get("F_SLEEP", "4"))


def gen_kf(name):
    C = gen_k1.gen_k1(name, fused=True)
    a, S, pf = C["a"], C["S"], C["pf"]
    s_w, s_non, s_rb, s_cg, s_out = C["s_w"], C["s_non"], C["s_rb"], C["s_cg"], C["s_out"]
    SRD_X, SRD_WS, SRD_WD = C["SRD_X"], C["SRD_WS"], C["SRD_WD"]
    SRD_OUT, SRD_C = C["SRD_G"], C["SRD_U"]
    v_lane = C["v_lane"]
    assert v_lane == 1
    L_F = gen_k1.F_LF
    gen_k23.L_F = L_F
    uid = [0]

    def signal(a, vt, st, skip_hi=False):
        uid[0] += 1
        if skip_hi:
            a(f"s_cmp_ge_u32 s{s_w}, 6")
            a(f"s_cbranch_scc1 {name}_sg{uid[0]}")
        a(f"s_waitcnt vmcnt({len(a.vm)})")
        a(f"v_mov_b32 v{vt[0]}, {L_F + 128}")
        a(f"v_mov_b32 v{vt[1]}, 1")
        a("s_mov_b64 exec, 1")
        a(f"ds_add_rtn_u32 v{vt[2]}, v{vt[0]}, v{vt[1]}")
        a("s_waitcnt lgkmcnt(0)")
        a(f"v_readfirstlane_b32 s{st}, v{vt[2]}")
        a(f"s_cmp_lg_u32 s{st}, 7")
        a(f"s_cbranch_scc1 {name}_sg{uid[0]}")
        a(f"s_lshl_b32 s{st}, s{s_rb}, 4")
        a(f"s_add_u32 s{st}, s{st}, s{s_cg}")
        a(f"s_lshl_b32 s{st}, s{st}, 7")
        a(f"s_add_u32 s{st}, s{st}, {gen_k1.WS_FL}")
        a(f"v_mov_b32 v{vt[0]}, s{s_non}")
        a(f"v_mov_b32 v{vt[1]}, 0")
        a(f"buffer_store_dword v{vt[0]}, v{vt[1]}, {sr(SRD_WS, 4)}, s{st} offen sc1")
        a.label(f"{name}_sg{uid[0]}")
        a("s_mov_b64 exec, -1")

    def poll(a, lbl, addrs, s_off, vdst, s_cnt):
        a(f"s_add_u32 s{s_off}, s{s_off}, {gen_k1.WS_FL}")
        a(f"s_mov_b32 s{s_cnt}, {gen_k1.SPIN_MAX}")
        a.label(lbl)
        for i, (va, off) in enumerate(addrs):
            a(f"buffer_load_dword v{vdst + i}, v{va}, {sr(SRD_WS, 4)}, s{s_off} offen offset:{off} sc1")
        a("s_waitcnt vmcnt(0)")
        a.vm = []
        for i in range(len(addrs)):
            a(f"v_xor_b32 v{vdst + i}, s{s_non}, v{vdst + i}")
        for i in range(1, len(addrs)):
            a(f"v_or_b32 v{vdst}, v{vdst}, v{vdst + i}")
        a(f"v_cmp_ne_u32 vcc, 0, v{vdst}")
        a(f"s_sub_u32 s{s_cnt}, s{s_cnt}, 1")
        a(f"s_cbranch_scc1 {lbl}_ok")
        a("s_nop 2")
        a(f"s_cbranch_vccz {lbl}_ok")
        a(f"s_sleep {POLL_SLEEP}")
        a(f"s_branch {lbl}")
        a.label(f"{lbl}_ok")

    def lwait(a, lbl, off, va, vd, st):
        a(f"v_mov_b32 v{va}, {L_F + off}")
        a.label(lbl)
        a(f"ds_read_b32 v{vd}, v{va}")
        a("s_waitcnt lgkmcnt(0)")
        a(f"v_readfirstlane_b32 s{st}, v{vd}")
        a(f"s_cmp_lg_u32 s{st}, 0")
        a(f"s_cbranch_scc1 {lbl}_ok")
        a("s_sleep 1")
        a(f"s_branch {lbl}")
        a.label(f"{lbl}_ok")
        a.lg = []
    gen_k23.FZ = dict(signal=signal, poll=poll, lwait=lwait)

    a.label("k23_begin")
    a.vm, a.lg = [], []
    free = [C[k] for k in "s_mi s_ni s_rs s_goff s_uoff s_t0 s_t1 s_t2 s_t3 s_sx s_sw s_sw2 s_rs4 s_rs64 s_m0x s_tile".split()]
    free += [C["s_p"] + i for i in range(14) if C["s_p"] + i != s_non]

    class Pool:
        def __init__(self):
            self.f = sorted(free)

        def alloc(self, cnt=1, align=1):
            for i, r in enumerate(self.f):
                if r % align == 0 and self.f[i:i + cnt] == list(range(r, r + cnt)):
                    del self.f[i:i + cnt]
                    return r
            raise AssertionError("out of scalar registers")
    pf.stamp()
    a(f"s_cmp_lt_u32 s{s_w}, 4")
    a(f"s_cbranch_scc1 {name}_gemm")
    a(f"s_setprio {gen_k23.FFT_PRIO}")
    V1 = Regs(2, 256)
    nul = copy.copy(pf)
    nul.stamp = lambda real=False: None
    L = gen_k23.fft_part(a, V1, Pool(), name, s_w, SRD_WS, SRD_C, v_lane, nul)
    a(f"s_cmp_le_u32 s{L['s_job']}, 256")
    a(f"s_cbranch_scc1 {name}_hasjob")
    signal(a, L["v_t"], L["s_a"])
    a(f"s_branch {name}_zpart")
    a.label(f"{name}_hasjob")
    a.vm, a.lg = [], []
    gen_k23.fft_main(L)
    a.label(f"{name}_zpart")
    a.vm, a.lg = [], []
    V3 = Regs(2, 256)
    pz = copy.copy(pf)
    pz.region = 1
    gen_k23.z_part(a, V3, Pool(), name, s_w, v_lane, SRD_X, SRD_WS, pz)
    a.label(f"{name}_gemm")
    a.vm, a.lg = [], []
    srd(a, SRD_OUT, s_out, 2048 * 1024)
    V2 = Regs(2, 256)
    pb = copy.copy(pf)
    pb.region = 2
    gen_k23.gemm_part(a, V2, Pool(), name, s_w, v_lane, SRD_WD, SRD_WS, SRD_OUT, None, pb)
    a.label(f"{name}_done")
    a("s_endpgm")
    a.label("k23_end")
    launch = f"; @launch grid=(256,1,1) block=(512,1,1) lds={gen_k1.K1_LDS}"
    vg = max(C["V"].hi, V1.hi, V2.hi, V3.hi)
    return kernel_header(name) + a.text(), kernel_desc(name, vg, 102), gen_k1.gen_ftab(), launch
```

```python
from gen_common import *

K1_LDS_X = 0
K1_LDS_G = 65536
K1_LDS_U = 114688
K1_LDS = 163840
K1_LDS_ST = K1_LDS_G + 2 * 16384
K1_LDS_CS = K1_LDS_ST + 8192
NSTAGE = 8
WS_ST = 15 << 20
SPIN_MAX = 1 << 14
SF = int(os.environ.get('K1_SF', '3'))
WT = os.environ.get("K1_WT", " sc1")
WTH = os.environ.get("K1_WTH", " sc1")
TOUCH_WD = int(os.environ.get("TOUCH_WD", "2"))
TOUCH = int(os.environ.get("TOUCH", "0"))
TOUCH_NEXT = int(os.environ.get("TOUCH_NEXT", "1"))
TLB_WARM = int(os.environ.get("TLB_WARM", "0"))
SENT = int(os.environ.get("SENT", "-1"))
WDST = int(os.environ.get("WDST", "3"))
WDN = int(os.environ.get("WDN", "1"))
G0S = int(os.environ.get("G0S", "4"))
GSTEP = int(os.environ.get("GSTEP", "0"))
XRS = int(os.environ.get("XRS", "-1"))
MAP = int(os.environ.get("MAP", "3"))
PBAR = int(os.environ.get("PBAR", "2"))
DSKIP = int(os.environ.get("DSKIP", "1"))
FRS = int(os.environ.get("FRS", "1152"))
WDCOPY = int(os.environ.get("WDCOPY", "1"))
F0S = int(os.environ.get("F0S", "3"))
NAFTER = int(os.environ.get("NAFTER", "2"))
K1PRIO = int(os.environ.get("K1PRIO", "0"))
KROT = int(os.environ.get("KROT", "3"))
SCS = int(os.environ.get("SCS", "0"))
TLEAD = int(os.environ.get("TLEAD", "0"))
TEARLY = int(os.environ.get("TEARLY", "0"))


WS_CS = WS_ST + 131072
WS_FL = WS_ST + 65536
F_LF = K1_LDS_ST + 12288


def gen_k1(name, fused=False):
    global G0S, TOUCH_NEXT
    if fused:
        G0S = -1
    a = Asm()
    V = Regs(1, 256)
    S = Regs(40, 102)
    SRD_X, SRD_G, SRD_U, SRD_WS, SRD_WR, SRD_WI, SRD_WD, SRD_T, SRD_D = 4, 8, 12, 16, 20, 24, 28, 32, 36
    s_rb, s_cg, s_w, s_mi, s_ni, s_rs, s_goff, s_uoff = [S.alloc() for _ in range(8)]
    s_t0, s_t1, s_t2, s_t3 = [S.alloc() for _ in range(4)]
    s_sx, s_sw, s_sw2, s_rs4, s_rs64, s_m0x, s_tile = [S.alloc() for _ in range(7)]
    s_p = S.alloc(16, 4)
    s_tab = S.alloc(2, 2)

    v_lane, v_n, v_h = V.alloc(), V.alloc(), V.alloc()
    v_t = [V.alloc() for _ in range(8)]
    v_dx = [V.alloc(), V.alloc()]
    v_dg, v_du = V.alloc(), V.alloc()
    v_xa = [V.alloc() for _ in range(4)]
    v_xs = V.alloc()
    v_wa = [V.alloc(), V.alloc()]
    v_st = [V.alloc(2, 2), V.alloc(2, 2)]
    v_f1a, v_f1s, v_f2a, v_f2s = [V.alloc() for _ in range(4)]
    v_pa = [V.alloc() for _ in range(3)]
    v_f1 = V.alloc(4, 4)
    v_f2 = V.alloc(4, 4)
    v_fi = V.alloc(8, 4)
    v_cs = [V.alloc(4, 4), V.alloc(4, 4)]
    v_sel = V.alloc(4, 4)
    v_XS = [V.alloc(4, 4) for _ in range(2)]
    v_X = [[V.alloc(4, 4) for _ in range(2)] for _ in range(2)]
    v_W = [[V.alloc(4, 4) for _ in range(2)] for _ in range(2)]
    v_acc = [[V.alloc(16, 4) for _ in range(2)] for _ in range(2)]
    v_e = V.alloc(16, 4)
    v_FA = [V.alloc(4, 4) for _ in range(2)]
    v_FB = [V.alloc(4, 4) for _ in range(2)]
    v_cso = V.alloc()
    v_sn = V.alloc(4, 4)
    t0, t1, t2, t3, t4 = v_t[:5]
    u0, u1, u2, u3 = v_t[4:8]

    pf = Prof(a, S, 12, 0)
    a("s_cmp_ge_u32 s2, 256")
    a(f"s_cbranch_scc1 {name}_done")
    pf.stamp(real=True)
    pf.stamp()
    a(f"s_load_dwordx2 {sr(s_p, 2)}, s[0:1], {KA_X}")
    a(f"s_load_dwordx4 {sr(s_p + 4, 4)}, s[0:1], {KA_WG}")
    a(f"s_load_dwordx2 {sr(s_p + 2, 2)}, s[0:1], {KA_WS}")
    a(f"s_load_dwordx4 {sr(s_p + 8, 4)}, s[0:1], {KA_WR}")
    a(f"s_load_dwordx4 {sr(s_p + 12, 4)}, s[0:1], {KA_WD}")
    a(f"s_load_dwordx2 {sr(SRD_D, 2)}, s[0:1], {KA_DBG}")
    s_out = s_p + 14
    a(f"v_lshrrev_b32 v{t0}, 6, v0")
    a(f"v_and_b32 v{v_lane}, 63, v0")
    a(f"v_readfirstlane_b32 s{s_w}, v{t0}")
    if MAP == 0:
        a(f"s_bfe_u32 s{s_rb}, s2, 0x10002")
        a(f"s_lshl_b32 s{s_rb}, s{s_rb}, 3")
        a(f"s_bfe_u32 s{s_t2}, s2, 0x30003")
        a(f"s_add_u32 s{s_rb}, s{s_rb}, s{s_t2}")
        a(f"s_and_b32 s{s_cg}, s2, 3")
        a(f"s_lshl_b32 s{s_cg}, s{s_cg}, 2")
        a(f"s_lshr_b32 s{s_t2}, s2, 6")
        a(f"s_add_u32 s{s_cg}, s{s_cg}, s{s_t2}")
    elif MAP == 3:
        a(f"s_bfe_u32 s{s_rb}, s2, 0x10002")
        a(f"s_lshl_b32 s{s_rb}, s{s_rb}, 3")
        a(f"s_bfe_u32 s{s_t2}, s2, 0x30003")
        a(f"s_add_u32 s{s_rb}, s{s_rb}, s{s_t2}")
        a(f"s_lshr_b32 s{s_cg}, s2, 6")
        a(f"s_add_u32 s{s_t2}, s{s_cg}, 1")
        a(f"s_lshr_b32 s{s_t2}, s{s_t2}, 2")
        a(f"s_and_b32 s{s_t2}, s{s_t2}, s{s_rb}")
        a(f"s_lshl_b32 s{s_t2}, s{s_t2}, 1")
        a(f"s_xor_b32 s{s_t2}, s{s_t2}, s2")
        a(f"s_and_b32 s{s_t2}, s{s_t2}, 3")
        a(f"s_lshl_b32 s{s_cg}, s{s_cg}, 2")
        a(f"s_add_u32 s{s_cg}, s{s_cg}, s{s_t2}")
    elif MAP == 1:
        a(f"s_and_b32 s{s_rb}, s2, 7")
        a(f"s_lshl_b32 s{s_rb}, s{s_rb}, 1")
        a(f"s_bfe_u32 s{s_t2}, s2, 0x10003")
        a(f"s_add_u32 s{s_rb}, s{s_rb}, s{s_t2}")
        a(f"s_lshr_b32 s{s_cg}, s2, 4")
    else:
        a(f"s_bfe_u32 s{s_rb}, s2, 0x20001")
        a(f"s_lshl_b32 s{s_rb}, s{s_rb}, 2")
        a(f"s_bfe_u32 s{s_t2}, s2, 0x20003")
        a(f"s_add_u32 s{s_rb}, s{s_rb}, s{s_t2}")
        a(f"s_and_b32 s{s_cg}, s2, 1")
        a(f"s_lshl_b32 s{s_cg}, s{s_cg}, 3")
        a(f"s_lshr_b32 s{s_t2}, s2, 5")
        a(f"s_add_u32 s{s_cg}, s{s_cg}, s{s_t2}")
    a(f"s_sub_u32 s{s_t0}, s{s_cg}, 14")
    a(f"s_lshl_b32 s{s_t0}, s{s_t0}, 9")
    a(f"s_add_u32 s{s_t1}, s{s_t0}, 256")
    a(f"s_lshl_b32 s{s_t2}, s{s_cg}, 8")
    a(f"s_movk_i32 s{s_rs}, 3584")
    a(f"s_cmp_ge_u32 s{s_cg}, 14")
    a(f"s_cselect_b32 s{s_rs}, {FRS}, s{s_rs}")
    a(f"s_cselect_b32 s{s_goff}, s{s_t0}, s{s_t2}")
    a(f"s_cselect_b32 s{s_uoff}, s{s_t1}, s{s_t2}")
    a(f"s_lshl_b32 s{s_rs4}, s{s_rs}, 2")
    a(f"s_lshl_b32 s{s_rs64}, s{s_rs}, 6")
    a(f"s_getpc_b64 {sr(s_tab, 2)}")
    a(f"s_add_u32 s{s_tab}, s{s_tab}, ftab@rel32@lo+4")
    a(f"s_addc_u32 s{s_tab + 1}, s{s_tab + 1}, ftab@rel32@hi+12")

    a(f"v_lshrrev_b32 v{t0}, 3, v{v_lane}")
    a(f"v_and_b32 v{t1}, 7, v{v_lane}")
    a(f"v_lshrrev_b32 v{t2}, 4, v{v_lane}")
    a(f"v_xor_b32 v{t1}, v{t1}, v{t2}")
    a(f"v_lshlrev_b32 v{t1}, 4, v{t1}")
    a(f"v_lshl_add_u32 v{t1}, v{t0}, 16, v{t1}")
    a(f"s_and_b32 s{s_t0}, s{s_w}, 1")
    a(f"s_lshl_b32 s{s_t0}, s{s_t0}, 20")
    a(f"s_lshr_b32 s{s_t1}, s{s_w}, 1")
    a(f"s_lshl_b32 s{s_t1}, s{s_t1}, 10")
    a(f"s_add_u32 s{s_t0}, s{s_t0}, s{s_t1}")
    a(f"s_lshl_b32 s{s_t1}, s{s_rb}, 12")
    a(f"s_add_u32 s{s_t0}, s{s_t0}, s{s_t1}")
    a(f"v_add_u32 v{v_dx[0]}, s{s_t0}, v{t1}")
    a(f"v_xor_b32 v{t1}, 0x80040, v{t1}")
    a(f"v_add_u32 v{v_dx[1]}, s{s_t0}, v{t1}")
    a(f"v_lshlrev_b32 v{t3}, 6, v{t2}")
    a(f"v_and_b32 v{t1}, 15, v{v_lane}")
    a(f"v_lshlrev_b32 v{t1}, 4, v{t1}")
    a(f"v_xor_b32 v{t1}, v{t1}, v{t3}")
    a(f"s_lshl_b32 s{s_t0}, s{s_w}, 3")
    a(f"v_add_u32 v{t0}, s{s_t0}, v{t2}")
    a(f"v_mul_lo_u32 v{t0}, v{t0}, s{s_rs}")
    a(f"v_add3_u32 v{v_dg}, v{t0}, v{t1}, s{s_goff}")
    a(f"v_xor_b32 v{t1}, 32, v{t1}")
    a(f"v_add3_u32 v{v_du}, v{t0}, v{t1}, s{s_uoff}")
    a(f"s_lshl_b32 s{s_m0x}, s{s_w}, 11")
    a(f"s_lshl_b32 s{s_t0}, s{s_cg}, 3")
    a(f"s_add_u32 s{s_t0}, s{s_t0}, s{s_w}")
    a(f"s_and_b32 s{s_t1}, s{s_t0}, 31")
    a(f"s_lshl_b32 s{s_t1}, s{s_t1}, 16")
    a(f"s_lshr_b32 s{s_t0}, s{s_t0}, 5")
    a(f"s_lshl_b32 s{s_t0}, s{s_t0}, 10")
    a(f"s_add_u32 s{s_t1}, s{s_t1}, s{s_t0}")
    a(f"s_lshl_b32 s{s_t0}, s{s_rb}, 12")
    a(f"s_add_u32 s{s_t3}, s{s_t1}, s{s_t0}")
    a(f"v_lshlrev_b32 v{t1}, 4, v{v_lane}")
    if KROT:
        if KROT == 2:
            a(f"s_lshr_b32 s{s_t0}, s2, 6")
            a(f"s_lshl_b32 s{s_t0}, s{s_t0}, 1")
            a(f"s_add_u32 s{s_t0}, s{s_t0}, s{s_rb}")
            a(f"s_and_b32 s{s_t0}, s{s_t0}, 7")
        elif KROT == 3:
            a(f"s_and_b32 s{s_t0}, s{s_rb}, 3")
            a(f"s_lshl_b32 s{s_t0}, s{s_t0}, 1")
        else:
            a(f"s_and_b32 s{s_t0}, s{s_rb}, 7")
        a(f"s_lshl_b32 s{s_sx}, s{s_t0}, 7")
        a(f"s_mul_i32 s{s_sw}, s{s_t0}, s{s_rs64}")
    else:
        a(f"s_mov_b32 s{s_sx}, 0")
        a(f"s_mov_b32 s{s_sw}, 0")
    a(f"s_mov_b32 s{SRD_X + 2}, {2048 * 1024}")
    a(f"s_mov_b32 s{SRD_X + 3}, 0x00020000")
    a(f"s_mov_b32 s{SRD_G + 3}, 0x00020000")
    a(f"s_mov_b32 s{SRD_U + 3}, 0x00020000")
    a(f"s_lshl_b32 s{SRD_G + 2}, s{s_rs}, 9")
    a(f"s_lshl_b32 s{SRD_U + 2}, s{s_rs}, 9")
    if PROF == 3:
        pf.stamp()
    a("s_waitcnt lgkmcnt(0)")
    if PROF == 3:
        pf.stamp()
    a(f"s_mov_b32 s{SRD_X}, s{s_p}")
    a(f"s_and_b32 s{SRD_X + 1}, s{s_p + 1}, 0xffff")
    a(f"s_cmp_ge_u32 s{s_cg}, 14")
    a(f"s_cselect_b32 s{SRD_G}, s{s_tab}, s{s_p + 4}")
    a(f"s_cselect_b32 s{SRD_G + 1}, s{s_tab + 1}, s{s_p + 5}")
    a(f"s_cselect_b32 s{SRD_U}, s{s_tab}, s{s_p + 6}")
    a(f"s_cselect_b32 s{SRD_U + 1}, s{s_tab + 1}, s{s_p + 7}")
    a(f"s_and_b32 s{SRD_G + 1}, s{SRD_G + 1}, 0xffff")
    a(f"s_and_b32 s{SRD_U + 1}, s{SRD_U + 1}, 0xffff")

    def mk(ldsbase, vaddr, srdn, soff, mid, tag, post=None):
        def f():
            a(f"s_add_u32 m0, s{s_m0x}, {ldsbase}")
            a(mid)
            a.vmem(f"buffer_load_dwordx4 v{vaddr}, {sr(srdn, 4)}, s{soff} offen lds", tag)
            if post:
                a(post)
        return f

    def dma_x(stage):
        b = K1_LDS_X + (stage % 4) * 16384
        return [mk(b, v_dx[0], SRD_X, s_sx, f"s_and_b32 s{s_sx}, s{s_sx}, 1023", f"x{stage}"),
                mk(b + 1024, v_dx[1], SRD_X, s_sx, "s_nop 0", f"x{stage}", post=f"s_add_u32 s{s_sx}, s{s_sx}, 128")]

    def dma_w(stage):
        b = (stage % 3) * 16384
        tag = f"w{stage}"
        return [mk(K1_LDS_G + b, v_dg, SRD_G, s_sw, f"s_add_u32 s{s_sw2}, s{s_sw}, s{s_rs4}", tag),
                mk(K1_LDS_U + b, v_du, SRD_U, s_sw, "s_nop 0", tag),
                mk(K1_LDS_G + b + 1024, v_dg, SRD_G, s_sw2, f"s_add_u32 s{s_sw}, s{s_sw}, s{s_rs64}", tag),
                mk(K1_LDS_U + b + 1024, v_du, SRD_U, s_sw2, "s_nop 0", tag,
                   post=(f"s_cmp_ge_u32 s{s_sw}, s{SRD_G + 2}\ns_cselect_b32 s{s_sw}, 0, s{s_sw}" if KROT else None))]

    for f in dma_x(0) + dma_w(0):
        f()
    if PROF == 3:
        pf.stamp()
    XR = v_XS[0]
    a(f"v_add_u32 v{v_xs}, s{s_t3}, v{t1}")

    def xr_load():
        a.vmem(f"buffer_load_dwordx4 {vr(XR, 4)}, v{v_xs}, {sr(SRD_X, 4)}, 0 offen", "xr")
    s_tpar, s_toff, s_tstep = s_tab, s_tab + 1, s_p

    def touch_setup():
        a(f"v_and_b32 v{u0}, 15, v{v_lane}")
        a(f"s_cmp_ge_u32 s{s_w}, 4")
        a(f"s_cbranch_scc1 {name}_tx")
        a(f"s_and_b32 s{s_tpar}, s{s_w}, 1")
        a(f"s_and_b32 s{s_t1}, s{s_rb}, 7")
        a(f"v_lshrrev_b32 v{u1}, 1, v{u0}")
        a(f"v_lshl_add_u32 v{u1}, v{u1}, 3, s{s_t1}")
        a(f"v_mul_lo_u32 v{u1}, v{u1}, s{s_rs}")
        a(f"v_and_b32 v{u0}, 1, v{u0}")
        a(f"v_lshl_add_u32 v{v_pa[2]}, v{u0}, 7, v{u1}")
        a(f"s_cmp_ge_u32 s{s_w}, 2")
        a(f"s_cselect_b32 s{s_toff}, s{s_uoff}, s{s_goff}")
        a(f"s_cselect_b32 s{SRD_T}, s{SRD_U}, s{SRD_G}")
        a(f"s_cselect_b32 s{SRD_T + 1}, s{SRD_U + 1}, s{SRD_G + 1}")
        a(f"s_mov_b32 s{SRD_T + 2}, s{SRD_G + 2}")
        a(f"s_mov_b32 s{s_tstep}, s{s_rs64}")
        a(f"s_branch {name}_tj")
        a.label(f"{name}_tx")
        a(f"s_bfe_u32 s{s_tpar}, s{s_w}, 0x10001")
        a(f"s_and_b32 s{s_toff}, s{s_w}, 1")
        a(f"s_lshl_b32 s{s_toff}, s{s_toff}, 20")
        a(f"s_and_b32 s{s_t1}, s{s_cg}, 3")
        a(f"s_lshl_b32 s{s_t1}, s{s_t1}, 10")
        a(f"s_add_u32 s{s_toff}, s{s_toff}, s{s_t1}")
        a(f"s_lshl_b32 s{s_t1}, s{s_rb}, 12")
        a(f"s_add_u32 s{s_toff}, s{s_toff}, s{s_t1}")
        a(f"v_lshlrev_b32 v{v_pa[2]}, 16, v{u0}")
        a(f"s_mov_b32 s{SRD_T}, s{SRD_X}")
        a(f"s_mov_b32 s{SRD_T + 1}, s{SRD_X + 1}")
        a(f"s_mov_b32 s{SRD_T + 2}, s{SRD_X + 2}")
        a(f"s_movk_i32 s{s_tstep}, 128")
        a.label(f"{name}_tj")
        a(f"s_mov_b32 s{SRD_T + 3}, 0x00020000")
        a(f"s_add_u32 s{s_t1}, s{s_tpar}, 2")
        a(f"s_mul_i32 s{s_t1}, s{s_t1}, s{s_tstep}")
        a(f"s_add_u32 s{s_toff}, s{s_toff}, s{s_t1}")
        a(f"s_lshl_b32 s{s_tstep}, s{s_tstep}, 1")

    def touch(stage):
        if stage is not None:
            a(f"s_cmp_lg_u32 s{s_tpar}, {stage & 1}")
            a(f"s_cbranch_scc1 {name}_tn{stage}")
        a(f"buffer_load_dword v{v_pa[1]}, v{v_pa[2]}, {sr(SRD_T, 4)}, s{s_toff} offen")
        a(f"s_add_u32 s{s_toff}, s{s_toff}, s{s_tstep}")
        if stage is not None:
            a.label(f"{name}_tn{stage}")
    if TLB_WARM:
        a(f"s_cmp_lg_u32 s{s_w}, 7")
        a(f"s_cbranch_scc1 {name}_notlb")
        a(f"v_min_u32 v{u0}, 7, v{v_lane}")
        a(f"v_lshlrev_b32 v{u0}, 21, v{u0}")
        a(f"v_and_b32 v{u1}, 1, v{v_lane}")
        for k, (ptr, size) in enumerate(((s_p + 2, WS_SIZE), (s_p + 8, 2048 * 514), (s_p + 10, 2048 * 514), (s_p + 12, 1792 * 1024), (s_p + 14, 2048 * 1024), (SRD_D, 256))):
            srd(a, SRD_T, ptr, size)
            if k:
                a(f"v_mul_u32_u24 v{u0}, {size - 4}, v{u1}")
            a(f"buffer_load_dword v{v_pa[k % 3]}, v{u0}, {sr(SRD_T, 4)}, 0 offen")
        a.label(f"{name}_notlb")
    if TOUCH and TEARLY:
        touch_setup()
    if PBAR >= 1:
        a("s_barrier")
        if TOUCH and TEARLY:
            touch(None)
    elif XRS < 0:
        xr_load()
    a(f"v_and_b32 v{v_n}, 31, v{v_lane}")
    a(f"v_lshrrev_b32 v{v_h}, 5, v{v_lane}")
    a(f"s_and_b32 s{s_mi}, s{s_w}, 3")
    a(f"s_lshr_b32 s{s_ni}, s{s_w}, 2")
    d1 = dma_x(1) + dma_w(1) + dma_x(2)
    a(f"v_bfe_u32 v{t0}, v{v_n}, 1, 3")
    a(f"v_xor_b32 v{t0}, v{t0}, v{v_h}")
    a(f"s_lshl_b32 s{s_t0}, s{s_ni}, 13")
    a(f"v_lshlrev_b32 v{t1}, 7, v{v_n}")
    a(f"v_add_u32 v{t1}, s{s_t0}, v{t1}")
    a(f"v_lshl_add_u32 v{v_xa[0]}, v{t0}, 4, v{t1}")
    d1[0]()
    for j in range(1, 4):
        a(f"v_xor_b32 v{v_xa[j]}, {32 * j}, v{v_xa[0]}")
    d1[1]()
    a(f"v_bfe_u32 v{t2}, v{v_lane}, 4, 1")
    a(f"v_bfe_u32 v{t3}, v{v_lane}, 2, 2")
    a(f"v_lshl_add_u32 v{t4}, v{t3}, 1, v{t2}")
    a(f"s_lshl_b32 s{s_tile}, s{s_mi}, 1")
    a(f"s_add_u32 s{s_tile}, s{s_tile}, s{s_ni}")
    a(f"v_xor_b32 v{t4}, s{s_tile}, v{t4}")
    d1[2]()
    a(f"v_lshlrev_b32 v{t4}, 5, v{t4}")
    a(f"v_lshl_add_u32 v{t4}, v{t3}, 8, v{t4}")
    a(f"v_and_b32 v{t3}, 3, v{v_lane}")
    a(f"v_lshl_add_u32 v{t4}, v{t3}, 3, v{t4}")
    a(f"v_lshl_add_u32 v{t4}, v{v_h}, 11, v{t4}")
    d1[3]()
    a(f"v_mul_u32_u24 v{t2}, {K1_LDS_U - K1_LDS_G}, v{t2}")
    a(f"v_add_u32 v{t4}, v{t4}, v{t2}")
    a(f"v_add_u32 v{v_wa[0]}, {K1_LDS_G}, v{t4}")
    a(f"v_xor_b32 v{v_wa[1]}, 32, v{v_wa[0]}")
    d1[4]()
    a(f"v_bfe_u32 v{t2}, v{v_lane}, 4, 1")
    a(f"v_cmp_eq_u32 vcc, v{t3}, v{t2}")
    a(f"v_mov_b32 v{t2}, 0x3f803f80")
    a(f"v_mov_b32 v{t3}, 0")
    d1[5]()
    for i in range(4):
        a(f"v_cndmask_b32 v{v_sel + i}, v{t3}, v{t2}, vcc")
    if PBAR >= 2:
        a("s_barrier")
    if PBAR >= 1 and XRS < 0:
        xr_load()
    d1[6]()
    d1[7]()

    if TOUCH and not TEARLY:
        touch_setup()
        touch(None)
    srd(a, SRD_WS, s_p + 2, WS_SIZE)
    srd(a, SRD_WR, s_p + 8, 2048 * 514)
    srd(a, SRD_WI, s_p + 10, 2048 * 514)
    srd(a, SRD_WD, s_p + 12, 1792 * 1024)
    srd(a, SRD_D, SRD_D, 256)
    s_non = s_p + 4
    a(f"s_or_b32 s{s_t0}, s{s_w}, s2")
    a(f"s_cmp_lg_u32 s{s_t0}, 0")
    a(f"s_cbranch_scc1 {name}_nonon")
    a(f"s_memrealtime {sr(s_non, 2)}")
    a("s_waitcnt lgkmcnt(0)")
    a(f"s_or_b32 s{s_non}, s{s_non}, 1")
    a(f"v_mov_b32 v{t0}, s{s_non}")
    a(f"v_mov_b32 v{t1}, 0")
    a("s_mov_b64 exec, 1")
    a(f"buffer_store_dword v{t0}, v{t1}, {sr(SRD_D, 4)}, 0 offen sc1")
    a("s_mov_b64 exec, -1")
    a.label(f"{name}_nonon")

    side = {}

    def lines(txt):
        return [lambda l=l: a(l) for l in txt.strip().split("\n")]
    job = lines(f"""
v_lshrrev_b32 v{u0}, 3, v{v_lane}
v_and_b32 v{u1}, 7, v{v_lane}
s_and_b32 s{s_t0}, s2, 3
s_lshl_b32 s{s_t0}, s{s_t0}, 3
s_add_u32 s{s_t0}, s{s_t0}, s{s_w}
s_lshl_b32 s{s_t0}, s{s_t0}, 3
v_add_u32 v{u1}, s{s_t0}, v{u1}
s_lshr_b32 s{s_t1}, s2, 2
s_and_b32 s{s_t1}, s{s_t1}, 3
s_lshr_b32 s{s_t2}, s2, 4
v_lshrrev_b32 v{u2}, 2, v{u0}
v_lshlrev_b32 v{u2}, 4, v{u2}
v_and_b32 v{u3}, 3, v{u0}
v_add_u32 v{u2}, v{u2}, v{u3}
s_lshl_b32 s{s_t3}, s{s_t1}, 2
v_add_u32 v{u2}, s{s_t3}, v{u2}
s_lshl_b32 s{s_t3}, s{s_t2}, 7
v_add_u32 v{u2}, s{s_t3}, v{u2}
v_mul_u32_u24 v{u2}, 514, v{u2}
v_lshl_add_u32 v{v_f1a}, v{u1}, 1, v{u2}
v_add_u32 v{v_f2a}, 512, v{u2}
s_lshl_b32 s{s_t3}, s{s_t2}, 9
s_lshl_b32 s{s_t1}, s{s_t1}, 7
s_add_u32 s{s_t3}, s{s_t3}, s{s_t1}
s_add_u32 s{s_t3}, s{s_t3}, {WS_W}
v_lshl_add_u32 v{u0}, v{u0}, 4, s{s_t3}
v_lshl_add_u32 v{v_f1s}, v{u1}, 13, v{u0}
v_add_u32 v{v_f2s}, {256 * 8192}, v{u0}
""")
    addr_job = job

    def gl(dst, va, srdn, i):
        def f():
            a(f"s_mov_b32 s{s_t0}, {i * 32 * 514}")
            a.vmem(f"buffer_load_ushort v{dst}, v{va}, {sr(srdn, 4)}, s{s_t0} offen", "f1")
        return f
    job = []
    for i in range(4):
        job.append(gl(v_f1 + i, v_f1a, SRD_WR, i))
        job.append(gl(v_fi + i, v_f1a, SRD_WI, i))
    gath = job
    side[6] = []

    def c256_test(lbl):
        a(f"s_and_b32 s{s_t0}, s2, 3")
        a(f"s_lshl_b32 s{s_t0}, s{s_t0}, 3")
        a(f"s_add_u32 s{s_t0}, s{s_t0}, s{s_w}")
        a(f"s_cmp_lg_u32 s{s_t0}, 31")
        a(f"s_cbranch_scc1 {name}_{lbl}")

    def col256_load():
        c256_test("c256a")
        for i in range(4):
            a(f"s_mov_b32 s{s_t0}, {i * 32 * 514}")
            a(f"buffer_load_ushort v{v_f2 + i}, v{v_f2a}, {sr(SRD_WR, 4)}, s{s_t0} offen")
            a(f"buffer_load_ushort v{v_fi + 4 + i}, v{v_f2a}, {sr(SRD_WI, 4)}, s{s_t0} offen")
        a.label(f"{name}_c256a")

    def side_store():
        a.wait(vm="f1")
        for i in range(4):
            a(f"v_lshl_or_b32 v{v_f1 + i}, v{v_fi + i}, 16, v{v_f1 + i}")
        a.vmem(f"buffer_store_dwordx4 {vr(v_f1, 4)}, v{v_f1s}, {sr(SRD_WS, 4)}, 0 offen{WT}", "st")
        c256_test("c256b")
        for i in range(4):
            a(f"v_lshl_or_b32 v{v_f2 + i}, v{v_fi + 4 + i}, 16, v{v_f2 + i}")
        a(f"buffer_store_dwordx4 {vr(v_f2, 4)}, v{v_f2s}, {sr(SRD_WS, 4)}, 0 offen{WT}")
        a.label(f"{name}_c256b")

    def wd_job(part, nparts):
        def f():
            if TOUCH_WD == 1:
                per = 56 // nparts
                a(f"s_lshr_b32 s{s_t0}, s2, 3")
                a(f"s_lshl_b32 s{s_t0}, s{s_t0}, 3")
                a(f"s_add_u32 s{s_t0}, s{s_t0}, s{s_w}")
                a(f"s_mul_i32 s{s_t0}, s{s_t0}, {per * 128}")
                a(f"s_add_u32 s{s_t0}, s{s_t0}, {part * 256 * per * 128}")
                a(f"v_min_u32 v{u3}, {per - 1}, v{v_lane}")
            else:
                a(f"s_lshl_b32 s{s_t0}, s2, 3")
                a(f"s_add_u32 s{s_t0}, s{s_t0}, s{s_w}")
                a(f"s_mul_i32 s{s_t0}, s{s_t0}, {7 * 128}")
                a(f"v_min_u32 v{u3}, 6, v{v_lane}")
            a(f"v_lshlrev_b32 v{u3}, 7, v{u3}")
            a.vmem(f"buffer_load_dword v{v_pa[1]}, v{u3}, {sr(SRD_WD, 4)}, s{s_t0} offen", "pf")
        return f
    def flag_init():
        a(f"s_lshl_b32 s{s_t0}, s2, 3")
        a(f"s_add_u32 s{s_t0}, s{s_t0}, s{s_w}")
        a(f"s_lshl_b32 s{s_t0}, s{s_t0}, 10")
        a(f"s_add_u32 s{s_t0}, s{s_t0}, {WS_Z}")
        a(f"v_lshlrev_b32 v{u3}, 4, v{v_lane}")
        for i in range(4):
            a(f"v_mov_b32 v{v_sn + i}, -1")
        a.vmem(f"buffer_store_dwordx4 {vr(v_sn, 4)}, v{u3}, {sr(SRD_WS, 4)}, s{s_t0} offen sc1", "st")
        if fused:
            a(f"s_add_u32 s{s_t0}, s{s_t0}, {(WS_U - WS_Z) & 0xffffffff}")
            a.vmem(f"buffer_store_dwordx4 {vr(v_sn, 4)}, v{u3}, {sr(SRD_WS, 4)}, s{s_t0} offen sc1", "st")
    def touch_next():
        a(f"s_cmp_ge_u32 s2, 8")
        a(f"s_cbranch_scc1 {name}_notn")
        a(f"s_getpc_b64 {sr(SRD_T, 2)}")
        a(f"s_add_u32 s{SRD_T}, s{SRD_T}, k23_begin@rel32@lo+4")
        a(f"s_addc_u32 s{SRD_T + 1}, s{SRD_T + 1}, k23_begin@rel32@hi+12")
        a(f"s_mov_b32 s{SRD_T + 2}, k23_end-k23_begin")
        a(f"s_lshl_b32 s{s_t0}, s{s_w}, 13")
        a(f"s_and_b32 s{SRD_T + 1}, s{SRD_T + 1}, 0xffff")
        a(f"s_mov_b32 s{SRD_T + 3}, 0x00020000")
        a(f"v_lshlrev_b32 v{u3}, 7, v{v_lane}")
        a(f"buffer_load_dword v{v_pa[1]}, v{u3}, {sr(SRD_T, 4)}, s{s_t0} offen")
        a.label(f"{name}_notn")

    if TOUCH:
        for st in range(4):
            side[st] = [lambda st=st: touch(st + 4)] + [lambda: None] * 3 + side.get(st, [])

    def read_ops(stage, j):
        bw = (stage % 3) * 16384 + j * 4096
        bx = (stage % 4) * 16384
        ops = []
        tag = f"r{stage}_{j}"
        for mt in range(2):
            for e in range(2):
                ops.append(lambda mt=mt, e=e: a.lds(
                    f"ds_read_b64_tr_b16 {vr(v_W[j % 2][mt] + 2 * e, 2)}, v{v_wa[mt]} offset:{bw + e * 1024}", tag))
            ops.append(lambda nt=mt: a.lds(
                f"ds_read_b128 {vr(v_X[j % 2][nt], 4)}, v{v_xa[j]} offset:{bx + nt * 4096}", tag))
        return ops

    def allreduce(v, t):
        return lines(f"""
s_nop 1
v_add_f32_dpp v{v}, v{v}, v{v} quad_perm:[1,0,3,2] row_mask:0xf bank_mask:0xf
s_nop 1
v_add_f32_dpp v{v}, v{v}, v{v} quad_perm:[2,3,0,1] row_mask:0xf bank_mask:0xf
s_nop 1
v_add_f32_dpp v{v}, v{v}, v{v} row_half_mirror row_mask:0xf bank_mask:0xf
s_nop 1
v_add_f32_dpp v{v}, v{v}, v{v} row_mirror row_mask:0xf bank_mask:0xf
v_mov_b32 v{t}, v{v}
s_nop 1
v_permlane16_swap_b32 v{v}, v{t}
v_add_f32 v{v}, v{v}, v{t}
v_mov_b32 v{t}, v{v}
s_nop 1
v_permlane32_swap_b32 v{v}, v{t}
v_add_f32 v{v}, v{v}, v{t}
""")
    el = [v_e + i for i in range(8)]
    m_, mb, dl, tt = v_t[:4]
    so0, so1 = v_st[0], v_st[0] + 1
    rowst = [lambda: a.wait(vm="xr")]
    for d in range(4):
        rowst += lines(f"v_lshlrev_b32 v{el[2 * d]}, 16, v{XR + d}\nv_and_b32 v{el[2 * d + 1]}, 0xffff0000, v{XR + d}")
    rowst += lines(f"""
v_add_f32 v{m_}, v{el[0]}, v{el[1]}
v_add_f32 v{mb}, v{el[2]}, v{el[3]}
v_add_f32 v{dl}, v{el[4]}, v{el[5]}
v_add_f32 v{tt}, v{el[6]}, v{el[7]}
v_add_f32 v{m_}, v{m_}, v{mb}
v_add_f32 v{dl}, v{dl}, v{tt}
v_add_f32 v{m_}, v{m_}, v{dl}
""") + allreduce(m_, tt) + lines(f"""
v_mul_f32 v{m_}, 0x3b000000, v{m_}
v_cvt_pk_bf16_f32 v{so0}, -v{m_}, -v{m_}
""")
    rowst += lines("\n".join(f"v_sub_f32 v{e_}, v{e_}, v{m_}" for e_ in el))
    rowst += lines(f"v_mul_f32 v{mb}, v{el[0]}, v{el[0]}\nv_mul_f32 v{dl}, v{el[1]}, v{el[1]}")
    rowst += lines("\n".join(f"v_fmac_f32 v{(mb, dl)[i % 2]}, v{el[i]}, v{el[i]}" for i in range(2, 8)))
    rowst += lines(f"v_add_f32 v{mb}, v{mb}, v{dl}") + allreduce(mb, tt) + lines(f"""
v_mul_f32 v{mb}, 0x3b000000, v{mb}
v_cvt_pk_bf16_f32 v{tt}, v{mb}, v{mb}
v_and_b32 v{tt}, 0xffff0000, v{tt}
v_add_f32 v{tt}, 0x3727c5ac, v{tt}
v_cvt_pk_bf16_f32 v{tt}, v{tt}, v{tt}
v_and_b32 v{tt}, 0xffff0000, v{tt}
v_sqrt_f32 v{tt}, v{tt}
v_and_b32 v{so0}, 0xffff, v{so0}
v_cvt_pk_bf16_f32 v{tt}, v{tt}, v{tt}
v_and_b32 v{tt}, 0xffff0000, v{tt}
v_or_b32 v{so0}, v{so0}, v{tt}
""")
    fl = v_XS[1]

    def cs_base(sd, st):
        a(f"s_lshr_b32 s{sd}, s{s_rb}, 3")
        a(f"s_lshl_b32 s{sd}, s{sd}, 4")
        a(f"s_add_u32 s{sd}, s{sd}, s{s_cg}")
        a(f"s_lshl_b32 s{sd}, s{sd}, 14")
        a(f"s_add_u32 s{sd}, s{sd}, {WS_CS}")

    def nonce_load():
        a(f"v_mov_b32 v{fl + 2}, 0")
        a.vmem(f"buffer_load_dword v{fl}, v{fl + 2}, {sr(SRD_D, 4)}, 0 offen sc1", "nl")

    def rowst_store():
        a.wait(vm="nl")
        a(f"s_mov_b32 s{s_t3}, {SPIN_MAX}")
        a.label(f"{name}_nn")
        a(f"v_readfirstlane_b32 s{s_non}, v{fl}")
        a(f"s_cmp_lg_u32 s{s_non}, 0")
        a(f"s_cbranch_scc1 {name}_nnok")
        a(f"s_sub_u32 s{s_t3}, s{s_t3}, 1")
        a(f"s_cbranch_scc1 {name}_nnok")
        a("s_sleep 8")
        a(f"buffer_load_dword v{fl}, v{fl + 2}, {sr(SRD_D, 4)}, 0 offen sc1")
        a("s_waitcnt vmcnt(0)")
        a(f"s_branch {name}_nn")
        a.label(f"{name}_nnok")
        a(f"s_lshl_b32 s{s_t0}, s{s_rb}, 7")
        a(f"s_lshl_b32 s{s_t1}, s{s_cg}, 3")
        a(f"s_add_u32 s{s_t0}, s{s_t0}, s{s_t1}")
        a(f"s_add_u32 s{s_t0}, s{s_t0}, s{s_w}")
        a(f"s_lshl_b32 s{s_t0}, s{s_t0}, 3")
        a(f"s_add_u32 s{s_t0}, s{s_t0}, {WS_ST}")
        a(f"v_mov_b32 v{so1}, v{fl}")
        a("s_mov_b64 exec, 1")
        a.vmem(f"buffer_store_dwordx2 {vr(so0, 2)}, v{fl + 2}, {sr(SRD_WS, 4)}, s{s_t0} offen sc1", "ss")
        a("s_mov_b64 exec, -1")
        if SCS:
            a(f"v_bfe_u32 v{t0}, v{v_lane}, 4, 1")
            a(f"v_cmp_eq_u32 vcc, 1, v{t0}")
            cs_base(s_t0, s_t1)
            a(f"s_lshl_b32 s{s_t1}, s{s_tile}, 11")
            a(f"s_add_u32 s{s_t0}, s{s_t0}, s{s_t1}")
            a(f"s_and_b32 s{s_t1}, s{s_rb}, 7")
            a(f"s_lshl_b32 s{s_t1}, s{s_t1}, 8")
            a(f"s_add_u32 s{s_t0}, s{s_t0}, s{s_t1}")
            a(f"v_cndmask_b32 v{v_cs[1]}, v{v_cs[0]}, v{v_cs[0] + 1}, vcc")
            a(f"v_mov_b32 v{v_cs[1] + 1}, v{fl}")
            a(f"v_lshlrev_b32 v{t0}, 3, v{v_lane}")
            a("s_mov_b32 exec_hi, 0")
            a.vmem(f"buffer_store_dwordx2 {vr(v_cs[1], 2)}, v{t0}, {sr(SRD_WS, 4)}, s{s_t0} offen sc1", "ss")
            a("s_mov_b32 exec_hi, -1")

    def st_loads(reg):
        for nt in range(2):
            txt = f"buffer_load_dwordx2 {vr(v_st[nt], 2)}, v{fl + 3}, {sr(SRD_WS, 4)}, s{s_sx} offen offset:{256 * nt} sc1"
            if reg:
                a.vmem(txt, "sl")
            else:
                a(txt)
        if SCS:
            for q in range(8):
                txt = f"buffer_load_dwordx2 {vr(v_e + 2 * q, 2)}, v{v_xs}, {sr(SRD_WS, 4)}, s{s_sw} offen offset:{256 * q} sc1"
                if reg:
                    a.vmem(txt, "sl")
                else:
                    a(txt)

    def st_poll_load():
        a(f"s_lshl_b32 s{s_sx}, s{s_rb}, 10")
        a(f"s_lshl_b32 s{s_t1}, s{s_ni}, 9")
        a(f"s_add_u32 s{s_sx}, s{s_sx}, s{s_t1}")
        a(f"s_add_u32 s{s_sx}, s{s_sx}, {WS_ST}")
        a(f"v_lshlrev_b32 v{fl + 3}, 3, v{v_n}")
        if SCS:
            cs_base(s_sw, s_t1)
            a(f"v_xor_b32 v{v_xs}, s{s_tile}, v{v_h}")
            a(f"v_lshl_add_u32 v{v_xs}, v{v_xs}, 11, v{fl + 3}")
        st_loads(True)

    def st_poll_check():
        a.wait(vm="sl")
        a(f"s_mov_b32 s{s_t3}, {SPIN_MAX}")
        a.label(f"{name}_sp")
        tags_ = [v_st[0] + 1, v_st[1] + 1] + ([v_e + 2 * q + 1 for q in range(8)] if SCS else [])
        a(f"v_xor_b32 v{fl}, s{s_non}, v{tags_[0]}")
        for tg in tags_[1:]:
            a(f"v_xor_b32 v{fl + 1}, s{s_non}, v{tg}")
            a(f"v_or_b32 v{fl}, v{fl}, v{fl + 1}")
        a(f"v_cmp_ne_u32 vcc, 0, v{fl}")
        a("s_nop 3")
        a(f"s_cbranch_vccz {name}_spok")
        a(f"s_sub_u32 s{s_t3}, s{s_t3}, 1")
        a(f"s_cbranch_scc1 {name}_spok")
        a("s_sleep 8")
        st_loads(False)
        a("s_waitcnt vmcnt(0)")
        a(f"s_branch {name}_sp")
        a.label(f"{name}_spok")

    skid = [0]

    def sel_op(j, mt, first, skip=False):
        c = "0" if first else vr(v_cs[mt], 4)

        def f():
            if skip:
                skid[0] += 1
                a(f"s_cbranch_vccz {name}_sk{skid[0]}")
            a(f"v_mfma_f32_16x16x32_bf16 {vr(v_cs[mt], 4)}, {vr(v_sel, 4)}, {vr(v_W[j % 2][mt], 4)}, {c}")
            if skip:
                a.label(f"{name}_sk{skid[0]}")
        return f

    ORDER = ((0, 0), (1, 0), (0, 1), (1, 1))

    def mfma_ops(stage, j):
        ops = []
        first = stage == 0 and j == 0
        for mt, nt in ORDER:
            acc = vr(v_acc[mt][nt], 16)
            ops.append(lambda mt=mt, nt=nt, acc=acc: a(
                f"v_mfma_f32_32x32x16_bf16 {acc}, {vr(v_W[j % 2][mt], 4)}, {vr(v_X[j % 2][nt], 4)}, {'0' if first else acc}"))
        return ops

    def merge(a_list, b_list):
        out = []
        na, nb = len(a_list), len(b_list)
        ia = ib = 0
        while ia < na or ib < nb:
            if ib >= nb or (ia < na and ia * nb <= ib * na):
                out.append(a_list[ia]); ia += 1
            else:
                out.append(b_list[ib]); ib += 1
        return out

    e = v_e
    rA, rB = v_st[0] + 1, v_st[1] + 1

    publish = lines(f"""
s_lshl_b32 s{s_t2}, s{s_tile}, 9
s_add_u32 s{s_t2}, s{s_t2}, {K1_LDS_CS}
v_lshlrev_b32 v{u1}, 3, v{v_lane}
v_add_u32 v{u1}, s{s_t2}, v{u1}
""")

    def publish_cs():
        a.lds(f"ds_write_b64 v{u1}, {vr(v_cs[0], 2)}", "w")

    gather = lines(f"v_xor_b32 v{u1}, 512, v{u1}")
    gather.append(lambda: a.lds(f"ds_read_b64 {vr(v_FA[1], 2)}, v{u1}", "s"))

    fin = lines(f"""
v_cmp_eq_u32 vcc, 0, v{v_h}
v_mov_b32 v{v_FB[0] + 2}, 0
v_mov_b32 v{v_FB[0] + 3}, 0
v_mov_b32 v{v_FB[1] + 2}, 0
v_mov_b32 v{v_FB[1] + 3}, 0
v_mov_b32 v{v_FA[0] + 2}, 0
v_mov_b32 v{v_FA[0] + 3}, 0
v_mov_b32 v{v_FA[1] + 2}, 0
v_mov_b32 v{v_FA[1] + 3}, 0
v_bfe_u32 v{t0}, v{v_lane}, 4, 1
v_and_b32 v{rA}, 0xffff0000, v{v_st[0]}
v_and_b32 v{rB}, 0xffff0000, v{v_st[1]}
v_rcp_f32 v{rA}, v{rA}
v_rcp_f32 v{rB}, v{rB}
v_and_b32 v{v_st[0]}, 0xffff, v{v_st[0]}
v_and_b32 v{v_st[1]}, 0xffff, v{v_st[1]}
v_lshl_or_b32 v{v_st[0]}, v{v_st[0]}, 16, v{v_st[0]}
v_lshl_or_b32 v{v_st[1]}, v{v_st[1]}, 16, v{v_st[1]}
v_cndmask_b32 v{v_FB[0]}, 0, v{v_st[0]}, vcc
v_cndmask_b32 v{v_FB[1]}, 0, v{v_st[1]}, vcc
v_cmp_eq_u32 vcc, 1, v{t0}
v_mov_b32 v{v_FB[0] + 1}, v{v_FB[0]}
v_mov_b32 v{v_FB[1] + 1}, v{v_FB[1]}
""")
    if SCS:
        fin += lines(f"""
v_add_f32 v{e}, v{e}, v{e + 2}
v_add_f32 v{e + 4}, v{e + 4}, v{e + 6}
v_add_f32 v{e + 8}, v{e + 8}, v{e + 10}
v_add_f32 v{e + 12}, v{e + 12}, v{e + 14}
v_add_f32 v{e}, v{e}, v{e + 4}
v_add_f32 v{e + 8}, v{e + 8}, v{e + 12}
v_add_f32 v{v_cs[0]}, v{e}, v{e + 8}
v_add_f32 v{v_cs[1]}, v{e}, v{e + 8}
s_nop 1
v_permlane32_swap_b32 v{v_cs[0]}, v{v_cs[1]}
""")
    else:
        fin += lines(f"v_cndmask_b32 v{v_cso}, v{v_FA[1]}, v{v_FA[1] + 1}, vcc")

    v_ana = [v_XS[0], v_XS[0] + 1]
    if DSKIP:
        grp = lines(f"""
s_cmp_ge_u32 s{s_cg}, 14
s_cselect_b64 {sr(s_tab, 2)}, -1, 0
""")
        fin += [lambda: [f() for f in grp]]
        for mt in range(2):
            fin += lines(f"""
s_xor_b32 s{s_t0}, s{s_tile}, {mt}
s_sub_u32 s{s_t1}, s{s_cg}, 14
s_or_b32 s{s_t0}, s{s_t0}, s{s_t1}
v_or_b32 v{v_ana[mt]}, s{s_t0}, v{v_n}
v_min_u32 v{v_ana[mt]}, 1, v{v_ana[mt]}
v_sub_u32 v{v_ana[mt]}, 1, v{v_ana[mt]}
v_mul_u32_u24 v{v_ana[mt]}, 0x4380, v{v_ana[mt]}
v_lshlrev_b32 v{v_ana[mt]}, 16, v{v_ana[mt]}
""")

    def fold_a(mt):
        c, r1, hi = v_t[3 * mt], v_t[3 * mt + 1], v_t[3 * mt + 2]
        FA = v_FA[mt]
        txt = f"v_cndmask_b32 v{c}, v{v_cs[mt]}, v{v_cs[mt] + 1}, vcc\n"
        if SCS:
            txt = f"v_mov_b32 v{c}, v{v_cs[mt]}\n"
        elif mt == 1:
            txt += f"v_add_f32 v{c}, v{c}, v{v_cso}\n"
        if DSKIP:
            txt += f"v_cndmask_b32 v{c}, v{c}, v{v_ana[mt]}, {sr(s_tab, 2)}\n"
        txt += f"""v_and_b32 v{hi}, 0xffff0000, v{c}
v_sub_f32 v{r1}, v{c}, v{hi}
v_and_b32 v{c}, 0xffff0000, v{r1}
v_sub_f32 v{r1}, v{r1}, v{c}
v_lshrrev_b32 v{hi}, 16, v{hi}
v_or_b32 v{FA}, v{hi}, v{c}
v_lshrrev_b32 v{FA + 1}, 16, v{r1}"""
        return lines(txt)

    nop = lambda: None
    side.clear()

    def put(stage, frac, ops):
        b = side.setdefault(stage, [[] for _ in range(16)])
        if isinstance(ops, list) and len(ops) > 4:
            n = len(ops)
            lo = int(frac * 16)
            for i, op in enumerate(ops):
                b[lo + (16 - lo) * i // n].append(op)
        else:
            b[min(15, int(frac * 16))] += ops if isinstance(ops, list) else [ops]
    if G0S < 0:
        for op in addr_job + gath + [col256_load]:
            op()
        put(1, 0.8, side_store)
    else:
        put(2, 0.0, addr_job)
    if G0S >= 0:
        for i in range(4):
            put(G0S + i * GSTEP, 0.3 if GSTEP else 0.1 + 0.2 * i, gath[2 * i:2 * i + 2])
        put(G0S + 3 * GSTEP, 0.8, col256_load)
        put(6, 0.5, side_store) if G0S < 6 else None

    def wd_by_wave(k):
        def f():
            a(f"s_and_b32 s{s_t0}, s{s_w}, 3")
            a(f"s_cmp_lg_u32 s{s_t0}, {k}")
            a(f"s_cbranch_scc1 {name}_nwd{k}")
            saved = list(a.vm)
            wd_job(0, 1)()
            a.vm = saved
            a.label(f"{name}_nwd{k}")
        return f
    if WDCOPY:
        def wd_ld():
            a(f"s_lshl_b32 s{s_t0}, s2, 3")
            a(f"s_add_u32 s{s_t0}, s{s_t0}, s{s_w}")
            a(f"s_lshl_b32 s{s_t0}, s{s_t0}, 10")
            a(f"v_lshlrev_b32 v{u3}, 4, v{v_lane}")
            a.vmem(f"buffer_load_dwordx4 {vr(v_sn, 4)}, v{u3}, {sr(SRD_WD, 4)}, s{s_t0} offen", "wdl")

        def wd_st():
            a.wait(vm="wdl")
            a(f"s_cmp_ge_u32 s2, 224")
            a(f"s_cbranch_scc1 {name}_nowds")
            a(f"s_lshl_b32 s{s_t0}, s2, 3")
            a(f"s_add_u32 s{s_t0}, s{s_t0}, s{s_w}")
            a(f"s_lshl_b32 s{s_t0}, s{s_t0}, 7")
            a(f"s_add_u32 s{s_t0}, s{s_t0}, {WS_WD}")
            a(f"v_lshrrev_b32 v{u3}, 3, v{v_lane}")
            a(f"v_mul_u32_u24 v{u3}, {1792 * 128}, v{u3}")
            a(f"v_and_b32 v{u2}, 7, v{v_lane}")
            a(f"v_lshl_add_u32 v{u3}, v{u2}, 4, v{u3}")
            a(f"buffer_store_dwordx4 {vr(v_sn, 4)}, v{u3}, {sr(SRD_WS, 4)}, s{s_t0} offen sc1")
            a.label(f"{name}_nowds")
        put(WDST, 0.9, wd_ld)
        put(WDST + 2, 0.5, wd_st)
    elif TOUCH_WD and WDST < 0:
        wd_job(0, 1)()
    elif TOUCH_WD and WDST < 7:
        put(WDST, 0.9, wd_job(0, 1))
    if TOUCH:
        for st in range(4):
            put(max(0, st - TLEAD), 0.05 + 0.3 * (st % 2) * (1 if TLEAD else 0), lambda st=st: touch(st + 4))
    if TOUCH_NEXT:
        put(5, 0.8, touch_next)
    RS = max(XRS, -1) + 1
    if XRS >= 0:
        put(XRS, 0.1, xr_load)
    put(RS, 0.0, rowst)
    put(RS, 0.4, nonce_load)
    put(RS + 1, 0.1, rowst_store)
    put(6, 0.3, st_poll_load)
    if fused:
        def ep_loads():
            for q in range(4):
                a(f"buffer_load_dword v{v_fi + q}, v{v_f1 + q}, {sr(SRD_WS, 4)}, s{s_sw2} offen offset:4 sc1")

        def ep_issue():
            a(f"s_cmp_lg_u32 s{s_w}, 7")
            a(f"s_cbranch_scc1 {name}_ep1")
            a(f"v_lshlrev_b32 v{v_f1}, 7, v{v_lane}")
            for q in range(1, 4):
                a(f"v_add_u32 v{v_f1 + q}, {8192 * q}, v{v_f1}")
            a(f"s_mov_b32 s{s_sw2}, {WS_FL}")
            ep_loads()
            a.label(f"{name}_ep1")

        def ep_check():
            a(f"s_cmp_lg_u32 s{s_w}, 7")
            a(f"s_cbranch_scc1 {name}_ep2")
            a(f"s_mov_b32 s{s_t3}, {SPIN_MAX}")
            a.label(f"{name}_epl")
            a("s_waitcnt vmcnt(0)")
            for q in range(4):
                a(f"v_xor_b32 v{v_fi + q}, s{s_non}, v{v_fi + q}")
            for q in range(1, 4):
                a(f"v_or_b32 v{v_fi}, v{v_fi}, v{v_fi + q}")
            a(f"v_cmp_ne_u32 {sr(s_tab, 2)}, 0, v{v_fi}")
            a(f"s_sub_u32 s{s_t3}, s{s_t3}, 1")
            a(f"s_cbranch_scc1 {name}_ep2")
            a(f"s_cmp_eq_u64 {sr(s_tab, 2)}, 0")
            a(f"s_cbranch_scc1 {name}_ep2")
            a("s_sleep 4")
            ep_loads()
            a(f"s_branch {name}_epl")
            a.label(f"{name}_ep2")
        put(6, 0.0, ep_issue)
        put(6, 0.95, ep_check)
    side = {k: [op for bk in v for op in (bk if bk else [nop])] for k, v in side.items()}
    if SENT == -1:
        flag_init()
    elif SENT < 7:
        side[SENT] = side.get(SENT, []) + [flag_init]
    if K1PRIO:
        a(f"s_cmp_lt_u32 s{s_w}, 4")
        a(f"s_cbranch_scc{K1PRIO - 1} {name}_noprio")
        a("s_setprio 1")
        a.label(f"{name}_noprio")
    if DSKIP:
        a(f"s_cmp_lt_u32 s{s_cg}, 14")
        a("s_cselect_b64 vcc, -1, 0")
    pf.stamp()
    a.wait(vm=["x0", "w0"])
    if PROF == 3:
        pf.stamp()
    a("s_barrier")
    pf.stamp()
    for f in read_ops(0, 0):
        f()
    LAST = NSTAGE - 1
    for stage in range(NSTAGE):
        dops = (dma_w(stage + 2) if stage + 2 < NSTAGE else []) + (dma_x(stage + 3) if stage + 3 < NSTAGE else [])
        extra = side.get(stage, [])
        for j in range(4):
            a.comment(f"stage {stage} step {j}")
            a.wait(lg="all")
            m = mfma_ops(stage, j)
            if stage < LAST:
                m = ([sel_op(j, 0, stage == 0 and j == 0, skip=DSKIP)] if (not SCS or stage == 0) else []) + m
                nb = len(m) - NAFTER
                so = publish if (stage == 6 and j == 2 and not SCS) else []
                ex = extra[len(extra) * j // 4:len(extra) * (j + 1) // 4]
                if j < 3:
                    fill = read_ops(stage, j + 1) + merge(merge(so, ex), dops[2 * j:2 * j + 2])
                    interleave(a, m, fill)
                else:
                    interleave(a, m[:nb], merge(so, ex))
                    if stage == 6:
                        if not SCS:
                            a("s_nop 5")
                            publish_cs()
                        if fused:
                            a(f"v_lshlrev_b32 v{t0}, 2, v{v_lane}")
                            a(f"v_add_u32 v{t0}, {F_LF}, v{t0}")
                            a(f"v_mov_b32 v{t1}, 0")
                            a.lds(f"ds_write_b32 v{t0}, v{t1}", "w")
                        a.wait(lg="all")
                    tags = [f"w{stage + 1}", f"x{stage + 1}"] + (["st"] if fused and stage == F0S else [])
                    a.wait(vm=tags)
                    a("s_barrier")
                    if PROF == 1 and stage % 2 == 0:
                        pf.stamp()
                    for f in read_ops(stage + 1, 0):
                        f()
                    m[nb]()
                    if fused and stage == F0S:
                        a(f"s_cmp_lg_u32 s{s_w}, 0")
                        a(f"s_cbranch_scc1 {name}_nof0")
                        a(f"s_lshl_b32 s{s_t0}, s{s_rb}, 4")
                        a(f"s_add_u32 s{s_t0}, s{s_t0}, s{s_cg}")
                        a(f"s_lshl_b32 s{s_t0}, s{s_t0}, 7")
                        a(f"s_add_u32 s{s_t0}, s{s_t0}, {WS_FL + 4}")
                        a(f"v_mov_b32 v{t0}, s{s_non}")
                        a(f"v_mov_b32 v{t1}, 0")
                        a("s_mov_b64 exec, 1")
                        a(f"buffer_store_dword v{t0}, v{t1}, {sr(SRD_WS, 4)}, s{s_t0} offen sc1")
                        a("s_mov_b64 exec, -1")
                        a.label(f"{name}_nof0")
                    if stage == 6 and not SCS:
                        for f in gather:
                            f()
                    for f in m[nb + 1:]:
                        f()
            else:
                if not SCS:
                    m = [sel_op(j, 0, False), sel_op(j, 1, j == 0)] + m
                if j < 3:
                    n = len(fin)
                    interleave(a, m, read_ops(stage, j + 1) + ([st_poll_check] + ([wd_job(0, 1)] if WDST == 7 else []) if j == 0 else []) + fin[n * j // 3:n * (j + 1) // 3])
                else:
                    if SCS:
                        interleave(a, m, merge(fold_a(0), fold_a(1)))
                    else:
                        for f in m[:4]:
                            f()
                        a("s_nop 3")
                        interleave(a, m[4:], merge(fold_a(0), fold_a(1)))
    a("s_nop 1")
    for mt, nt in ORDER:
        acc = vr(v_acc[mt][nt], 16)
        a(f"v_mfma_f32_32x32x16_bf16 {acc}, {vr(v_FA[mt], 4)}, {vr(v_FB[nt], 4)}, {acc}")
    if G0S == 6:
        side_store()
    pf.stamp()
    rr = [rA, rB]
    a(f"s_cmp_ge_u32 s{s_cg}, 14")
    a(f"s_cbranch_scc1 {name}_epi_dft")
    r2 = [e + 4, e + 6]
    for nt in range(2):
        a(f"v_mul_f32 v{r2[nt]}, v{rr[nt]}, v{rr[nt]}")
    a(f"v_lshlrev_b32 v{t0}, 4, v{v_lane}")
    a(f"s_lshl_b32 s{s_t0}, s{s_rb}, 2")
    a(f"s_lshl_b32 s{s_t2}, s{s_ni}, 1")
    a(f"s_add_u32 s{s_t0}, s{s_t0}, s{s_t2}")
    a(f"s_mul_i32 s{s_t0}, s{s_t0}, 112")
    a(f"s_lshl_b32 s{s_t2}, s{s_cg}, 3")
    a(f"s_add_u32 s{s_t0}, s{s_t0}, s{s_t2}")
    for mt, nt in ORDER:
        acc = v_acc[mt][nt]
        for i in range(8):
            a(f"v_max_f32 v{acc + i}, 0, v{acc + i}")
            a(f"v_mul_f32 v{acc + 8 + i}, v{r2[nt]}, v{acc + 8 + i}")
        for i in range(8):
            a(f"v_mul_f32 v{acc + i}, v{acc + i}, v{acc + 8 + i}")
        for i in range(4):
            a(f"v_cvt_pk_bf16_f32 v{acc + 8 + i}, v{acc + 2 * i}, v{acc + 2 * i + 1}")
        a(f"s_xor_b32 s{s_t2}, s{s_tile}, {mt}")
        a(f"s_add_u32 s{s_t2}, s{s_t2}, s{s_t0}")
        if nt:
            a(f"s_add_u32 s{s_t2}, s{s_t2}, 112")
        a(f"s_lshl_b32 s{s_t2}, s{s_t2}, 10")
        a(f"buffer_store_dwordx4 {vr(acc + 8, 4)}, v{t0}, {sr(SRD_WS, 4)}, s{s_t2} offen{WTH}")
    if PROF and not fused:
        pf.stamp()
        a("s_waitcnt vmcnt(0)")
        pf.stamp()
        pf.stamp(real=True)
        pf.dump(SRD_WS, 2, s_w, v_t[0], s_t0, 8)
    a(f"s_branch {name}_join" if fused else "s_endpgm")
    a.label(f"{name}_epi_dft")
    for nt in range(2):
        a(f"v_mul_f32 v{rr[nt]}, 0x36000000, v{rr[nt]}")
    a(f"v_lshlrev_b32 v{t0}, 14, v{v_h}")
    a(f"v_lshl_add_u32 v{t0}, v{v_n}, 2, v{t0}")
    a(f"s_sub_u32 s{s_t0}, s{s_cg}, 14")
    a(f"s_lshl_b32 s{s_t0}, s{s_t0}, 20")
    a(f"s_add_u32 s{s_t0}, s{s_t0}, {WS_U}")
    a(f"s_lshl_b32 s{s_t2}, s{s_rb}, 9")
    a(f"s_add_u32 s{s_t0}, s{s_t0}, s{s_t2}")
    a(f"s_lshl_b32 s{s_t2}, s{s_ni}, 8")
    a(f"s_add_u32 s{s_t0}, s{s_t0}, s{s_t2}")
    for mt, nt in ORDER:
        a(f"s_xor_b32 s{s_t2}, s{s_tile}, {mt}")
        a(f"s_lshl_b32 s{s_t2}, s{s_t2}, 16")
        a(f"s_add_u32 s{s_t2}, s{s_t2}, s{s_t0}")
        acc = v_acc[mt][nt]
        for i in range(16):
            a(f"v_mul_f32 v{acc + i}, v{rr[nt]}, v{acc + i}")
        for i in range(8):
            a(f"v_cvt_pk_bf16_f32 v{acc + 2 * i}, v{acc + 2 * i}, v{acc + 2 * i + 1}")
        for g in range(4):
            for ip in range(2):
                koff = (g % 2) * 4 + (g // 2) * 64 + ip
                a(f"s_add_u32 s{s_t3}, s{s_t2}, {koff * 8192}")
                a(f"buffer_store_dword v{acc + 4 * g + 2 * ip}, v{t0}, {sr(SRD_WS, 4)}, s{s_t3} offen offset:{nt * 128}{WTH}")
    if fused:
        a.label(f"{name}_join")
        a("s_barrier")
        return locals()
    if PROF:
        pf.n -= 3
        pf.stamp()
        a("s_waitcnt vmcnt(0)")
        pf.stamp()
        pf.stamp(real=True)
        pf.dump(SRD_WS, 2, s_w, v_t[0], s_t0, 8)
    a.label(f"{name}_done")
    a("s_endpgm")
    return kernel_header(name) + a.text(), kernel_desc(name, V.hi, 102)


def gen_ftab():
    j = np.arange(512)
    c, s = exact_cos_sin(j, 512)
    cb, nb = bf16_bits(c), bf16_bits(-s + 0.0)
    t = ""
    for i in range(512):
        t += f".set tw_{i}, 0x{int(cb[i] | (nb[i] << 16)):08x}\n"
    t += """.macro twe idx
.long tw_\\idx
.endm
.altmacro
.p2align 8
ftab:
.set dd, 0
.rept 512
.long 0x3f003f00 | ((dd & 1) << 31)
.set kk, 1
.rept 255
twe %((dd*kk) & 511)
.set kk, kk+1
.endr
""" + (f".fill {(FRS - 1024) // 4}, 4, 0\n" if FRS > 1024 else "") + """.set dd, dd+1
.endr
.noaltmacro
"""
    return t
```

```python
from gen_common import *
from gen_k2 import fhex, gen_ctab

R = int(os.environ.get("K3_R", "7"))
NKB, NKZ = 28, 8
L_Z = 0
L_RING = 65536
L_F = L_RING + 4 * R * 2048
K23_LDS = L_F + 256
FZ = None


def ring_base(a, s_dst, s_wave, s_tmp):
    if FZ:
        a(f"s_lshl_b32 s{s_dst}, s{s_wave}, 14")
        a(f"s_lshr_b32 s{s_tmp}, s{s_wave}, 1")
        a(f"s_lshl_b32 s{s_tmp}, s{s_tmp}, 14")
        a(f"s_add_u32 s{s_dst}, s{s_dst}, s{s_tmp}")
    else:
        a(f"s_mul_i32 s{s_dst}, s{s_wave}, {R * 2048}")
    a(f"s_add_u32 s{s_dst}, s{s_dst}, {L_RING}")
WS_FLAG = 15 << 20
SPIN_MAX = 1 << 14
GENC = int(os.environ.get("GENC", "1"))
BROT = int(os.environ.get("BROT", "0"))
WDCOPY = int(os.environ.get("WDCOPY", "1"))
DPX = int(os.environ.get("DPX", "0"))
U_SLEEP = int(os.environ.get("U_SLEEP", "6"))
KSKEW = int(os.environ.get("KSKEW", "0"))
FFT_PRIO = int(os.environ.get("FFT_PRIO", "3"))
G_PRIO = int(os.environ.get("G_PRIO", "0"))
Z_PRIO = int(os.environ.get("Z_PRIO", "1"))
B_PRIO = int(os.environ.get("B_PRIO", "0"))


def lds_spin(a, name, v_addr, off, v_tmp, s_tmp):
    a.label(name)
    a(f"ds_read_b32 v{v_tmp}, v{v_addr} offset:{off}")
    a("s_waitcnt lgkmcnt(0)")
    a(f"v_readfirstlane_b32 s{s_tmp}, v{v_tmp}")
    a(f"s_cmp_eq_u32 s{s_tmp}, 0")
    a(f"s_cbranch_scc1 {name}")
    a.lg = []


def fft_part(a, V, S, name, s_w, SRD_WS, SRD_C, v_lane, pf):
    s_a, s_b, s_job, s_t, s_lb = [S.alloc() for _ in range(5)]
    v_n, v_h = V.alloc(), V.alloc()
    v_t = [V.alloc() for _ in range(6)]
    v_au, v_al, v_xw, v_xr, v_fw, v_fr, v_one = [V.alloc() for _ in range(7)]
    U = V.alloc(16, 4)
    Wf = V.alloc(16, 4)
    C32r, C32i = V.alloc(16, 4), V.alloc(16, 4)
    F64r, F64i = V.alloc(16, 4), V.alloc(16, 4)
    Cr, Ci = V.alloc(16, 4), V.alloc(16, 4)
    P = [V.alloc(16, 4), V.alloc(16, 4), U]
    tw1c, tw1s, tw2c, tw2s = [V.alloc(16, 4) for _ in range(4)]
    t0, t1, t2, t3 = v_t[:4]

    a(f"s_sub_u32 s{s_b}, s{s_w}, 4")
    a(f"s_lshl_b32 s{s_b}, s{s_b}, 4")
    a(f"s_add_u32 s{s_b}, s{s_b}, {L_F}")
    a(f"v_mov_b32 v{v_fw}, s{s_b}")
    if not FZ:
        a(f"v_mov_b32 v{t0}, 0")
        a(f"ds_write_b32 v{v_fw}, v{t0}")
        a(f"ds_write_b32 v{v_fw}, v{t0} offset:4")
        a(f"ds_write_b32 v{v_fw}, v{t0} offset:8")
        a(f"ds_write_b32 v{v_fw}, v{t0} offset:12")
    a(f"v_xor_b32 v{v_fr}, 16, v{v_fw}")
    a(f"v_mov_b32 v{v_one}, 1")
    a(f"s_and_b32 s{s_t}, s{s_w}, 1")
    a(f"s_bfe_u32 s{s_lb}, s{s_w}, 0x10001")
    a(f"s_lshl_b32 s{s_job}, s{s_lb}, 8")
    a(f"s_add_u32 s{s_job}, s{s_job}, s2")
    a(f"v_and_b32 v{v_n}, 31, v{v_lane}")
    a(f"v_lshrrev_b32 v{v_h}, 5, v{v_lane}")
    a(f"v_lshlrev_b32 v{v_al}, 4, v{v_lane}")
    a(f"v_lshlrev_b32 v{v_au}, 7, v{v_n}")
    a(f"v_lshl_add_u32 v{v_au}, v{v_h}, 6, v{v_au}")
    a(f"s_and_b32 s{s_a}, s{s_job}, 255")
    a(f"s_lshl_b32 s{s_a}, s{s_a}, 13")
    a(f"s_lshl_b32 s{s_b}, s{s_t}, 12")
    a(f"s_add_u32 s{s_a}, s{s_a}, s{s_b}")
    a(f"s_add_u32 s{s_a}, s{s_a}, {WS_U}")
    if not FZ:
        a("s_waitcnt lgkmcnt(0)")
        a("s_barrier")
    return dict(locals())


def fft_main(L):
    a, name, pf = L["a"], L["name"], L["pf"]
    (s_a, s_b, s_job, s_t, s_lb, s_w, SRD_WS, SRD_C, v_lane, v_n, v_h, v_t, v_au, v_al, v_xw, v_xr, v_fw, v_fr, v_one,
     U, Wf, C32r, C32i, F64r, F64i, Cr, Ci, P, tw1c, tw1s, tw2c, tw2s) = [L[k] for k in (
        "s_a s_b s_job s_t s_lb s_w SRD_WS SRD_C v_lane v_n v_h v_t v_au v_al v_xw v_xr v_fw v_fr v_one "
        "U Wf C32r C32i F64r F64i Cr Ci P tw1c tw1s tw2c tw2s").split()]
    t0, t1, t2, t3 = v_t[:4]
    def u_loads():
        a(f"s_and_b32 s{s_a}, s{s_job}, 255")
        a(f"s_lshl_b32 s{s_a}, s{s_a}, 13")
        a(f"s_lshl_b32 s{s_b}, s{s_t}, 12")
        a(f"s_add_u32 s{s_a}, s{s_a}, s{s_b}")
        a(f"s_add_u32 s{s_a}, s{s_a}, {WS_U}")
        for j in range(4):
            a.vmem(f"buffer_load_dwordx4 {vr(U + 4 * j, 4)}, v{v_au}, {sr(SRD_WS, 4)}, s{s_a} offen offset:{16 * j}{' sc1' if FZ else ''}", "u")
    if not FZ:
        u_loads()
    if not GENC:
        for j in range(4):
            a.vmem(f"buffer_load_dwordx4 {vr(C32r + 4 * j, 4)}, v{v_al}, {sr(SRD_C, 4)}, 0 offen offset:{1024 * j}", "c32")
        a(f"s_movk_i32 s{s_a}, 4096")
        for j in range(4):
            a.vmem(f"buffer_load_dwordx4 {vr(C32i + 4 * j, 4)}, v{v_al}, {sr(SRD_C, 4)}, s{s_a} offen offset:{1024 * j}", "c32")
        a(f"s_lshl_b32 s{s_a}, s{s_t}, 13")
        a(f"s_add_u32 s{s_a}, s{s_a}, 8192")
        a(f"s_add_u32 s{s_b}, s{s_a}, 4096")
        for j in range(4):
            a.vmem(f"buffer_load_dwordx4 {vr(F64r + 4 * j, 4)}, v{v_al}, {sr(SRD_C, 4)}, s{s_a} offen offset:{1024 * j}", "c64")
            a.vmem(f"buffer_load_dwordx4 {vr(F64i + 4 * j, 4)}, v{v_al}, {sr(SRD_C, 4)}, s{s_b} offen offset:{1024 * j}", "c64")

    def w_loads():
        a(f"s_lshl_b32 s{s_a}, s{s_job}, 13")
        a(f"s_lshl_b32 s{s_b}, s{s_t}, 12")
        a(f"s_add_u32 s{s_a}, s{s_a}, s{s_b}")
        a(f"s_add_u32 s{s_a}, s{s_a}, {WS_W}")
        for g in range(4):
            a.vmem(f"buffer_load_dwordx4 {vr(Wf + 4 * g, 4)}, v{v_al}, {sr(SRD_WS, 4)}, s{s_a} offen offset:{1024 * g}{' sc1' if FZ else ''}", "w")
    w_loads()
    if FZ:
        FZ["signal"](a, v_t, s_a)
    a(f"s_sub_u32 s{s_a}, s{s_w}, 4")
    a(f"s_lshl_b32 s{s_a}, s{s_a}, 14")
    a(f"v_add_u32 v{v_xr}, s{s_a}, v{v_al}")
    a(f"v_xor_b32 v{v_xw}, 16384, v{v_xr}")
    a(f"v_bfe_u32 v{t0}, v{v_n}, 2, 1")
    a(f"v_lshlrev_b32 v{t0}, 4, v{t0}")
    a(f"v_lshrrev_b32 v{t1}, 3, v{v_n}")
    a(f"v_lshl_add_u32 v{t0}, v{t1}, 2, v{t0}")
    a(f"v_and_b32 v{t1}, 3, v{v_n}")
    a(f"v_add_u32 v{t0}, v{t0}, v{t1}")
    a(f"v_cvt_f32_u32 v{t0}, v{t0}")
    a(f"v_mul_f32 v{t0}, {fhex(1 / 2048)}, v{t0}")
    if GENC:
        st, bs = Cr, Cr + 1
        a(f"v_mul_f32 v{st}, 64.0, v{t0}" .replace("64.0", fhex(64.0)))
        a(f"v_lshlrev_b32 v{bs}, 4, v{v_h}")
        a(f"v_cvt_f32_u32 v{bs}, v{bs}")
        a(f"v_mul_f32 v{bs}, v{bs}, v{st}")
        pend = []
        for r in range(16):
            an, cc, ss = Ci + 3 * (r % 4), Ci + 3 * (r % 4) + 1, Ci + 3 * (r % 4) + 2
            a(f"v_fmamk_f32 v{an}, v{st}, {fhex(r)}, v{bs}")
            for l in pend:
                a(l)
            a(f"v_cos_f32 v{cc}, v{an}")
            a(f"v_sin_f32 v{ss}, v{an}")
            pend = [f"v_cvt_pk_bf16_f32 v{C32r + r}, v{cc}, v{ss}", f"v_cvt_pk_bf16_f32 v{C32i + r}, -v{ss}, v{cc}"]
        a("s_nop 0")
        for l in pend:
            a(l)
    a(f"s_lshl_b32 s{s_a}, s{s_t}, 5")
    a(f"v_lshl_add_u32 v{t1}, v{v_h}, 2, s{s_a}")
    a(f"v_cvt_f32_u32 v{t1}, v{t1}")
    a(f"v_mul_f32 v{t1}, v{t1}, v{t0}")
    for r in range(16):
        k = 8 * (r // 4) + r % 4
        tt = v_t[2 + r % 4]
        a(f"v_fmamk_f32 v{tt}, v{t0}, {fhex(k)}, v{t1}")
        a(f"v_cos_f32 v{tw1c + r}, v{tt}")
        a(f"v_sin_f32 v{tw1s + r}, v{tt}")
    if GENC:
        st, bs = Cr, Cr + 1
        a(f"v_add_u32 v{st}, s{s_a}, v{v_n}")
        a(f"v_cvt_f32_u32 v{st}, v{st}")
        a(f"v_mul_f32 v{st}, {fhex(1 / 64)}, v{st}")
        a(f"v_lshl_add_u32 v{bs}, v{v_h}, 2, s{s_a}")
        a(f"v_cvt_f32_u32 v{bs}, v{bs}")
        a(f"v_mul_f32 v{bs}, v{bs}, v{st}")
        pend = []
        for d in range(16):
            q = Ci + 6 * (d % 2)
            for x in range(2):
                e = 2 * (d % 4) + x
                K = 16 * (d // 4) + 8 * (e // 4) + e % 4
                a(f"v_fmamk_f32 v{q + 3 * x}, v{st}, {fhex(K)}, v{bs}")
                if x == 0:
                    for l in pend:
                        a(l)
                a(f"v_cos_f32 v{q + 3 * x + 1}, v{q + 3 * x}")
                a(f"v_sin_f32 v{q + 3 * x + 2}, v{q + 3 * x}")
            pend = [f"v_cvt_pk_bf16_f32 v{F64r + d}, v{q + 1}, v{q + 4}", f"v_cvt_pk_bf16_f32 v{F64i + d}, -v{q + 2}, -v{q + 5}"]
        a("s_nop 0")
        for l in pend:
            a(l)

    def tw2_gen():
        a(f"s_lshl_b32 s{s_b}, s{s_t}, 5")
        a(f"v_add_u32 v{t0}, s{s_b}, v{v_n}")
        a(f"v_cvt_f32_u32 v{t0}, v{t0}")
        a(f"v_mul_f32 v{t0}, {fhex(1 / 2048)}, v{t0}")
        a(f"v_lshlrev_b32 v{t1}, 4, v{v_h}")
        a(f"v_cvt_f32_u32 v{t1}, v{t1}")
        a(f"v_mul_f32 v{t1}, v{t1}, v{t0}")
        return [f for r in range(16) for f in (
            f"v_fmamk_f32 v{v_t[2 + r % 4]}, v{t0}, {fhex(r)}, v{t1}",
            f"v_cos_f32 v{tw2c + r}, v{v_t[2 + r % 4]}",
            f"v_sin_f32 v{tw2s + r}, v{v_t[2 + r % 4]}")]
    if not GENC:
        for l in tw2_gen():
            a(l)
    if FZ:
        a(f"s_mov_b32 s{s_lb}, {SPIN_MAX}")
        a.label(f"{name}_ul")
        u_loads()
        a("s_waitcnt vmcnt(0)")
        a.vm = []
        a(f"v_max_u32 v{t0}, v{U}, v{U + 1}")
        for i in range(2, 16, 2):
            a(f"v_max3_u32 v{t0}, v{t0}, v{U + i}, v{U + i + 1}")
        a(f"v_cmp_eq_u32 vcc, -1, v{t0}")
        a(f"s_sub_u32 s{s_lb}, s{s_lb}, 1")
        a(f"s_cbranch_scc1 {name}_ul_ok")
        a("s_nop 2")
        a(f"s_cbranch_vccz {name}_ul_ok")
        a(f"s_sleep {U_SLEEP}")
        a(f"s_branch {name}_ul")
        a.label(f"{name}_ul_ok")
    pf.stamp()
    a.wait(vm="u")
    a(f"s_and_b32 s{s_a}, s{s_job}, 255")
    a(f"s_cmp_lg_u32 s{s_a}, 0")
    a(f"s_cbranch_scc1 {name}_nospec")
    a(f"s_lshr_b32 s{s_a}, s{s_job}, 4")
    for i in range(16):
        a(f"v_lshrrev_b32 v{U + i}, s{s_a}, v{U + i}")
        a(f"v_and_b32 v{U + i}, 0xffff, v{U + i}")
    a.label(f"{name}_nospec")
    a.wait(vm="c32")
    pf.stamp()

    def mf(acc, A, B, first):
        a(f"v_mfma_f32_32x32x16_bf16 {vr(acc, 16)}, {vr(A, 4)}, {vr(B, 4)}, {'0' if first else vr(acc, 16)}")

    for j in range(4):
        mf(Cr, U + 4 * j, C32r + 4 * j, j == 0)
        mf(Ci, U + 4 * j, C32i + 4 * j, j == 0)
    a("s_nop 11")

    def cmul(cs, sn, sign):
        ng1, ng2 = ("-", "") if sign > 0 else ("", "-")
        for r in range(16):
            tt = v_t[r % 4]
            a(f"v_mul_f32 v{tt}, v{Ci + r}, v{sn + r}")
            a(f"v_mul_f32 v{Ci + r}, v{Ci + r}, v{cs + r}")
            a(f"v_fma_f32 v{Ci + r}, {ng2}v{Cr + r}, v{sn + r}, v{Ci + r}")
            a(f"v_fma_f32 v{Cr + r}, v{Cr + r}, v{cs + r}, {ng1}v{tt}")

    def send(x, negq):
        off = x * 8192
        for p in range(8):
            a(f"v_cvt_pk_bf16_f32 v{P[0] + p}, v{Cr + 2 * p}, v{Cr + 2 * p + 1}")
            a(f"v_cvt_pk_bf16_f32 v{P[1] + p}, v{Ci + 2 * p}, v{Ci + 2 * p + 1}")
        for q in range(2):
            for hh in range(2):
                a.lds(f"ds_write_b128 v{v_xw}, {vr(P[q] + 4 * hh, 4)} offset:{off + (2 * q + hh) * 1024}", "xw")
        a.lds(f"ds_write_b32 v{v_fw}, v{v_one} offset:{4 * x}", "xw")
        for p in range(8):
            a(f"v_xor_b32 v{P[2] + p}, 0x80008000, v{P[negq] + p}")

    def recv(x, negq):
        off = x * 8192
        lds_spin(a, f"{name}_sp{x}", v_fr, 4 * x, t0, s_a)
        for q in (negq, 1 - negq):
            for hh in range(2):
                a.lds(f"ds_read_b128 {vr(P[q] + 8 + 4 * hh, 4)}, v{v_xr} offset:{off + (2 * q + hh) * 1024}", f"xr{q}")

    def recv_fin(negq):
        a.wait(lg=f"xr{negq}")
        for p in range(8):
            a(f"v_xor_b32 v{P[2] + 8 + p}, 0x80008000, v{P[negq] + 8 + p}")
        a.wait(lg="all")

    cmul(tw1c, tw1s, -1)
    pf.stamp()
    send(0, 1)
    a.wait(vm="c64")

    def step3(j):
        mf(Cr, F64r + 4 * j, P[0] + 4 * j, j == 0)
        mf(Ci, F64i + 4 * j, P[0] + 4 * j, j == 0)
        mf(Ci, F64r + 4 * j, P[1] + 4 * j, False)
        mf(Cr, F64i + 4 * j, P[2] + 4 * j, False)
    step3(0)
    recv(0, 1)
    step3(1)
    recv_fin(1)
    if GENC:
        tl = tw2_gen()
        mm = []
        for j in (2, 3):
            mm += [(Cr, F64r + 4 * j, P[0] + 4 * j), (Ci, F64i + 4 * j, P[0] + 4 * j), (Ci, F64r + 4 * j, P[1] + 4 * j), (Cr, F64i + 4 * j, P[2] + 4 * j)]
        for i, (x, y, z) in enumerate(mm):
            mf(x, y, z, False)
            for l in tl[6 * i:6 * i + 6]:
                a(l)
    else:
        step3(2)
        step3(3)
    a.wait(vm="w")
    pf.stamp()
    for r in range(16):
        a(f"v_lshlrev_b32 v{tw1c + r}, 16, v{Wf + r}")
        a(f"v_and_b32 v{tw1s + r}, 0xffff0000, v{Wf + r}")
    cmul(tw1c, tw1s, +1)
    pf.stamp()
    send(1, 0)
    a("s_nop 0")

    def step4(j):
        mf(Cr, P[0] + 4 * j, F64r + 4 * j, j == 0)
        mf(Ci, P[1] + 4 * j, F64r + 4 * j, j == 0)
        mf(Cr, P[1] + 4 * j, F64i + 4 * j, False)
        mf(Ci, P[2] + 4 * j, F64i + 4 * j, False)
    step4(0)
    recv(1, 0)
    step4(1)
    recv_fin(0)
    step4(2)
    step4(3)
    a("s_nop 11")
    pf.stamp()
    cmul(tw2c, tw2s, +1)
    for r in range(16):
        a(f"v_cvt_pk_bf16_f32 v{P[0] + r}, v{Cr + r}, -v{Ci + r}")
    a("s_nop 1")
    for j in range(4):
        mf(Cr, C32r + 4 * j, P[0] + 4 * j, j == 0)
    for j in range(4):
        mf(Ci, C32i + 4 * j, P[0] + 4 * j, j == 0)
    a(f"v_lshlrev_b32 v{t0}, 6, v{v_n}")
    a(f"v_lshl_add_u32 v{t0}, v{v_h}, 5, v{t0}")
    a(f"s_and_b32 s{s_a}, s{s_job}, 255")
    a(f"s_lshl_b32 s{s_a}, s{s_a}, 8")
    a(f"s_lshr_b32 s{s_b}, s{s_job}, 8")
    a(f"s_lshl_b32 s{s_b}, s{s_b}, 7")
    a(f"s_add_u32 s{s_a}, s{s_a}, s{s_b}")
    a(f"s_lshl_b32 s{s_b}, s{s_t}, 20")
    a(f"s_add_u32 s{s_a}, s{s_a}, s{s_b}")
    a(f"s_add_u32 s{s_a}, s{s_a}, {WS_Z}")
    a(f"s_add_u32 s{s_b}, s{s_a}, {8 * 65536}")
    a(f"v_lshrrev_b32 v{t2}, 3, v{v_lane}")
    a(f"v_and_b32 v{t3}, 7, v{v_lane}")
    a(f"v_lshlrev_b32 v{t2}, 16, v{t2}")
    a(f"v_lshl_add_u32 v{t2}, v{t3}, 4, v{t2}")
    a(f"v_sub_u32 v{t1}, v{v_xr}, v{v_al}")
    a(f"v_add_u32 v{t0}, v{t0}, v{t1}")
    for p in range(8):
        a(f"v_cvt_pk_bf16_f32 v{P[1] + p}, v{Cr + 2 * p}, v{Cr + 2 * p + 1}")
    for hh in range(2):
        a.lds(f"ds_write_b128 v{t0}, {vr(P[1] + 4 * hh, 4)} offset:{16 * hh}", "zb")
    for hh in range(2):
        a.lds(f"ds_read_b128 {vr(P[1] + 8 + 4 * hh, 4)}, v{v_xr} offset:{1024 * hh}", "zr")
    for p in range(8):
        a(f"v_cvt_pk_bf16_f32 v{P[2] + p}, -v{Ci + 2 * p}, -v{Ci + 2 * p + 1}")
    for hh in range(2):
        a.lds(f"ds_write_b128 v{t0}, {vr(P[2] + 4 * hh, 4)} offset:{2048 + 16 * hh}", "zb")
    for hh in range(2):
        a.lds(f"ds_read_b128 {vr(P[2] + 8 + 4 * hh, 4)}, v{v_xr} offset:{2048 + 1024 * hh}", "zi")
    a.wait(lg="zr")
    for hh in range(2):
        a.vmem(f"buffer_store_dwordx4 {vr(P[1] + 8 + 4 * hh, 4)}, v{t2}, {sr(SRD_WS, 4)}, s{(s_a, s_b)[hh]} offen sc1", "st")
    a(f"s_and_b32 s{s_lb}, s{s_job}, 255")
    a(f"s_cmp_eq_u32 s{s_lb}, 0")
    a.wait(lg="all")
    a(f"s_cbranch_scc1 {name}_noim")
    for hh in range(2):
        a.vmem(f"buffer_store_dwordx4 {vr(P[2] + 8 + 4 * hh, 4)}, v{t2}, {sr(SRD_WS, 4)}, s{(s_a, s_b)[hh]} offen offset:128 sc1", "st")
    a.label(f"{name}_noim")
    pf.stamp()
    pf.stamp()


def tile_decode(a, s_sp, s_dp, s_t2):
    a(f"s_and_b32 s{s_sp}, s2, 7")
    a(f"s_lshl_b32 s{s_sp}, s{s_sp}, 2")
    a(f"s_bfe_u32 s{s_t2}, s2, 0x20003")
    a(f"s_add_u32 s{s_sp}, s{s_sp}, s{s_t2}")
    a(f"s_lshr_b32 s{s_dp}, s2, 5")
    if DPX:
        a(f"s_xor_b32 s{s_dp}, s{s_dp}, {DPX}")


def out_addr(a, v_xo, v_n, v_h, s_sp, s_dp, s_sw, s_dw, s_t0, s_t1):
    a(f"v_lshlrev_b32 v{v_xo}, 16, v{v_n}")
    a(f"v_lshl_add_u32 v{v_xo}, v{v_h}, 5, v{v_xo}")
    a(f"s_lshl_b32 s{s_t0}, s{s_sp}, 11")
    a(f"s_lshl_b32 s{s_t1}, s{s_sw}, 10")
    a(f"s_add_u32 s{s_t0}, s{s_t0}, s{s_t1}")
    a(f"s_lshl_b32 s{s_t1}, s{s_dp}, 7")
    a(f"s_add_u32 s{s_t0}, s{s_t0}, s{s_t1}")
    a(f"s_lshl_b32 s{s_t1}, s{s_dw}, 6")
    a(f"s_add_u32 s{s_t0}, s{s_t0}, s{s_t1}")
    a(f"v_add_u32 v{v_xo}, s{s_t0}, v{v_xo}")


def z_part(a, V, S, name, s_w, v_lane, SRD_X, SRD_WS, pf):
    s_sp, s_dp, s_sw, s_dw, s_z = [S.alloc() for _ in range(5)]
    s_t0, s_t1, s_t2, s_oz, s_mz, s_spin = [S.alloc() for _ in range(6)]
    s_msk = S.alloc(2, 2)
    v_n, v_h = V.alloc(), V.alloc()
    v_t = [V.alloc() for _ in range(8)]
    v_dl, v_dz, v_xo, v_nyq, v_fa, v_one = [V.alloc() for _ in range(6)]
    v_rz = [V.alloc(), V.alloc()]
    v_step, v_base = [V.alloc(), V.alloc()], [V.alloc(), V.alloc()]
    v_x = V.alloc(8, 4)
    v_fl = V.alloc(4, 4)
    acc = [[V.alloc(16, 4) for _ in range(2)] for _ in range(2)]
    POOL = V.alloc(64, 4)
    ZF = lambda ps, kz: POOL + 32 * (1 - ps) + 4 * kz
    G = V.alloc(64, 4)
    t0, t1, t2, t3, t4 = v_t[:5]
    a(f"s_sub_u32 s{s_z}, s{s_w}, 4")
    tile_decode(a, s_sp, s_dp, s_t2)
    a(f"s_and_b32 s{s_sw}, s{s_z}, 1")
    a(f"s_lshr_b32 s{s_dw}, s{s_z}, 1")
    a(f"v_and_b32 v{v_n}, 31, v{v_lane}")
    a(f"v_lshrrev_b32 v{v_h}, 5, v{v_lane}")
    a(f"v_lshlrev_b32 v{v_dl}, 4, v{v_lane}")
    out_addr(a, v_xo, v_n, v_h, s_sp, s_dp, s_sw, s_dw, s_t0, s_t1)
    a.vmem(f"buffer_load_dwordx4 {vr(v_x, 4)}, v{v_xo}, {sr(SRD_X, 4)}, 0 offen", "x")
    a.vmem(f"buffer_load_dwordx4 {vr(v_x + 4, 4)}, v{v_xo}, {sr(SRD_X, 4)}, 0 offen offset:16", "x")
    a(f"s_setprio {G_PRIO}")
    a(f"v_lshrrev_b32 v{t0}, 3, v{v_lane}")
    a(f"v_bfe_u32 v{t1}, v{v_lane}, 4, 1")
    a(f"v_lshlrev_b32 v{t1}, 2, v{t1}")
    a(f"v_and_b32 v{t2}, 7, v{v_lane}")
    a(f"v_xor_b32 v{t1}, v{t1}, v{t2}")
    a(f"v_lshlrev_b32 v{t1}, 4, v{t1}")
    a(f"v_lshl_add_u32 v{v_dz}, v{t0}, 7, v{t1}")
    a(f"s_lshl_b32 s{s_mz}, s{s_z}, 14")
    a(f"s_add_u32 s{s_mz}, s{s_mz}, {L_Z}")
    a(f"s_lshl_b32 s{s_oz}, s{s_z}, 14")
    a(f"s_lshl_b32 s{s_t1}, s{s_sp}, 16")
    a(f"s_add_u32 s{s_oz}, s{s_oz}, s{s_t1}")
    a(f"s_add_u32 s{s_oz}, s{s_oz}, {WS_Z}")
    a(f"v_bfe_u32 v{t0}, v{v_lane}, 2, 2")
    a(f"v_and_b32 v{t1}, 3, v{v_lane}")
    a(f"v_bfe_u32 v{t2}, v{v_lane}, 4, 1")
    a(f"v_lshl_add_u32 v{t3}, v{v_h}, 2, v{t0}")
    a(f"v_lshlrev_b32 v{t3}, 7, v{t3}")
    a(f"v_lshrrev_b32 v{t0}, 1, v{t0}")
    a(f"v_xor_b32 v{t4}, s{s_sw}, v{t0}")
    a(f"v_lshl_add_u32 v{t4}, v{t4}, 6, v{t3}")
    a(f"v_add_u32 v{t4}, s{s_mz}, v{t4}")
    a(f"v_lshl_add_u32 v{t4}, v{t2}, 5, v{t4}")
    a(f"v_lshl_add_u32 v{v_rz[0]}, v{t1}, 3, v{t4}")
    a(f"v_xor_b32 v{v_rz[1]}, 64, v{v_rz[0]}")
    a(f"v_bfe_u32 v{t0}, v{v_n}, 2, 1")
    a(f"v_lshlrev_b32 v{t0}, 4, v{t0}")
    a(f"v_lshrrev_b32 v{t1}, 3, v{v_n}")
    a(f"v_lshl_add_u32 v{t0}, v{t1}, 2, v{t0}")
    a(f"v_and_b32 v{t1}, 3, v{v_n}")
    a(f"v_add_u32 v{t0}, v{t0}, v{t1}")
    a(f"s_lshl_b32 s{s_t1}, s{s_dp}, 6")
    a(f"s_lshl_b32 s{s_t2}, s{s_dw}, 5")
    a(f"s_add_u32 s{s_t1}, s{s_t1}, s{s_t2}")
    a(f"v_add_u32 v{t0}, s{s_t1}, v{t0}")
    a(f"v_lshlrev_b32 v{v_nyq}, 31, v{t0}")
    a(f"v_or_b32 v{v_nyq}, 0x3f803f80, v{v_nyq}")
    a(f"v_xor_b32 v{t2}, 32, v{t0}")
    a(f"v_cvt_f32_u32 v{v_step[0]}, v{t0}")
    a(f"v_cvt_f32_u32 v{v_step[1]}, v{t2}")
    a(f"v_mul_f32 v{v_step[0]}, {fhex(1 / 512)}, v{v_step[0]}")
    a(f"v_mul_f32 v{v_step[1]}, {fhex(1 / 512)}, v{v_step[1]}")
    a(f"s_lshl_b32 s{s_t1}, s{s_z}, 6")
    a(f"v_lshl_add_u32 v{t1}, v{v_h}, 1, s{s_t1}")
    a(f"v_cvt_f32_u32 v{t2}, v{t1}")
    for dt in range(2):
        a(f"v_mul_f32 v{v_base[dt]}, v{t2}, v{v_step[dt]}")
        a(f"v_fract_f32 v{v_base[dt]}, v{v_base[dt]}")
    a(f"v_cmp_eq_u32 {sr(s_msk, 2)}, 0, v{t1}")
    items = [(kz, dt, dd) for kz in range(NKZ) for dt in range(2) for dd in range(4)]
    prev = None
    for idx, (kz, dt, dd) in enumerate(items):
        K = 8 * kz + 4 * (dd // 2) + dd % 2
        ta, tb, tc = v_t[(3 * idx) % 6], v_t[(3 * idx + 1) % 6], v_t[(3 * idx + 2) % 6]
        a(f"v_fmamk_f32 v{ta}, v{v_step[dt]}, {fhex(K)}, v{v_base[dt]}")
        if prev:
            a(prev)
        a(f"v_cos_f32 v{tb}, v{ta}")
        a(f"v_sin_f32 v{tc}, v{ta}")
        prev = f"v_cvt_pk_bf16_f32 v{G + idx}, v{tb}, -v{tc}"
    a(f"v_cndmask_b32 v{G}, v{G}, v{v_nyq}, {sr(s_msk, 2)}")
    a(prev)
    a(f"v_cndmask_b32 v{G + 4}, v{G + 4}, v{v_nyq}, {sr(s_msk, 2)}")
    a.wait(vm="x")
    for i in range(8):
        a(f"v_lshlrev_b32 v{acc[0][0] + 2 * i}, 16, v{v_x + i}")
        a(f"v_and_b32 v{acc[0][0] + 2 * i + 1}, 0xffff0000, v{v_x + i}")
    a(f"v_add_u32 v{t0}, s{s_mz}, v{v_dl}")
    for q in (1, 2, 3):
        a(f"s_xor_b32 s{s_t0}, s{s_z}, {q}")
        a(f"s_lshl_b32 s{s_t0}, s{s_t0}, 14")
        a(f"s_add_u32 s{s_t0}, s{s_t0}, {L_Z + (q - 1) * 4096}")
        a(f"v_add_u32 v{v_t[q]}, s{s_t0}, v{v_dl}")
    a(f"v_and_b32 v{v_fa}, 3, v{v_lane}")
    a(f"v_lshlrev_b32 v{v_fa}, 4, v{v_fa}")
    a(f"v_add_u32 v{v_fa}, {L_F + 8}, v{v_fa}")
    a(f"s_lshl_b32 s{s_t1}, s{s_z}, 4")
    a(f"s_add_u32 s{s_t1}, s{s_t1}, {L_F + 8}")
    a(f"v_mov_b32 v{v_t[4]}, s{s_t1}")
    a(f"v_mov_b32 v{v_one}, 1")
    pf.stamp()
    a(f"v_mov_b32 v{v_t[6]}, {L_F + 12}")
    a(f"s_cmp_lg_u32 s{s_z}, 0")
    a(f"s_cbranch_scc1 {name}_lw")
    a(f"ds_write_b32 v{v_t[6]}, v{v_one}")
    a.label(f"{name}_lw")
    a(f"ds_read_b32 v{v_t[5]}, v{v_t[6]}")
    a("s_waitcnt lgkmcnt(0)")
    a(f"v_readfirstlane_b32 s{s_t0}, v{v_t[5]}")
    a(f"s_cmp_lg_u32 s{s_t0}, 0")
    a(f"s_cbranch_scc1 {name}_lwok")
    a("s_sleep 2")
    a(f"s_branch {name}_lw")
    a.label(f"{name}_lwok")
    a(f"s_mov_b32 s{s_spin}, {SPIN_MAX}")
    a(f"s_mov_b32 s{s_t1}, 0xffff")
    a(f"s_setprio {Z_PRIO}")
    pf.stamp()

    def zdma(q, reg=True):
        a(f"s_add_u32 m0, s{s_mz}, {1024 * q}")
        a(f"s_add_u32 s{s_t2}, s{s_oz}, {1024 * q}")
        txt = f"buffer_load_dwordx4 v{v_dz}, {sr(SRD_WS, 4)}, s{s_t2} offen sc1 lds"
        if reg:
            a.vmem(txt, f"z{q // 2}")
        else:
            a(txt)
    for q in range(16):
        zdma(q)

    def zread(ps, kz):
        for e in range(2):
            a.lds(f"ds_read_b64_tr_b16 {vr(ZF(ps, kz) + 2 * e, 2)}, v{v_rz[ps]} offset:{kz * 2048 + e * 1024}", f"z{ps}_{kz}")

    def zm(pd, ps, kz):
        A = vr(acc[pd][ps], 16)
        C = "0" if (kz == 0 and (pd or ps)) else A
        a(f"v_mfma_f32_32x32x16_bf16 {A}, {vr(G + 8 * kz + 4 * pd, 4)}, {vr(ZF(ps, kz), 4)}, {C}")

    def qwrite(pd, ps, g):
        a.lds(f"ds_write_b128 v{t0}, {vr(acc[pd][ps] + 4 * g, 4)} offset:{(2 * pd + ps - 1) * 4096 + g * 1024}", "qw")

    def zcheck(kz):
        c0, c1 = v_t[5], v_t[6]
        a.label(f"{name}_zc{kz}")
        a(f"v_pk_max_u16 v{c0}, v{ZF(1, kz)}, v{ZF(1, kz) + 1}")
        a(f"v_pk_max_u16 v{c1}, v{ZF(1, kz) + 2}, v{ZF(1, kz) + 3}")
        for i in range(4):
            a(f"v_pk_max_u16 v{(c0, c1)[i % 2]}, v{(c0, c1)[i % 2]}, v{ZF(0, kz) + i}")
        a(f"v_pk_max_u16 v{c0}, v{c0}, v{c1}")
        a(f"v_lshrrev_b32 v{c1}, 16, v{c0}")
        a(f"v_max_u16 v{c0}, v{c0}, v{c1}")
        a(f"v_and_b32 v{c0}, 0xffff, v{c0}")
        a(f"v_cmp_eq_u32 vcc, s{s_t1}, v{c0}")
        a(f"s_cmp_eq_u32 s{s_spin}, 0")
        a(f"s_cbranch_scc1 {name}_zo{kz}")
        a("s_nop 2")
        a(f"s_cbranch_vccz {name}_zo{kz}")
        a(f"s_sub_u32 s{s_spin}, s{s_spin}, 1")
        a(f"s_sleep {POLL_SLEEP}")
        zdma(2 * kz, False)
        zdma(2 * kz + 1, False)
        a("s_waitcnt vmcnt(0)")
        for ps in (1, 0):
            for e in range(2):
                a(f"ds_read_b64_tr_b16 {vr(ZF(ps, kz) + 2 * e, 2)}, v{v_rz[ps]} offset:{kz * 2048 + e * 1024}")
        a("s_waitcnt lgkmcnt(0)")
        a(f"s_branch {name}_zc{kz}")
        a.label(f"{name}_zo{kz}")

    a.wait(vm="z0")
    zread(1, 0)
    zread(0, 0)
    for kz in range(8):
        if kz + 1 < 8:
            a.wait(vm=f"z{kz + 1}")
            zread(1, kz + 1)
            zread(0, kz + 1)
        a.wait(lg=f"z0_{kz}")
        zcheck(kz)
        zm(1, 1, kz)
        zm(0, 1, kz)
        zm(1, 0, kz)
    pf.stamp()
    zm(0, 0, 0)
    zm(0, 0, 1)
    a("s_nop 7")
    seq = [(1, 1), (0, 1), (1, 0)]
    for n, (pd, ps) in enumerate(seq):
        for g in range(4):
            qwrite(pd, ps, g)
        zm(0, 0, 2 + n)
    a.lds(f"ds_write_b32 v{v_t[4]}, v{v_one}", "qw")
    zm(0, 0, 5)
    zm(0, 0, 6)
    zm(0, 0, 7)
    a.label(f"{name}_zsp")
    a(f"ds_read_b32 v{v_t[5]}, v{v_fa}")
    a("s_waitcnt lgkmcnt(0)")
    a.lg = []
    a(f"v_cmp_eq_u32 vcc, 0, v{v_t[5]}")
    a("s_nop 3")
    a(f"s_cbranch_vccnz {name}_zsp")
    RB = [acc[0][1], acc[1][0], acc[1][1]]
    for q in (1, 2, 3):
        for g in range(4):
            a.lds(f"ds_read_b128 {vr(RB[q - 1] + 4 * g, 4)}, v{v_t[q]} offset:{g * 1024}", f"q{q}")
    a.wait(lg="q1")
    for i in range(16):
        a(f"v_add_f32 v{acc[0][0] + i}, v{acc[0][0] + i}, v{RB[0] + i}")
    a.wait(lg="q3")
    for i in range(16):
        a(f"v_add_f32 v{RB[1] + i}, v{RB[1] + i}, v{RB[2] + i}")
    for g in range(4):
        for i in range(4 * g, 4 * g + 4):
            a(f"v_add_f32 v{acc[0][0] + i}, v{acc[0][0] + i}, v{RB[1] + i}")
        a.lds(f"ds_write_b128 v{t0}, {vr(acc[0][0] + 4 * g, 4)} offset:{12288 + g * 1024}", "o")
    a.wait(lg="all")
    if PROF:
        pf.stamp()
        pf.stamp(real=True)
        pf.dump(SRD_WS, 2, s_z, v_t[0], s_t0, 4)
    a("s_endpgm")


def gemm_part(a, V, S, name, s_w, v_lane, SRD_WD, SRD_WS, SRD_OUT, build_srds, pf, NKB=28, K0=0):
    s_sp, s_dp, s_sw, s_dw = [S.alloc() for _ in range(4)]
    s_t0, s_t1, s_t2 = [S.alloc() for _ in range(3)]
    s_oh0, s_oh1, s_ow, s_ow2, s_m = [S.alloc() for _ in range(5)]
    v_n, v_h = V.alloc(), V.alloc()
    v_t = [V.alloc() for _ in range(8)]
    v_dl, v_dw = V.alloc(), V.alloc()
    v_rw = [V.alloc(), V.alloc()]
    v_xo = V.alloc()
    v_x = V.alloc(8, 4)
    acc = [[V.alloc(16, 4) for _ in range(2)] for _ in range(2)]
    HP = V.alloc(max(8 * R, 64), 4)
    HR = [HP + 8 * i for i in range(R)]
    WF = [V.alloc(8, 4), V.alloc(8, 4)]
    RB = [HP + 16 * i for i in range(4)]
    t0, t1, t2, t3, t4 = v_t[:5]

    a(f"s_setprio {B_PRIO}")
    tile_decode(a, s_sp, s_dp, s_t2)
    a(f"s_and_b32 s{s_sw}, s{s_w}, 1")
    a(f"s_lshr_b32 s{s_dw}, s{s_w}, 1")
    a(f"v_lshlrev_b32 v{v_dl}, 4, v{v_lane}")
    a(f"v_lshrrev_b32 v{t0}, 3, v{v_lane}")
    a(f"v_bfe_u32 v{t1}, v{v_lane}, 4, 1")
    a(f"v_lshlrev_b32 v{t1}, 2, v{t1}")
    a(f"v_and_b32 v{t2}, 7, v{v_lane}")
    a(f"v_xor_b32 v{t1}, v{t1}, v{t2}")
    a(f"v_lshlrev_b32 v{t1}, 4, v{t1}")
    a(f"v_lshl_add_u32 v{v_dw}, v{t0}, {7 if WDCOPY else 10}, v{t1}")
    if WDCOPY:
        SRD_WD = SRD_WS
    WROW = 128 if WDCOPY else 1024
    a(f"s_mul_i32 s{s_oh0}, s{s_sp}, 224")
    a(f"s_mul_i32 s{s_t1}, s{s_w}, {NKB}")
    if K0:
        a(f"s_add_u32 s{s_t1}, s{s_t1}, {K0 & 0xffffffff}")
    if BROT:
        s_wr = S.alloc()
        a(f"s_add_u32 s{s_wr}, s{s_sp}, s{s_dp}")
        a(f"s_and_b32 s{s_wr}, s{s_wr}, 1")
        a(f"s_lshl_b32 s{s_t2}, s{s_wr}, 4")
        a(f"s_add_u32 s{s_t1}, s{s_t1}, s{s_t2}")
        a(f"s_mul_i32 s{s_wr}, s{s_wr}, {NKB * 1024}")
    a(f"s_add_u32 s{s_oh0}, s{s_oh0}, s{s_t1}")
    a(f"s_mul_i32 s{s_t2}, s{s_sw}, 112")
    a(f"s_sub_u32 s{s_oh1}, s{s_oh0}, s{s_t2}")
    a(f"s_add_u32 s{s_oh1}, s{s_oh1}, 112")
    a(f"s_add_u32 s{s_oh0}, s{s_oh0}, s{s_t2}")
    a(f"s_lshl_b32 s{s_oh0}, s{s_oh0}, 10")
    a(f"s_lshl_b32 s{s_oh1}, s{s_oh1}, 10")
    if WDCOPY:
        a(f"s_lshl_b32 s{s_ow}, s{s_t1}, 11")
        a(f"s_mul_i32 s{s_t1}, s{s_dp}, {1792 * 128}")
        a(f"s_add_u32 s{s_ow}, s{s_ow}, {WS_WD}")
    else:
        a(f"s_lshl_b32 s{s_ow}, s{s_t1}, 14")
        a(f"s_lshl_b32 s{s_t1}, s{s_dp}, 7")
    a(f"s_add_u32 s{s_ow}, s{s_ow}, s{s_t1}")
    a(f"s_add_u32 s{s_ow2}, s{s_ow}, {8 * WROW}")
    ring_base(a, s_m, s_w, s_t2)
    if not FZ:
        a("s_waitcnt lgkmcnt(0)")
        build_srds()
        a("s_barrier")

    HSC = " sc1" if FZ else ""

    def load_ops(i):
        sl = i % R
        tag = f"d{i}"

        def f0():
            if BROT and i == NKB - 16:
                assert WDCOPY and i % 4 == 0
                for r_ in (s_oh0, s_oh1, s_ow, s_ow, s_ow2, s_ow2):
                    a(f"s_sub_u32 s{r_}, s{r_}, s{s_wr}")
            a(f"s_add_u32 m0, s{s_m}, {sl * 2048}")
            a.vmem(f"buffer_load_dwordx4 {vr(HR[sl], 4)}, v{v_dl}, {sr(SRD_WS, 4)}, s{s_oh0} offen offset:{(i % 4) * 1024}{HSC}", tag)

        def f1():
            a.vmem(f"buffer_load_dwordx4 v{v_dw}, {sr(SRD_WD, 4)}, s{s_ow} offen lds", tag)
            a(f"s_add_u32 m0, s{s_m}, {sl * 2048 + 1024}")
            a(f"s_add_u32 s{s_ow}, s{s_ow}, {16 * WROW}")

        def f2():
            a.vmem(f"buffer_load_dwordx4 v{v_dw}, {sr(SRD_WD, 4)}, s{s_ow2} offen lds", tag)
            a(f"s_add_u32 s{s_ow2}, s{s_ow2}, {16 * WROW}")

        def f3():
            a.vmem(f"buffer_load_dwordx4 {vr(HR[sl] + 4, 4)}, v{v_dl}, {sr(SRD_WS, 4)}, s{s_oh1} offen offset:{(i % 4) * 1024}{HSC}", tag)
            if i % 4 == 3:
                a(f"s_add_u32 s{s_oh0}, s{s_oh0}, 4096")
                a(f"s_add_u32 s{s_oh1}, s{s_oh1}, 4096")
        return [f0, f1, f2, f3]

    pro = [load_ops(i) for i in range(R - 1)]
    if FZ:
        for i in range(R - 1):
            a(f"s_add_u32 m0, s{s_m}, {(i % R) * 2048}")
            a("s_nop 0")
            pro[i][1]()
            pro[i][2]()
        FZ["signal"](a, v_t, s_t0)
    else:
        for i in range(2):
            for f in pro[i]:
                f()
    a(f"v_and_b32 v{v_n}, 31, v{v_lane}")
    a(f"v_lshrrev_b32 v{v_h}, 5, v{v_lane}")
    a(f"v_bfe_u32 v{t0}, v{v_lane}, 2, 2")
    a(f"v_and_b32 v{t1}, 3, v{v_lane}")
    a(f"v_bfe_u32 v{t2}, v{v_lane}, 4, 1")
    a(f"v_lshl_add_u32 v{t3}, v{v_h}, 2, v{t0}")
    a(f"v_lshlrev_b32 v{t3}, 7, v{t3}")
    a(f"v_lshrrev_b32 v{t0}, 1, v{t0}")
    a(f"v_xor_b32 v{t4}, s{s_dw}, v{t0}")
    a(f"v_lshl_add_u32 v{t4}, v{t4}, 6, v{t3}")
    a(f"v_add_u32 v{t4}, s{s_m}, v{t4}")
    a(f"v_and_b32 v{v_t[5]}, 1, v{t1}")
    a(f"v_lshl_add_u32 v{t4}, v{v_t[5]}, 5, v{t4}")
    a(f"v_lshl_add_u32 v{t4}, v{t2}, 4, v{t4}")
    a(f"v_lshrrev_b32 v{v_t[5]}, 1, v{t1}")
    a(f"v_lshl_add_u32 v{v_rw[0]}, v{v_t[5]}, 3, v{t4}")
    a(f"v_xor_b32 v{v_rw[1]}, 64, v{v_rw[0]}")
    if not FZ:
        for i in range(2, R - 1):
            for f in pro[i]:
                f()
    out_addr(a, v_xo, v_n, v_h, s_sp, s_dp, s_sw, s_dw, s_t0, s_t1)
    a(f"v_add_u32 v{t0}, s{s_m}, v{v_dl}")
    for q in (1, 2, 3):
        a(f"s_xor_b32 s{s_t1}, s{s_w}, {q}")
        ring_base(a, s_t0, s_t1, s_t2)
        a(f"s_add_u32 s{s_t0}, s{s_t0}, {(q - 1) * 4096}")
        a(f"v_add_u32 v{v_t[q]}, s{s_t0}, v{v_dl}")
    a(f"s_lshl_b32 s{s_t0}, s{s_w}, 14")
    a(f"s_add_u32 s{s_t0}, s{s_t0}, {L_Z + 12288}")
    a(f"v_add_u32 v{t4}, s{s_t0}, v{v_dl}")
    assert R * 2048 >= 12288
    if FZ:
        pf.stamp()
        a(f"s_cmp_lg_u32 s{s_w}, 0")
        a(f"s_cbranch_scc1 {name}_bnp")
        a(f"v_min_u32 v{v_t[5]}, 13, v{v_lane}")
        a(f"v_lshlrev_b32 v{v_t[5]}, 7, v{v_t[5]}")
        a(f"s_lshr_b32 s{s_t0}, s{s_sp}, 1")
        a(f"s_lshl_b32 s{s_t0}, s{s_t0}, 11")
        saved = list(a.vm)
        FZ["poll"](a, f"{name}_bp", [(v_t[5], 0)], s_t0, v_t[6], s_t1)
        a.vm = saved
        a(f"v_mov_b32 v{v_t[5]}, {L_F + 132}")
        a(f"v_mov_b32 v{v_t[6]}, 1")
        a(f"ds_write_b32 v{v_t[5]}, v{v_t[6]}")
        a.label(f"{name}_bnp")
        FZ["lwait"](a, f"{name}_bw", 132, v_t[5], v_t[6], s_t0)
        for i in range(R - 1):
            pro[i][0]()
            pro[i][3]()

    def read_ops(i):
        b = (i % R) * 2048
        F = WF[i % 2]
        return [lambda tl=tl, e=e: a.lds(f"ds_read_b64_tr_b16 {vr(F + 4 * tl + 2 * e, 2)}, v{v_rw[tl]} offset:{b + e * 1024}", f"r{i}")
                for tl in range(2) for e in range(2)]

    QORD = ((1, 1), (0, 1), (1, 0), (0, 0))

    def mfma_ops(i):
        F = WF[i % 2]
        ops = []
        for dt, st in QORD:
            A = vr(acc[dt][st], 16)
            C = "0" if i == 0 else A
            ops.append(lambda A=A, C=C, dt=dt, st=st: a(
                f"v_mfma_f32_32x32x16_bf16 {A}, {vr(F + 4 * dt, 4)}, {vr(HR[i % R] + 4 * st, 4)}, {C}"))
        return ops

    pf.stamp()
    a.wait(vm="d0")
    for f in read_ops(0):
        f()
    for i in range(NKB):
        a.comment(f"k-step {i}")
        if i % 4 == 0 and i < 28 and PROF != 4:
            pf.stamp()
        if i + 1 < NKB:
            a.wait(vm=f"d{i + 1}", lg=f"r{i}")
            for f in read_ops(i + 1):
                f()
        else:
            a.wait(lg=f"r{i}")
        nxt = i + R - 1
        lo = load_ops(nxt) if nxt < NKB else []
        m = mfma_ops(i)
        for q in range(4):
            m[q]()
            if q < len(lo):
                lo[q]()
    pf.stamp()
    a("s_nop 8")
    for pd, ps in QORD[:3]:
        for g in range(4):
            a.lds(f"ds_write_b128 v{t0}, {vr(acc[pd][ps] + 4 * g, 4)} offset:{(2 * pd + ps - 1) * 4096 + g * 1024}", "qw")
    a.wait(lg="all")
    a("s_barrier")
    pf.stamp()
    for q in (0, 3, 1, 2):
        for g in range(4):
            a.lds(f"ds_read_b128 {vr(RB[q] + 4 * g, 4)}, v{v_t[q] if q else t4} offset:{g * 1024}", f"q{q}")
    A0 = acc[0][0]
    a.wait(lg="q0")
    for i in range(16):
        a(f"v_add_f32 v{A0 + i}, v{A0 + i}, v{RB[0] + i}")
    a.wait(lg="q1")
    for i in range(16):
        a(f"v_add_f32 v{RB[3] + i}, v{RB[3] + i}, v{RB[1] + i}")
    a.wait(lg="q2")
    for i in range(16):
        a(f"v_add_f32 v{A0 + i}, v{A0 + i}, v{RB[2] + i}")
    for hh in range(2):
        for i in range(8 * hh, 8 * hh + 8):
            a(f"v_add_f32 v{A0 + i}, v{A0 + i}, v{RB[3] + i}")
        for i in range(4 * hh, 4 * hh + 4):
            a(f"v_cvt_pk_bf16_f32 v{v_x + i}, v{A0 + 2 * i}, v{A0 + 2 * i + 1}")
        a(f"buffer_store_dwordx4 {vr(v_x + 4 * hh, 4)}, v{v_xo}, {sr(SRD_OUT, 4)}, 0 offen offset:{16 * hh}")
    if PROF:
        if PROF != 4:
            pf.stamp()
            a("s_waitcnt vmcnt(0)")
        pf.stamp()
        pf.stamp(real=True)
        pf.dump(SRD_WS, 2, s_w, v_t[0], s_t0, 4)


TOUCH_H = int(os.environ.get("TOUCH_H", "0"))
POLL_SLEEP = int(os.environ.get("POLL_SLEEP", "4"))
TOUCH_W = int(os.environ.get("TOUCH_W", "0"))


def gen_k23(name):
    import copy
    a = Asm()
    SRD_X, SRD_WD, SRD_WS, SRD_OUT, SRD_C = 4, 8, 12, 16, 20
    S = Regs(24, 102)
    s_p = S.alloc(12, 4)
    s_w = S.alloc()
    v_lane = 1
    a.label("k23_begin")
    a("s_cmp_ge_u32 s2, 256")
    a(f"s_cbranch_scc1 {name}_done")
    pfg = Prof(a, S, 18, 2)
    pfg.stamp(real=True)
    pfg.stamp()
    a(f"s_load_dwordx2 {sr(s_p + 2, 2)}, s[0:1], {KA_WS}")
    a(f"s_load_dwordx2 {sr(s_p, 2)}, s[0:1], {KA_X}")
    a(f"s_load_dwordx4 {sr(s_p + 4, 4)}, s[0:1], {KA_WD}")
    a(f"v_lshrrev_b32 v{v_lane}, 6, v0")
    if not GENC:
        a(f"s_getpc_b64 {sr(s_p + 8, 2)}")
        a(f"s_add_u32 s{s_p + 8}, s{s_p + 8}, ctab@rel32@lo+4")
        a(f"s_addc_u32 s{s_p + 9}, s{s_p + 9}, ctab@rel32@hi+12")
    a("s_nop 0")
    a(f"v_readfirstlane_b32 s{s_w}, v{v_lane}")
    a(f"v_and_b32 v{v_lane}, 63, v0")
    a(f"s_cmp_lt_u32 s{s_w}, 4")
    a(f"s_cbranch_scc1 {name}_gemm")
    if FFT_PRIO:
        a(f"s_setprio {FFT_PRIO}")
    if not GENC:
        srd(a, SRD_C, s_p + 8, 24576)
    Sn = S.n
    V1 = Regs(2, 256)
    pff = copy.copy(pfg)
    pff.region = 1
    L = fft_part(a, V1, S, name, s_w, SRD_WS, SRD_C, v_lane, pff)
    srd(a, SRD_WS, s_p + 2, WS_SIZE)
    srd(a, SRD_X, s_p, 2048 * 1024)
    a(f"s_cmp_gt_u32 s{L['s_job']}, 256")
    a(f"s_cbranch_scc1 {name}_nojob")
    fft_main(L)
    a(f"s_branch {name}_zpart")
    a.label(f"{name}_nojob")
    if PROF:
        n = pff.n
        pff.n = 2
        while pff.n < n:
            pff.stamp()
    if TOUCH_H:
        sa, sb, vt = L["s_a"], L["s_b"], L["v_t"]
        a(f"s_and_b32 s{sa}, s2, 7")
        a(f"s_lshl_b32 s{sa}, s{sa}, 2")
        a(f"s_bfe_u32 s{sb}, s2, 0x20003")
        a(f"s_add_u32 s{sa}, s{sa}, s{sb}")
        a(f"s_mul_i32 s{sa}, s{sa}, {224 * 1024}")
        a(f"s_and_b32 s{sb}, s{s_w}, 1")
        a(f"s_mul_i32 s{sb}, s{sb}, {112 * 1024}")
        a(f"s_add_u32 s{sa}, s{sa}, s{sb}")
        a(f"s_lshr_b32 s{sb}, s2, 5")
        a(f"s_lshl_b32 s{sb}, s{sb}, 7")
        a(f"s_add_u32 s{sa}, s{sa}, s{sb}")
        a(f"v_lshrrev_b32 v{vt[0]}, 2, v{v_lane}")
        a(f"v_min_u32 v{vt[0]}, 13, v{vt[0]}")
        a(f"v_and_b32 v{vt[1]}, 3, v{v_lane}")
        a(f"v_mul_u32_u24 v{vt[1]}, 28, v{vt[1]}")
        a(f"v_add_u32 v{vt[0]}, v{vt[0]}, v{vt[1]}")
        a(f"v_lshlrev_b32 v{vt[0]}, 10, v{vt[0]}")
        a(f"buffer_load_dword v{vt[2]}, v{vt[0]}, {sr(SRD_WS, 4)}, s{sa} offen")
        a(f"s_add_u32 s{sa}, s{sa}, {14 * 1024}")
        a(f"buffer_load_dword v{vt[3]}, v{vt[0]}, {sr(SRD_WS, 4)}, s{sa} offen")
        a("s_waitcnt vmcnt(0)")
    if TOUCH_W:
        sa, sb, vt = L["s_a"], L["s_b"], L["v_t"]
        srd(a, SRD_WD, s_p + 4, 1792 * 1024)
        a(f"s_lshr_b32 s{sa}, s2, 5")
        a(f"s_lshl_b32 s{sa}, s{sa}, 7")
        a(f"s_bfe_u32 s{sb}, s2, 0x20003")
        a(f"s_lshl_b32 s{sb}, s{sb}, 10")
        a(f"s_add_u32 s{sa}, s{sa}, s{sb}")
        a(f"s_and_b32 s{sb}, s{s_w}, 1")
        a(f"s_add_u32 s{sb}, s{sb}, 1")
        a(f"s_lshl_b32 s{sb}, s{sb}, 16")
        a(f"s_add_u32 s{sa}, s{sa}, s{sb}")
        a(f"v_and_b32 v{vt[1]}, 3, v{v_lane}")
        a(f"v_mul_u32_u24 v{vt[1]}, 448, v{vt[1]}")
        a(f"v_and_b32 v{vt[0]}, 60, v{v_lane}")
        a(f"v_add_u32 v{vt[0]}, v{vt[0]}, v{vt[1]}")
        a(f"v_lshlrev_b32 v{vt[0]}, 10, v{vt[0]}")
        for j in range(3):
            a(f"buffer_load_dword v{vt[2 + j]}, v{vt[0]}, {sr(SRD_WD, 4)}, s{sa} offen")
            a(f"s_add_u32 s{sa}, s{sa}, {128 * 1024}")
            if TOUCH_W == 2:
                a("s_waitcnt vmcnt(0)")
        a("s_waitcnt vmcnt(0)")
    a.label(f"{name}_zpart")
    a.vm, a.lg = [], []
    S.n = Sn
    V3 = Regs(2, 256)
    z_part(a, V3, S, name, s_w, v_lane, SRD_X, SRD_WS, pff)
    a.label(f"{name}_gemm")
    a.vm, a.lg = [], []
    S.n = Sn
    V2 = Regs(2, 256)

    def build_srds():
        srd(a, SRD_WS, s_p + 2, WS_SIZE)
        srd(a, SRD_WD, s_p + 4, 1792 * 1024)
        srd(a, SRD_OUT, s_p + 6, 2048 * 1024)
    if KSKEW:
        a(f"s_cmp_ge_u32 s{s_w}, 2")
        a(f"s_cbranch_scc1 {name}_gemm2")
        n0 = pfg.n
        gemm_part(a, V2, S, name, s_w, v_lane, SRD_WD, SRD_WS, SRD_OUT, build_srds, pfg, NKB=28 - KSKEW)
        a("s_endpgm")
        a.label(f"{name}_gemm2")
        a.vm, a.lg = [], []
        S.n = Sn
        pfg.n = n0
        gemm_part(a, Regs(2, 256), S, name, s_w, v_lane, SRD_WD, SRD_WS, SRD_OUT, build_srds, pfg, NKB=28 + KSKEW, K0=-4 * KSKEW)
    else:
        gemm_part(a, V2, S, name, s_w, v_lane, SRD_WD, SRD_WS, SRD_OUT, build_srds, pfg)
    a.label(f"{name}_done")
    a("s_endpgm")
    a.label("k23_end")
    launch = f"; @launch kernel={name} grid=(256,1,1) block=(512,1,1) lds={K23_LDS}"
    return kernel_header(name) + a.text(), kernel_desc(name, max(V1.hi, V2.hi, V3.hi), 102), ('' if GENC else gen_ctab()), launch
```

```python
from gen_common import *

K1_LDS_X = 0
K1_LDS_G = 65536
K1_LDS_U = 114688
K1_LDS = 163840
K1_LDS_ST = K1_LDS_G + 2 * 16384
K1_LDS_CS = K1_LDS_ST + 8192
NSTAGE = 8
WS_ST = 15 << 20
SPIN_MAX = 1 << 14
SF = int(os.environ.get('K1_SF', '3'))
WT = os.environ.get("K1_WT", " sc1")
WTH = os.environ.get("K1_WTH", " sc1")
TOUCH_WD = int(os.environ.get("TOUCH_WD", "2"))
TOUCH = int(os.environ.get("TOUCH", "0"))
TOUCH_NEXT = int(os.environ.get("TOUCH_NEXT", "1"))
TLB_WARM = int(os.environ.get("TLB_WARM", "0"))
SENT = int(os.environ.get("SENT", "-1"))
WDST = int(os.environ.get("WDST", "3"))
WDN = int(os.environ.get("WDN", "1"))
G0S = int(os.environ.get("G0S", "4"))
GSTEP = int(os.environ.get("GSTEP", "0"))
XRS = int(os.environ.get("XRS", "-1"))
MAP = int(os.environ.get("MAP", "3"))
PBAR = int(os.environ.get("PBAR", "2"))
DSKIP = int(os.environ.get("DSKIP", "1"))
NTG = os.environ.get("NTG", "")
NTW = os.environ.get("NTW", "")
FRS = int(os.environ.get("FRS", "1152"))
WDCOPY = int(os.environ.get("WDCOPY", "1"))
F0S = int(os.environ.get("F0S", "3"))
NAFTER = int(os.environ.get("NAFTER", "2"))
K1PRIO = int(os.environ.get("K1PRIO", "0"))
KROT = int(os.environ.get("KROT", "3"))
SCS = int(os.environ.get("SCS", "0"))
TLEAD = int(os.environ.get("TLEAD", "0"))
TEARLY = int(os.environ.get("TEARLY", "0"))


WS_CS = WS_ST + 131072
WS_FL = WS_ST + 65536
F_LF = K1_LDS_ST + 12288


def gen_k1(name, fused=False):
    global G0S, TOUCH_NEXT
    if fused:
        G0S = -1
    a = Asm()
    V = Regs(1, 256)
    S = Regs(40, 102)
    SRD_X, SRD_G, SRD_U, SRD_WS, SRD_WR, SRD_WI, SRD_WD, SRD_T, SRD_D = 4, 8, 12, 16, 20, 24, 28, 32, 36
    s_rb, s_cg, s_w, s_mi, s_ni, s_rs, s_goff, s_uoff = [S.alloc() for _ in range(8)]
    s_t0, s_t1, s_t2, s_t3 = [S.alloc() for _ in range(4)]
    s_sx, s_sw, s_sw2, s_rs4, s_rs64, s_m0x, s_tile = [S.alloc() for _ in range(7)]
    s_p = S.alloc(16, 4)
    s_tab = S.alloc(2, 2)

    v_lane, v_n, v_h = V.alloc(), V.alloc(), V.alloc()
    v_t = [V.alloc() for _ in range(8)]
    v_dx = [V.alloc(), V.alloc()]
    v_dg, v_du = V.alloc(), V.alloc()
    v_xa = [V.alloc() for _ in range(4)]
    v_xs = V.alloc()
    v_wa = [V.alloc(), V.alloc()]
    v_st = [V.alloc(2, 2), V.alloc(2, 2)]
    v_f1a, v_f1s, v_f2a, v_f2s = [V.alloc() for _ in range(4)]
    v_pa = [V.alloc() for _ in range(3)]
    v_f1 = V.alloc(4, 4)
    v_f2 = V.alloc(4, 4)
    v_fi = V.alloc(8, 4)
    v_cs = [V.alloc(4, 4), V.alloc(4, 4)]
    v_sel = V.alloc(4, 4)
    v_XS = [V.alloc(4, 4) for _ in range(2)]
    v_X = [[V.alloc(4, 4) for _ in range(2)] for _ in range(2)]
    v_W = [[V.alloc(4, 4) for _ in range(2)] for _ in range(2)]
    v_acc = [[V.alloc(16, 4) for _ in range(2)] for _ in range(2)]
    v_e = V.alloc(16, 4)
    v_FA = [V.alloc(4, 4) for _ in range(2)]
    v_FB = [V.alloc(4, 4) for _ in range(2)]
    v_cso = V.alloc()
    v_sn = V.alloc(4, 4)
    t0, t1, t2, t3, t4 = v_t[:5]
    u0, u1, u2, u3 = v_t[4:8]

    pf = Prof(a, S, 12, 0)
    a("s_cmp_ge_u32 s2, 256")
    a(f"s_cbranch_scc1 {name}_done")
    pf.stamp(real=True)
    pf.stamp()
    a(f"s_load_dwordx2 {sr(s_p, 2)}, s[0:1], {KA_X}")
    a(f"s_load_dwordx4 {sr(s_p + 4, 4)}, s[0:1], {KA_WG}")
    a(f"s_load_dwordx2 {sr(s_p + 2, 2)}, s[0:1], {KA_WS}")
    a(f"s_load_dwordx4 {sr(s_p + 8, 4)}, s[0:1], {KA_WR}")
    a(f"s_load_dwordx4 {sr(s_p + 12, 4)}, s[0:1], {KA_WD}")
    a(f"s_load_dwordx2 {sr(SRD_D, 2)}, s[0:1], {KA_DBG}")
    s_out = s_p + 14
    a(f"v_lshrrev_b32 v{t0}, 6, v0")
    a(f"v_and_b32 v{v_lane}, 63, v0")
    a(f"v_readfirstlane_b32 s{s_w}, v{t0}")
    if MAP == 0:
        a(f"s_bfe_u32 s{s_rb}, s2, 0x10002")
        a(f"s_lshl_b32 s{s_rb}, s{s_rb}, 3")
        a(f"s_bfe_u32 s{s_t2}, s2, 0x30003")
        a(f"s_add_u32 s{s_rb}, s{s_rb}, s{s_t2}")
        a(f"s_and_b32 s{s_cg}, s2, 3")
        a(f"s_lshl_b32 s{s_cg}, s{s_cg}, 2")
        a(f"s_lshr_b32 s{s_t2}, s2, 6")
        a(f"s_add_u32 s{s_cg}, s{s_cg}, s{s_t2}")
    elif MAP == 3:
        a(f"s_bfe_u32 s{s_rb}, s2, 0x10002")
        a(f"s_lshl_b32 s{s_rb}, s{s_rb}, 3")
        a(f"s_bfe_u32 s{s_t2}, s2, 0x30003")
        a(f"s_add_u32 s{s_rb}, s{s_rb}, s{s_t2}")
        a(f"s_lshr_b32 s{s_cg}, s2, 6")
        a(f"s_add_u32 s{s_t2}, s{s_cg}, 1")
        a(f"s_lshr_b32 s{s_t2}, s{s_t2}, 2")
        a(f"s_and_b32 s{s_t2}, s{s_t2}, s{s_rb}")
        a(f"s_lshl_b32 s{s_t2}, s{s_t2}, 1")
        a(f"s_xor_b32 s{s_t2}, s{s_t2}, s2")
        a(f"s_and_b32 s{s_t2}, s{s_t2}, 3")
        a(f"s_lshl_b32 s{s_cg}, s{s_cg}, 2")
        a(f"s_add_u32 s{s_cg}, s{s_cg}, s{s_t2}")
    elif MAP == 1:
        a(f"s_and_b32 s{s_rb}, s2, 7")
        a(f"s_lshl_b32 s{s_rb}, s{s_rb}, 1")
        a(f"s_bfe_u32 s{s_t2}, s2, 0x10003")
        a(f"s_add_u32 s{s_rb}, s{s_rb}, s{s_t2}")
        a(f"s_lshr_b32 s{s_cg}, s2, 4")
    else:
        a(f"s_bfe_u32 s{s_rb}, s2, 0x20001")
        a(f"s_lshl_b32 s{s_rb}, s{s_rb}, 2")
        a(f"s_bfe_u32 s{s_t2}, s2, 0x20003")
        a(f"s_add_u32 s{s_rb}, s{s_rb}, s{s_t2}")
        a(f"s_and_b32 s{s_cg}, s2, 1")
        a(f"s_lshl_b32 s{s_cg}, s{s_cg}, 3")
        a(f"s_lshr_b32 s{s_t2}, s2, 5")
        a(f"s_add_u32 s{s_cg}, s{s_cg}, s{s_t2}")
    a(f"s_sub_u32 s{s_t0}, s{s_cg}, 14")
    a(f"s_lshl_b32 s{s_t0}, s{s_t0}, 9")
    a(f"s_add_u32 s{s_t1}, s{s_t0}, 256")
    a(f"s_lshl_b32 s{s_t2}, s{s_cg}, 8")
    a(f"s_movk_i32 s{s_rs}, 3584")
    a(f"s_cmp_ge_u32 s{s_cg}, 14")
    a(f"s_cselect_b32 s{s_rs}, {FRS}, s{s_rs}")
    a(f"s_cselect_b32 s{s_goff}, s{s_t0}, s{s_t2}")
    a(f"s_cselect_b32 s{s_uoff}, s{s_t1}, s{s_t2}")
    a(f"s_lshl_b32 s{s_rs4}, s{s_rs}, 2")
    a(f"s_lshl_b32 s{s_rs64}, s{s_rs}, 6")
    a(f"s_getpc_b64 {sr(s_tab, 2)}")
    a(f"s_add_u32 s{s_tab}, s{s_tab}, ftab@rel32@lo+4")
    a(f"s_addc_u32 s{s_tab + 1}, s{s_tab + 1}, ftab@rel32@hi+12")

    a(f"v_lshrrev_b32 v{t0}, 3, v{v_lane}")
    a(f"v_and_b32 v{t1}, 7, v{v_lane}")
    a(f"v_lshrrev_b32 v{t2}, 4, v{v_lane}")
    a(f"v_xor_b32 v{t1}, v{t1}, v{t2}")
    a(f"v_lshlrev_b32 v{t1}, 4, v{t1}")
    a(f"v_lshl_add_u32 v{t1}, v{t0}, 16, v{t1}")
    a(f"s_and_b32 s{s_t0}, s{s_w}, 1")
    a(f"s_lshl_b32 s{s_t0}, s{s_t0}, 20")
    a(f"s_lshr_b32 s{s_t1}, s{s_w}, 1")
    a(f"s_lshl_b32 s{s_t1}, s{s_t1}, 10")
    a(f"s_add_u32 s{s_t0}, s{s_t0}, s{s_t1}")
    a(f"s_lshl_b32 s{s_t1}, s{s_rb}, 12")
    a(f"s_add_u32 s{s_t0}, s{s_t0}, s{s_t1}")
    a(f"v_add_u32 v{v_dx[0]}, s{s_t0}, v{t1}")
    a(f"v_xor_b32 v{t1}, 0x80040, v{t1}")
    a(f"v_add_u32 v{v_dx[1]}, s{s_t0}, v{t1}")
    a(f"v_lshlrev_b32 v{t3}, 6, v{t2}")
    a(f"v_and_b32 v{t1}, 15, v{v_lane}")
    a(f"v_lshlrev_b32 v{t1}, 4, v{t1}")
    a(f"v_xor_b32 v{t1}, v{t1}, v{t3}")
    a(f"s_lshl_b32 s{s_t0}, s{s_w}, 3")
    a(f"v_add_u32 v{t0}, s{s_t0}, v{t2}")
    a(f"v_mul_lo_u32 v{t0}, v{t0}, s{s_rs}")
    a(f"v_add3_u32 v{v_dg}, v{t0}, v{t1}, s{s_goff}")
    a(f"v_xor_b32 v{t1}, 32, v{t1}")
    a(f"v_add3_u32 v{v_du}, v{t0}, v{t1}, s{s_uoff}")
    a(f"s_lshl_b32 s{s_m0x}, s{s_w}, 11")
    a(f"s_lshl_b32 s{s_t0}, s{s_cg}, 3")
    a(f"s_add_u32 s{s_t0}, s{s_t0}, s{s_w}")
    a(f"s_and_b32 s{s_t1}, s{s_t0}, 31")
    a(f"s_lshl_b32 s{s_t1}, s{s_t1}, 16")
    a(f"s_lshr_b32 s{s_t0}, s{s_t0}, 5")
    a(f"s_lshl_b32 s{s_t0}, s{s_t0}, 10")
    a(f"s_add_u32 s{s_t1}, s{s_t1}, s{s_t0}")
    a(f"s_lshl_b32 s{s_t0}, s{s_rb}, 12")
    a(f"s_add_u32 s{s_t3}, s{s_t1}, s{s_t0}")
    a(f"v_lshlrev_b32 v{t1}, 4, v{v_lane}")
    if KROT:
        if KROT == 2:
            a(f"s_lshr_b32 s{s_t0}, s2, 6")
            a(f"s_lshl_b32 s{s_t0}, s{s_t0}, 1")
            a(f"s_add_u32 s{s_t0}, s{s_t0}, s{s_rb}")
            a(f"s_and_b32 s{s_t0}, s{s_t0}, 7")
        elif KROT == 3:
            a(f"s_and_b32 s{s_t0}, s{s_rb}, 3")
            a(f"s_lshl_b32 s{s_t0}, s{s_t0}, 1")
        else:
            a(f"s_and_b32 s{s_t0}, s{s_rb}, 7")
        a(f"s_lshl_b32 s{s_sx}, s{s_t0}, 7")
        a(f"s_mul_i32 s{s_sw}, s{s_t0}, s{s_rs64}")
    else:
        a(f"s_mov_b32 s{s_sx}, 0")
        a(f"s_mov_b32 s{s_sw}, 0")
    a(f"s_mov_b32 s{SRD_X + 2}, {2048 * 1024}")
    a(f"s_mov_b32 s{SRD_X + 3}, 0x00020000")
    a(f"s_mov_b32 s{SRD_G + 3}, 0x00020000")
    a(f"s_mov_b32 s{SRD_U + 3}, 0x00020000")
    a(f"s_lshl_b32 s{SRD_G + 2}, s{s_rs}, 9")
    a(f"s_lshl_b32 s{SRD_U + 2}, s{s_rs}, 9")
    if PROF == 3:
        pf.stamp()
    a("s_waitcnt lgkmcnt(0)")
    if PROF == 3:
        pf.stamp()
    a(f"s_mov_b32 s{SRD_X}, s{s_p}")
    a(f"s_and_b32 s{SRD_X + 1}, s{s_p + 1}, 0xffff")
    a(f"s_cmp_ge_u32 s{s_cg}, 14")
    a(f"s_cselect_b32 s{SRD_G}, s{s_tab}, s{s_p + 4}")
    a(f"s_cselect_b32 s{SRD_G + 1}, s{s_tab + 1}, s{s_p + 5}")
    a(f"s_cselect_b32 s{SRD_U}, s{s_tab}, s{s_p + 6}")
    a(f"s_cselect_b32 s{SRD_U + 1}, s{s_tab + 1}, s{s_p + 7}")
    a(f"s_and_b32 s{SRD_G + 1}, s{SRD_G + 1}, 0xffff")
    a(f"s_and_b32 s{SRD_U + 1}, s{SRD_U + 1}, 0xffff")

    def mk(ldsbase, vaddr, srdn, soff, mid, tag, post=None):
        def f():
            a(f"s_add_u32 m0, s{s_m0x}, {ldsbase}")
            a(mid)
            a.vmem(f"buffer_load_dwordx4 v{vaddr}, {sr(srdn, 4)}, s{soff} offen lds", tag)
            if post:
                a(post)
        return f

    def dma_x(stage):
        b = K1_LDS_X + (stage % 4) * 16384
        return [mk(b, v_dx[0], SRD_X, s_sx, f"s_and_b32 s{s_sx}, s{s_sx}, 1023", f"x{stage}"),
                mk(b + 1024, v_dx[1], SRD_X, s_sx, "s_nop 0", f"x{stage}", post=f"s_add_u32 s{s_sx}, s{s_sx}, 128")]

    def dma_w(stage):
        b = (stage % 3) * 16384
        tag = f"w{stage}"
        return [mk(K1_LDS_G + b, v_dg, SRD_G, s_sw, f"s_add_u32 s{s_sw2}, s{s_sw}, s{s_rs4}", tag),
                mk(K1_LDS_U + b, v_du, SRD_U, s_sw, "s_nop 0", tag),
                mk(K1_LDS_G + b + 1024, v_dg, SRD_G, s_sw2, f"s_add_u32 s{s_sw}, s{s_sw}, s{s_rs64}", tag),
                mk(K1_LDS_U + b + 1024, v_du, SRD_U, s_sw2, "s_nop 0", tag,
                   post=(f"s_cmp_ge_u32 s{s_sw}, s{SRD_G + 2}\ns_cselect_b32 s{s_sw}, 0, s{s_sw}" if KROT else None))]

    for f in dma_x(0) + dma_w(0):
        f()
    if PROF == 3:
        pf.stamp()
    XR = v_XS[0]
    a(f"v_add_u32 v{v_xs}, s{s_t3}, v{t1}")

    def xr_load():
        a.vmem(f"buffer_load_dwordx4 {vr(XR, 4)}, v{v_xs}, {sr(SRD_X, 4)}, 0 offen", "xr")
    s_tpar, s_toff, s_tstep = s_tab, s_tab + 1, s_p

    def touch_setup():
        a(f"v_and_b32 v{u0}, 15, v{v_lane}")
        a(f"s_cmp_ge_u32 s{s_w}, 4")
        a(f"s_cbranch_scc1 {name}_tx")
        a(f"s_and_b32 s{s_tpar}, s{s_w}, 1")
        a(f"s_and_b32 s{s_t1}, s{s_rb}, 7")
        a(f"v_lshrrev_b32 v{u1}, 1, v{u0}")
        a(f"v_lshl_add_u32 v{u1}, v{u1}, 3, s{s_t1}")
        a(f"v_mul_lo_u32 v{u1}, v{u1}, s{s_rs}")
        a(f"v_and_b32 v{u0}, 1, v{u0}")
        a(f"v_lshl_add_u32 v{v_pa[2]}, v{u0}, 7, v{u1}")
        a(f"s_cmp_ge_u32 s{s_w}, 2")
        a(f"s_cselect_b32 s{s_toff}, s{s_uoff}, s{s_goff}")
        a(f"s_cselect_b32 s{SRD_T}, s{SRD_U}, s{SRD_G}")
        a(f"s_cselect_b32 s{SRD_T + 1}, s{SRD_U + 1}, s{SRD_G + 1}")
        a(f"s_mov_b32 s{SRD_T + 2}, s{SRD_G + 2}")
        a(f"s_mov_b32 s{s_tstep}, s{s_rs64}")
        a(f"s_branch {name}_tj")
        a.label(f"{name}_tx")
        a(f"s_bfe_u32 s{s_tpar}, s{s_w}, 0x10001")
        a(f"s_and_b32 s{s_toff}, s{s_w}, 1")
        a(f"s_lshl_b32 s{s_toff}, s{s_toff}, 20")
        a(f"s_and_b32 s{s_t1}, s{s_cg}, 3")
        a(f"s_lshl_b32 s{s_t1}, s{s_t1}, 10")
        a(f"s_add_u32 s{s_toff}, s{s_toff}, s{s_t1}")
        a(f"s_lshl_b32 s{s_t1}, s{s_rb}, 12")
        a(f"s_add_u32 s{s_toff}, s{s_toff}, s{s_t1}")
        a(f"v_lshlrev_b32 v{v_pa[2]}, 16, v{u0}")
        a(f"s_mov_b32 s{SRD_T}, s{SRD_X}")
        a(f"s_mov_b32 s{SRD_T + 1}, s{SRD_X + 1}")
        a(f"s_mov_b32 s{SRD_T + 2}, s{SRD_X + 2}")
        a(f"s_movk_i32 s{s_tstep}, 128")
        a.label(f"{name}_tj")
        a(f"s_mov_b32 s{SRD_T + 3}, 0x00020000")
        a(f"s_add_u32 s{s_t1}, s{s_tpar}, 2")
        a(f"s_mul_i32 s{s_t1}, s{s_t1}, s{s_tstep}")
        a(f"s_add_u32 s{s_toff}, s{s_toff}, s{s_t1}")
        a(f"s_lshl_b32 s{s_tstep}, s{s_tstep}, 1")

    def touch(stage):
        if stage is not None:
            a(f"s_cmp_lg_u32 s{s_tpar}, {stage & 1}")
            a(f"s_cbranch_scc1 {name}_tn{stage}")
        a(f"buffer_load_dword v{v_pa[1]}, v{v_pa[2]}, {sr(SRD_T, 4)}, s{s_toff} offen")
        a(f"s_add_u32 s{s_toff}, s{s_toff}, s{s_tstep}")
        if stage is not None:
            a.label(f"{name}_tn{stage}")
    if TLB_WARM:
        a(f"s_cmp_lg_u32 s{s_w}, 7")
        a(f"s_cbranch_scc1 {name}_notlb")
        a(f"v_min_u32 v{u0}, 7, v{v_lane}")
        a(f"v_lshlrev_b32 v{u0}, 21, v{u0}")
        a(f"v_and_b32 v{u1}, 1, v{v_lane}")
        for k, (ptr, size) in enumerate(((s_p + 2, WS_SIZE), (s_p + 8, 2048 * 514), (s_p + 10, 2048 * 514), (s_p + 12, 1792 * 1024), (s_p + 14, 2048 * 1024), (SRD_D, 256))):
            srd(a, SRD_T, ptr, size)
            if k:
                a(f"v_mul_u32_u24 v{u0}, {size - 4}, v{u1}")
            a(f"buffer_load_dword v{v_pa[k % 3]}, v{u0}, {sr(SRD_T, 4)}, 0 offen")
        a.label(f"{name}_notlb")
    if TOUCH and TEARLY:
        touch_setup()
    if PBAR >= 1:
        a("s_barrier")
        if TOUCH and TEARLY:
            touch(None)
    elif XRS < 0:
        xr_load()
    a(f"v_and_b32 v{v_n}, 31, v{v_lane}")
    a(f"v_lshrrev_b32 v{v_h}, 5, v{v_lane}")
    a(f"s_and_b32 s{s_mi}, s{s_w}, 3")
    a(f"s_lshr_b32 s{s_ni}, s{s_w}, 2")
    d1 = dma_x(1) + dma_w(1) + dma_x(2)
    a(f"v_bfe_u32 v{t0}, v{v_n}, 1, 3")
    a(f"v_xor_b32 v{t0}, v{t0}, v{v_h}")
    a(f"s_lshl_b32 s{s_t0}, s{s_ni}, 13")
    a(f"v_lshlrev_b32 v{t1}, 7, v{v_n}")
    a(f"v_add_u32 v{t1}, s{s_t0}, v{t1}")
    a(f"v_lshl_add_u32 v{v_xa[0]}, v{t0}, 4, v{t1}")
    d1[0]()
    for j in range(1, 4):
        a(f"v_xor_b32 v{v_xa[j]}, {32 * j}, v{v_xa[0]}")
    d1[1]()
    a(f"v_bfe_u32 v{t2}, v{v_lane}, 4, 1")
    a(f"v_bfe_u32 v{t3}, v{v_lane}, 2, 2")
    a(f"v_lshl_add_u32 v{t4}, v{t3}, 1, v{t2}")
    a(f"s_lshl_b32 s{s_tile}, s{s_mi}, 1")
    a(f"s_add_u32 s{s_tile}, s{s_tile}, s{s_ni}")
    a(f"v_xor_b32 v{t4}, s{s_tile}, v{t4}")
    d1[2]()
    a(f"v_lshlrev_b32 v{t4}, 5, v{t4}")
    a(f"v_lshl_add_u32 v{t4}, v{t3}, 8, v{t4}")
    a(f"v_and_b32 v{t3}, 3, v{v_lane}")
    a(f"v_lshl_add_u32 v{t4}, v{t3}, 3, v{t4}")
    a(f"v_lshl_add_u32 v{t4}, v{v_h}, 11, v{t4}")
    d1[3]()
    a(f"v_mul_u32_u24 v{t2}, {K1_LDS_U - K1_LDS_G}, v{t2}")
    a(f"v_add_u32 v{t4}, v{t4}, v{t2}")
    a(f"v_add_u32 v{v_wa[0]}, {K1_LDS_G}, v{t4}")
    a(f"v_xor_b32 v{v_wa[1]}, 32, v{v_wa[0]}")
    d1[4]()
    a(f"v_bfe_u32 v{t2}, v{v_lane}, 4, 1")
    a(f"v_cmp_eq_u32 vcc, v{t3}, v{t2}")
    a(f"v_mov_b32 v{t2}, 0x3f803f80")
    a(f"v_mov_b32 v{t3}, 0")
    d1[5]()
    for i in range(4):
        a(f"v_cndmask_b32 v{v_sel + i}, v{t3}, v{t2}, vcc")
    if PBAR >= 2:
        a("s_barrier")
    if PBAR >= 1 and XRS < 0:
        xr_load()
    d1[6]()
    d1[7]()

    if TOUCH and not TEARLY:
        touch_setup()
        touch(None)
    srd(a, SRD_WS, s_p + 2, WS_SIZE)
    srd(a, SRD_WR, s_p + 8, 2048 * 514)
    srd(a, SRD_WI, s_p + 10, 2048 * 514)
    srd(a, SRD_WD, s_p + 12, 1792 * 1024)
    srd(a, SRD_D, SRD_D, 256)
    s_non = s_p + 4
    a(f"s_or_b32 s{s_t0}, s{s_w}, s2")
    a(f"s_cmp_lg_u32 s{s_t0}, 0")
    a(f"s_cbranch_scc1 {name}_nonon")
    a(f"s_memrealtime {sr(s_non, 2)}")
    a("s_waitcnt lgkmcnt(0)")
    a(f"s_or_b32 s{s_non}, s{s_non}, 1")
    a(f"v_mov_b32 v{t0}, s{s_non}")
    a(f"v_mov_b32 v{t1}, 0")
    a("s_mov_b64 exec, 1")
    a(f"buffer_store_dword v{t0}, v{t1}, {sr(SRD_D, 4)}, 0 offen sc1")
    a("s_mov_b64 exec, -1")
    a.label(f"{name}_nonon")

    side = {}

    def lines(txt):
        return [lambda l=l: a(l) for l in txt.strip().split("\n")]
    job = lines(f"""
v_lshrrev_b32 v{u0}, 3, v{v_lane}
v_and_b32 v{u1}, 7, v{v_lane}
s_and_b32 s{s_t0}, s2, 3
s_lshl_b32 s{s_t0}, s{s_t0}, 3
s_add_u32 s{s_t0}, s{s_t0}, s{s_w}
s_lshl_b32 s{s_t0}, s{s_t0}, 3
v_add_u32 v{u1}, s{s_t0}, v{u1}
s_lshr_b32 s{s_t1}, s2, 2
s_and_b32 s{s_t1}, s{s_t1}, 3
s_lshr_b32 s{s_t2}, s2, 4
v_lshrrev_b32 v{u2}, 2, v{u0}
v_lshlrev_b32 v{u2}, 4, v{u2}
v_and_b32 v{u3}, 3, v{u0}
v_add_u32 v{u2}, v{u2}, v{u3}
s_lshl_b32 s{s_t3}, s{s_t1}, 2
v_add_u32 v{u2}, s{s_t3}, v{u2}
s_lshl_b32 s{s_t3}, s{s_t2}, 7
v_add_u32 v{u2}, s{s_t3}, v{u2}
v_mul_u32_u24 v{u2}, 514, v{u2}
v_lshl_add_u32 v{v_f1a}, v{u1}, 1, v{u2}
v_add_u32 v{v_f2a}, 512, v{u2}
s_lshl_b32 s{s_t3}, s{s_t2}, 9
s_lshl_b32 s{s_t1}, s{s_t1}, 7
s_add_u32 s{s_t3}, s{s_t3}, s{s_t1}
s_add_u32 s{s_t3}, s{s_t3}, {WS_W}
v_lshl_add_u32 v{u0}, v{u0}, 4, s{s_t3}
v_lshl_add_u32 v{v_f1s}, v{u1}, 13, v{u0}
v_add_u32 v{v_f2s}, {256 * 8192}, v{u0}
""")
    addr_job = job

    def gl(dst, va, srdn, i):
        def f():
            a(f"s_mov_b32 s{s_t0}, {i * 32 * 514}")
            a.vmem(f"buffer_load_ushort v{dst}, v{va}, {sr(srdn, 4)}, s{s_t0} offen{NTG}", "f1")
        return f
    job = []
    for i in range(4):
        job.append(gl(v_f1 + i, v_f1a, SRD_WR, i))
        job.append(gl(v_fi + i, v_f1a, SRD_WI, i))
    gath = job
    side[6] = []

    def c256_test(lbl):
        a(f"s_and_b32 s{s_t0}, s2, 3")
        a(f"s_lshl_b32 s{s_t0}, s{s_t0}, 3")
        a(f"s_add_u32 s{s_t0}, s{s_t0}, s{s_w}")
        a(f"s_cmp_lg_u32 s{s_t0}, 31")
        a(f"s_cbranch_scc1 {name}_{lbl}")

    def col256_load():
        c256_test("c256a")
        for i in range(4):
            a(f"s_mov_b32 s{s_t0}, {i * 32 * 514}")
            a(f"buffer_load_ushort v{v_f2 + i}, v{v_f2a}, {sr(SRD_WR, 4)}, s{s_t0} offen")
            a(f"buffer_load_ushort v{v_fi + 4 + i}, v{v_f2a}, {sr(SRD_WI, 4)}, s{s_t0} offen")
        a.label(f"{name}_c256a")

    def side_store():
        a.wait(vm="f1")
        for i in range(4):
            a(f"v_lshl_or_b32 v{v_f1 + i}, v{v_fi + i}, 16, v{v_f1 + i}")
        a.vmem(f"buffer_store_dwordx4 {vr(v_f1, 4)}, v{v_f1s}, {sr(SRD_WS, 4)}, 0 offen{WT}", "st")
        c256_test("c256b")
        for i in range(4):
            a(f"v_lshl_or_b32 v{v_f2 + i}, v{v_fi + 4 + i}, 16, v{v_f2 + i}")
        a(f"buffer_store_dwordx4 {vr(v_f2, 4)}, v{v_f2s}, {sr(SRD_WS, 4)}, 0 offen{WT}")
        a.label(f"{name}_c256b")

    def wd_job(part, nparts):
        def f():
            if TOUCH_WD == 1:
                per = 56 // nparts
                a(f"s_lshr_b32 s{s_t0}, s2, 3")
                a(f"s_lshl_b32 s{s_t0}, s{s_t0}, 3")
                a(f"s_add_u32 s{s_t0}, s{s_t0}, s{s_w}")
                a(f"s_mul_i32 s{s_t0}, s{s_t0}, {per * 128}")
                a(f"s_add_u32 s{s_t0}, s{s_t0}, {part * 256 * per * 128}")
                a(f"v_min_u32 v{u3}, {per - 1}, v{v_lane}")
            else:
                a(f"s_lshl_b32 s{s_t0}, s2, 3")
                a(f"s_add_u32 s{s_t0}, s{s_t0}, s{s_w}")
                a(f"s_mul_i32 s{s_t0}, s{s_t0}, {7 * 128}")
                a(f"v_min_u32 v{u3}, 6, v{v_lane}")
            a(f"v_lshlrev_b32 v{u3}, 7, v{u3}")
            a.vmem(f"buffer_load_dword v{v_pa[1]}, v{u3}, {sr(SRD_WD, 4)}, s{s_t0} offen", "pf")
        return f
    def flag_init():
        a(f"s_lshl_b32 s{s_t0}, s2, 3")
        a(f"s_add_u32 s{s_t0}, s{s_t0}, s{s_w}")
        a(f"s_lshl_b32 s{s_t0}, s{s_t0}, 10")
        a(f"s_add_u32 s{s_t0}, s{s_t0}, {WS_Z}")
        a(f"v_lshlrev_b32 v{u3}, 4, v{v_lane}")
        for i in range(4):
            a(f"v_mov_b32 v{v_sn + i}, -1")
        a.vmem(f"buffer_store_dwordx4 {vr(v_sn, 4)}, v{u3}, {sr(SRD_WS, 4)}, s{s_t0} offen sc1", "st")
        if fused:
            a(f"s_add_u32 s{s_t0}, s{s_t0}, {(WS_U - WS_Z) & 0xffffffff}")
            a.vmem(f"buffer_store_dwordx4 {vr(v_sn, 4)}, v{u3}, {sr(SRD_WS, 4)}, s{s_t0} offen sc1", "st")
    def touch_next():
        a(f"s_cmp_ge_u32 s2, 8")
        a(f"s_cbranch_scc1 {name}_notn")
        a(f"s_getpc_b64 {sr(SRD_T, 2)}")
        a(f"s_add_u32 s{SRD_T}, s{SRD_T}, k23_begin@rel32@lo+4")
        a(f"s_addc_u32 s{SRD_T + 1}, s{SRD_T + 1}, k23_begin@rel32@hi+12")
        a(f"s_mov_b32 s{SRD_T + 2}, k23_end-k23_begin")
        a(f"s_lshl_b32 s{s_t0}, s{s_w}, 13")
        a(f"s_and_b32 s{SRD_T + 1}, s{SRD_T + 1}, 0xffff")
        a(f"s_mov_b32 s{SRD_T + 3}, 0x00020000")
        a(f"v_lshlrev_b32 v{u3}, 7, v{v_lane}")
        a(f"buffer_load_dword v{v_pa[1]}, v{u3}, {sr(SRD_T, 4)}, s{s_t0} offen")
        a.label(f"{name}_notn")

    if TOUCH:
        for st in range(4):
            side[st] = [lambda st=st: touch(st + 4)] + [lambda: None] * 3 + side.get(st, [])

    def read_ops(stage, j):
        bw = (stage % 3) * 16384 + j * 4096
        bx = (stage % 4) * 16384
        ops = []
        tag = f"r{stage}_{j}"
        for mt in range(2):
            for e in range(2):
                ops.append(lambda mt=mt, e=e: a.lds(
                    f"ds_read_b64_tr_b16 {vr(v_W[j % 2][mt] + 2 * e, 2)}, v{v_wa[mt]} offset:{bw + e * 1024}", tag))
            ops.append(lambda nt=mt: a.lds(
                f"ds_read_b128 {vr(v_X[j % 2][nt], 4)}, v{v_xa[j]} offset:{bx + nt * 4096}", tag))
        return ops

    def allreduce(v, t):
        return lines(f"""
s_nop 1
v_add_f32_dpp v{v}, v{v}, v{v} quad_perm:[1,0,3,2] row_mask:0xf bank_mask:0xf
s_nop 1
v_add_f32_dpp v{v}, v{v}, v{v} quad_perm:[2,3,0,1] row_mask:0xf bank_mask:0xf
s_nop 1
v_add_f32_dpp v{v}, v{v}, v{v} row_half_mirror row_mask:0xf bank_mask:0xf
s_nop 1
v_add_f32_dpp v{v}, v{v}, v{v} row_mirror row_mask:0xf bank_mask:0xf
v_mov_b32 v{t}, v{v}
s_nop 1
v_permlane16_swap_b32 v{v}, v{t}
v_add_f32 v{v}, v{v}, v{t}
v_mov_b32 v{t}, v{v}
s_nop 1
v_permlane32_swap_b32 v{v}, v{t}
v_add_f32 v{v}, v{v}, v{t}
""")
    el = [v_e + i for i in range(8)]
    m_, mb, dl, tt = v_t[:4]
    so0, so1 = v_st[0], v_st[0] + 1
    rowst = [lambda: a.wait(vm="xr")]
    for d in range(4):
        rowst += lines(f"v_lshlrev_b32 v{el[2 * d]}, 16, v{XR + d}\nv_and_b32 v{el[2 * d + 1]}, 0xffff0000, v{XR + d}")
    rowst += lines(f"""
v_add_f32 v{m_}, v{el[0]}, v{el[1]}
v_add_f32 v{mb}, v{el[2]}, v{el[3]}
v_add_f32 v{dl}, v{el[4]}, v{el[5]}
v_add_f32 v{tt}, v{el[6]}, v{el[7]}
v_add_f32 v{m_}, v{m_}, v{mb}
v_add_f32 v{dl}, v{dl}, v{tt}
v_add_f32 v{m_}, v{m_}, v{dl}
""") + allreduce(m_, tt) + lines(f"""
v_mul_f32 v{m_}, 0x3b000000, v{m_}
v_cvt_pk_bf16_f32 v{so0}, -v{m_}, -v{m_}
""")
    rowst += lines("\n".join(f"v_sub_f32 v{e_}, v{e_}, v{m_}" for e_ in el))
    rowst += lines(f"v_mul_f32 v{mb}, v{el[0]}, v{el[0]}\nv_mul_f32 v{dl}, v{el[1]}, v{el[1]}")
    rowst += lines("\n".join(f"v_fmac_f32 v{(mb, dl)[i % 2]}, v{el[i]}, v{el[i]}" for i in range(2, 8)))
    rowst += lines(f"v_add_f32 v{mb}, v{mb}, v{dl}") + allreduce(mb, tt) + lines(f"""
v_mul_f32 v{mb}, 0x3b000000, v{mb}
v_cvt_pk_bf16_f32 v{tt}, v{mb}, v{mb}
v_and_b32 v{tt}, 0xffff0000, v{tt}
v_add_f32 v{tt}, 0x3727c5ac, v{tt}
v_cvt_pk_bf16_f32 v{tt}, v{tt}, v{tt}
v_and_b32 v{tt}, 0xffff0000, v{tt}
v_sqrt_f32 v{tt}, v{tt}
v_and_b32 v{so0}, 0xffff, v{so0}
v_cvt_pk_bf16_f32 v{tt}, v{tt}, v{tt}
v_and_b32 v{tt}, 0xffff0000, v{tt}
v_or_b32 v{so0}, v{so0}, v{tt}
""")
    fl = v_XS[1]

    def cs_base(sd, st):
        a(f"s_lshr_b32 s{sd}, s{s_rb}, 3")
        a(f"s_lshl_b32 s{sd}, s{sd}, 4")
        a(f"s_add_u32 s{sd}, s{sd}, s{s_cg}")
        a(f"s_lshl_b32 s{sd}, s{sd}, 14")
        a(f"s_add_u32 s{sd}, s{sd}, {WS_CS}")

    def nonce_load():
        a(f"v_mov_b32 v{fl + 2}, 0")
        a.vmem(f"buffer_load_dword v{fl}, v{fl + 2}, {sr(SRD_D, 4)}, 0 offen sc1", "nl")

    def rowst_store():
        a.wait(vm="nl")
        a(f"s_mov_b32 s{s_t3}, {SPIN_MAX}")
        a.label(f"{name}_nn")
        a(f"v_readfirstlane_b32 s{s_non}, v{fl}")
        a(f"s_cmp_lg_u32 s{s_non}, 0")
        a(f"s_cbranch_scc1 {name}_nnok")
        a(f"s_sub_u32 s{s_t3}, s{s_t3}, 1")
        a(f"s_cbranch_scc1 {name}_nnok")
        a("s_sleep 8")
        a(f"buffer_load_dword v{fl}, v{fl + 2}, {sr(SRD_D, 4)}, 0 offen sc1")
        a("s_waitcnt vmcnt(0)")
        a(f"s_branch {name}_nn")
        a.label(f"{name}_nnok")
        a(f"s_lshl_b32 s{s_t0}, s{s_rb}, 7")
        a(f"s_lshl_b32 s{s_t1}, s{s_cg}, 3")
        a(f"s_add_u32 s{s_t0}, s{s_t0}, s{s_t1}")
        a(f"s_add_u32 s{s_t0}, s{s_t0}, s{s_w}")
        a(f"s_lshl_b32 s{s_t0}, s{s_t0}, 3")
        a(f"s_add_u32 s{s_t0}, s{s_t0}, {WS_ST}")
        a(f"v_mov_b32 v{so1}, v{fl}")
        a("s_mov_b64 exec, 1")
        a.vmem(f"buffer_store_dwordx2 {vr(so0, 2)}, v{fl + 2}, {sr(SRD_WS, 4)}, s{s_t0} offen sc1", "ss")
        a("s_mov_b64 exec, -1")
        if SCS:
            a(f"v_bfe_u32 v{t0}, v{v_lane}, 4, 1")
            a(f"v_cmp_eq_u32 vcc, 1, v{t0}")
            cs_base(s_t0, s_t1)
            a(f"s_lshl_b32 s{s_t1}, s{s_tile}, 11")
            a(f"s_add_u32 s{s_t0}, s{s_t0}, s{s_t1}")
            a(f"s_and_b32 s{s_t1}, s{s_rb}, 7")
            a(f"s_lshl_b32 s{s_t1}, s{s_t1}, 8")
            a(f"s_add_u32 s{s_t0}, s{s_t0}, s{s_t1}")
            a(f"v_cndmask_b32 v{v_cs[1]}, v{v_cs[0]}, v{v_cs[0] + 1}, vcc")
            a(f"v_mov_b32 v{v_cs[1] + 1}, v{fl}")
            a(f"v_lshlrev_b32 v{t0}, 3, v{v_lane}")
            a("s_mov_b32 exec_hi, 0")
            a.vmem(f"buffer_store_dwordx2 {vr(v_cs[1], 2)}, v{t0}, {sr(SRD_WS, 4)}, s{s_t0} offen sc1", "ss")
            a("s_mov_b32 exec_hi, -1")

    def st_loads(reg):
        for nt in range(2):
            txt = f"buffer_load_dwordx2 {vr(v_st[nt], 2)}, v{fl + 3}, {sr(SRD_WS, 4)}, s{s_sx} offen offset:{256 * nt} sc1"
            if reg:
                a.vmem(txt, "sl")
            else:
                a(txt)
        if SCS:
            for q in range(8):
                txt = f"buffer_load_dwordx2 {vr(v_e + 2 * q, 2)}, v{v_xs}, {sr(SRD_WS, 4)}, s{s_sw} offen offset:{256 * q} sc1"
                if reg:
                    a.vmem(txt, "sl")
                else:
                    a(txt)

    def st_poll_load():
        a(f"s_lshl_b32 s{s_sx}, s{s_rb}, 10")
        a(f"s_lshl_b32 s{s_t1}, s{s_ni}, 9")
        a(f"s_add_u32 s{s_sx}, s{s_sx}, s{s_t1}")
        a(f"s_add_u32 s{s_sx}, s{s_sx}, {WS_ST}")
        a(f"v_lshlrev_b32 v{fl + 3}, 3, v{v_n}")
        if SCS:
            cs_base(s_sw, s_t1)
            a(f"v_xor_b32 v{v_xs}, s{s_tile}, v{v_h}")
            a(f"v_lshl_add_u32 v{v_xs}, v{v_xs}, 11, v{fl + 3}")
        st_loads(True)

    def st_poll_check():
        a.wait(vm="sl")
        a(f"s_mov_b32 s{s_t3}, {SPIN_MAX}")
        a.label(f"{name}_sp")
        tags_ = [v_st[0] + 1, v_st[1] + 1] + ([v_e + 2 * q + 1 for q in range(8)] if SCS else [])
        a(f"v_xor_b32 v{fl}, s{s_non}, v{tags_[0]}")
        for tg in tags_[1:]:
            a(f"v_xor_b32 v{fl + 1}, s{s_non}, v{tg}")
            a(f"v_or_b32 v{fl}, v{fl}, v{fl + 1}")
        a(f"v_cmp_ne_u32 vcc, 0, v{fl}")
        a("s_nop 3")
        a(f"s_cbranch_vccz {name}_spok")
        a(f"s_sub_u32 s{s_t3}, s{s_t3}, 1")
        a(f"s_cbranch_scc1 {name}_spok")
        a("s_sleep 8")
        st_loads(False)
        a("s_waitcnt vmcnt(0)")
        a(f"s_branch {name}_sp")
        a.label(f"{name}_spok")

    skid = [0]

    def sel_op(j, mt, first, skip=False):
        c = "0" if first else vr(v_cs[mt], 4)

        def f():
            if skip:
                skid[0] += 1
                a(f"s_cbranch_vccz {name}_sk{skid[0]}")
            a(f"v_mfma_f32_16x16x32_bf16 {vr(v_cs[mt], 4)}, {vr(v_sel, 4)}, {vr(v_W[j % 2][mt], 4)}, {c}")
            if skip:
                a.label(f"{name}_sk{skid[0]}")
        return f

    ORDER = ((0, 0), (1, 0), (0, 1), (1, 1))

    def mfma_ops(stage, j):
        ops = []
        first = stage == 0 and j == 0
        for mt, nt in ORDER:
            acc = vr(v_acc[mt][nt], 16)
            ops.append(lambda mt=mt, nt=nt, acc=acc: a(
                f"v_mfma_f32_32x32x16_bf16 {acc}, {vr(v_W[j % 2][mt], 4)}, {vr(v_X[j % 2][nt], 4)}, {'0' if first else acc}"))
        return ops

    def merge(a_list, b_list):
        out = []
        na, nb = len(a_list), len(b_list)
        ia = ib = 0
        while ia < na or ib < nb:
            if ib >= nb or (ia < na and ia * nb <= ib * na):
                out.append(a_list[ia]); ia += 1
            else:
                out.append(b_list[ib]); ib += 1
        return out

    e = v_e
    rA, rB = v_st[0] + 1, v_st[1] + 1

    publish = lines(f"""
s_lshl_b32 s{s_t2}, s{s_tile}, 9
s_add_u32 s{s_t2}, s{s_t2}, {K1_LDS_CS}
v_lshlrev_b32 v{u1}, 3, v{v_lane}
v_add_u32 v{u1}, s{s_t2}, v{u1}
""")

    def publish_cs():
        a.lds(f"ds_write_b64 v{u1}, {vr(v_cs[0], 2)}", "w")

    gather = lines(f"v_xor_b32 v{u1}, 512, v{u1}")
    gather.append(lambda: a.lds(f"ds_read_b64 {vr(v_FA[1], 2)}, v{u1}", "s"))

    fin = lines(f"""
v_cmp_eq_u32 vcc, 0, v{v_h}
v_mov_b32 v{v_FB[0] + 2}, 0
v_mov_b32 v{v_FB[0] + 3}, 0
v_mov_b32 v{v_FB[1] + 2}, 0
v_mov_b32 v{v_FB[1] + 3}, 0
v_mov_b32 v{v_FA[0] + 2}, 0
v_mov_b32 v{v_FA[0] + 3}, 0
v_mov_b32 v{v_FA[1] + 2}, 0
v_mov_b32 v{v_FA[1] + 3}, 0
v_bfe_u32 v{t0}, v{v_lane}, 4, 1
v_and_b32 v{rA}, 0xffff0000, v{v_st[0]}
v_and_b32 v{rB}, 0xffff0000, v{v_st[1]}
v_rcp_f32 v{rA}, v{rA}
v_rcp_f32 v{rB}, v{rB}
v_and_b32 v{v_st[0]}, 0xffff, v{v_st[0]}
v_and_b32 v{v_st[1]}, 0xffff, v{v_st[1]}
v_lshl_or_b32 v{v_st[0]}, v{v_st[0]}, 16, v{v_st[0]}
v_lshl_or_b32 v{v_st[1]}, v{v_st[1]}, 16, v{v_st[1]}
v_cndmask_b32 v{v_FB[0]}, 0, v{v_st[0]}, vcc
v_cndmask_b32 v{v_FB[1]}, 0, v{v_st[1]}, vcc
v_cmp_eq_u32 vcc, 1, v{t0}
v_mov_b32 v{v_FB[0] + 1}, v{v_FB[0]}
v_mov_b32 v{v_FB[1] + 1}, v{v_FB[1]}
""")
    if SCS:
        fin += lines(f"""
v_add_f32 v{e}, v{e}, v{e + 2}
v_add_f32 v{e + 4}, v{e + 4}, v{e + 6}
v_add_f32 v{e + 8}, v{e + 8}, v{e + 10}
v_add_f32 v{e + 12}, v{e + 12}, v{e + 14}
v_add_f32 v{e}, v{e}, v{e + 4}
v_add_f32 v{e + 8}, v{e + 8}, v{e + 12}
v_add_f32 v{v_cs[0]}, v{e}, v{e + 8}
v_add_f32 v{v_cs[1]}, v{e}, v{e + 8}
s_nop 1
v_permlane32_swap_b32 v{v_cs[0]}, v{v_cs[1]}
""")
    else:
        fin += lines(f"v_cndmask_b32 v{v_cso}, v{v_FA[1]}, v{v_FA[1] + 1}, vcc")

    v_ana = [v_XS[0], v_XS[0] + 1]
    if DSKIP:
        grp = lines(f"""
s_cmp_ge_u32 s{s_cg}, 14
s_cselect_b64 {sr(s_tab, 2)}, -1, 0
""")
        fin += [lambda: [f() for f in grp]]
        for mt in range(2):
            fin += lines(f"""
s_xor_b32 s{s_t0}, s{s_tile}, {mt}
s_sub_u32 s{s_t1}, s{s_cg}, 14
s_or_b32 s{s_t0}, s{s_t0}, s{s_t1}
v_or_b32 v{v_ana[mt]}, s{s_t0}, v{v_n}
v_min_u32 v{v_ana[mt]}, 1, v{v_ana[mt]}
v_sub_u32 v{v_ana[mt]}, 1, v{v_ana[mt]}
v_mul_u32_u24 v{v_ana[mt]}, 0x4380, v{v_ana[mt]}
v_lshlrev_b32 v{v_ana[mt]}, 16, v{v_ana[mt]}
""")

    def fold_a(mt):
        c, r1, hi = v_t[3 * mt], v_t[3 * mt + 1], v_t[3 * mt + 2]
        FA = v_FA[mt]
        txt = f"v_cndmask_b32 v{c}, v{v_cs[mt]}, v{v_cs[mt] + 1}, vcc\n"
        if SCS:
            txt = f"v_mov_b32 v{c}, v{v_cs[mt]}\n"
        elif mt == 1:
            txt += f"v_add_f32 v{c}, v{c}, v{v_cso}\n"
        if DSKIP:
            txt += f"v_cndmask_b32 v{c}, v{c}, v{v_ana[mt]}, {sr(s_tab, 2)}\n"
        txt += f"""v_and_b32 v{hi}, 0xffff0000, v{c}
v_sub_f32 v{r1}, v{c}, v{hi}
v_and_b32 v{c}, 0xffff0000, v{r1}
v_sub_f32 v{r1}, v{r1}, v{c}
v_lshrrev_b32 v{hi}, 16, v{hi}
v_or_b32 v{FA}, v{hi}, v{c}
v_lshrrev_b32 v{FA + 1}, 16, v{r1}"""
        return lines(txt)

    nop = lambda: None
    side.clear()

    def put(stage, frac, ops):
        b = side.setdefault(stage, [[] for _ in range(16)])
        if isinstance(ops, list) and len(ops) > 4:
            n = len(ops)
            lo = int(frac * 16)
            for i, op in enumerate(ops):
                b[lo + (16 - lo) * i // n].append(op)
        else:
            b[min(15, int(frac * 16))] += ops if isinstance(ops, list) else [ops]
    if G0S < 0:
        for op in addr_job + gath + [col256_load]:
            op()
        put(1, 0.8, side_store)
    else:
        put(2, 0.0, addr_job)
    if G0S >= 0:
        for i in range(4):
            put(G0S + i * GSTEP, 0.3 if GSTEP else 0.1 + 0.2 * i, gath[2 * i:2 * i + 2])
        put(G0S + 3 * GSTEP, 0.8, col256_load)
        put(6, 0.5, side_store) if G0S < 6 else None

    def wd_by_wave(k):
        def f():
            a(f"s_and_b32 s{s_t0}, s{s_w}, 3")
            a(f"s_cmp_lg_u32 s{s_t0}, {k}")
            a(f"s_cbranch_scc1 {name}_nwd{k}")
            saved = list(a.vm)
            wd_job(0, 1)()
            a.vm = saved
            a.label(f"{name}_nwd{k}")
        return f
    if WDCOPY:
        def wd_ld():
            a(f"s_lshl_b32 s{s_t0}, s2, 3")
            a(f"s_add_u32 s{s_t0}, s{s_t0}, s{s_w}")
            a(f"s_lshl_b32 s{s_t0}, s{s_t0}, 10")
            a(f"v_lshlrev_b32 v{u3}, 4, v{v_lane}")
            a.vmem(f"buffer_load_dwordx4 {vr(v_sn, 4)}, v{u3}, {sr(SRD_WD, 4)}, s{s_t0} offen{NTW}", "wdl")

        def wd_st():
            a.wait(vm="wdl")
            a(f"s_cmp_ge_u32 s2, 224")
            a(f"s_cbranch_scc1 {name}_nowds")
            a(f"s_lshl_b32 s{s_t0}, s2, 3")
            a(f"s_add_u32 s{s_t0}, s{s_t0}, s{s_w}")
            a(f"s_lshl_b32 s{s_t0}, s{s_t0}, 7")
            a(f"s_add_u32 s{s_t0}, s{s_t0}, {WS_WD}")
            a(f"v_lshrrev_b32 v{u3}, 3, v{v_lane}")
            a(f"v_mul_u32_u24 v{u3}, {1792 * 128}, v{u3}")
            a(f"v_and_b32 v{u2}, 7, v{v_lane}")
            a(f"v_lshl_add_u32 v{u3}, v{u2}, 4, v{u3}")
            a(f"buffer_store_dwordx4 {vr(v_sn, 4)}, v{u3}, {sr(SRD_WS, 4)}, s{s_t0} offen sc1")
            a.label(f"{name}_nowds")
        put(WDST, 0.9, wd_ld)
        put(WDST + 2, 0.5, wd_st)
    elif TOUCH_WD and WDST < 0:
        wd_job(0, 1)()
    elif TOUCH_WD and WDST < 7:
        put(WDST, 0.9, wd_job(0, 1))
    if TOUCH:
        for st in range(4):
            put(max(0, st - TLEAD), 0.05 + 0.3 * (st % 2) * (1 if TLEAD else 0), lambda st=st: touch(st + 4))
    if TOUCH_NEXT:
        put(5, 0.8, touch_next)
    RS = max(XRS, -1) + 1
    if XRS >= 0:
        put(XRS, 0.1, xr_load)
    put(RS, 0.0, rowst)
    put(RS, 0.4, nonce_load)
    put(RS + 1, 0.1, rowst_store)
    put(6, 0.3, st_poll_load)
    if fused:
        def ep_loads():
            for q in range(4):
                a(f"buffer_load_dword v{v_fi + q}, v{v_f1 + q}, {sr(SRD_WS, 4)}, s{s_sw2} offen offset:4 sc1")

        def ep_issue():
            a(f"s_cmp_lg_u32 s{s_w}, 7")
            a(f"s_cbranch_scc1 {name}_ep1")
            a(f"v_lshlrev_b32 v{v_f1}, 7, v{v_lane}")
            for q in range(1, 4):
                a(f"v_add_u32 v{v_f1 + q}, {8192 * q}, v{v_f1}")
            a(f"s_mov_b32 s{s_sw2}, {WS_FL}")
            ep_loads()
            a.label(f"{name}_ep1")

        def ep_check():
            a(f"s_cmp_lg_u32 s{s_w}, 7")
            a(f"s_cbranch_scc1 {name}_ep2")
            a(f"s_mov_b32 s{s_t3}, {SPIN_MAX}")
            a.label(f"{name}_epl")
            a("s_waitcnt vmcnt(0)")
            for q in range(4):
                a(f"v_xor_b32 v{v_fi + q}, s{s_non}, v{v_fi + q}")
            for q in range(1, 4):
                a(f"v_or_b32 v{v_fi}, v{v_fi}, v{v_fi + q}")
            a(f"v_cmp_ne_u32 {sr(s_tab, 2)}, 0, v{v_fi}")
            a(f"s_sub_u32 s{s_t3}, s{s_t3}, 1")
            a(f"s_cbranch_scc1 {name}_ep2")
            a(f"s_cmp_eq_u64 {sr(s_tab, 2)}, 0")
            a(f"s_cbranch_scc1 {name}_ep2")
            a("s_sleep 4")
            ep_loads()
            a(f"s_branch {name}_epl")
            a.label(f"{name}_ep2")
        put(6, 0.0, ep_issue)
        put(6, 0.95, ep_check)
    side = {k: [op for bk in v for op in (bk if bk else [nop])] for k, v in side.items()}
    if SENT == -1:
        flag_init()
    elif SENT < 7:
        side[SENT] = side.get(SENT, []) + [flag_init]
    if K1PRIO:
        a(f"s_cmp_lt_u32 s{s_w}, 4")
        a(f"s_cbranch_scc{K1PRIO - 1} {name}_noprio")
        a("s_setprio 1")
        a.label(f"{name}_noprio")
    if DSKIP:
        a(f"s_cmp_lt_u32 s{s_cg}, 14")
        a("s_cselect_b64 vcc, -1, 0")
    pf.stamp()
    a.wait(vm=["x0", "w0"])
    if PROF == 3:
        pf.stamp()
    a("s_barrier")
    pf.stamp()
    for f in read_ops(0, 0):
        f()
    LAST = NSTAGE - 1
    for stage in range(NSTAGE):
        dops = (dma_w(stage + 2) if stage + 2 < NSTAGE else []) + (dma_x(stage + 3) if stage + 3 < NSTAGE else [])
        extra = side.get(stage, [])
        for j in range(4):
            a.comment(f"stage {stage} step {j}")
            a.wait(lg="all")
            m = mfma_ops(stage, j)
            if stage < LAST:
                m = ([sel_op(j, 0, stage == 0 and j == 0, skip=DSKIP)] if (not SCS or stage == 0) else []) + m
                nb = len(m) - NAFTER
                so = publish if (stage == 6 and j == 2 and not SCS) else []
                ex = extra[len(extra) * j // 4:len(extra) * (j + 1) // 4]
                if j < 3:
                    fill = read_ops(stage, j + 1) + merge(merge(so, ex), dops[2 * j:2 * j + 2])
                    interleave(a, m, fill)
                else:
                    interleave(a, m[:nb], merge(so, ex))
                    if stage == 6:
                        if not SCS:
                            a("s_nop 5")
                            publish_cs()
                        if fused:
                            a(f"v_lshlrev_b32 v{t0}, 2, v{v_lane}")
                            a(f"v_add_u32 v{t0}, {F_LF}, v{t0}")
                            a(f"v_mov_b32 v{t1}, 0")
                            a.lds(f"ds_write_b32 v{t0}, v{t1}", "w")
                        a.wait(lg="all")
                    tags = [f"w{stage + 1}", f"x{stage + 1}"] + (["st"] if fused and stage == F0S else [])
                    a.wait(vm=tags)
                    a("s_barrier")
                    if PROF == 1 and stage % 2 == 0:
                        pf.stamp()
                    for f in read_ops(stage + 1, 0):
                        f()
                    m[nb]()
                    if fused and stage == F0S:
                        a(f"s_cmp_lg_u32 s{s_w}, 0")
                        a(f"s_cbranch_scc1 {name}_nof0")
                        a(f"s_lshl_b32 s{s_t0}, s{s_rb}, 4")
                        a(f"s_add_u32 s{s_t0}, s{s_t0}, s{s_cg}")
                        a(f"s_lshl_b32 s{s_t0}, s{s_t0}, 7")
                        a(f"s_add_u32 s{s_t0}, s{s_t0}, {WS_FL + 4}")
                        a(f"v_mov_b32 v{t0}, s{s_non}")
                        a(f"v_mov_b32 v{t1}, 0")
                        a("s_mov_b64 exec, 1")
                        a(f"buffer_store_dword v{t0}, v{t1}, {sr(SRD_WS, 4)}, s{s_t0} offen sc1")
                        a("s_mov_b64 exec, -1")
                        a.label(f"{name}_nof0")
                    if stage == 6 and not SCS:
                        for f in gather:
                            f()
                    for f in m[nb + 1:]:
                        f()
            else:
                if not SCS:
                    m = [sel_op(j, 0, False), sel_op(j, 1, j == 0)] + m
                if j < 3:
                    n = len(fin)
                    interleave(a, m, read_ops(stage, j + 1) + ([st_poll_check] + ([wd_job(0, 1)] if WDST == 7 else []) if j == 0 else []) + fin[n * j // 3:n * (j + 1) // 3])
                else:
                    if SCS:
                        interleave(a, m, merge(fold_a(0), fold_a(1)))
                    else:
                        for f in m[:4]:
                            f()
                        a("s_nop 3")
                        interleave(a, m[4:], merge(fold_a(0), fold_a(1)))
    a("s_nop 1")
    for mt, nt in ORDER:
        acc = vr(v_acc[mt][nt], 16)
        a(f"v_mfma_f32_32x32x16_bf16 {acc}, {vr(v_FA[mt], 4)}, {vr(v_FB[nt], 4)}, {acc}")
    if G0S == 6:
        side_store()
    pf.stamp()
    rr = [rA, rB]
    a(f"s_cmp_ge_u32 s{s_cg}, 14")
    a(f"s_cbranch_scc1 {name}_epi_dft")
    r2 = [e + 4, e + 6]
    for nt in range(2):
        a(f"v_mul_f32 v{r2[nt]}, v{rr[nt]}, v{rr[nt]}")
    a(f"v_lshlrev_b32 v{t0}, 4, v{v_lane}")
    a(f"s_lshl_b32 s{s_t0}, s{s_rb}, 2")
    a(f"s_lshl_b32 s{s_t2}, s{s_ni}, 1")
    a(f"s_add_u32 s{s_t0}, s{s_t0}, s{s_t2}")
    a(f"s_mul_i32 s{s_t0}, s{s_t0}, 112")
    a(f"s_lshl_b32 s{s_t2}, s{s_cg}, 3")
    a(f"s_add_u32 s{s_t0}, s{s_t0}, s{s_t2}")
    for mt, nt in ORDER:
        acc = v_acc[mt][nt]
        for i in range(8):
            a(f"v_max_f32 v{acc + i}, 0, v{acc + i}")
            a(f"v_mul_f32 v{acc + 8 + i}, v{r2[nt]}, v{acc + 8 + i}")
        for i in range(8):
            a(f"v_mul_f32 v{acc + i}, v{acc + i}, v{acc + 8 + i}")
        for i in range(4):
            a(f"v_cvt_pk_bf16_f32 v{acc + 8 + i}, v{acc + 2 * i}, v{acc + 2 * i + 1}")
        a(f"s_xor_b32 s{s_t2}, s{s_tile}, {mt}")
        a(f"s_add_u32 s{s_t2}, s{s_t2}, s{s_t0}")
        if nt:
            a(f"s_add_u32 s{s_t2}, s{s_t2}, 112")
        a(f"s_lshl_b32 s{s_t2}, s{s_t2}, 10")
        a(f"buffer_store_dwordx4 {vr(acc + 8, 4)}, v{t0}, {sr(SRD_WS, 4)}, s{s_t2} offen{WTH}")
    if PROF and not fused:
        pf.stamp()
        a("s_waitcnt vmcnt(0)")
        pf.stamp()
        pf.stamp(real=True)
        pf.dump(SRD_WS, 2, s_w, v_t[0], s_t0, 8)
    a(f"s_branch {name}_join" if fused else "s_endpgm")
    a.label(f"{name}_epi_dft")
    for nt in range(2):
        a(f"v_mul_f32 v{rr[nt]}, 0x36000000, v{rr[nt]}")
    a(f"v_lshlrev_b32 v{t0}, 14, v{v_h}")
    a(f"v_lshl_add_u32 v{t0}, v{v_n}, 2, v{t0}")
    a(f"s_sub_u32 s{s_t0}, s{s_cg}, 14")
    a(f"s_lshl_b32 s{s_t0}, s{s_t0}, 20")
    a(f"s_add_u32 s{s_t0}, s{s_t0}, {WS_U}")
    a(f"s_lshl_b32 s{s_t2}, s{s_rb}, 9")
    a(f"s_add_u32 s{s_t0}, s{s_t0}, s{s_t2}")
    a(f"s_lshl_b32 s{s_t2}, s{s_ni}, 8")
    a(f"s_add_u32 s{s_t0}, s{s_t0}, s{s_t2}")
    for mt, nt in ORDER:
        a(f"s_xor_b32 s{s_t2}, s{s_tile}, {mt}")
        a(f"s_lshl_b32 s{s_t2}, s{s_t2}, 16")
        a(f"s_add_u32 s{s_t2}, s{s_t2}, s{s_t0}")
        acc = v_acc[mt][nt]
        for i in range(16):
            a(f"v_mul_f32 v{acc + i}, v{rr[nt]}, v{acc + i}")
        for i in range(8):
            a(f"v_cvt_pk_bf16_f32 v{acc + 2 * i}, v{acc + 2 * i}, v{acc + 2 * i + 1}")
        for g in range(4):
            for ip in range(2):
                koff = (g % 2) * 4 + (g // 2) * 64 + ip
                a(f"s_add_u32 s{s_t3}, s{s_t2}, {koff * 8192}")
                a(f"buffer_store_dword v{acc + 4 * g + 2 * ip}, v{t0}, {sr(SRD_WS, 4)}, s{s_t3} offen offset:{nt * 128}{WTH}")
    if fused:
        a.label(f"{name}_join")
        a("s_barrier")
        return locals()
    if PROF:
        pf.n -= 3
        pf.stamp()
        a("s_waitcnt vmcnt(0)")
        pf.stamp()
        pf.stamp(real=True)
        pf.dump(SRD_WS, 2, s_w, v_t[0], s_t0, 8)
    a.label(f"{name}_done")
    a("s_endpgm")
    return kernel_header(name) + a.text(), kernel_desc(name, V.hi, 102)


def gen_ftab():
    j = np.arange(512)
    c, s = exact_cos_sin(j, 512)
    cb, nb = bf16_bits(c), bf16_bits(-s + 0.0)
    t = ""
    for i in range(512):
        t += f".set tw_{i}, 0x{int(cb[i] | (nb[i] << 16)):08x}\n"
    t += """.macro twe idx
.long tw_\\idx
.endm
.altmacro
.p2align 8
ftab:
.set dd, 0
.rept 512
.long 0x3f003f00 | ((dd & 1) << 31)
.set kk, 1
.rept 255
twe %((dd*kk) & 511)
.set kk, kk+1
.endr
""" + (f".fill {(FRS - 1024) // 4}, 4, 0\n" if FRS > 1024 else "") + """.set dd, dd+1
.endr
.noaltmacro
"""
    return t
```

```python
import sys
from gen_common import *
import gen_k1
def build(which=("k1",)):
    hdr = open("cdna_kernels/" + NAME + ".s.ref").read().split("; Override launch")[0]
    launches, code, desc, data = [], [], [], []
    if "pf" in which or "pfn" in which:
        import gen_pf
        c, d, l = gen_pf.gen_pf("pf_kernel", "pf" in which); code.append(c); desc.append(d); launches.append(l)
    if "k1" in which:
        c, d = gen_k1.gen_k1("k1_kernel"); code.append(c); desc.append(d); data.append(gen_k1.gen_ftab())
        launches.append(f"; @launch kernel=k1_kernel grid=(256,1,1) block=(512,1,1) lds={gen_k1.K1_LDS}")
    if "ka" in which:
        import gen_ka
        c, d, l = gen_ka.gen_ka("k1_kernel"); code.append(c); desc.append(d); data.append(gen_k1.gen_ftab()); launches.append(l)
    if "k2" in which:
        import gen_k2
        c, d, t, l = gen_k2.gen_k2("k2_kernel"); code.append(c); desc.append(d); data.append(t); launches.append(l)
    if "k3" in which:
        import gen_k3
        c, d, l = gen_k3.gen_k3("k3_kernel"); code.append(c); desc.append(d); launches.append(l)
    if "k23" in which:
        import gen_k23
        c, d, t, l = gen_k23.gen_k23("k23_kernel"); code.append(c); desc.append(d); data.append(t); launches.append(l)
    if "kf" in which:
        import gen_kf
        c, d, t, l = gen_kf.gen_kf(NAME + "_kernel"); code.append(c); desc.append(d); data.append(t); launches.append(l)
    doc = """
;  k1_kernel : x @ [W_gate | W_up | row-DFT table] as one bf16 MFMA GEMM (128 rows x 256 columns per workgroup,
;  k23_kernel: waves 4-7 run the 2048-point column FFT (32 x 64 via MFMA) * filter * inverse FFT and then the inverse
;              row DFT; waves 0-3 stream h @ W_down (split-K); results meet in LDS, out = x + A + B."""
    s = hdr + "\n".join(launches) + doc + '\n.amdgcn_target "amdgcn-amd-amdhsa--gfx950"\n.text\n' + "\n".join(code)
    s += '.section .rodata,"a"\n' + "\n".join(desc) + "\n".join(data)
    return s
if __name__ == "__main__":
    which = sys.argv[2].split(",") if len(sys.argv) > 2 else ("k1", "k23")
    open(sys.argv[1], "w").write(build(which))
```
